```python
import torch

def _softmax(x, axis=-1):
    return torch.softmax(x, dim=axis)
def _gelu(x):
    return torch.nn.functional.gelu(x, approximate="tanh")
def _silu(x):
    return torch.nn.functional.silu(x)
def _sigmoid(x):
    return torch.sigmoid(x)
def _layernorm(x, axis=-1, eps=1e-5):
    m = x.mean(dim=axis, keepdim=True)
    v = x.var(dim=axis, keepdim=True, unbiased=False)
    return (x - m) / torch.sqrt(v + eps)
def _scatter_add(tgt, idx, src, axis=0):
    return tgt.clone().index_add_(axis, idx, src)
def _segment_sum(src, seg, n):
    out = torch.zeros((n,) + src.shape[1:], dtype=src.dtype)
    return out.index_add_(0, seg, src)
def _pad(x, pw):
    flat = tuple(v for pair in reversed(pw) for v in pair)
    return torch.nn.functional.pad(x, flat)

kernel_name = 'sequential_preLN__sliding_block_cached__dense_activation_silu__decode'

def setup_inputs():

    _w = (lambda a: (lambda t: t.to(torch.bfloat16) if t.is_floating_point() else t)(torch.as_tensor(a)))
    def _A_setup():
        B, Sq, D = 8, 1, 640
        Hq, Hkv, Sk, Dh = 32, 32, 4096, 192
        assert Hq % Hkv == 0, (Hq, Hkv)
        return {
            "x": _w((lambda *s: torch.randn(*s, dtype=torch.bfloat16) * 0.05)(B, Sq, D)),
            "k_cache": _w((lambda *s: torch.randn(*s, dtype=torch.bfloat16) * 3.2)(B, Hkv, Sk, Dh)),
            "v_cache": _w((lambda *s: torch.randn(*s, dtype=torch.bfloat16) * 0.8)(B, Hkv, Sk, Dh)),
            "wq": _w((lambda *s: torch.randn(*s, dtype=torch.bfloat16) * 3.2)(D, Hq * Dh) * (D ** -0.5)),
            "wo": _w((lambda *s: torch.randn(*s, dtype=torch.bfloat16) * 0.8)(Hq * Dh, D) * ((Hq * Dh) ** -0.5)),
        }
    _A_in = _A_setup()

    def _B_setup():
        B, S, D, F = 8, 1, 640, 1536
        return {
            "x": _w((lambda *s: torch.randn(*s, dtype=torch.bfloat16) * 0.05)(B, S, D)),
            "w1": _w((lambda *s: torch.randn(*s, dtype=torch.bfloat16) * 3.2)(D, F) * (D ** -0.5)),
            "w2": _w((lambda *s: torch.randn(*s, dtype=torch.bfloat16) * 0.4)(F, D) * (F ** -0.5)),
        }
    _B_in = _B_setup()

    return {
        "A_x": _A_in["x"],
        "A_k_cache": _A_in["k_cache"],
        "A_v_cache": _A_in["v_cache"],
        "A_wq": _A_in["wq"],
        "A_wo": _A_in["wo"],
        "B_x": _B_in["x"],
        "B_w1": _B_in["w1"],
        "B_w2": _B_in["w2"],
    }

def reference(A_x, A_k_cache, A_v_cache, A_wq, A_wo, B_x, B_w1, B_w2):
    def _A_ref(x, k_cache, v_cache, wq, wo):
        B, Sq, D = x.shape
        Hq, Dh = 32, 192
        Hkv, Sk = k_cache.shape[1], k_cache.shape[2]
        W = min(4096, max(256, Sk // 4))
        rep = Hq // Hkv
        q = (lambda x, *d: x.permute(*d))((x @ wq).reshape(B, Sq, Hq, Dh), 0, 2, 1, 3)
        k = (lambda x, n, axis: torch.repeat_interleave(x, n, dim=axis))(k_cache[:, :, Sk - W:, :], rep, axis=1)
        v = (lambda x, n, axis: torch.repeat_interleave(x, n, dim=axis))(v_cache[:, :, Sk - W:, :], rep, axis=1)
        scores = torch.einsum("bhqd,bhkd->bhqk", q, k) * (Dh ** -0.5)
        p = _softmax(scores, axis=-1)
        o = torch.einsum("bhqk,bhkd->bhqd", p, v)
        return (lambda x, *d: x.permute(*d))(o, 0, 2, 1, 3).reshape(B, Sq, Hq * Dh) @ wo

    def _B_ref(x, w1, w2):
        h = torch.einsum("bsd,df->bsf", x, w1)
        h = _silu(h)
        out = torch.einsum("bsf,fd->bsd", h, w2)
        return out

    x = A_x
    h = x + _A_ref(_layernorm(x, axis=-1), A_k_cache, A_v_cache, A_wq, A_wo)
    h2 = h + _B_ref(_layernorm(h, axis=-1), B_w1, B_w2)
    return h2
```

```python
import re

REG = re.compile(r"^(-?)(\|?)([vas])(\d+)\|?$")
RNG = re.compile(r"^([vas])\[(\d+):(\d+)\]$")
TRANS = ("v_exp_f32", "v_log_f32", "v_rcp_f32", "v_rsq_f32", "v_sqrt_f32")

def regs_of(tok):
    tok = tok.strip()
    m = REG.match(tok)
    if m: return {(m.group(3), int(m.group(4)))}
    m = RNG.match(tok)
    if m: return {(m.group(1), i) for i in range(int(m.group(2)), int(m.group(3)) + 1)}
    if tok == "vcc": return {("s", "vcc")}
    if tok == "exec": return {("s", "exec")}
    return set()

class Asm:
    def __init__(self):
        self.lines = []
        self.hist = []
        self.nops = 0
    def raw(self, s):
        self.lines.append(s)
    def label(self, name):
        self.lines.append(f"{name}:")
    def comment(self, s):
        self.lines.append(f"    ; {s}")
    def _dist(self, pred):
        for d, h in enumerate(reversed(self.hist)):
            if h is not None and pred(h): return d
        return 99
    def __call__(self, s):
        s = s.strip()
        mn, _, rest = s.partition(" ")
        ops = [o.strip() for o in rest.split(",")] if rest else []
        if ops:
            last = ops[-1].split()
            mods = last[1:] if last else []
            ops[-1] = last[0] if last else ""
        else: mods = []
        body = rest
        dpp = "_dpp" in mn
        if dpp:
            opstr = re.split(r"\s+(?=quad_perm|row_)", rest)[0]
            ops = [o.strip() for o in opstr.split(",")]
        cls = "other"; W = set(); R = set(); extra = {}
        if mn.startswith("v_smfmac"):
            cls = "xdl"; W = regs_of(ops[0]); extra["C"] = regs_of(ops[0]); extra["AB"] = regs_of(ops[1]) | regs_of(ops[2]) | regs_of(ops[3]); R = extra["C"] | extra["AB"]
        elif mn.startswith("v_mfma"):
            cls = "xdl"; W = regs_of(ops[0]); extra["C"] = regs_of(ops[3]); extra["AB"] = regs_of(ops[1]) | regs_of(ops[2]); R = extra["C"] | extra["AB"]
        elif mn.startswith("v_permlane"):
            cls = "valu"; W = regs_of(ops[0]) | regs_of(ops[1]); R = set(W); extra["perm"] = True
        elif mn.startswith("v_"):
            cls = "valu"
            W = regs_of(ops[0])
            for o in ops[1:]: R |= regs_of(o)
            if mn.startswith("v_dot2c") or mn.startswith("v_fmac") or dpp:
                R |= W
            if mn.startswith("v_dot2"):
                cls = "dl"; extra["AB"] = regs_of(ops[1]) | regs_of(ops[2])
            if mn.startswith("v_cndmask") and len(ops) == 3: R |= {("s", "vcc")}
            if mn.split("_e32")[0].split("_e64")[0] in TRANS: extra["trans"] = True
            if dpp: extra["dpp"] = True
            if mn.startswith("v_readlane") or mn.startswith("v_readfirstlane"): extra["rl"] = True
        elif mn.startswith("buffer_") or mn.startswith("global_"):
            cls = "vmem"
            if "load" in mn and "lds" in mods:
                for o in ops: R |= regs_of(o)
            elif "load" in mn:
                W = regs_of(ops[0])
                for o in ops[1:]: R |= regs_of(o)
            else:
                for o in ops: R |= regs_of(o)
                if mn.endswith("x3") or mn.endswith("x4"):
                    extra["wide"] = regs_of(ops[0]) if mn.startswith("buffer_") else regs_of(ops[1])
        elif mn.startswith("ds_"):
            cls = "ds"
            if "read" in mn or "swizzle" in mn or "permute" in mn:
                W = regs_of(ops[0])
                for o in ops[1:]: R |= regs_of(o)
            else:
                for o in ops: R |= regs_of(o)
        elif mn.startswith("s_"):
            cls = "salu"
            if ops and not mn.startswith(("s_cmp", "s_cbranch", "s_branch", "s_waitcnt", "s_nop", "s_barrier", "s_endpgm", "s_setprio", "s_sleep", "s_bitcmp")):
                W = regs_of(ops[0])
                for o in ops[1:]: R |= regs_of(o)
            else:
                for o in ops: R |= regs_of(o)
        isv = lambda rs: {r for r in rs if r[0] in "va"}
        iss = lambda rs: {r for r in rs if r[0] == "s"}
        valu_like = lambda h: h[0] in ("valu", "dl")
        need = 0
        def req(n, pred):
            nonlocal need
            d = self._dist(pred)
            if d < n: need = max(need, n - d)
        if cls in ("valu", "dl"):
            if extra.get("dpp") or extra.get("perm"):
                req(2, lambda h: valu_like(h) and h[1] & isv(R))
            if extra.get("rl"):
                req(1, lambda h: valu_like(h) and h[1] & isv(R))
            if not extra.get("trans"):
                req(1, lambda h: h[4].get("trans") and h[1] & isv(R))
            req(8, lambda h: h[0] == "xdl" and h[1] & (isv(R) | isv(W)))
            req(3, lambda h: h[0] == "xdl" and h[4]["C"] & isv(W))
            req(2, lambda h: valu_like(h) and iss(h[1]) & iss(R))
            req(2, lambda h: h[4].get("wide", set()) & isv(W))
            if cls == "dl":
                req(3, lambda h: h[0] == "dl" and h[1] & extra["AB"])
                req(3, lambda h: h[0] == "dl" and h[3] != mn and h[1] & (isv(R) | isv(W)))
            else:
                req(3, lambda h: h[0] == "dl" and h[1] & (isv(R) | isv(W)))
        if cls == "xdl":
            req(2, lambda h: h[0] == "valu" and h[1] & R)
            req(3, lambda h: h[0] == "dl" and h[1] & R)
            req(8, lambda h: h[0] == "xdl" and h[1] & extra["AB"])
            req(6, lambda h: h[0] == "xdl" and h[1] & extra["C"] and h[1] != extra["C"])
        if cls in ("vmem", "ds"):
            req(8, lambda h: h[0] == "xdl" and h[1] & (isv(R) | isv(W)))
            req(3, lambda h: h[0] == "dl" and h[1] & isv(R))
            req(1, lambda h: h[4].get("wide", set()) & isv(W))
        if cls == "vmem":
            req(5, lambda h: valu_like(h) and iss(h[1]) & iss(R))
        if need:
            self.lines.append(f"    s_nop {need-1}")
            self.hist.extend([None] * need); self.nops += need
        self.lines.append("    " + s)
        n = 1
        if mn == "s_nop": n = int(ops[0]) + 1
        self.hist.append((cls, W, R, mn, extra))
        if n > 1: self.hist.extend([None] * (n - 1))
        self.hist = self.hist[-16:]
    def text(self):
        return "\n".join(self.lines) + "\n"
```

```python
import sys, os
sys.path.insert(0, os.path.dirname(os.path.abspath(__file__)))
from asmlib import Asm

NAME = "sequential_preLN__sliding_block_cached__dense_activation_silu__decode"
KNAME = NAME + "_kernel"

DEF = dict(
    WA=15, WB=12, WC=12,
    nKA=30,
    nWOB=30,
    rot=4,
    polKV="nt", polW="nt",
    prof=False,
    wlast=0,
    codepf=True,
    spin=200000,
)

RED, QB, SM, RED2, REDZ, LDS_BYTES = 0, 3072, 4608, 5120, 17408, 18432
P1, P2, HB, PROF = 0, 0x100000, 0x200000, 0x800000
OOB = 0x40000000
LOG2E = 0x3fb8aa3b
import struct
def fbits(x): return struct.unpack("<I", struct.pack("<f", x))[0]

def gen(**kw):
    o = dict(DEF); o.update(kw)
    A = Asm()
    hdr = open(os.path.join(os.path.dirname(os.path.abspath(__file__)), "..", "cdna_kernels", NAME + ".s.ref")).read().splitlines()
    for ln in hdr:
        if ln.startswith("; Override") : break
        A.raw(ln)
    A.raw(f"; @launch grid=(256,1,1) block=(256,1,1) lds={LDS_BYTES}")
    A.raw('.amdgcn_target "amdgcn-amd-amdhsa--gfx950"')
    A.raw(".text"); A.raw(f".globl {KNAME}"); A.raw(".p2align 8"); A.raw(f".type {KNAME},@function"); A.label(KNAME)

    sW, sB, sH = "s3", "s26", "s27"
    sX, sK, sV, sWQ, sWO, sW1, sW2, sOUT, sDBG, sWS = [28 + 4 * i for i in range(10)]
    srd = lambda n: f"s[{n}:{n+3}]"
    sU = 68
    sT = "s84"
    sQB0, sQB1, sF0, sF1, sZ = "s86", "s87", "s88", "s89", "s90"
    sLM = "s[92:93]"
    sA, sC, sD, sE = "s94", "s95", "s96", "s97"
    sSPIN = "s98"
    sPC = 100
    vL, vK, vV, vWQ, vWO, vW2, vW1, vIDX = [f"v{i}" for i in range(8)]
    MK = [8, 9, 10, 11]
    AF = [12, 16]
    D = 20
    Q = 32
    S = 44
    T = 48
    vHST, vP1ST, vREDW = "v61", "v62", "v63"
    tO_R, tR2W, tR2R, tCNT, tRD, tPF, tHL0, tHL4, tZR, tP2ST, tOUT, tXR = [f"v{Q+i}" for i in range(12)]
    v = lambda n: f"v{n}"
    vr = lambda n, k: f"v[{n}:{n+k-1}]"
    nstamp = [0]
    def stamp():
        if o["prof"]:
            k = nstamp[0]; nstamp[0] += 1
            assert k < 11
            A(f"s_memrealtime s[{4+2*k}:{5+2*k}]")

    A("s_load_dwordx16 s[4:19], s[0:1], 0")
    A("s_load_dwordx4 s[20:23], s[0:1], 64")
    A("s_load_dwordx2 s[24:25], s[0:1], 80")
    A("s_cmpk_ge_u32 s2, 256")
    A("s_cbranch_scc1 L_end")
    if o["prof"]: A("s_memrealtime s[98:99]")
    A(f"v_readfirstlane_b32 {sW}, v0")
    A(f"v_and_b32 {vL}, 63, v0")
    A(f"s_lshr_b32 {sW}, {sW}, 6")
    A(f"s_lshr_b32 {sB}, s2, 5")
    A(f"s_and_b32 {sH}, s2, 31")
    vR8, vC, t0, t1, t2, t3 = v(T+7), v(T+8), v(T+9), v(T+10), v(T+11), v(T+12)
    A(f"v_lshrrev_b32 {vR8}, 3, {vL}")
    A(f"v_and_b32 {vC}, 7, {vL}")
    A(f"v_lshlrev_b32 {v(T+5)}, 2, {vL}")
    A(f"s_lshl_b32 {sA}, {sW}, 3")
    A(f"v_xor_b32 {v(T+6)}, {sA}, {v(T+5)}")
    A(f"v_and_b32 {t0}, 32, {vL}")
    A(f"v_bfe_u32 {t1}, {vL}, 3, 1")
    A(f"v_bfe_u32 {t2}, {vL}, 4, 1")
    A(f"v_lshl_add_u32 {t3}, {t1}, 4, {t0}")
    A(f"v_add_u32 {t3}, {t3}, {t2}")
    A(f"v_mul_u32_u24 {t3}, 12288, {t3}")
    A(f"v_lshl_add_u32 {vWQ}, {vC}, 4, {t3}")
    A(f"v_lshrrev_b32 {t3}, 2, {t0}")
    A(f"v_lshl_add_u32 {t3}, {t2}, 2, {t3}")
    A(f"v_add_u32 {t3}, {t3}, {t1}")
    A(f"v_mul_u32_u24 {t3}, 384, {t3}")
    A(f"v_lshl_add_u32 {vK}, {vC}, 4, {t3}")
    A(f"s_mul_i32 {sA}, s2, 1572864")
    A(f"s_add_u32 {sA}, {sA}, 1179648")
    A(f"s_mul_i32 {sC}, {sB}, 1280")
    A(f"s_mul_i32 {sD}, {sH}, 384")
    A(f"s_mul_i32 {sQB0}, {sW}, {128*12288}")
    A(f"s_mul_i32 {sE}, s2, {o['rot']}")
    A(f"s_add_u32 {sE}, {sE}, {sW}")
    def unit_off(n):
        A(f"s_add_u32 s{sU+n}, {sE}, {4*n}")
        A(f"s_and_b32 s{sU+n}, s{sU+n}, 63")
        A(f"s_mulk_i32 s{sU+n}, 6144")
    unit_off(0)
    A(f"s_mov_b32 s{sX+2}, 1280"); A(f"s_mov_b32 s{sX+3}, 0x20000")
    A(f"s_mov_b32 s{sK+2}, 393216"); A(f"s_mov_b32 s{sK+3}, 0x20000")
    A(f"s_sub_u32 s{sWQ+2}, {640*12288}, {sD}"); A(f"s_mov_b32 s{sWQ+3}, 0x20000")
    A("s_waitcnt lgkmcnt(0)")
    A(f"s_add_u32 s{sX}, s4, {sC}"); A(f"s_addc_u32 s{sX+1}, s5, 0")
    A(f"s_add_u32 s{sK}, s6, {sA}"); A(f"s_addc_u32 s{sK+1}, s7, 0")
    A(f"s_add_u32 s{sWQ}, s10, {sD}"); A(f"s_addc_u32 s{sWQ+1}, s11, 0")

    def late_setup():
        A(f"s_add_u32 s{sV}, s8, {sA}"); A(f"s_addc_u32 s{sV+1}, s9, 0")
        A(f"s_mov_b32 s{sV+2}, 393216"); A(f"s_mov_b32 s{sV+3}, 0x20000")
        A(f"s_add_u32 s{sOUT}, s20, {sC}"); A(f"s_addc_u32 s{sOUT+1}, s21, 0")
        A(f"s_mov_b32 s{sOUT+2}, 1280"); A(f"s_mov_b32 s{sOUT+3}, 0x20000")
        A(f"s_mul_i32 {sD}, {sH}, 245760")
        A(f"s_add_u32 s{sWO}, s12, {sD}"); A(f"s_addc_u32 s{sWO+1}, s13, 0")
        A(f"s_mov_b32 s{sWO+2}, 245760"); A(f"s_mov_b32 s{sWO+3}, 0x20000")
        A(f"s_and_b32 {sA}, {sH}, 7"); A(f"s_lshl_b32 {sA}, {sA}, 2"); A(f"s_lshr_b32 {sC}, {sH}, 3"); A(f"s_add_u32 {sA}, {sA}, {sC}")
        A(f"s_mul_i32 {sD}, {sA}, 96")
        A(f"s_add_u32 s{sW1}, s16, {sD}"); A(f"s_addc_u32 s{sW1+1}, s17, 0")
        A(f"s_sub_u32 s{sW1+2}, {640*3072}, {sD}"); A(f"s_mov_b32 s{sW1+3}, 0x20000")
        A(f"s_mul_i32 {sD}, {sA}, 61440")
        A(f"s_add_u32 s{sW2}, s18, {sD}"); A(f"s_addc_u32 s{sW2+1}, s19, 0")
        A(f"s_mov_b32 s{sW2+2}, 61440"); A(f"s_mov_b32 s{sW2+3}, 0x20000")
        A(f"s_mov_b32 s{sDBG}, s22"); A(f"s_mov_b32 s{sDBG+1}, s23"); A(f"s_mov_b32 s{sDBG+2}, 256"); A(f"s_mov_b32 s{sDBG+3}, 0x20000")
        A(f"s_mov_b32 s{sWS}, s24"); A(f"s_mov_b32 s{sWS+1}, s25"); A(f"s_mov_b32 s{sWS+2}, 0x1000000"); A(f"s_mov_b32 s{sWS+3}, 0x20000")
        if o["prof"]:
            A("s_mov_b32 s4, s98"); nstamp[0] = 1
        for n in range(1, 16): unit_off(n)
        A(f"s_lshl_b32 {sA}, {sW}, 2"); A(f"s_add_u32 {sA}, {sA}, 512"); A(f"s_mul_i32 {sQB1}, {sA}, 12288")
        A(f"s_mul_i32 {sF0}, {sW}, {128*3072}")
        A(f"s_and_b32 {sA}, {sW}, 1"); A(f"s_lshl_b32 {sA}, {sA}, 5"); A(f"s_lshr_b32 {sC}, {sW}, 1"); A(f"s_add_u32 {sA}, {sA}, {sC}")
        A(f"s_add_u32 {sA}, {sA}, 512"); A(f"s_mul_i32 {sF1}, {sA}, 3072")
        A(f"s_sub_u32 {sA}, 8, {sW}"); A(f"s_lshl_b32 {sA}, {sA}, 7"); A(f"s_cmp_lt_u32 {sW}, 2"); A(f"s_cselect_b32 {sZ}, {sA}, 0x100000")
        A("s_mov_b32 s92, 0x01010101"); A("s_mov_b32 s93, 0x01010101")
        A(f"v_mul_u32_u24 {t3}, 384, {vR8}")
        A(f"v_lshl_add_u32 {vV}, {vC}, 4, {t3}")
        A(f"v_lshrrev_b32 {t3}, 4, {vL}"); A(f"s_mul_i32 {sA}, {sW}, 48"); A(f"v_add_u32 {t3}, {sA}, {t3}")
        A(f"v_mul_u32_u24 {t3}, 1280, {t3}"); A(f"v_and_b32 {vWO}, 15, {vL}"); A(f"v_lshl_add_u32 {vWO}, {vWO}, 4, {t3}")
        A(f"v_lshrrev_b32 {t3}, 3, {t0}")
        A(f"v_lshl_add_u32 {t3}, {t1}, 1, {t3}")
        A(f"v_lshl_add_u32 {vW1}, {t2}, 3, {t3}")
        A(f"v_mul_u32_u24 {vW1}, 3072, {vW1}")
        A(f"v_min_u32 {vW2}, 5, {vC}")
        A(f"v_lshl_add_u32 {vW1}, {vW2}, 4, {vW1}")
        A(f"v_add_u32 {t3}, {t3}, {t2}")
        A(f"v_mul_u32_u24 {t3}, 1280, {t3}")
        A(f"v_lshl_add_u32 {t3}, {vC}, 4, {t3}")
        A(f"s_lshl_b32 {sA}, {sW}, 8")
        A(f"v_add_u32 {vW2}, {sA}, {t3}")
        A(f"v_cmp_gt_u32 vcc, 4, {vC}")
        A(f"v_mov_b32 {t3}, 0xffff")
        A(f"v_and_b32 {vIDX}, 3, {vC}")
        A(f"v_cndmask_b32 {v(MK[0])}, 0, {t3}, vcc")
        A(f"v_mul_u32_u24 {vIDX}, 0x5555, {vIDX}")
        A(f"v_xor_b32 {v(MK[1])}, {t3}, {v(MK[0])}")
        A(f"v_lshlrev_b32 {v(MK[2])}, 16, {v(MK[0])}")
        A(f"v_lshlrev_b32 {v(MK[3])}, 16, {v(MK[1])}")
        A(f"v_lshrrev_b32 {t3}, 5, {vL}")
        A(f"v_lshl_add_u32 {t3}, {t1}, 1, {t3}")
        A(f"v_lshl_add_u32 {t3}, {t2}, 2, {t3}")
        A(f"v_lshl_add_u32 {t3}, {vC}, 3, {t3}")
        A(f"s_lshl_b32 {sA}, {sW}, 2")
        A(f"v_lshl_add_u32 {vREDW}, {t3}, 4, {sA}")
        A(f"s_mul_i32 {sA}, s2, 2560"); A(f"s_mul_i32 {sC}, {sW}, 640"); A(f"s_add_u32 {sA}, {sA}, {sC}")
        A(f"v_lshl_add_u32 {vP1ST}, {vL}, 4, {sA}")
        A(f"v_mov_b32 {t3}, {OOB}")
        A(f"v_cmp_gt_u32 vcc, 40, {vL}")
        A(f"s_mul_i32 {sA}, {sB}, 2560"); A(f"s_lshl_b32 {sC}, {sH}, 7"); A(f"s_add_u32 {sA}, {sA}, {sC}"); A(f"s_add_u32 {sA}, {sA}, {HB}")
        A(f"v_cndmask_b32 {vP1ST}, {t3}, {vP1ST}, vcc")
        A(f"s_cmp_lt_u32 {sH}, 20"); A(f"s_cselect_b32 {sC}, 32, 0"); A(f"s_cmp_eq_u32 {sW}, 0"); A(f"s_cselect_b32 {sC}, {sC}, 0")
        A(f"v_lshl_add_u32 {vHST}, {vL}, 2, {sA}")
        A(f"v_cmp_gt_u32 vcc, {sC}, {vL}")
        for k in range(4): A(f"v_mov_b32 {v(AF[1]+k)}, -1")
        A(f"v_cndmask_b32 {vHST}, {t3}, {vHST}, vcc")

    DPPF = "row_mask:0xf bank_mask:0xf"
    def wave_reduce(op, reg, sdst, fill=()):
        fill = list(fill)
        steps = [f"quad_perm:[1,0,3,2] {DPPF}", f"quad_perm:[2,3,0,1] {DPPF}", f"row_half_mirror {DPPF}", f"row_mirror {DPPF}",
                 "row_bcast:15 row_mask:0xa bank_mask:0xf", "row_bcast:31 row_mask:0xc bank_mask:0xf"]
        for st in steps:
            for _ in range(2):
                if fill: A(fill.pop(0))
            A(f"{op}_dpp {reg}, {reg}, {reg} {st}")
        if fill: A(fill.pop(0))
        A(f"v_readlane_b32 {sdst}, {reg}, 63")
        for f in fill: A(f)
    def round_bf16(reg):
        A(f"v_cvt_pk_bf16_f32 {reg}, {reg}, {reg}")
        A(f"v_lshlrev_b32 {reg}, 16, {reg}")
    def layernorm(F, tp, out):
        A(f"v_pk_add_f32 {vr(tp,2)}, {vr(F,2)}, {vr(F+2,2)}")
        A(f"v_pk_add_f32 {vr(tp+2,2)}, {vr(F+4,2)}, {vr(F+6,2)}")
        A(f"v_pk_add_f32 {vr(tp,2)}, {vr(tp,2)}, {vr(F+8,2)}")
        A(f"v_pk_add_f32 {vr(tp,2)}, {vr(tp,2)}, {vr(tp+2,2)}")
        A(f"v_add_f32 {v(tp)}, {v(tp)}, {v(tp+1)}")
        wave_reduce("v_add_f32", v(tp), sA, fill=[f"v_mov_b32 {v(tp+2)}, {hex(fbits(-1.0/640))}"])
        A(f"v_mul_f32 {v(tp)}, {sA}, {v(tp+2)}")
        A(f"v_mul_f32 {v(tp+1)}, {sA}, {v(tp+2)}")
        A(f"v_pk_add_f32 {vr(tp+2,2)}, {vr(F,2)}, {vr(tp,2)}")
        A(f"v_pk_add_f32 {vr(F+2,2)}, {vr(F+2,2)}, {vr(tp,2)}")
        A(f"v_pk_mul_f32 {vr(tp+2,2)}, {vr(tp+2,2)}, {vr(tp+2,2)}")
        A(f"v_pk_add_f32 {vr(F+4,2)}, {vr(F+4,2)}, {vr(tp,2)}")
        A(f"v_pk_fma_f32 {vr(tp+2,2)}, {vr(F+2,2)}, {vr(F+2,2)}, {vr(tp+2,2)}")
        A(f"v_pk_add_f32 {vr(F+6,2)}, {vr(F+6,2)}, {vr(tp,2)}")
        A(f"v_pk_fma_f32 {vr(tp+2,2)}, {vr(F+4,2)}, {vr(F+4,2)}, {vr(tp+2,2)}")
        A(f"v_pk_add_f32 {vr(F+2,2)}, {vr(F+8,2)}, {vr(tp,2)}")
        A(f"v_pk_fma_f32 {vr(tp+2,2)}, {vr(F+6,2)}, {vr(F+6,2)}, {vr(tp+2,2)}")
        A(f"v_pk_fma_f32 {vr(tp+2,2)}, {vr(F+2,2)}, {vr(F+2,2)}, {vr(tp+2,2)}")
        A(f"v_add_f32 {v(tp+2)}, {v(tp+2)}, {v(tp+3)}")
        fill = [f"v_cvt_pk_bf16_f32 {v(tp)}, {v(tp)}, {v(tp)}",
                f"v_lshlrev_b32 {v(tp+1)}, 16, {v(tp)}",
                f"v_lshlrev_b32 {v(tp)}, 16, {v(tp)}",
                f"v_pk_add_f32 {vr(F,2)}, {vr(F,2)}, {vr(tp,2)}",
                f"v_pk_add_f32 {vr(F+8,2)}, {vr(F+8,2)}, {vr(tp,2)}",
                f"v_cvt_pk_bf16_f32 {v(F+2)}, {v(F)}, {v(F+1)}",
                f"v_cvt_pk_bf16_f32 {v(F+3)}, {v(F+8)}, {v(F+9)}",
                f"v_lshlrev_b32 {v(F)}, 16, {v(F+2)}",
                f"v_and_b32 {v(F+1)}, 0xffff0000, {v(F+2)}",
                f"v_lshlrev_b32 {v(F+8)}, 16, {v(F+3)}",
                f"v_and_b32 {v(F+9)}, 0xffff0000, {v(F+3)}",
                f"v_mov_b32 {v(tp+4)}, {hex(fbits(1.0/640))}"]
        wave_reduce("v_add_f32", v(tp+2), sA, fill=fill)
        A(f"v_mul_f32 {v(tp)}, {sA}, {v(tp+4)}")
        round_bf16(v(tp))
        A(f"v_add_f32 {v(tp)}, {hex(fbits(1e-5))}, {v(tp)}")
        round_bf16(v(tp))
        A(f"v_sqrt_f32 {v(tp)}, {v(tp)}")
        round_bf16(v(tp))
        A(f"v_rcp_f32 {v(tp)}, {v(tp)}")
        A(f"v_mul_f32 {v(F)}, {v(F)}, {v(tp)}")
        A(f"v_mul_f32 {v(F+1)}, {v(F+1)}, {v(tp)}")
        A(f"v_cvt_pk_bf16_f32 {v(out)}, {v(F)}, {v(F+1)}")
        A(f"v_mul_f32 {v(F+8)}, {v(F+8)}, {v(tp)}")
        A(f"v_mul_f32 {v(F+9)}, {v(F+9)}, {v(tp)}")
        A(f"v_mov_b32_dpp {v(out+1)}, {v(out)} row_half_mirror {DPPF}")
        A(f"v_cvt_pk_bf16_f32 {v(out+2)}, {v(F+8)}, {v(F+9)}")
        A(f"v_mov_b32_dpp {v(out+3)}, {v(out+2)} row_half_mirror {DPPF}")
    def afrag_oct(dst, P, c0):
        lo, hi = ((P, c0), (P + 1, 3 - c0)) if c0 < 4 else ((P + 1, 7 - c0), (P, c0 - 4))
        out = []
        for k in range(4):
            src, x = lo if k % 2 == 0 else hi
            out.append(f"v_and_b32_dpp {v(dst+k)}, {v(src)}, {v(MK[k])} quad_perm:[{x},{x},{x},{x}] {DPPF}")
        return out
    def smf(d, a, slot):
        A(f"v_smfmac_f32_16x16x64_bf16 {vr(d,4)}, {vr(a,4)}, {slot[0]}[{slot[1]}:{slot[1]+7}], {vIDX}")
    def compact(blocks):
        for d in blocks:
            A(f"v_permlane32_swap_b32 {v(d)}, {v(d+1)}")
            A(f"v_permlane32_swap_b32 {v(d+2)}, {v(d+3)}")
        for d in blocks:
            A(f"v_add_f32_dpp {v(d)}, {v(d+1)}, {v(d)} row_ror:8 row_mask:0xf bank_mask:0x3")
        for d in blocks:
            A(f"v_add_f32_dpp {v(d)}, {v(d+2)}, {v(d+3)} row_ror:8 row_mask:0xf bank_mask:0xc")

    freeA = [("a", 8 * i) for i in range(32)]
    freeV = [("v", 64 + 8 * i) for i in range(24)]
    halfV = []
    slots = {}
    def can_alloc(kind):
        if kind == "pair": return bool(freeA or freeV)
        if kind == "half": return bool(halfV or freeV)
        return True
    def alloc(kind, key, preferV=False):
        if kind == "pair":
            s = (freeV if (preferV and freeV) or not freeA else freeA).pop(0)
        else:
            if not halfV:
                s = freeV.pop(0); halfV.extend([s, (s[0], s[1] + 4)])
            s = halfV.pop(0)
        slots[key] = s
        return s
    def release(kind, key):
        s = slots.pop(key)
        if kind == "pair":
            (freeA if s[0] == "a" else freeV).append(s)
        else:
            mate = (s[0], s[1] ^ 4)
            if mate in halfV:
                halfV.remove(mate); freeV.append((s[0], s[1] & ~7))
            else: halfV.append(s)

    def tile_load(reg, vaddr, sr, soff, imm, pol):
        A(f"buffer_load_dwordx4 {reg[0]}[{reg[1]}:{reg[1]+3}], {vaddr}, {srd(sr)}, {soff} offen offset:{imm} {pol}".rstrip())
    def mk_pair(key, Tt, vaddr, sr, soff_fn, imm, pol, preferV=False):
        def emit():
            s = alloc("pair", key, preferV) if Tt == 0 else slots[key]
            tile_load((s[0], s[1] + 4 * Tt), vaddr, sr, soff_fn(), imm, pol)
        return dict(tag=key + (Tt,), need="pair" if Tt == 0 else None, emit=emit)
    last_soff = [None]
    def soff_add(base, const):
        def f():
            if last_soff[0] != (base, const):
                if base is None: A(f"s_mov_b32 {sT}, {const}")
                else: A(f"s_add_u32 {sT}, {base}, {const}")
                last_soff[0] = (base, const)
            return sT
        return f
    Lx = []
    for s_ in range(4):
        def emit(s_=s_):
            A(f"s_add_u32 {sT}, {sW}, {s_}"); A(f"s_and_b32 {sT}, {sT}, 3"); A(f"s_lshl_b32 {sT}, {sT}, 8")
            A(f"buffer_load_dword {v(T+s_)}, {v(T+5)}, {srd(sX)}, {sT} offen")
        Lx.append(dict(tag=("x", s_), need=None, emit=emit))
    Lx.append(dict(tag=("x", 4), need=None, emit=lambda: A(f"buffer_load_dword {v(T+4)}, {v(T+6)}, {srd(sX)}, 0 offen offset:1024")))
    Lwq = []
    for u in range(10):
        for t in range(3):
            for Tt in range(2):
                base, rows = (sQB0, 64 * Tt + 2 * u) if u < 8 else (sQB1, 64 * Tt + 2 * (u - 8))
                Lwq.append(mk_pair(("wq", u, t), Tt, vWQ, sWQ, soff_add(base, rows * 12288), 128 * t, o["polW"]))
    LK = []
    for n in range(16):
        for hB in range(2):
            for t in range(3):
                def emit(n=n, hB=hB, t=t):
                    s = alloc("half", ("k", n, hB, t))
                    tile_load(s, vK, sK, f"s{sU+n}", hB * 768 + t * 128, o["polKV"])
                LK.append(dict(tag=("k", n, hB, t), need="half", emit=emit))
    LV = []
    for n in range(16):
        for t in range(3):
            for Tt in range(2):
                LV.append(mk_pair(("v", n, t), Tt, vV, sV, (lambda n=n: f"s{sU+n}"), Tt * 3072 + t * 128, o["polKV"], preferV=True))
    Lwo = []
    for u in range(6):
        for blk in range(5):
            for Tt in range(2):
                Lwo.append(mk_pair(("wo", u, blk), Tt, vWO, sWO, soff_add(None, u * 10240 + Tt * 5120), blk * 256, o["polW"]))
    Lw1 = []
    for u in range(10):
        for Tt in range(2):
            base, rows = (sF0, 64 * Tt + 16 * (u & 3) + (u >> 2)) if u < 8 else (sF1, 64 * Tt + 16 * (u - 8))
            Lw1.append(mk_pair(("w1", u), Tt, vW1, sW1, soff_add(base, rows * 3072), 0, o["polW"]))
    Lw2 = []
    for u in range(3):
        for blk in range(3):
            for Tt in range(2):
                rows = 16 * u + 8 * Tt
                if blk < 2: Lw2.append(mk_pair(("w2", u, blk), Tt, vW2, sW2, soff_add(None, rows * 1280), blk * 128, o["polW"]))
                else: Lw2.append(mk_pair(("w2", u, blk), Tt, vW2, sW2, soff_add(sZ, rows * 1280), 0, o["polW"]))
    def misc(tag, fn): return dict(tag=tag, need=None, emit=fn)
    def mix(*lists):
        lists = [l for l in lists if l]
        items = []
        for li, l in enumerate(lists):
            for i, it in enumerate(l): items.append(((i + 0.5) / len(l), li, it))
        items.sort(key=lambda z: (z[0], z[1]))
        return [z[2] for z in items]
    def clr1():
        A(f"buffer_store_dwordx4 {vr(AF[1],4)}, {vP1ST}, {srd(sWS)}, 0 offen sc1")
    def clr2():
        A(f"s_mov_b32 {sT}, {P2}"); last_soff[0] = None
        A(f"buffer_store_dwordx4 {vr(AF[1],4)}, {vP1ST}, {srd(sWS)}, {sT} offen sc1")
    def clr3():
        A(f"buffer_store_dword {v(AF[1])}, {vHST}, {srd(sWS)}, 0 offen sc1")
    def code_pf(label, reg, areg):
        def f():
            A(f"s_getpc_b64 s[{sPC}:{sPC+1}]")
            here = f"L_pc_{label}"
            A.label(here)
            A(f"s_add_u32 s{sPC}, s{sPC}, {label}-{here}"); A(f"s_addc_u32 s{sPC+1}, s{sPC+1}, 0")
            A(f"v_lshlrev_b32 {areg}, 7, {vL}")
            A(f"v_min_u32 {areg}, L_last-{label}, {areg}")
            A(f"global_load_dword {reg}, {areg}, s[{sPC}:{sPC+1}]")
        return f
    phA = mix(Lwq, LK[:o["nKA"]])
    phB = mix(LK[o["nKA"]:], Lwo[:o["nWOB"]])
    rest = Lwo[o["nWOB"]:] + Lw1 + Lw2
    nlast = o["wlast"]
    phC = mix(LV, rest[:len(rest) - nlast]) + rest[len(rest) - nlast:]
    nfirst = o["WA"] - len(Lx)
    phA = phA[:nfirst] + [misc(("clr", 0), clr1), misc(("clr", 1), clr2), misc(("clr", 2), clr3)] + phA[nfirst:]
    k = len(phC) * 2 // 3
    extra = [misc(("xr",), lambda: A(f"buffer_load_ushort {tXR}, {tOUT}, {srd(sX)}, 0 offen"))]
    if o["codepf"]: extra.append(misc(("pf",), code_pf("L_tail", tPF, tPF)))
    phC = phC[:k] + extra + phC[k:]
    k = len(phC) - nlast - o["WC"]
    def cntload():
        A(f"s_lshl_b32 {sT}, {sB}, 5"); last_soff[0] = None
        A(f"buffer_load_dword {tCNT}, off, {srd(sDBG)}, {sT} sc1")
    phC = phC[:k] + [misc(("cnt",), cntload)] + phC[k:]
    seq = Lx + phA + phB + phC
    Wn = [o["WA"]] * (len(Lx) + len(phA)) + [o["WB"]] * len(phB) + [o["WC"]] * len(phC)
    pos = {it["tag"]: i for i, it in enumerate(seq)}

    acts = []
    def act(needs, fn, before=None): acts.append(dict(needs=[pos[t] for t in needs], fn=fn))
    def a_lnx():
        A.comment("LayerNorm(x)")
        F = D
        for s_ in range(5):
            A(f"v_lshlrev_b32 {v(F+2*s_)}, 16, {v(T+s_)}")
            A(f"v_and_b32 {v(F+2*s_+1)}, 0xffff0000, {v(T+s_)}")
        layernorm(F, T, S)
        for k in range(12): A(f"v_mov_b32 {v(D+k)}, 0")
    act([("x", s_) for s_ in range(5)], a_lnx)
    assert pos[("k", 1, 0, 0)] > pos[("clr", 0)] and pos[("wq", 8, 0, 0)] > pos[("clr", 0)]
    assert pos[("x", 4)] + o["WA"] > pos[("clr", 2)]
    for u in range(10):
        for t in range(3):
            def f(u=u, t=t):
                if t == 0:
                    for ins in afrag_oct(AF[u & 1], S + 2 * (u >> 3), u & 7): A(ins)
                smf(D + 4 * t, AF[u & 1], slots[("wq", u, t)]); release("pair", ("wq", u, t))
            act([("wq", u, t, 1)], f)
    def a_qred1():
        A.comment("q: cross-wave reduction")
        compact([D, D + 4, D + 8])
        for t in range(3): A(f"ds_write_b32 {vREDW}, {v(D+4*t)} offset:{RED + 1024*t}")
        A(f"v_lshlrev_b32 {v(T)}, 4, {vL}")
        A(f"s_mul_i32 {sA}, {sW}, 384")
        A(f"v_lshl_add_u32 {v(T+1)}, {vL}, 1, {sA}")
        A(f"v_and_b32 {v(T+2)}, 7, {vL}")
        A(f"v_lshl_add_u32 {v(T+2)}, {v(T+2)}, 4, {sA}")
        A("s_waitcnt lgkmcnt(0)")
        A("s_barrier")
        for t in range(3): A(f"ds_read_b128 {vr(D+4*t,4)}, {v(T)} offset:{RED + 1024*t}")
    act([], a_qred1)
    def a_qred2():
        A("s_waitcnt lgkmcnt(0)")
        for t in range(3):
            d = D + 4 * t
            A(f"v_pk_add_f32 {vr(d,2)}, {vr(d,2)}, {vr(d+2,2)}")
        for t in range(3):
            d = D + 4 * t
            A(f"v_add_f32 {v(d)}, {v(d)}, {v(d+1)}")
        for t in range(3):
            d = D + 4 * t
            A(f"v_cvt_pk_bf16_f32 {v(d)}, {v(d)}, {v(d)}")
        for t in range(3): A(f"ds_write_b16 {v(T+1)}, {v(D+4*t)} offset:{QB + 128*t}")
        A("s_waitcnt lgkmcnt(0)")
        for t in range(3): A(f"ds_read_b128 {vr(Q+4*t,4)}, {v(T+2)} offset:{QB + 128*t}")
        for k in range(12): A(f"v_mov_b32 {v(D+k)}, 0")
        A("s_waitcnt lgkmcnt(0)")
        stamp()
    act([], a_qred2)
    for n in range(16):
        for hB in range(2):
            def f(n=n, hB=hB):
                acc = v(T + hB)
                first = True
                for t in range(3):
                    s = slots[("k", n, hB, t)]
                    for k in range(4):
                        if first: A(f"v_dot2_f32_bf16 {acc}, v{s[1]+k}, {v(Q+4*t+k)}, 0"); first = False
                        else: A(f"v_dot2_f32_bf16 {acc}, v{s[1]+k}, {v(Q+4*t+k)}, {acc}")
                    release("half", ("k", n, hB, t))
                if hB == 1:
                    A(f"s_lshl_b64 vcc, {sLM}, {n & 7}")
                    for st in (f"quad_perm:[1,0,3,2] {DPPF}", f"quad_perm:[2,3,0,1] {DPPF}", f"row_half_mirror {DPPF}"):
                        for hh in range(2): A(f"v_add_f32_dpp {v(T+hh)}, {v(T+hh)}, {v(T+hh)} {st}")
                    for hh in range(2):
                        d = v(S + 2 * (n >> 3) + hh)
                        A(f"v_cndmask_b32 {d}, {d}, {v(T+hh)}, vcc")
            act([("k", n, hB, 2)], f)
    def a_soft1():
        A.comment("softmax statistics")
        stamp()
        A(f"v_mov_b32 {v(T+4)}, {hex(fbits(192 ** -0.5))}")
        for rnd in range(2):
            for k in range(2): A(f"v_cvt_pk_bf16_f32 {v(T+k)}, {v(S+2*k)}, {v(S+2*k+1)}")
            for k in range(2):
                A(f"v_lshlrev_b32 {v(S+2*k)}, 16, {v(T+k)}")
                A(f"v_and_b32 {v(S+2*k+1)}, 0xffff0000, {v(T+k)}")
            if rnd == 0:
                for k in range(4): A(f"v_mul_f32 {v(S+k)}, {v(S+k)}, {v(T+4)}")
        A(f"v_max3_f32 {v(T)}, {v(S)}, {v(S+1)}, {v(S+2)}")
        A(f"v_max_f32 {v(T)}, {v(T)}, {v(S+3)}")
        wave_reduce("v_max_f32", v(T), sA, fill=[f"v_mov_b32 {v(T+8)}, {hex(LOG2E)}", f"s_lshl_b32 {sC}, {sW}, 3", f"v_mov_b32 {v(T+9)}, {sC}", f"v_mov_b32 {v(T+10)}, 0"])
        for k in range(4): A(f"v_subrev_f32 {v(T+k)}, {sA}, {v(S+k)}")
        for k in range(4): A(f"v_mul_f32 {v(T+k)}, {v(T+k)}, {v(T+8)}")
        for k in range(4): A(f"v_exp_f32 {v(T+k)}, {v(T+k)}")
        A(f"v_mov_b32 {v(T+4)}, {sA}")
        A(f"v_pk_add_f32 {vr(T,2)}, {vr(T,2)}, {vr(T+2,2)}")
        A(f"v_add_f32 {v(T)}, {v(T)}, {v(T+1)}")
        wave_reduce("v_add_f32", v(T), sC)
        A(f"v_mov_b32 {v(T+5)}, {sC}")
        A(f"ds_write_b64 {v(T+9)}, {vr(T+4,2)} offset:{SM}")
    act([], a_soft1)
    def a_soft2():
        A("s_waitcnt lgkmcnt(0)")
        A("s_barrier")
        A(f"ds_read_b128 {vr(T,4)}, {v(T+10)} offset:{SM}")
        A(f"ds_read_b128 {vr(T+4,4)}, {v(T+10)} offset:{SM+16}")
        A(f"s_cmp_lg_u32 {sW}, 0")
        A("s_cbranch_scc1 L_nosig")
        A(f"s_lshl_b32 {sA}, {sB}, 5")
        A(f"v_mov_b32 {v(T+11)}, 1")
        A("s_mov_b64 exec, 1")
        A(f"buffer_atomic_add {v(T+11)}, off, {srd(sDBG)}, {sA} sc1")
        A("s_mov_b64 exec, -1")
        A.label("L_nosig")
        A("s_waitcnt lgkmcnt(0)")
        A(f"v_max3_f32 {v(T+9)}, {v(T)}, {v(T+2)}, {v(T+4)}")
        A(f"v_max_f32 {v(T+9)}, {v(T+9)}, {v(T+6)}")
        for k in range(4): A(f"v_sub_f32 {v(T+2*k)}, {v(T+2*k)}, {v(T+9)}")
        for k in range(4): A(f"v_sub_f32 {v(S+k)}, {v(S+k)}, {v(T+9)}")
        for k in range(4): A(f"v_mul_f32 {v(T+2*k)}, {v(T+2*k)}, {v(T+8)}")
        for k in range(4): A(f"v_mul_f32 {v(S+k)}, {v(S+k)}, {v(T+8)}")
        for k in range(4): A(f"v_exp_f32 {v(T+2*k)}, {v(T+2*k)}")
        for k in range(4): A(f"v_exp_f32 {v(S+k)}, {v(S+k)}")
        A(f"v_mul_f32 {v(T)}, {v(T)}, {v(T+1)}")
        for k in range(1, 4): A(f"v_fmac_f32 {v(T)}, {v(T+2*k)}, {v(T+2*k+1)}")
        A(f"v_rcp_f32 {v(T)}, {v(T)}")
        for k in range(4): A(f"v_mul_f32 {v(S+k)}, {v(S+k)}, {v(T)}")
        A(f"v_cvt_pk_bf16_f32 {v(S)}, {v(S)}, {v(S+1)}")
        A(f"v_cvt_pk_bf16_f32 {v(S+2)}, {v(S+2)}, {v(S+3)}")
        A(f"v_mov_b32_dpp {v(S+1)}, {v(S)} row_half_mirror {DPPF}")
        A(f"v_mov_b32_dpp {v(S+3)}, {v(S+2)} row_half_mirror {DPPF}")
        stamp()
    act([], a_soft2)
    sRD = [f"s{sWQ+k}" for k in range(4)]
    sHL = [f"s{sK+k}" for k in range(4)]
    def a_tailprep():
        A.comment("addresses used by the tail")
        c, r8, i16, b4, b3, b5, tt, oob = [v(T + k) for k in range(8)]
        A(f"v_and_b32 {c}, 7, {vL}"); A(f"v_lshrrev_b32 {r8}, 3, {vL}"); A(f"v_and_b32 {i16}, 15, {vL}")
        A(f"v_bfe_u32 {b4}, {vL}, 4, 1"); A(f"v_bfe_u32 {b3}, {vL}, 3, 1"); A(f"v_lshrrev_b32 {b5}, 5, {vL}")
        A(f"v_mov_b32 {oob}, {OOB}")
        A(f"v_min_u32 {tt}, 5, {i16}"); A(f"v_lshlrev_b32 {tt}, 7, {tt}")
        A(f"v_lshrrev_b32 {tO_R}, 4, {vL}"); A(f"v_lshl_add_u32 {tO_R}, {tO_R}, 5, {tt}")
        A(f"s_mul_i32 {sA}, {sW}, 768"); A(f"v_add_u32 {tO_R}, {sA}, {tO_R}")
        A(f"v_lshlrev_b32 {tt}, 9, {b5}"); A(f"v_lshl_add_u32 {tt}, {i16}, 5, {tt}"); A(f"v_lshl_add_u32 {tt}, {b4}, 4, {tt}")
        A(f"s_mul_i32 {sA}, {sW}, 3072"); A(f"v_add_u32 {tR2W}, {sA}, {tt}")
        A(f"s_mul_i32 {sA}, {sW}, 5"); A(f"v_add_u32 {tt}, {sA}, {r8}")
        A(f"v_lshrrev_b32 {tR2R}, 1, {tt}"); A(f"v_lshlrev_b32 {tR2R}, 8, {tR2R}")
        A(f"v_and_b32 {tt}, 1, {tt}"); A(f"v_lshl_add_u32 {tR2R}, {tt}, 4, {tR2R}"); A(f"v_lshl_add_u32 {tR2R}, {c}, 5, {tR2R}")
        A(f"s_mul_i32 {sA}, {sB}, 81920"); A(f"s_lshl_b32 {sC}, {sH}, 7"); A(f"s_add_u32 {sA}, {sA}, {sC}")
        A(f"v_mul_u32_u24 {tt}, 2560, {r8}"); A(f"v_lshl_add_u32 {tt}, {c}, 4, {tt}"); A(f"v_add_u32 {tRD}, {sA}, {tt}")
        A(f"s_mul_i32 {sA}, {sB}, 2560"); A(f"s_add_u32 {sA}, {sA}, {HB}")
        A(f"v_lshl_add_u32 {tHL0}, {vL}, 3, {sA}")
        A(f"s_lshl_b32 {sC}, {sW}, 1"); A(f"v_xor_b32 {tt}, {sC}, {vL}"); A(f"v_lshl_add_u32 {tHL4}, {tt}, 3, {sA}")
        for k in range(4):
            A(f"s_add_u32 {sHL[k]}, {sW}, {k}"); A(f"s_and_b32 {sHL[k]}, {sHL[k]}, 3"); A(f"s_lshl_b32 {sHL[k]}, {sHL[k]}, 9")
            A(f"s_mov_b32 {sRD[k]}, {P1 + k * 20480}")
        A(f"v_and_b32 {tt}, 3, {c}"); A(f"v_min_u32 {tt}, 2, {tt}"); A(f"v_lshlrev_b32 {tt}, 8, {tt}"); A(f"v_lshl_add_u32 {tZR}, {r8}, 5, {tt}")
        A(f"s_mul_i32 {sA}, s2, 2560"); A(f"s_add_u32 {sA}, {sA}, {P2}")
        A(f"v_lshlrev_b32 {tt}, 7, {b4}"); A(f"v_lshl_add_u32 {tt}, {c}, 4, {tt}"); A(f"v_add_u32 {tt}, {sA}, {tt}")
        A(f"s_lshl_b32 {sC}, {sW}, 9"); A(f"v_lshl_add_u32 {tP2ST}, {b5}, 8, {sC}")
        A(f"s_add_u32 {sC}, {sW}, 8"); A(f"s_lshl_b32 {sC}, {sC}, 8"); A(f"s_cmp_lt_u32 {sW}, 2"); A(f"s_cselect_b32 {sC}, {sC}, {OOB}")
        A(f"v_cmp_eq_u32 vcc, 1, {b5}"); A(f"v_mov_b32 {i16}, {sC}")
        A(f"v_cndmask_b32 {i16}, {oob}, {i16}, vcc")
        A(f"v_cmp_eq_u32 vcc, 1, {b3}")
        A(f"v_cndmask_b32 {tP2ST}, {tP2ST}, {i16}, vcc")
        A(f"v_add_u32 {tP2ST}, {tP2ST}, {tt}")
        A(f"s_lshr_b32 {sA}, {sH}, 1"); A(f"s_lshl_b32 {sA}, {sA}, 7"); A(f"s_and_b32 {sC}, {sH}, 1"); A(f"s_lshl_b32 {sC}, {sC}, 3"); A(f"s_add_u32 {sA}, {sA}, {sC}")
        A(f"v_lshl_add_u32 {tt}, {c}, 3, {r8}"); A(f"v_lshl_add_u32 {tt}, {tt}, 1, {sA}")
        A(f"v_cmp_gt_u32 vcc, 32, {vL}")
        A(f"s_mov_b32 {sSPIN}, 0")
        A(f"v_cndmask_b32 {tOUT}, {oob}, {tt}, vcc")
    tailprep_done = [False]
    for n in range(16):
        for t in range(3):
            def f(n=n, t=t):
                if t == 0:
                    for ins in afrag_oct(AF[n & 1], S + 2 * (n >> 3), n & 7): A(ins)
                smf(D + 4 * t, AF[n & 1], slots[("v", n, t)]); release("pair", ("v", n, t))
            act([("v", n, t, 1)], f)
        if n == 4:
            def g(): a_tailprep(); tailprep_done[0] = True
            act([], g)

    arrived = -1
    ai = 0
    def wait_for(idx, issued):
        nonlocal arrived
        if idx > arrived:
            A(f"s_waitcnt vmcnt({issued - 1 - idx})"); arrived = idx
    def force_action(issued):
        nonlocal ai
        a = acts[ai]; m = max(a["needs"], default=-1)
        assert m < issued, "action needs a load that is not issued yet"
        wait_for(m, issued); a["fn"](); ai += 1
    forced = 0
    for n, it in enumerate(seq):
        if it["tag"] == ("clr", 0): late_setup()
        if it["tag"] == ("xr",): assert tailprep_done[0]
        if n - Wn[n] > arrived: wait_for(n - Wn[n], n)
        while it["need"] and not can_alloc(it["need"]):
            force_action(n); forced += 1
        it["emit"]()
        budget = 1
        while budget and ai < len(acts) and max(acts[ai]["needs"], default=-1) <= arrived:
            acts[ai]["fn"](); ai += 1; budget -= 1
    issued = len(seq)
    A.label("L_tail")
    while ai < len(acts): force_action(issued)
    o["_forced"] = forced

    stamp()
    assert not halfV
    tv = sorted(s[1] for s in freeV)
    assert len(tv) >= 5, tv
    DO = [tv[0], tv[0] + 4, tv[1], tv[1] + 4, tv[2]]
    G = [tv[3], tv[3] + 4, tv[4], tv[4] + 4]
    for d in DO[:2]:
        for k in range(4): A(f"v_mov_b32 {v(d+k)}, 0")
    compact([D, D + 4, D + 8])
    for t in range(3): A(f"ds_write_b32 {vREDW}, {v(D+4*t)} offset:{RED + 1024*t}")
    for d in DO[2:4]:
        for k in range(4): A(f"v_mov_b32 {v(d+k)}, 0")
    A("s_waitcnt lgkmcnt(0)")
    A("s_barrier")
    A(f"ds_read_b128 {vr(T,4)}, {tO_R} offset:{RED}")
    A(f"ds_read_b128 {vr(T+4,4)}, {tO_R} offset:{RED+16}")
    for k in range(4): A(f"v_mov_b32 {v(DO[4]+k)}, 0")
    wait_for(max(pos[it["tag"]] for it in Lwo), issued)
    A("s_waitcnt lgkmcnt(0)")
    A(f"v_pk_add_f32 {vr(T,2)}, {vr(T,2)}, {vr(T+2,2)}")
    A(f"v_pk_add_f32 {vr(T+4,2)}, {vr(T+4,2)}, {vr(T+6,2)}")
    A(f"v_add_f32 {v(T)}, {v(T)}, {v(T+1)}")
    A(f"v_add_f32 {v(T+4)}, {v(T+4)}, {v(T+5)}")
    A(f"v_cvt_pk_bf16_f32 {v(S)}, {v(T)}, {v(T+4)}")
    def af_row(dst, u): return [f"v_and_b32_dpp {v(dst+k)}, {v(S)}, {v(MK[k])} row_newbcast:{u} {DPPF}" for k in range(4)]
    for ins in af_row(AF[0], 0): A(ins)
    for u in range(6):
        nxt = af_row(AF[(u + 1) & 1], u + 1) if u < 5 else []
        for blk in range(5):
            smf(DO[blk], AF[u & 1], slots[("wo", u, blk)])
            if nxt: A(nxt.pop(0))
    for k in range(4): A(f"v_mov_b32_dpp {v(DO[0]+k)}, {v(DO[1]+k)} quad_perm:[0,1,2,3] row_mask:0xc bank_mask:0xf")
    A(f"ds_write_b128 {tR2W}, {vr(DO[0],4)} offset:{RED2}")
    for k in range(4): A(f"v_mov_b32_dpp {v(DO[2]+k)}, {v(DO[3]+k)} quad_perm:[0,1,2,3] row_mask:0xc bank_mask:0xf")
    A(f"ds_write_b128 {tR2W}, {vr(DO[2],4)} offset:{RED2+1024}")
    A(f"ds_write_b128 {tR2W}, {vr(DO[4],4)} offset:{RED2+2048}")
    A("s_waitcnt lgkmcnt(0)")
    A("s_barrier")
    for k in range(4): A(f"ds_read_b128 {vr(G[k],4)}, {tR2R} offset:{RED2 + 3072*k}")
    for k in range(12): A(f"v_mov_b32 {v(D+k)}, 0")
    A("s_waitcnt lgkmcnt(0)")
    def sum4():
        for hh in (0, 2):
            A(f"v_pk_add_f32 {vr(G[0]+hh,2)}, {vr(G[0]+hh,2)}, {vr(G[1]+hh,2)}")
            A(f"v_pk_add_f32 {vr(G[2]+hh,2)}, {vr(G[2]+hh,2)}, {vr(G[3]+hh,2)}")
        for hh in (0, 2):
            A(f"v_pk_add_f32 {vr(G[0]+hh,2)}, {vr(G[0]+hh,2)}, {vr(G[2]+hh,2)}")
    sum4()
    for k in range(4): A(f"v_min_u32 {v(G[0]+k)}, -2, {v(G[0]+k)}")
    A(f"buffer_store_dwordx4 {vr(G[0],4)}, {vP1ST}, {srd(sWS)}, 0 offen sc1")
    stamp()
    def spin_guard():
        A(f"s_add_u32 {sSPIN}, {sSPIN}, 1"); A(f"s_cmp_gt_u32 {sSPIN}, {o['spin']}"); A("s_cbranch_scc1 L_end")
    wait_for(pos[("cnt",)], issued + 1)
    A(f"v_cmp_ne_u32 vcc, 32, {tCNT}")
    A("s_cbranch_vccnz L_cntwait")
    A.label("L_cntok")
    A(f"s_cmp_lg_u32 {sW}, 0"); A("s_cbranch_scc1 L_hpoll")
    A(f"s_cmp_ge_u32 {sH}, 20"); A("s_cbranch_scc1 L_hpoll")
    def reduce_stage(lbl):
        A.label(lbl)
        for k in range(4): A(f"buffer_load_dwordx4 {vr(G[k],4)}, {tRD}, {srd(sWS)}, {sRD[k]} offen sc1")
        spin_guard()
        A("s_waitcnt vmcnt(0)")
        regs = [G[k] + j for k in range(4) for j in range(4)]
        A(f"v_max3_u32 {v(T)}, {v(regs[0])}, {v(regs[1])}, {v(regs[2])}")
        A(f"v_max3_u32 {v(T+1)}, {v(regs[3])}, {v(regs[4])}, {v(regs[5])}")
        for k in range(6, 16, 2):
            d = v(T + ((k >> 1) & 1))
            A(f"v_max3_u32 {d}, {d}, {v(regs[k])}, {v(regs[k+1])}")
        A(f"v_max_u32 {v(T)}, {v(T)}, {v(T+1)}")
        A(f"v_cmp_eq_u32 vcc, -1, {v(T)}")
        A(f"s_cbranch_vccnz {lbl}")
        sum4()
        g = G[0]
        A(f"v_add_f32_dpp {v(T)}, {v(g)}, {v(g)} row_ror:8 row_mask:0xf bank_mask:0x3")
        A(f"v_add_f32_dpp {v(T+1)}, {v(g+2)}, {v(g+2)} row_ror:8 row_mask:0xf bank_mask:0x3")
        A(f"v_add_f32_dpp {v(T)}, {v(g+1)}, {v(g+1)} row_ror:8 row_mask:0xf bank_mask:0xc")
        A(f"v_add_f32_dpp {v(T+1)}, {v(g+3)}, {v(g+3)} row_ror:8 row_mask:0xf bank_mask:0xc")
        A(f"v_permlane16_swap_b32 {v(T)}, {v(T+1)}")
        A(f"v_add_f32 {v(T)}, {v(T)}, {v(T+1)}")
        A(f"v_mov_b32 {v(T+1)}, {v(T)}")
        A(f"v_permlane32_swap_b32 {v(T)}, {v(T+1)}")
        A(f"v_add_f32 {v(T)}, {v(T)}, {v(T+1)}")
        round_bf16(v(T))
    A(f"v_lshlrev_b32 {tXR}, 16, {tXR}")
    reduce_stage("L_red1")
    A(f"v_add_f32 {tXR}, {tXR}, {v(T)}")
    round_bf16(tXR)
    A(f"buffer_store_dword {tXR}, {vHST}, {srd(sWS)}, 0 offen sc1")
    A.label("L_hpoll")
    F = tv[0]; F2 = tv[1]
    assert F2 == F + 8 or True
    cons = [x for x in tv if x + 8 in tv]
    assert cons, tv
    F = cons[0]
    for k in range(4): A(f"buffer_load_dwordx2 {vr(F+2*k,2)}, {tHL0}, {srd(sWS)}, {sHL[k]} offen sc1")
    A(f"buffer_load_dwordx2 {vr(F+8,2)}, {tHL4}, {srd(sWS)}, 0 offen offset:2048 sc1")
    spin_guard()
    A("s_waitcnt vmcnt(0)")
    A(f"v_max3_u32 {v(T)}, {v(F)}, {v(F+1)}, {v(F+2)}")
    A(f"v_max3_u32 {v(T+1)}, {v(F+3)}, {v(F+4)}, {v(F+5)}")
    A(f"v_max3_u32 {v(T)}, {v(T)}, {v(F+6)}, {v(F+7)}")
    A(f"v_max3_u32 {v(T+1)}, {v(T+1)}, {v(F+8)}, {v(F+9)}")
    A(f"v_max_u32 {v(T)}, {v(T)}, {v(T+1)}")
    A(f"v_cmp_eq_u32 vcc, -1, {v(T)}")
    A("s_cbranch_vccnz L_hpoll")
    stamp()
    layernorm(F, T, S)
    for ins in afrag_oct(AF[0], S, 0): A(ins)
    for u in range(10):
        nxt = afrag_oct(AF[(u + 1) & 1], S + 2 * ((u + 1) >> 3), (u + 1) & 7) if u < 9 else []
        if nxt: A(nxt.pop(0)); A(nxt.pop(0))
        smf(D, AF[u & 1], slots[("w1", u)])
        for ins in nxt: A(ins)
    A(f"v_mov_b32 {v(T+8)}, {hex(LOG2E ^ 0x80000000)}")
    compact([D])
    A(f"ds_write_b32 {vREDW}, {v(D)} offset:{REDZ}")
    A("s_waitcnt lgkmcnt(0)")
    A("s_barrier")
    A(f"ds_read_b128 {vr(T,4)}, {tZR} offset:{REDZ}")
    A(f"ds_read_b128 {vr(T+4,4)}, {tZR} offset:{REDZ+16}")
    for k in range(4): A(f"v_mov_b32 {v(D+k)}, 0")
    for k in range(4): A(f"s_add_u32 {sRD[k]}, {sRD[k]}, {P2 - P1}")
    A("s_waitcnt lgkmcnt(0)")
    A(f"v_pk_add_f32 {vr(T,2)}, {vr(T,2)}, {vr(T+2,2)}")
    A(f"v_pk_add_f32 {vr(T+4,2)}, {vr(T+4,2)}, {vr(T+6,2)}")
    A(f"v_add_f32 {v(T)}, {v(T)}, {v(T+1)}")
    A(f"v_add_f32 {v(T+4)}, {v(T+4)}, {v(T+5)}")
    A(f"v_cvt_pk_bf16_f32 {v(T+1)}, {v(T)}, {v(T+4)}")
    A(f"v_lshlrev_b32 {v(T)}, 16, {v(T+1)}")
    A(f"v_and_b32 {v(T+1)}, 0xffff0000, {v(T+1)}")
    for k in range(2): A(f"v_mul_f32 {v(T+2+k)}, {v(T+k)}, {v(T+8)}")
    for k in range(2): A(f"v_exp_f32 {v(T+2+k)}, {v(T+2+k)}")
    for k in range(2): A(f"v_add_f32 {v(T+2+k)}, 1.0, {v(T+2+k)}")
    for k in range(2): A(f"v_rcp_f32 {v(T+2+k)}, {v(T+2+k)}")
    for k in range(2): A(f"v_mul_f32 {v(T+k)}, {v(T+k)}, {v(T+2+k)}")
    A(f"v_cvt_pk_bf16_f32 {v(S)}, {v(T)}, {v(T+1)}")
    def af_quad(dst, u): return [f"v_and_b32_dpp {v(dst+k)}, {v(S)}, {v(MK[k])} quad_perm:[{u},{u},{u},{u}] {DPPF}" for k in range(4)]
    for ins in af_quad(AF[0], 0): A(ins)
    for u in range(3):
        nxt = af_quad(AF[(u + 1) & 1], u + 1) if u < 2 else []
        if nxt: A(nxt.pop(0)); A(nxt.pop(0))
        for blk in range(3):
            smf(D + 4 * blk, AF[u & 1], slots[("w2", u, blk)])
            if nxt: A(nxt.pop(0))
    X, Y, Z = D, D + 4, D + 8
    for e in range(4): A(f"v_permlane32_swap_b32 {v(X+e)}, {v(Y+e)}")
    for e in range(4): A(f"v_add_f32_dpp {v(X+e)}, {v(Y+e)}, {v(X+e)} row_ror:8 row_mask:0xf bank_mask:0x3")
    for e in range(4): A(f"v_permlane32_swap_b32 {v(Y+e)}, {v(Z+e)}")
    for e in range(4): A(f"v_add_f32_dpp {v(X+e)}, {v(Y+e)}, {v(Z+e)} row_ror:8 row_mask:0xc bank_mask:0xc")
    for e in range(4): A(f"v_min_u32 {v(X+e)}, -2, {v(X+e)}")
    A(f"buffer_store_dwordx4 {vr(X,4)}, {tP2ST}, {srd(sWS)}, 0 offen sc1")
    stamp()
    fin = "L_prof" if o["prof"] else "L_end"
    A(f"s_cmp_lg_u32 {sW}, 0"); A(f"s_cbranch_scc1 {fin}")
    A(f"s_cmp_ge_u32 {sH}, 20"); A(f"s_cbranch_scc1 {fin}")
    reduce_stage("L_red2")
    A(f"v_add_f32 {v(T)}, {tXR}, {v(T)}")
    A(f"v_cvt_pk_bf16_f32 {v(T)}, {v(T)}, {v(T)}")
    A(f"buffer_store_short {v(T)}, {tOUT}, {srd(sOUT)}, 0 offen")
    if o["prof"]:
        A.label("L_prof")
        stamp()
        A("s_getreg_b32 s25, hwreg(HW_REG_XCC_ID)")
        A("s_waitcnt lgkmcnt(0)")
        A(f"s_lshl_b32 {sA}, s2, 2"); A(f"s_add_u32 {sA}, {sA}, {sW}"); A(f"s_lshl_b32 {sA}, {sA}, 6"); A(f"s_add_u32 {sA}, {sA}, {PROF}")
        for k in range(nstamp[0]):
            A(f"v_mov_b32 {v(T)}, s{4+2*k}")
            A(f"buffer_store_dword {v(T)}, off, {srd(sWS)}, {sA} offset:{4*k}")
        A(f"v_mov_b32 {v(T)}, s25"); A(f"buffer_store_dword {v(T)}, off, {srd(sWS)}, {sA} offset:56")
        A(f"v_mov_b32 {v(T)}, {sSPIN}"); A(f"buffer_store_dword {v(T)}, off, {srd(sWS)}, {sA} offset:60")
    A.label("L_end")
    A("s_endpgm")
    A.label("L_cntwait")
    A(f"s_lshl_b32 {sT}, {sB}, 5")
    A(f"buffer_load_dword {tCNT}, off, {srd(sDBG)}, {sT} sc1")
    spin_guard()
    A("s_waitcnt vmcnt(0)")
    A(f"v_cmp_ne_u32 vcc, 32, {tCNT}")
    A("s_cbranch_vccnz L_cntwait")
    A.label("L_last")
    A("s_branch L_cntok")
    A.raw('.section .rodata,"a"'); A.raw(".p2align 6"); A.raw(f".amdhsa_kernel {KNAME}")
    A.raw("  .amdhsa_next_free_vgpr 512"); A.raw("  .amdhsa_next_free_sgpr 102"); A.raw("  .amdhsa_accum_offset 256")
    A.raw("  .amdhsa_float_denorm_mode_32 3")
    A.raw("  .amdhsa_group_segment_fixed_size 0"); A.raw("  .amdhsa_kernarg_size 88"); A.raw("  .amdhsa_user_sgpr_count 2")
    A.raw("  .amdhsa_user_sgpr_kernarg_segment_ptr 1"); A.raw("  .amdhsa_system_sgpr_workgroup_id_x 1"); A.raw(".end_amdhsa_kernel")
    o["_nstamp"] = nstamp[0]
    return A.text(), o

if __name__ == "__main__":
    out = sys.argv[1]
    kw = eval("dict(" + (sys.argv[2] if len(sys.argv) > 2 else "") + ")")
    txt, o = gen(**kw)
    open(out, "w").write(txt)
    print("forced", o["_forced"], "lines", txt.count("\n"))
```

```python
import sys, os
sys.path.insert(0, os.path.dirname(os.path.abspath(__file__)))
from asmlib import Asm

NAME = "sequential_preLN__sliding_block_cached__dense_activation_silu__decode"
KNAME = NAME + "_kernel"

DEF = dict(
    WA=15, WB=12, WC=12,
    nKA=30,
    nWOB=30,
    rot=4,
    polKV="nt", polW="nt",
    prof=False,
    wlast=0,
    codepf=True,
    burst=True, W=8, Wb=14,
    grp="b",
    a0=7, da=3, b0=60, db=7, c0=125, dc=7, tlead=14, touch64=False, touch=True, polT="nt", polT2="sc1",
    spin=200000,
)

RED, QB, SM, RED2, REDZ, LDS_BYTES = 0, 3072, 4608, 5120, 17408, 18432
P1, P2, HB, PROF = 0, 0x100000, 0x200000, 0x800000
OOB = 0x40000000
LOG2E = 0x3fb8aa3b
import struct
def fbits(x): return struct.unpack("<I", struct.pack("<f", x))[0]

def gen(**kw):
    o = dict(DEF); o.update(kw)
    A = Asm()
    hdr = open(os.path.join(os.path.dirname(os.path.abspath(__file__)), "..", "cdna_kernels", NAME + ".s.ref")).read().splitlines()
    for ln in hdr:
        if ln.startswith("; Override") : break
        A.raw(ln)
    A.raw(f"; @launch grid=(256,1,1) block=(256,1,1) lds={LDS_BYTES}")
    A.raw('.amdgcn_target "amdgcn-amd-amdhsa--gfx950"')
    A.raw(".text"); A.raw(f".globl {KNAME}"); A.raw(".p2align 8"); A.raw(f".type {KNAME},@function"); A.label(KNAME)

    sW, sB, sH = "s3", "s26", "s27"
    sX, sK, sV, sWQ, sWO, sW1, sW2, sOUT, sDBG, sWS = [28 + 4 * i for i in range(10)]
    srd = lambda n: f"s[{n}:{n+3}]"
    sU = 68
    sT = "s84"
    sQB0, sQB1, sF0, sF1, sZ = "s86", "s87", "s88", "s89", "s90"
    sLM = "s[92:93]"
    sA, sC, sD, sE = "s94", "s95", "s96", "s97"
    sSPIN = "s98"
    sPC = 100
    vL, vK, vV, vWQ, vWO, vW2, vW1, vIDX = [f"v{i}" for i in range(8)]
    MK = [8, 9, 10, 11]
    AF = [12, 16]
    D = 20
    Q = 32
    S = 44
    T = 48
    vHST, vP1ST, vREDW = "v61", "v62", "v63"
    tO_R, tR2W, tR2R, tCNT, tRD, tPF, tHL0, tHL4, tZR, tP2ST, tOUT, tXR = [f"v{Q+i}" for i in range(12)]
    v = lambda n: f"v{n}"
    vr = lambda n, k: f"v[{n}:{n+k-1}]"
    nstamp = [0]
    def stamp():
        if o["prof"]:
            k = nstamp[0]; nstamp[0] += 1
            assert k < 11
            A(f"s_memrealtime s[{4+2*k}:{5+2*k}]")

    A("s_load_dwordx16 s[4:19], s[0:1], 0")
    A("s_load_dwordx4 s[20:23], s[0:1], 64")
    A("s_load_dwordx2 s[24:25], s[0:1], 80")
    A("s_cmpk_ge_u32 s2, 256")
    A("s_cbranch_scc1 L_end")
    if o["prof"]: A("s_memrealtime s[100:101]")
    A(f"v_readfirstlane_b32 {sW}, v0")
    A(f"v_and_b32 {vL}, 63, v0")
    A(f"s_lshr_b32 {sW}, {sW}, 6")
    A(f"s_lshr_b32 {sB}, s2, 5")
    A(f"s_and_b32 {sH}, s2, 31")
    vR8, vC, t0, t1, t2, t3 = v(T+7), v(T+8), v(T+9), v(T+10), v(T+11), v(T+12)
    A(f"v_lshrrev_b32 {vR8}, 3, {vL}")
    A(f"v_and_b32 {vC}, 7, {vL}")
    A(f"v_lshlrev_b32 {v(T+5)}, 2, {vL}")
    A(f"s_lshl_b32 {sA}, {sW}, 3")
    A(f"v_xor_b32 {v(T+6)}, {sA}, {v(T+5)}")
    A(f"v_and_b32 {t0}, 32, {vL}")
    A(f"v_bfe_u32 {t1}, {vL}, 3, 1")
    A(f"v_bfe_u32 {t2}, {vL}, 4, 1")
    A(f"v_lshl_add_u32 {t3}, {t1}, 4, {t0}")
    A(f"v_add_u32 {t3}, {t3}, {t2}")
    A(f"v_mul_u32_u24 {t3}, 12288, {t3}")
    A(f"v_lshl_add_u32 {vWQ}, {vC}, 4, {t3}")
    A(f"v_lshrrev_b32 {t3}, 2, {t0}")
    A(f"v_lshl_add_u32 {t3}, {t2}, 2, {t3}")
    A(f"v_add_u32 {t3}, {t3}, {t1}")
    A(f"v_mul_u32_u24 {t3}, 384, {t3}")
    A(f"v_lshl_add_u32 {vK}, {vC}, 4, {t3}")
    A(f"s_mul_i32 {sA}, s2, 1572864")
    A(f"s_add_u32 {sA}, {sA}, 1179648")
    A(f"s_mul_i32 {sC}, {sB}, 1280")
    A(f"s_mul_i32 {sD}, {sH}, 384")
    A(f"s_mul_i32 {sQB0}, {sW}, {128*12288}")
    A(f"s_mul_i32 {sE}, s2, {o['rot']}")
    A(f"s_add_u32 {sE}, {sE}, {sW}")
    def unit_off(n):
        A(f"s_add_u32 s{sU+n}, {sE}, {4*n}")
        A(f"s_and_b32 s{sU+n}, s{sU+n}, 63")
        A(f"s_mulk_i32 s{sU+n}, 6144")
    unit_off(0)
    sG, sRA, sT2, sGT = "s85", "s[76:77]", "s91", "s99"
    vT1, vT2 = v(Q), v(Q + 1)
    if o["burst"]:
        sRA = f"s[{sPC}:{sPC+1}]"
        A(f"v_mul_u32_u24 {vT1}, 21846, {vL}"); A(f"v_lshrrev_b32 {vT1}, 16, {vT1}")
        A(f"v_mul_u32_u24 {vT2}, {12288 - 3*128}, {vT1}"); A(f"v_lshl_add_u32 {vT2}, {vL}, 7, {vT2}")
        A(f"s_lshl_b32 {sT2}, {sB}, 2"); A(f"s_add_u32 {sT2}, {sT2}, {sW}"); A(f"s_mul_i32 {sT2}, {sT2}, {20*12288}")
        if o["grp"] == "h":
            A(f"s_lshr_b32 {sG}, {sH}, 3"); A(f"s_mov_b32 {sGT}, {sG}")
        elif o["grp"] == "hb":
            A(f"s_lshr_b32 {sGT}, {sH}, 3"); A(f"s_lshl_b32 {sGT}, {sGT}, 1"); A(f"s_and_b32 {sG}, {sB}, 1"); A(f"s_add_u32 {sG}, {sG}, {sGT}")
        else:
            A(f"s_mov_b32 {sG}, {sB}"); A(f"s_mov_b32 {sGT}, 0")
    A(f"s_mov_b32 s{sX+2}, 1280"); A(f"s_mov_b32 s{sX+3}, 0x20000")
    A(f"s_mov_b32 s{sK+2}, 393216"); A(f"s_mov_b32 s{sK+3}, 0x20000")
    A(f"s_sub_u32 s{sWQ+2}, {640*12288}, {sD}"); A(f"s_mov_b32 s{sWQ+3}, 0x20000")
    A("s_waitcnt lgkmcnt(0)")
    A(f"s_add_u32 s{sX}, s4, {sC}"); A(f"s_addc_u32 s{sX+1}, s5, 0")
    A(f"s_add_u32 s{sK}, s6, {sA}"); A(f"s_addc_u32 s{sK+1}, s7, 0")
    A(f"s_add_u32 s{sWQ}, s10, {sD}"); A(f"s_addc_u32 s{sWQ+1}, s11, 0")

    def late_setup():
        A(f"s_add_u32 s{sV}, s8, {sA}"); A(f"s_addc_u32 s{sV+1}, s9, 0")
        A(f"s_mov_b32 s{sV+2}, 393216"); A(f"s_mov_b32 s{sV+3}, 0x20000")
        A(f"s_add_u32 s{sOUT}, s20, {sC}"); A(f"s_addc_u32 s{sOUT+1}, s21, 0")
        A(f"s_mov_b32 s{sOUT+2}, 1280"); A(f"s_mov_b32 s{sOUT+3}, 0x20000")
        A(f"s_mul_i32 {sD}, {sH}, 245760")
        A(f"s_add_u32 s{sWO}, s12, {sD}"); A(f"s_addc_u32 s{sWO+1}, s13, 0")
        A(f"s_mov_b32 s{sWO+2}, 245760"); A(f"s_mov_b32 s{sWO+3}, 0x20000")
        A(f"s_and_b32 {sA}, {sH}, 7"); A(f"s_lshl_b32 {sA}, {sA}, 2"); A(f"s_lshr_b32 {sC}, {sH}, 3"); A(f"s_add_u32 {sA}, {sA}, {sC}")
        A(f"s_mul_i32 {sD}, {sA}, 96")
        A(f"s_add_u32 s{sW1}, s16, {sD}"); A(f"s_addc_u32 s{sW1+1}, s17, 0")
        A(f"s_sub_u32 s{sW1+2}, {640*3072}, {sD}"); A(f"s_mov_b32 s{sW1+3}, 0x20000")
        A(f"s_mul_i32 {sD}, {sA}, 61440")
        A(f"s_add_u32 s{sW2}, s18, {sD}"); A(f"s_addc_u32 s{sW2+1}, s19, 0")
        A(f"s_mov_b32 s{sW2+2}, 61440"); A(f"s_mov_b32 s{sW2+3}, 0x20000")
        A(f"s_mov_b32 s{sDBG}, s22"); A(f"s_mov_b32 s{sDBG+1}, s23"); A(f"s_mov_b32 s{sDBG+2}, 256"); A(f"s_mov_b32 s{sDBG+3}, 0x20000")
        A(f"s_mov_b32 s{sWS}, s24"); A(f"s_mov_b32 s{sWS+1}, s25"); A(f"s_mov_b32 s{sWS+2}, 0x1000000"); A(f"s_mov_b32 s{sWS+3}, 0x20000")
        if o["prof"]:
            A("s_mov_b32 s4, s100"); nstamp[0] = 1
        for n in range(1, 16): unit_off(n)
        A(f"s_lshl_b32 {sA}, {sW}, 2"); A(f"s_add_u32 {sA}, {sA}, 512"); A(f"s_mul_i32 {sQB1}, {sA}, 12288")
        A(f"s_mul_i32 {sF0}, {sW}, {128*3072}")
        A(f"s_and_b32 {sA}, {sW}, 1"); A(f"s_lshl_b32 {sA}, {sA}, 5"); A(f"s_lshr_b32 {sC}, {sW}, 1"); A(f"s_add_u32 {sA}, {sA}, {sC}")
        A(f"s_add_u32 {sA}, {sA}, 512"); A(f"s_mul_i32 {sF1}, {sA}, 3072")
        A(f"s_sub_u32 {sA}, 8, {sW}"); A(f"s_lshl_b32 {sA}, {sA}, 7"); A(f"s_cmp_lt_u32 {sW}, 2"); A(f"s_cselect_b32 {sZ}, {sA}, 0x100000")
        A("s_mov_b32 s92, 0x01010101"); A("s_mov_b32 s93, 0x01010101")
        A(f"v_mul_u32_u24 {t3}, 384, {vR8}")
        A(f"v_lshl_add_u32 {vV}, {vC}, 4, {t3}")
        A(f"v_lshrrev_b32 {t3}, 4, {vL}"); A(f"s_mul_i32 {sA}, {sW}, 48"); A(f"v_add_u32 {t3}, {sA}, {t3}")
        A(f"v_mul_u32_u24 {t3}, 1280, {t3}"); A(f"v_and_b32 {vWO}, 15, {vL}"); A(f"v_lshl_add_u32 {vWO}, {vWO}, 4, {t3}")
        A(f"v_lshrrev_b32 {t3}, 3, {t0}")
        A(f"v_lshl_add_u32 {t3}, {t1}, 1, {t3}")
        A(f"v_lshl_add_u32 {vW1}, {t2}, 3, {t3}")
        A(f"v_mul_u32_u24 {vW1}, 3072, {vW1}")
        A(f"v_min_u32 {vW2}, 5, {vC}")
        A(f"v_lshl_add_u32 {vW1}, {vW2}, 4, {vW1}")
        A(f"v_add_u32 {t3}, {t3}, {t2}")
        A(f"v_mul_u32_u24 {t3}, 1280, {t3}")
        A(f"v_lshl_add_u32 {t3}, {vC}, 4, {t3}")
        A(f"s_lshl_b32 {sA}, {sW}, 8")
        A(f"v_add_u32 {vW2}, {sA}, {t3}")
        A(f"v_cmp_gt_u32 vcc, 4, {vC}")
        A(f"v_mov_b32 {t3}, 0xffff")
        A(f"v_and_b32 {vIDX}, 3, {vC}")
        A(f"v_cndmask_b32 {v(MK[0])}, 0, {t3}, vcc")
        A(f"v_mul_u32_u24 {vIDX}, 0x5555, {vIDX}")
        A(f"v_xor_b32 {v(MK[1])}, {t3}, {v(MK[0])}")
        A(f"v_lshlrev_b32 {v(MK[2])}, 16, {v(MK[0])}")
        A(f"v_lshlrev_b32 {v(MK[3])}, 16, {v(MK[1])}")
        A(f"v_lshrrev_b32 {t3}, 5, {vL}")
        A(f"v_lshl_add_u32 {t3}, {t1}, 1, {t3}")
        A(f"v_lshl_add_u32 {t3}, {t2}, 2, {t3}")
        A(f"v_lshl_add_u32 {t3}, {vC}, 3, {t3}")
        A(f"s_lshl_b32 {sA}, {sW}, 2")
        A(f"v_lshl_add_u32 {vREDW}, {t3}, 4, {sA}")
        A(f"s_mul_i32 {sA}, s2, 2560"); A(f"s_mul_i32 {sC}, {sW}, 640"); A(f"s_add_u32 {sA}, {sA}, {sC}")
        A(f"v_lshl_add_u32 {vP1ST}, {vL}, 4, {sA}")
        A(f"v_mov_b32 {t3}, {OOB}")
        A(f"v_cmp_gt_u32 vcc, 40, {vL}")
        A(f"s_mul_i32 {sA}, {sB}, 2560"); A(f"s_lshl_b32 {sC}, {sH}, 7"); A(f"s_add_u32 {sA}, {sA}, {sC}"); A(f"s_add_u32 {sA}, {sA}, {HB}")
        A(f"v_cndmask_b32 {vP1ST}, {t3}, {vP1ST}, vcc")
        A(f"s_cmp_lt_u32 {sH}, 20"); A(f"s_cselect_b32 {sC}, 32, 0"); A(f"s_cmp_eq_u32 {sW}, 0"); A(f"s_cselect_b32 {sC}, {sC}, 0")
        A(f"v_lshl_add_u32 {vHST}, {vL}, 2, {sA}")
        A(f"v_cmp_gt_u32 vcc, {sC}, {vL}")
        for k in range(4): A(f"v_mov_b32 {v(AF[1]+k)}, -1")
        A(f"v_cndmask_b32 {vHST}, {t3}, {vHST}, vcc")

    DPPF = "row_mask:0xf bank_mask:0xf"
    def wave_reduce(op, reg, sdst, fill=()):
        fill = list(fill)
        steps = [f"quad_perm:[1,0,3,2] {DPPF}", f"quad_perm:[2,3,0,1] {DPPF}", f"row_half_mirror {DPPF}", f"row_mirror {DPPF}",
                 "row_bcast:15 row_mask:0xa bank_mask:0xf", "row_bcast:31 row_mask:0xc bank_mask:0xf"]
        for st in steps:
            for _ in range(2):
                if fill: A(fill.pop(0))
            A(f"{op}_dpp {reg}, {reg}, {reg} {st}")
        if fill: A(fill.pop(0))
        A(f"v_readlane_b32 {sdst}, {reg}, 63")
        for f in fill: A(f)
    def round_bf16(reg):
        A(f"v_cvt_pk_bf16_f32 {reg}, {reg}, {reg}")
        A(f"v_lshlrev_b32 {reg}, 16, {reg}")
    def layernorm(F, tp, out):
        A(f"v_pk_add_f32 {vr(tp,2)}, {vr(F,2)}, {vr(F+2,2)}")
        A(f"v_pk_add_f32 {vr(tp+2,2)}, {vr(F+4,2)}, {vr(F+6,2)}")
        A(f"v_pk_add_f32 {vr(tp,2)}, {vr(tp,2)}, {vr(F+8,2)}")
        A(f"v_pk_add_f32 {vr(tp,2)}, {vr(tp,2)}, {vr(tp+2,2)}")
        A(f"v_add_f32 {v(tp)}, {v(tp)}, {v(tp+1)}")
        wave_reduce("v_add_f32", v(tp), sA, fill=[f"v_mov_b32 {v(tp+2)}, {hex(fbits(-1.0/640))}"])
        A(f"v_mul_f32 {v(tp)}, {sA}, {v(tp+2)}")
        A(f"v_mul_f32 {v(tp+1)}, {sA}, {v(tp+2)}")
        A(f"v_pk_add_f32 {vr(tp+2,2)}, {vr(F,2)}, {vr(tp,2)}")
        A(f"v_pk_add_f32 {vr(F+2,2)}, {vr(F+2,2)}, {vr(tp,2)}")
        A(f"v_pk_mul_f32 {vr(tp+2,2)}, {vr(tp+2,2)}, {vr(tp+2,2)}")
        A(f"v_pk_add_f32 {vr(F+4,2)}, {vr(F+4,2)}, {vr(tp,2)}")
        A(f"v_pk_fma_f32 {vr(tp+2,2)}, {vr(F+2,2)}, {vr(F+2,2)}, {vr(tp+2,2)}")
        A(f"v_pk_add_f32 {vr(F+6,2)}, {vr(F+6,2)}, {vr(tp,2)}")
        A(f"v_pk_fma_f32 {vr(tp+2,2)}, {vr(F+4,2)}, {vr(F+4,2)}, {vr(tp+2,2)}")
        A(f"v_pk_add_f32 {vr(F+2,2)}, {vr(F+8,2)}, {vr(tp,2)}")
        A(f"v_pk_fma_f32 {vr(tp+2,2)}, {vr(F+6,2)}, {vr(F+6,2)}, {vr(tp+2,2)}")
        A(f"v_pk_fma_f32 {vr(tp+2,2)}, {vr(F+2,2)}, {vr(F+2,2)}, {vr(tp+2,2)}")
        A(f"v_add_f32 {v(tp+2)}, {v(tp+2)}, {v(tp+3)}")
        fill = [f"v_cvt_pk_bf16_f32 {v(tp)}, {v(tp)}, {v(tp)}",
                f"v_lshlrev_b32 {v(tp+1)}, 16, {v(tp)}",
                f"v_lshlrev_b32 {v(tp)}, 16, {v(tp)}",
                f"v_pk_add_f32 {vr(F,2)}, {vr(F,2)}, {vr(tp,2)}",
                f"v_pk_add_f32 {vr(F+8,2)}, {vr(F+8,2)}, {vr(tp,2)}",
                f"v_cvt_pk_bf16_f32 {v(F+2)}, {v(F)}, {v(F+1)}",
                f"v_cvt_pk_bf16_f32 {v(F+3)}, {v(F+8)}, {v(F+9)}",
                f"v_lshlrev_b32 {v(F)}, 16, {v(F+2)}",
                f"v_and_b32 {v(F+1)}, 0xffff0000, {v(F+2)}",
                f"v_lshlrev_b32 {v(F+8)}, 16, {v(F+3)}",
                f"v_and_b32 {v(F+9)}, 0xffff0000, {v(F+3)}",
                f"v_mov_b32 {v(tp+4)}, {hex(fbits(1.0/640))}"]
        wave_reduce("v_add_f32", v(tp+2), sA, fill=fill)
        A(f"v_mul_f32 {v(tp)}, {sA}, {v(tp+4)}")
        round_bf16(v(tp))
        A(f"v_add_f32 {v(tp)}, {hex(fbits(1e-5))}, {v(tp)}")
        round_bf16(v(tp))
        A(f"v_sqrt_f32 {v(tp)}, {v(tp)}")
        round_bf16(v(tp))
        A(f"v_rcp_f32 {v(tp)}, {v(tp)}")
        A(f"v_mul_f32 {v(F)}, {v(F)}, {v(tp)}")
        A(f"v_mul_f32 {v(F+1)}, {v(F+1)}, {v(tp)}")
        A(f"v_cvt_pk_bf16_f32 {v(out)}, {v(F)}, {v(F+1)}")
        A(f"v_mul_f32 {v(F+8)}, {v(F+8)}, {v(tp)}")
        A(f"v_mul_f32 {v(F+9)}, {v(F+9)}, {v(tp)}")
        A(f"v_mov_b32_dpp {v(out+1)}, {v(out)} row_half_mirror {DPPF}")
        A(f"v_cvt_pk_bf16_f32 {v(out+2)}, {v(F+8)}, {v(F+9)}")
        A(f"v_mov_b32_dpp {v(out+3)}, {v(out+2)} row_half_mirror {DPPF}")
    def afrag_oct(dst, P, c0):
        lo, hi = ((P, c0), (P + 1, 3 - c0)) if c0 < 4 else ((P + 1, 7 - c0), (P, c0 - 4))
        out = []
        for k in range(4):
            src, x = lo if k % 2 == 0 else hi
            out.append(f"v_and_b32_dpp {v(dst+k)}, {v(src)}, {v(MK[k])} quad_perm:[{x},{x},{x},{x}] {DPPF}")
        return out
    def smf(d, a, slot):
        A(f"v_smfmac_f32_16x16x64_bf16 {vr(d,4)}, {vr(a,4)}, {slot[0]}[{slot[1]}:{slot[1]+7}], {vIDX}")
    def compact(blocks):
        for d in blocks:
            A(f"v_permlane32_swap_b32 {v(d)}, {v(d+1)}")
            A(f"v_permlane32_swap_b32 {v(d+2)}, {v(d+3)}")
        for d in blocks:
            A(f"v_add_f32_dpp {v(d)}, {v(d+1)}, {v(d)} row_ror:8 row_mask:0xf bank_mask:0x3")
        for d in blocks:
            A(f"v_add_f32_dpp {v(d)}, {v(d+2)}, {v(d+3)} row_ror:8 row_mask:0xf bank_mask:0xc")

    freeA = [("a", 8 * i) for i in range(32)]
    freeV = [("v", 64 + 8 * i) for i in range(24)]
    halfV = []
    slots = {}
    def can_alloc(kind):
        if kind == "pair": return bool(freeA or freeV)
        if kind == "half": return bool(halfV or freeV)
        return True
    def alloc(kind, key, preferV=False):
        if kind == "pair":
            s = (freeV if (preferV and freeV) or not freeA else freeA).pop(0)
        else:
            if not halfV:
                s = freeV.pop(0); halfV.extend([s, (s[0], s[1] + 4)])
            s = halfV.pop(0)
        slots[key] = s
        return s
    def release(kind, key):
        s = slots.pop(key)
        if kind == "pair":
            (freeA if s[0] == "a" else freeV).append(s)
        else:
            mate = (s[0], s[1] ^ 4)
            if mate in halfV:
                halfV.remove(mate); freeV.append((s[0], s[1] & ~7))
            else: halfV.append(s)

    def tile_load(reg, vaddr, sr, soff, imm, pol):
        A(f"buffer_load_dwordx4 {reg[0]}[{reg[1]}:{reg[1]+3}], {vaddr}, {srd(sr)}, {soff} offen offset:{imm} {pol}".rstrip())
    def mk_pair(key, Tt, vaddr, sr, soff_fn, imm, pol, preferV=False):
        def emit():
            s = alloc("pair", key, preferV) if key not in slots else slots[key]
            tile_load((s[0], s[1] + 4 * Tt), vaddr, sr, soff_fn(), imm, pol)
        return dict(tag=key + (Tt,), need="pair" if Tt == 0 else None, emit=emit)
    last_soff = [None]
    def soff_add(base, const):
        def f():
            if last_soff[0] != (base, const):
                if base is None: A(f"s_mov_b32 {sT}, {const}")
                else: A(f"s_add_u32 {sT}, {base}, {const}")
                last_soff[0] = (base, const)
            return sT
        return f
    Lx = []
    for s_ in range(4):
        def emit(s_=s_):
            A(f"s_add_u32 {sT}, {sW}, {s_}"); A(f"s_and_b32 {sT}, {sT}, 3"); A(f"s_lshl_b32 {sT}, {sT}, 8")
            A(f"buffer_load_dword {v(T+s_)}, {v(T+5)}, {srd(sX)}, {sT} offen")
        Lx.append(dict(tag=("x", s_), need=None, emit=emit))
    Lx.append(dict(tag=("x", 4), need=None, emit=lambda: A(f"buffer_load_dword {v(T+4)}, {v(T+6)}, {srd(sX)}, 0 offen offset:1024")))
    Lwq = []
    for u in range(10):
        for t in range(3):
            for Tt in range(2):
                base, rows = (sQB0, 64 * Tt + 2 * u) if u < 8 else (sQB1, 64 * Tt + 2 * (u - 8))
                Lwq.append(mk_pair(("wq", u, t), Tt, vWQ, sWQ, soff_add(base, rows * 12288), 128 * t, o["polW"]))
    LK = []
    for n in range(16):
        for hB in range(2):
            for t in range(3):
                def emit(n=n, hB=hB, t=t):
                    s = alloc("half", ("k", n, hB, t))
                    tile_load(s, vK, sK, f"s{sU+n}", hB * 768 + t * 128, o["polKV"])
                LK.append(dict(tag=("k", n, hB, t), need="half", emit=emit))
    LV = []
    for n in range(16):
        for t in range(3):
            for Tt in range(2):
                LV.append(mk_pair(("v", n, t), Tt, vV, sV, (lambda n=n: f"s{sU+n}"), Tt * 3072 + t * 128, o["polKV"], preferV=True))
    Lwo = []
    for u in range(6):
        for blk in range(5):
            for Tt in range(2):
                Lwo.append(mk_pair(("wo", u, blk), Tt, vWO, sWO, soff_add(None, u * 10240 + Tt * 5120), blk * 256, o["polW"]))
    Lw1 = []
    for u in range(10):
        for Tt in range(2):
            base, rows = (sF0, 64 * Tt + 16 * (u & 3) + (u >> 2)) if u < 8 else (sF1, 64 * Tt + 16 * (u - 8))
            Lw1.append(mk_pair(("w1", u), Tt, vW1, sW1, soff_add(base, rows * 3072), 0, o["polW"]))
    Lw2 = []
    for u in range(3):
        for blk in range(3):
            for Tt in range(2):
                rows = 16 * u + 8 * Tt
                if blk < 2: Lw2.append(mk_pair(("w2", u, blk), Tt, vW2, sW2, soff_add(None, rows * 1280), blk * 128, o["polW"]))
                else: Lw2.append(mk_pair(("w2", u, blk), Tt, vW2, sW2, soff_add(sZ, rows * 1280), 0, o["polW"]))
    def misc(tag, fn): return dict(tag=tag, need=None, emit=fn)
    def mix(*lists):
        lists = [l for l in lists if l]
        items = []
        for li, l in enumerate(lists):
            for i, it in enumerate(l): items.append(((i + 0.5) / len(l), li, it))
        items.sort(key=lambda z: (z[0], z[1]))
        return [z[2] for z in items]
    def clr1():
        A(f"buffer_store_dwordx4 {vr(AF[1],4)}, {vP1ST}, {srd(sWS)}, 0 offen sc1")
    def clr2():
        A(f"s_mov_b32 {sT}, {P2}"); last_soff[0] = None
        A(f"buffer_store_dwordx4 {vr(AF[1],4)}, {vP1ST}, {srd(sWS)}, {sT} offen sc1")
    def clr3():
        A(f"buffer_store_dword {v(AF[1])}, {vHST}, {srd(sWS)}, 0 offen sc1")
    def code_pf(label, reg, areg):
        def f():
            A(f"s_getpc_b64 s[{sPC}:{sPC+1}]")
            here = f"L_pc_{label}"
            A.label(here)
            A(f"s_add_u32 s{sPC}, s{sPC}, {label}-{here}"); A(f"s_addc_u32 s{sPC+1}, s{sPC+1}, 0")
            A(f"v_lshlrev_b32 {areg}, 7, {vL}")
            A(f"v_min_u32 {areg}, L_last-{label}, {areg}")
            A(f"global_load_dword {reg}, {areg}, s[{sPC}:{sPC+1}]")
        return f
    def cntload():
        A(f"s_lshl_b32 {sT}, {sB}, 5"); last_soff[0] = None
        A(f"buffer_load_dword {tCNT}, off, {srd(sDBG)}, {sT} sc1")
    extra = [misc(("xr",), lambda: A(f"buffer_load_ushort {tXR}, {tOUT}, {srd(sX)}, 0 offen"))]
    if o["codepf"]: extra.append(misc(("pf",), code_pf("L_tail", tPF, tPF)))
    clrs = [misc(("clr", 0), clr1), misc(("clr", 1), clr2), misc(("clr", 2), clr3)]
    hooks = {}
    subs = []
    if not o["burst"]:
        phA = mix(Lwq, LK[:o["nKA"]])
        phB = mix(LK[o["nKA"]:], Lwo[:o["nWOB"]])
        rest = Lwo[o["nWOB"]:] + Lw1 + Lw2
        nlast = o["wlast"]
        phC = mix(LV, rest[:len(rest) - nlast]) + rest[len(rest) - nlast:]
        nfirst = o["WA"] - len(Lx)
        phA = phA[:nfirst] + clrs + phA[nfirst:]
        k = len(phC) * 2 // 3
        phC = phC[:k] + extra + phC[k:]
        k = len(phC) - nlast - o["WC"]
        phC = phC[:k] + [misc(("cnt",), cntload)] + phC[k:]
        seq = Lx + phA + phB + phC
        Wn = [o["WA"]] * (len(Lx) + len(phA)) + [o["WB"]] * len(phB) + [o["WC"]] * len(phC)
    else:
        NG = 4 if o["grp"] == "h" else 8
        KV = LK + LV
        pol = o["polT"]
        vDUM = v(T + 12)
        def touch(areg, sr, soff, dst=vDUM):
            A(f"buffer_load_dword {dst}, {areg}, {srd(sr)}, {soff} offen {pol}")
            if o["touch64"]: A(f"buffer_load_dword {dst}, {areg}, {srd(sr)}, {soff} offen offset:64 {pol}")
            if o["polT2"] is not None: A(f"buffer_load_dword {dst}, {areg}, {srd(sr)}, {soff} offen {o['polT2']}")
        ncond = [0]
        def cond(sreg, k, fn):
            def f():
                lbl = f"L_skip{ncond[0]}"; ncond[0] += 1
                A(f"s_cmp_lg_u32 {sreg}, {k}"); A(f"s_cbranch_scc1 {lbl}")
                fn(); A.label(lbl); last_soff[0] = None
            return f
        def reserve(lst):
            def f():
                for it in lst:
                    if it["need"]:
                        while not can_alloc("pair"): force_now()
                        freeV.sort(key=lambda z: -z[1])
                        alloc("pair", it["tag"][:-1])
                subs.append((lst[0]["tag"][0], lst, dict(slots)))
            return f
        def touch_wo():
            a = vWQ
            A(f"s_lshl_b32 {sT2}, {sB}, 2"); A(f"s_add_u32 {sT2}, {sT2}, {sW}"); A(f"s_mul_i32 {sT2}, {sT2}, {60*128}")
            A(f"v_lshlrev_b32 {a}, 7, {vL}"); touch(a, sWO, sT2)
        def touch_w12():
            a = vWQ
            A(f"s_lshl_b32 {sT2}, {sB}, 2"); A(f"s_add_u32 {sT2}, {sT2}, {sW}"); A(f"s_mul_i32 {sT}, {sT2}, {15*128}")
            A(f"s_mul_i32 {sT2}, {sT2}, {20*3072}")
            A(f"v_min_u32 {a}, 39, {vL}"); A(f"v_and_b32 {vDUM}, 1, {a}"); A(f"v_lshrrev_b32 {a}, 1, {a}")
            A(f"v_mul_u32_u24 {a}, 3072, {a}"); A(f"v_mul_u32_u24 {vDUM}, 92, {vDUM}"); A(f"v_add_u32 {a}, {a}, {vDUM}")
            A(f"buffer_load_dword {vDUM}, {a}, {srd(sW1)}, {sT2} offen {pol}")
            if o["polT2"] is not None: A(f"buffer_load_dword {vDUM}, {a}, {srd(sW1)}, {sT2} offen {o['polT2']}")
            A(f"v_min_u32 {a}, 14, {vL}"); A(f"v_lshlrev_b32 {a}, 7, {a}"); touch(a, sW2, sT)
        assert o["b0"] - o["tlead"] > o["a0"] + (NG - 1) * o["da"]
        assert o["c0"] - o["tlead"] > o["b0"] + (NG - 1) * o["db"] - o["tlead"] + o["W"]
        def hook(i, fn): hooks.setdefault(KV[i]["tag"], []).append(fn)
        for base, step, lst, tfn in ((o["a0"], o["da"], Lwq, None), (o["b0"], o["db"], Lwo, touch_wo), (o["c0"], o["dc"], Lw1 + Lw2, touch_w12)):
            nm = lst[0]["tag"][0]
            hook(base, reserve(lst))
            for k in range(NG):
                if tfn and o["touch"] and (o["grp"] == "h" or (o["grp"] == "hb" and k % 2 == 0) or k == 0):
                    hook(base + k * step - o["tlead"], cond(sGT, k, tfn))
                hook(base + k * step, cond(sG, k, lambda nm=nm: A(f"s_call_b64 {sRA}, L_burst_{nm}")))
        lastA = KV[o["a0"] + (NG - 1) * o["da"]]["tag"]
        lastB = KV[o["b0"] + (NG - 1) * o["db"]]["tag"]
        lastC = KV[o["c0"] + (NG - 1) * o["dc"]]["tag"]
        t0l = [misc(("tq",), lambda: touch(vT2, sWQ, sT2, vT1))] if o["touch"] else []
        k1 = 160; k2 = 192 - o["W"]
        seq = Lx + t0l + KV[:6] + clrs + KV[6:k1] + extra + KV[k1:k2] + [misc(("cnt",), cntload)] + KV[k2:]
        nhead = len(Lx) + len(t0l) + 6 + 3
        Wn = [nhead + 2] * (nhead + 2) + [o["W"]] * (len(seq) - nhead - 2)
    pos = {it["tag"]: i for i, it in enumerate(seq)}

    acts = []
    def act(needs, fn, before=None): acts.append(dict(needs=[pos[t] for t in needs], fn=fn))
    def a_lnx():
        A.comment("LayerNorm(x)")
        F = D
        for s_ in range(5):
            A(f"v_lshlrev_b32 {v(F+2*s_)}, 16, {v(T+s_)}")
            A(f"v_and_b32 {v(F+2*s_+1)}, 0xffff0000, {v(T+s_)}")
        layernorm(F, T, S)
        for k in range(12): A(f"v_mov_b32 {v(D+k)}, 0")
    act([("x", s_) for s_ in range(5)], a_lnx)
    assert pos[("k", 1, 0, 0)] > pos[("clr", 0)]
    if o["burst"]:
        for it in Lwq: pos[it["tag"]] = pos[lastA]
        for it in Lwo: pos[it["tag"]] = pos[lastB]
        assert o["a0"] >= 6
    else:
        assert pos[("wq", 8, 0, 0)] > pos[("clr", 0)]
        assert pos[("x", 4)] + o["WA"] > pos[("clr", 2)]
    for u in range(10):
        for t in range(3):
            def f(u=u, t=t):
                if t == 0:
                    for ins in afrag_oct(AF[u & 1], S + 2 * (u >> 3), u & 7): A(ins)
                smf(D + 4 * t, AF[u & 1], slots[("wq", u, t)]); release("pair", ("wq", u, t))
            act([("wq", u, t, 1)], f); acts[-1]["cost"] = 0.2 if o["burst"] else 1
    def a_qred1():
        A.comment("q: cross-wave reduction")
        compact([D, D + 4, D + 8])
        for t in range(3): A(f"ds_write_b32 {vREDW}, {v(D+4*t)} offset:{RED + 1024*t}")
        A(f"v_lshlrev_b32 {v(T)}, 4, {vL}")
        A(f"s_mul_i32 {sA}, {sW}, 384")
        A(f"v_lshl_add_u32 {v(T+1)}, {vL}, 1, {sA}")
        A(f"v_and_b32 {v(T+2)}, 7, {vL}")
        A(f"v_lshl_add_u32 {v(T+2)}, {v(T+2)}, 4, {sA}")
        A("s_waitcnt lgkmcnt(0)")
        A("s_barrier")
        for t in range(3): A(f"ds_read_b128 {vr(D+4*t,4)}, {v(T)} offset:{RED + 1024*t}")
    act([], a_qred1)
    def a_qred2():
        A("s_waitcnt lgkmcnt(0)")
        for t in range(3):
            d = D + 4 * t
            A(f"v_pk_add_f32 {vr(d,2)}, {vr(d,2)}, {vr(d+2,2)}")
        for t in range(3):
            d = D + 4 * t
            A(f"v_add_f32 {v(d)}, {v(d)}, {v(d+1)}")
        for t in range(3):
            d = D + 4 * t
            A(f"v_cvt_pk_bf16_f32 {v(d)}, {v(d)}, {v(d)}")
        for t in range(3): A(f"ds_write_b16 {v(T+1)}, {v(D+4*t)} offset:{QB + 128*t}")
        A("s_waitcnt lgkmcnt(0)")
        for t in range(3): A(f"ds_read_b128 {vr(Q+4*t,4)}, {v(T+2)} offset:{QB + 128*t}")
        for k in range(12): A(f"v_mov_b32 {v(D+k)}, 0")
        A("s_waitcnt lgkmcnt(0)")
        stamp()
    act([], a_qred2)
    for n in range(16):
        for hB in range(2):
            def f(n=n, hB=hB):
                acc = v(T + hB)
                first = True
                for t in range(3):
                    s = slots[("k", n, hB, t)]
                    for k in range(4):
                        if first: A(f"v_dot2_f32_bf16 {acc}, v{s[1]+k}, {v(Q+4*t+k)}, 0"); first = False
                        else: A(f"v_dot2_f32_bf16 {acc}, v{s[1]+k}, {v(Q+4*t+k)}, {acc}")
                    release("half", ("k", n, hB, t))
                if hB == 1:
                    A(f"s_lshl_b64 vcc, {sLM}, {n & 7}")
                    for st in (f"quad_perm:[1,0,3,2] {DPPF}", f"quad_perm:[2,3,0,1] {DPPF}", f"row_half_mirror {DPPF}"):
                        for hh in range(2): A(f"v_add_f32_dpp {v(T+hh)}, {v(T+hh)}, {v(T+hh)} {st}")
                    for hh in range(2):
                        d = v(S + 2 * (n >> 3) + hh)
                        A(f"v_cndmask_b32 {d}, {d}, {v(T+hh)}, vcc")
            act([("k", n, hB, 2)], f)
    def a_soft1():
        A.comment("softmax statistics")
        stamp()
        A(f"v_mov_b32 {v(T+4)}, {hex(fbits(192 ** -0.5))}")
        for rnd in range(2):
            for k in range(2): A(f"v_cvt_pk_bf16_f32 {v(T+k)}, {v(S+2*k)}, {v(S+2*k+1)}")
            for k in range(2):
                A(f"v_lshlrev_b32 {v(S+2*k)}, 16, {v(T+k)}")
                A(f"v_and_b32 {v(S+2*k+1)}, 0xffff0000, {v(T+k)}")
            if rnd == 0:
                for k in range(4): A(f"v_mul_f32 {v(S+k)}, {v(S+k)}, {v(T+4)}")
        A(f"v_max3_f32 {v(T)}, {v(S)}, {v(S+1)}, {v(S+2)}")
        A(f"v_max_f32 {v(T)}, {v(T)}, {v(S+3)}")
        wave_reduce("v_max_f32", v(T), sA, fill=[f"v_mov_b32 {v(T+8)}, {hex(LOG2E)}", f"s_lshl_b32 {sC}, {sW}, 3", f"v_mov_b32 {v(T+9)}, {sC}", f"v_mov_b32 {v(T+10)}, 0"])
        for k in range(4): A(f"v_subrev_f32 {v(T+k)}, {sA}, {v(S+k)}")
        for k in range(4): A(f"v_mul_f32 {v(T+k)}, {v(T+k)}, {v(T+8)}")
        for k in range(4): A(f"v_exp_f32 {v(T+k)}, {v(T+k)}")
        A(f"v_mov_b32 {v(T+4)}, {sA}")
        A(f"v_pk_add_f32 {vr(T,2)}, {vr(T,2)}, {vr(T+2,2)}")
        A(f"v_add_f32 {v(T)}, {v(T)}, {v(T+1)}")
        wave_reduce("v_add_f32", v(T), sC)
        A(f"v_mov_b32 {v(T+5)}, {sC}")
        A(f"ds_write_b64 {v(T+9)}, {vr(T+4,2)} offset:{SM}")
    act([], a_soft1)
    def a_soft2():
        A("s_waitcnt lgkmcnt(0)")
        A("s_barrier")
        A(f"ds_read_b128 {vr(T,4)}, {v(T+10)} offset:{SM}")
        A(f"ds_read_b128 {vr(T+4,4)}, {v(T+10)} offset:{SM+16}")
        A(f"s_cmp_lg_u32 {sW}, 0")
        A("s_cbranch_scc1 L_nosig")
        A(f"s_lshl_b32 {sA}, {sB}, 5")
        A(f"v_mov_b32 {v(T+11)}, 1")
        A("s_mov_b64 exec, 1")
        A(f"buffer_atomic_add {v(T+11)}, off, {srd(sDBG)}, {sA} sc1")
        A("s_mov_b64 exec, -1")
        A.label("L_nosig")
        A("s_waitcnt lgkmcnt(0)")
        A(f"v_max3_f32 {v(T+9)}, {v(T)}, {v(T+2)}, {v(T+4)}")
        A(f"v_max_f32 {v(T+9)}, {v(T+9)}, {v(T+6)}")
        for k in range(4): A(f"v_sub_f32 {v(T+2*k)}, {v(T+2*k)}, {v(T+9)}")
        for k in range(4): A(f"v_sub_f32 {v(S+k)}, {v(S+k)}, {v(T+9)}")
        for k in range(4): A(f"v_mul_f32 {v(T+2*k)}, {v(T+2*k)}, {v(T+8)}")
        for k in range(4): A(f"v_mul_f32 {v(S+k)}, {v(S+k)}, {v(T+8)}")
        for k in range(4): A(f"v_exp_f32 {v(T+2*k)}, {v(T+2*k)}")
        for k in range(4): A(f"v_exp_f32 {v(S+k)}, {v(S+k)}")
        A(f"v_mul_f32 {v(T)}, {v(T)}, {v(T+1)}")
        for k in range(1, 4): A(f"v_fmac_f32 {v(T)}, {v(T+2*k)}, {v(T+2*k+1)}")
        A(f"v_rcp_f32 {v(T)}, {v(T)}")
        for k in range(4): A(f"v_mul_f32 {v(S+k)}, {v(S+k)}, {v(T)}")
        A(f"v_cvt_pk_bf16_f32 {v(S)}, {v(S)}, {v(S+1)}")
        A(f"v_cvt_pk_bf16_f32 {v(S+2)}, {v(S+2)}, {v(S+3)}")
        A(f"v_mov_b32_dpp {v(S+1)}, {v(S)} row_half_mirror {DPPF}")
        A(f"v_mov_b32_dpp {v(S+3)}, {v(S+2)} row_half_mirror {DPPF}")
        stamp()
    act([], a_soft2)
    sRD = [f"s{sWQ+k}" for k in range(4)]
    sHL = [f"s{sK+k}" for k in range(4)]
    def a_tailprep():
        A.comment("addresses used by the tail")
        c, r8, i16, b4, b3, b5, tt, oob = [v(T + k) for k in range(8)]
        A(f"v_and_b32 {c}, 7, {vL}"); A(f"v_lshrrev_b32 {r8}, 3, {vL}"); A(f"v_and_b32 {i16}, 15, {vL}")
        A(f"v_bfe_u32 {b4}, {vL}, 4, 1"); A(f"v_bfe_u32 {b3}, {vL}, 3, 1"); A(f"v_lshrrev_b32 {b5}, 5, {vL}")
        A(f"v_mov_b32 {oob}, {OOB}")
        A(f"v_min_u32 {tt}, 5, {i16}"); A(f"v_lshlrev_b32 {tt}, 7, {tt}")
        A(f"v_lshrrev_b32 {tO_R}, 4, {vL}"); A(f"v_lshl_add_u32 {tO_R}, {tO_R}, 5, {tt}")
        A(f"s_mul_i32 {sA}, {sW}, 768"); A(f"v_add_u32 {tO_R}, {sA}, {tO_R}")
        A(f"v_lshlrev_b32 {tt}, 9, {b5}"); A(f"v_lshl_add_u32 {tt}, {i16}, 5, {tt}"); A(f"v_lshl_add_u32 {tt}, {b4}, 4, {tt}")
        A(f"s_mul_i32 {sA}, {sW}, 3072"); A(f"v_add_u32 {tR2W}, {sA}, {tt}")
        A(f"s_mul_i32 {sA}, {sW}, 5"); A(f"v_add_u32 {tt}, {sA}, {r8}")
        A(f"v_lshrrev_b32 {tR2R}, 1, {tt}"); A(f"v_lshlrev_b32 {tR2R}, 8, {tR2R}")
        A(f"v_and_b32 {tt}, 1, {tt}"); A(f"v_lshl_add_u32 {tR2R}, {tt}, 4, {tR2R}"); A(f"v_lshl_add_u32 {tR2R}, {c}, 5, {tR2R}")
        A(f"s_mul_i32 {sA}, {sB}, 81920"); A(f"s_lshl_b32 {sC}, {sH}, 7"); A(f"s_add_u32 {sA}, {sA}, {sC}")
        A(f"v_mul_u32_u24 {tt}, 2560, {r8}"); A(f"v_lshl_add_u32 {tt}, {c}, 4, {tt}"); A(f"v_add_u32 {tRD}, {sA}, {tt}")
        A(f"s_mul_i32 {sA}, {sB}, 2560"); A(f"s_add_u32 {sA}, {sA}, {HB}")
        A(f"v_lshl_add_u32 {tHL0}, {vL}, 3, {sA}")
        A(f"s_lshl_b32 {sC}, {sW}, 1"); A(f"v_xor_b32 {tt}, {sC}, {vL}"); A(f"v_lshl_add_u32 {tHL4}, {tt}, 3, {sA}")
        for k in range(4):
            A(f"s_add_u32 {sHL[k]}, {sW}, {k}"); A(f"s_and_b32 {sHL[k]}, {sHL[k]}, 3"); A(f"s_lshl_b32 {sHL[k]}, {sHL[k]}, 9")
            A(f"s_mov_b32 {sRD[k]}, {P1 + k * 20480}")
        A(f"v_and_b32 {tt}, 3, {c}"); A(f"v_min_u32 {tt}, 2, {tt}"); A(f"v_lshlrev_b32 {tt}, 8, {tt}"); A(f"v_lshl_add_u32 {tZR}, {r8}, 5, {tt}")
        A(f"s_mul_i32 {sA}, s2, 2560"); A(f"s_add_u32 {sA}, {sA}, {P2}")
        A(f"v_lshlrev_b32 {tt}, 7, {b4}"); A(f"v_lshl_add_u32 {tt}, {c}, 4, {tt}"); A(f"v_add_u32 {tt}, {sA}, {tt}")
        A(f"s_lshl_b32 {sC}, {sW}, 9"); A(f"v_lshl_add_u32 {tP2ST}, {b5}, 8, {sC}")
        A(f"s_add_u32 {sC}, {sW}, 8"); A(f"s_lshl_b32 {sC}, {sC}, 8"); A(f"s_cmp_lt_u32 {sW}, 2"); A(f"s_cselect_b32 {sC}, {sC}, {OOB}")
        A(f"v_cmp_eq_u32 vcc, 1, {b5}"); A(f"v_mov_b32 {i16}, {sC}")
        A(f"v_cndmask_b32 {i16}, {oob}, {i16}, vcc")
        A(f"v_cmp_eq_u32 vcc, 1, {b3}")
        A(f"v_cndmask_b32 {tP2ST}, {tP2ST}, {i16}, vcc")
        A(f"v_add_u32 {tP2ST}, {tP2ST}, {tt}")
        A(f"s_lshr_b32 {sA}, {sH}, 1"); A(f"s_lshl_b32 {sA}, {sA}, 7"); A(f"s_and_b32 {sC}, {sH}, 1"); A(f"s_lshl_b32 {sC}, {sC}, 3"); A(f"s_add_u32 {sA}, {sA}, {sC}")
        A(f"v_lshl_add_u32 {tt}, {c}, 3, {r8}"); A(f"v_lshl_add_u32 {tt}, {tt}, 1, {sA}")
        A(f"v_cmp_gt_u32 vcc, 32, {vL}")
        A(f"s_mov_b32 {sSPIN}, 0")
        A(f"v_cndmask_b32 {tOUT}, {oob}, {tt}, vcc")
    tailprep_done = [False]
    for n in range(16):
        for t in range(3):
            def f(n=n, t=t):
                if t == 0:
                    for ins in afrag_oct(AF[n & 1], S + 2 * (n >> 3), n & 7): A(ins)
                smf(D + 4 * t, AF[n & 1], slots[("v", n, t)]); release("pair", ("v", n, t))
            act([("v", n, t, 1)], f)
        if n == 4:
            def g(): a_tailprep(); tailprep_done[0] = True
            act([], g)

    arrived = -1
    ai = 0
    def wait_for(idx, issued):
        nonlocal arrived
        if idx > arrived:
            A(f"s_waitcnt vmcnt({issued - 1 - idx})"); arrived = idx
    def force_action(issued):
        nonlocal ai
        a = acts[ai]; m = max(a["needs"], default=-1)
        assert m < issued, "action needs a load that is not issued yet"
        wait_for(m, issued); a["fn"](); ai += 1
    forced = 0
    cur = [0]
    def force_now():
        nonlocal forced
        force_action(cur[0]); forced += 1
    for n, it in enumerate(seq):
        cur[0] = n
        if it["tag"] == ("clr", 0): late_setup()
        if it["tag"] == ("xr",): assert tailprep_done[0]
        if n - Wn[n] > arrived: wait_for(n - Wn[n], n)
        for hk in hooks.get(it["tag"], []): hk()
        while it["need"] and not can_alloc(it["need"]):
            force_action(n); forced += 1
        it["emit"]()
        budget = 1.0
        while budget > 0.01 and ai < len(acts) and max(acts[ai]["needs"], default=-1) <= arrived:
            budget -= acts[ai].get("cost", 1); acts[ai]["fn"](); ai += 1
    issued = len(seq)
    A.label("L_tail")
    while ai < len(acts): force_action(issued)
    o["_forced"] = forced

    stamp()
    assert not halfV
    tv = sorted(s[1] for s in freeV)
    assert len(tv) >= 5, tv
    DO = [tv[0], tv[0] + 4, tv[1], tv[1] + 4, tv[2]]
    G = [tv[3], tv[3] + 4, tv[4], tv[4] + 4]
    for d in DO[:2]:
        for k in range(4): A(f"v_mov_b32 {v(d+k)}, 0")
    compact([D, D + 4, D + 8])
    for t in range(3): A(f"ds_write_b32 {vREDW}, {v(D+4*t)} offset:{RED + 1024*t}")
    for d in DO[2:4]:
        for k in range(4): A(f"v_mov_b32 {v(d+k)}, 0")
    A("s_waitcnt lgkmcnt(0)")
    A("s_barrier")
    A(f"ds_read_b128 {vr(T,4)}, {tO_R} offset:{RED}")
    A(f"ds_read_b128 {vr(T+4,4)}, {tO_R} offset:{RED+16}")
    for k in range(4): A(f"v_mov_b32 {v(DO[4]+k)}, 0")
    wait_for(max(pos[it["tag"]] for it in Lwo), issued)
    A("s_waitcnt lgkmcnt(0)")
    A(f"v_pk_add_f32 {vr(T,2)}, {vr(T,2)}, {vr(T+2,2)}")
    A(f"v_pk_add_f32 {vr(T+4,2)}, {vr(T+4,2)}, {vr(T+6,2)}")
    A(f"v_add_f32 {v(T)}, {v(T)}, {v(T+1)}")
    A(f"v_add_f32 {v(T+4)}, {v(T+4)}, {v(T+5)}")
    A(f"v_cvt_pk_bf16_f32 {v(S)}, {v(T)}, {v(T+4)}")
    def af_row(dst, u): return [f"v_and_b32_dpp {v(dst+k)}, {v(S)}, {v(MK[k])} row_newbcast:{u} {DPPF}" for k in range(4)]
    for ins in af_row(AF[0], 0): A(ins)
    for u in range(6):
        nxt = af_row(AF[(u + 1) & 1], u + 1) if u < 5 else []
        for blk in range(5):
            smf(DO[blk], AF[u & 1], slots[("wo", u, blk)])
            if nxt: A(nxt.pop(0))
    for k in range(4): A(f"v_mov_b32_dpp {v(DO[0]+k)}, {v(DO[1]+k)} quad_perm:[0,1,2,3] row_mask:0xc bank_mask:0xf")
    A(f"ds_write_b128 {tR2W}, {vr(DO[0],4)} offset:{RED2}")
    for k in range(4): A(f"v_mov_b32_dpp {v(DO[2]+k)}, {v(DO[3]+k)} quad_perm:[0,1,2,3] row_mask:0xc bank_mask:0xf")
    A(f"ds_write_b128 {tR2W}, {vr(DO[2],4)} offset:{RED2+1024}")
    A(f"ds_write_b128 {tR2W}, {vr(DO[4],4)} offset:{RED2+2048}")
    A("s_waitcnt lgkmcnt(0)")
    A("s_barrier")
    for k in range(4): A(f"ds_read_b128 {vr(G[k],4)}, {tR2R} offset:{RED2 + 3072*k}")
    for k in range(12): A(f"v_mov_b32 {v(D+k)}, 0")
    A("s_waitcnt lgkmcnt(0)")
    def sum4():
        for hh in (0, 2):
            A(f"v_pk_add_f32 {vr(G[0]+hh,2)}, {vr(G[0]+hh,2)}, {vr(G[1]+hh,2)}")
            A(f"v_pk_add_f32 {vr(G[2]+hh,2)}, {vr(G[2]+hh,2)}, {vr(G[3]+hh,2)}")
        for hh in (0, 2):
            A(f"v_pk_add_f32 {vr(G[0]+hh,2)}, {vr(G[0]+hh,2)}, {vr(G[2]+hh,2)}")
    sum4()
    for k in range(4): A(f"v_min_u32 {v(G[0]+k)}, -2, {v(G[0]+k)}")
    A(f"buffer_store_dwordx4 {vr(G[0],4)}, {vP1ST}, {srd(sWS)}, 0 offen sc1")
    stamp()
    def spin_guard():
        A(f"s_add_u32 {sSPIN}, {sSPIN}, 1"); A(f"s_cmp_gt_u32 {sSPIN}, {o['spin']}"); A("s_cbranch_scc1 L_end")
    wait_for(pos[("cnt",)], issued + 1)
    A(f"v_cmp_gt_u32 vcc, 32, {tCNT}")
    A("s_cbranch_vccnz L_cntwait")
    A.label("L_cntok")
    A(f"s_cmp_lg_u32 {sW}, 0"); A("s_cbranch_scc1 L_hpoll")
    A(f"s_cmp_ge_u32 {sH}, 20"); A("s_cbranch_scc1 L_hpoll")
    def reduce_stage(lbl):
        A.label(lbl)
        for k in range(4): A(f"buffer_load_dwordx4 {vr(G[k],4)}, {tRD}, {srd(sWS)}, {sRD[k]} offen sc1")
        spin_guard()
        A("s_waitcnt vmcnt(0)")
        regs = [G[k] + j for k in range(4) for j in range(4)]
        A(f"v_max3_u32 {v(T)}, {v(regs[0])}, {v(regs[1])}, {v(regs[2])}")
        A(f"v_max3_u32 {v(T+1)}, {v(regs[3])}, {v(regs[4])}, {v(regs[5])}")
        for k in range(6, 16, 2):
            d = v(T + ((k >> 1) & 1))
            A(f"v_max3_u32 {d}, {d}, {v(regs[k])}, {v(regs[k+1])}")
        A(f"v_max_u32 {v(T)}, {v(T)}, {v(T+1)}")
        A(f"v_cmp_eq_u32 vcc, -1, {v(T)}")
        A(f"s_cbranch_vccnz {lbl}")
        sum4()
        g = G[0]
        A(f"v_add_f32_dpp {v(T)}, {v(g)}, {v(g)} row_ror:8 row_mask:0xf bank_mask:0x3")
        A(f"v_add_f32_dpp {v(T+1)}, {v(g+2)}, {v(g+2)} row_ror:8 row_mask:0xf bank_mask:0x3")
        A(f"v_add_f32_dpp {v(T)}, {v(g+1)}, {v(g+1)} row_ror:8 row_mask:0xf bank_mask:0xc")
        A(f"v_add_f32_dpp {v(T+1)}, {v(g+3)}, {v(g+3)} row_ror:8 row_mask:0xf bank_mask:0xc")
        A(f"v_permlane16_swap_b32 {v(T)}, {v(T+1)}")
        A(f"v_add_f32 {v(T)}, {v(T)}, {v(T+1)}")
        A(f"v_mov_b32 {v(T+1)}, {v(T)}")
        A(f"v_permlane32_swap_b32 {v(T)}, {v(T+1)}")
        A(f"v_add_f32 {v(T)}, {v(T)}, {v(T+1)}")
        round_bf16(v(T))
    A(f"v_lshlrev_b32 {tXR}, 16, {tXR}")
    reduce_stage("L_red1")
    A(f"v_add_f32 {tXR}, {tXR}, {v(T)}")
    round_bf16(tXR)
    A(f"buffer_store_dword {tXR}, {vHST}, {srd(sWS)}, 0 offen sc1")
    A.label("L_hpoll")
    F = tv[0]; F2 = tv[1]
    assert F2 == F + 8 or True
    cons = [x for x in tv if x + 8 in tv]
    assert cons, tv
    F = cons[0]
    for k in range(4): A(f"buffer_load_dwordx2 {vr(F+2*k,2)}, {tHL0}, {srd(sWS)}, {sHL[k]} offen sc1")
    A(f"buffer_load_dwordx2 {vr(F+8,2)}, {tHL4}, {srd(sWS)}, 0 offen offset:2048 sc1")
    spin_guard()
    A("s_waitcnt vmcnt(0)")
    A(f"v_max3_u32 {v(T)}, {v(F)}, {v(F+1)}, {v(F+2)}")
    A(f"v_max3_u32 {v(T+1)}, {v(F+3)}, {v(F+4)}, {v(F+5)}")
    A(f"v_max3_u32 {v(T)}, {v(T)}, {v(F+6)}, {v(F+7)}")
    A(f"v_max3_u32 {v(T+1)}, {v(T+1)}, {v(F+8)}, {v(F+9)}")
    A(f"v_max_u32 {v(T)}, {v(T)}, {v(T+1)}")
    A(f"v_cmp_eq_u32 vcc, -1, {v(T)}")
    A("s_cbranch_vccnz L_hpoll")
    stamp()
    layernorm(F, T, S)
    for ins in afrag_oct(AF[0], S, 0): A(ins)
    for u in range(10):
        nxt = afrag_oct(AF[(u + 1) & 1], S + 2 * ((u + 1) >> 3), (u + 1) & 7) if u < 9 else []
        if nxt: A(nxt.pop(0)); A(nxt.pop(0))
        smf(D, AF[u & 1], slots[("w1", u)])
        for ins in nxt: A(ins)
    A(f"v_mov_b32 {v(T+8)}, {hex(LOG2E ^ 0x80000000)}")
    compact([D])
    A(f"ds_write_b32 {vREDW}, {v(D)} offset:{REDZ}")
    A("s_waitcnt lgkmcnt(0)")
    A("s_barrier")
    A(f"ds_read_b128 {vr(T,4)}, {tZR} offset:{REDZ}")
    A(f"ds_read_b128 {vr(T+4,4)}, {tZR} offset:{REDZ+16}")
    for k in range(4): A(f"v_mov_b32 {v(D+k)}, 0")
    for k in range(4): A(f"s_add_u32 {sRD[k]}, {sRD[k]}, {P2 - P1}")
    A("s_waitcnt lgkmcnt(0)")
    A(f"v_pk_add_f32 {vr(T,2)}, {vr(T,2)}, {vr(T+2,2)}")
    A(f"v_pk_add_f32 {vr(T+4,2)}, {vr(T+4,2)}, {vr(T+6,2)}")
    A(f"v_add_f32 {v(T)}, {v(T)}, {v(T+1)}")
    A(f"v_add_f32 {v(T+4)}, {v(T+4)}, {v(T+5)}")
    A(f"v_cvt_pk_bf16_f32 {v(T+1)}, {v(T)}, {v(T+4)}")
    A(f"v_lshlrev_b32 {v(T)}, 16, {v(T+1)}")
    A(f"v_and_b32 {v(T+1)}, 0xffff0000, {v(T+1)}")
    for k in range(2): A(f"v_mul_f32 {v(T+2+k)}, {v(T+k)}, {v(T+8)}")
    for k in range(2): A(f"v_exp_f32 {v(T+2+k)}, {v(T+2+k)}")
    for k in range(2): A(f"v_add_f32 {v(T+2+k)}, 1.0, {v(T+2+k)}")
    for k in range(2): A(f"v_rcp_f32 {v(T+2+k)}, {v(T+2+k)}")
    for k in range(2): A(f"v_mul_f32 {v(T+k)}, {v(T+k)}, {v(T+2+k)}")
    A(f"v_cvt_pk_bf16_f32 {v(S)}, {v(T)}, {v(T+1)}")
    def af_quad(dst, u): return [f"v_and_b32_dpp {v(dst+k)}, {v(S)}, {v(MK[k])} quad_perm:[{u},{u},{u},{u}] {DPPF}" for k in range(4)]
    for ins in af_quad(AF[0], 0): A(ins)
    for u in range(3):
        nxt = af_quad(AF[(u + 1) & 1], u + 1) if u < 2 else []
        if nxt: A(nxt.pop(0)); A(nxt.pop(0))
        for blk in range(3):
            smf(D + 4 * blk, AF[u & 1], slots[("w2", u, blk)])
            if nxt: A(nxt.pop(0))
    X, Y, Z = D, D + 4, D + 8
    for e in range(4): A(f"v_permlane32_swap_b32 {v(X+e)}, {v(Y+e)}")
    for e in range(4): A(f"v_add_f32_dpp {v(X+e)}, {v(Y+e)}, {v(X+e)} row_ror:8 row_mask:0xf bank_mask:0x3")
    for e in range(4): A(f"v_permlane32_swap_b32 {v(Y+e)}, {v(Z+e)}")
    for e in range(4): A(f"v_add_f32_dpp {v(X+e)}, {v(Y+e)}, {v(Z+e)} row_ror:8 row_mask:0xc bank_mask:0xc")
    for e in range(4): A(f"v_min_u32 {v(X+e)}, -2, {v(X+e)}")
    A(f"buffer_store_dwordx4 {vr(X,4)}, {tP2ST}, {srd(sWS)}, 0 offen sc1")
    stamp()
    fin = "L_prof" if o["prof"] else "L_end"
    A(f"s_cmp_lg_u32 {sW}, 0"); A(f"s_cbranch_scc1 {fin}")
    A(f"s_cmp_ge_u32 {sH}, 20"); A(f"s_cbranch_scc1 {fin}")
    reduce_stage("L_red2")
    A(f"v_add_f32 {v(T)}, {tXR}, {v(T)}")
    A(f"v_cvt_pk_bf16_f32 {v(T)}, {v(T)}, {v(T)}")
    A(f"buffer_store_short {v(T)}, {tOUT}, {srd(sOUT)}, 0 offen")
    if o["prof"]:
        A.label("L_prof")
        stamp()
        A("s_getreg_b32 s25, hwreg(HW_REG_XCC_ID)")
        A("s_waitcnt lgkmcnt(0)")
        A(f"s_lshl_b32 {sA}, s2, 2"); A(f"s_add_u32 {sA}, {sA}, {sW}"); A(f"s_lshl_b32 {sA}, {sA}, 6"); A(f"s_add_u32 {sA}, {sA}, {PROF}")
        for k in range(nstamp[0]):
            A(f"v_mov_b32 {v(T)}, s{4+2*k}")
            A(f"buffer_store_dword {v(T)}, off, {srd(sWS)}, {sA} offset:{4*k}")
        A(f"v_mov_b32 {v(T)}, s25"); A(f"buffer_store_dword {v(T)}, off, {srd(sWS)}, {sA} offset:56")
        A(f"v_mov_b32 {v(T)}, {sSPIN}"); A(f"buffer_store_dword {v(T)}, off, {srd(sWS)}, {sA} offset:60")
    A.label("L_end")
    A("s_endpgm")
    A.label("L_cntwait")
    A(f"s_lshl_b32 {sT}, {sB}, 5")
    A(f"buffer_load_dword {tCNT}, off, {srd(sDBG)}, {sT} sc1")
    spin_guard()
    A("s_waitcnt vmcnt(0)")
    A(f"v_cmp_gt_u32 vcc, 32, {tCNT}")
    A("s_cbranch_vccnz L_cntwait")
    A.label("L_last")
    A("s_branch L_cntok")
    for nm, lst, snap in subs:
        A.label(f"L_burst_{nm}")
        slots.clear(); slots.update(snap); last_soff[0] = None
        for i, it in enumerate(lst):
            if i % 2 == 0: A(f"s_waitcnt vmcnt({o['Wb'] - 2})")
            it["emit"]()
        A(f"s_setpc_b64 {sRA}")
    A.raw('.section .rodata,"a"'); A.raw(".p2align 6"); A.raw(f".amdhsa_kernel {KNAME}")
    A.raw("  .amdhsa_next_free_vgpr 512"); A.raw("  .amdhsa_next_free_sgpr 102"); A.raw("  .amdhsa_accum_offset 256")
    A.raw("  .amdhsa_float_denorm_mode_32 3")
    A.raw("  .amdhsa_group_segment_fixed_size 0"); A.raw("  .amdhsa_kernarg_size 88"); A.raw("  .amdhsa_user_sgpr_count 2")
    A.raw("  .amdhsa_user_sgpr_kernarg_segment_ptr 1"); A.raw("  .amdhsa_system_sgpr_workgroup_id_x 1"); A.raw(".end_amdhsa_kernel")
    o["_nstamp"] = nstamp[0]
    return A.text(), o

if __name__ == "__main__":
    out = sys.argv[1]
    kw = eval("dict(" + (sys.argv[2] if len(sys.argv) > 2 else "") + ")")
    txt, o = gen(**kw)
    open(out, "w").write(txt)
    print("forced", o["_forced"], "lines", txt.count("\n"))
```

```python
import sys, os
sys.path.insert(0, os.path.dirname(os.path.abspath(__file__)))
from asmlib import Asm

NAME = "sequential_preLN__sliding_block_cached__dense_activation_silu__decode"
KNAME = NAME + "_kernel"

DEF = dict(
    WA=15, WB=12, WC=12,
    nKA=30,
    nWOB=30,
    rot=4,
    polKV="nt", polW="",
    prof=False,
    wlast=0,
    codepf=True,
    burst=True, W=8, Wb=8,
    grp="b",
    a0=7, da=3, b0=60, db=7, c0=125, dc=7, tlead=14, touch64=False, touch=True, polT="nt", polT2="sc1", skip=(), notail=False, sleep=0, dR=1, dH=1, ack3=True, hbar=True, ack2=True, Ws=None, perm=False, nosig=False, noclr=False, sig0=46, dsig=0, xorid=0, polC="sc1", clrpos=6, w12late=False, n1=6, n2=14,
    spin=200000,
)

RED, QB, SM, RED2, REDZ, LDS_BYTES = 0, 3072, 4608, 5120, 17408, 18432
P1, P2, HB, PROF = 0, 0x100000, 0x200000, 0x800000
OOB = 0x40000000
LOG2E = 0x3fb8aa3b
import struct
def fbits(x): return struct.unpack("<I", struct.pack("<f", x))[0]

def gen(**kw):
    o = dict(DEF); o.update(kw)
    A = Asm()
    hdr = open(os.path.join(os.path.dirname(os.path.abspath(__file__)), "..", "cdna_kernels", NAME + ".s.ref")).read().splitlines()
    for ln in hdr:
        if ln.startswith("; Override") : break
        A.raw(ln)
    A.raw(f"; @launch grid=(256,1,1) block=(256,1,1) lds={LDS_BYTES}")
    A.raw('.amdgcn_target "amdgcn-amd-amdhsa--gfx950"')
    A.raw(".text"); A.raw(f".globl {KNAME}"); A.raw(".p2align 8"); A.raw(f".type {KNAME},@function"); A.label(KNAME)

    sW, sB, sH = "s3", "s26", "s27"
    sX, sK, sV, sWQ, sWO, sW1, sW2, sOUT, sDBG, sWS = [28 + 4 * i for i in range(10)]
    srd = lambda n: f"s[{n}:{n+3}]"
    sU = 68
    sT = "s84"
    sQB0, sQB1, sF0, sF1, sZ = "s86", "s87", "s88", "s89", "s90"
    sLM = "s[92:93]"
    sA, sC, sD, sE = "s94", "s95", "s96", "s97"
    sSPIN = "s98"
    sPC = 100
    vL, vK, vV, vWQ, vWO, vW2, vW1, vIDX = [f"v{i}" for i in range(8)]
    MK = [8, 9, 10, 11]
    AF = [12, 16]
    D = 20
    Q = 32
    S = 44
    T = 48
    vHST, vP1ST, vREDW = "v61", "v62", "v63"
    tO_R, tR2W, tR2R, tCNT, tRD, tPF, tHL0, tHL4, tZR, tP2ST, tOUT, tXR = [f"v{Q+i}" for i in range(12)]
    v = lambda n: f"v{n}"
    vr = lambda n, k: f"v[{n}:{n+k-1}]"
    nstamp = [0]
    def stamp():
        if o["prof"]:
            k = nstamp[0]; nstamp[0] += 1
            assert k < 11
            A(f"s_memrealtime s[{4+2*k}:{5+2*k}]")

    A("s_load_dwordx16 s[4:19], s[0:1], 0")
    A("s_load_dwordx4 s[20:23], s[0:1], 64")
    A("s_load_dwordx2 s[24:25], s[0:1], 80")
    A("s_cmpk_ge_u32 s2, 256")
    A("s_cbranch_scc1 L_end")
    if o["xorid"]: A(f"s_xor_b32 s2, s2, {o['xorid']}")
    if o["perm"]:
        A("s_lshr_b32 s3, s2, 3"); A("s_add_u32 s3, s3, s2"); A("s_and_b32 s3, s3, 7"); A("s_and_b32 s2, s2, 0xf8"); A("s_or_b32 s2, s2, s3")
    if o["prof"]: A("s_memrealtime s[100:101]")
    A(f"v_readfirstlane_b32 {sW}, v0")
    A(f"v_and_b32 {vL}, 63, v0")
    A(f"s_lshr_b32 {sW}, {sW}, 6")
    A(f"s_lshr_b32 {sB}, s2, 5")
    A(f"s_and_b32 {sH}, s2, 31")
    vR8, vC, t0, t1, t2, t3 = v(T+7), v(T+8), v(T+9), v(T+10), v(T+11), v(T+12)
    A(f"v_lshrrev_b32 {vR8}, 3, {vL}")
    A(f"v_and_b32 {vC}, 7, {vL}")
    A(f"v_lshlrev_b32 {v(T+5)}, 2, {vL}")
    A(f"s_lshl_b32 {sA}, {sW}, 3")
    A(f"v_xor_b32 {v(T+6)}, {sA}, {v(T+5)}")
    A(f"v_and_b32 {t0}, 32, {vL}")
    A(f"v_bfe_u32 {t1}, {vL}, 3, 1")
    A(f"v_bfe_u32 {t2}, {vL}, 4, 1")
    A(f"v_lshl_add_u32 {t3}, {t1}, 4, {t0}")
    A(f"v_add_u32 {t3}, {t3}, {t2}")
    A(f"v_mul_u32_u24 {t3}, 12288, {t3}")
    A(f"v_lshl_add_u32 {vWQ}, {vC}, 4, {t3}")
    A(f"v_lshrrev_b32 {t3}, 2, {t0}")
    A(f"v_lshl_add_u32 {t3}, {t2}, 2, {t3}")
    A(f"v_add_u32 {t3}, {t3}, {t1}")
    A(f"v_mul_u32_u24 {t3}, 384, {t3}")
    A(f"v_lshl_add_u32 {vK}, {vC}, 4, {t3}")
    A(f"s_mul_i32 {sA}, s2, 1572864")
    A(f"s_add_u32 {sA}, {sA}, 1179648")
    A(f"s_mul_i32 {sC}, {sB}, 1280")
    A(f"s_mul_i32 {sD}, {sH}, 384")
    A(f"s_mul_i32 {sQB0}, {sW}, {128*12288}")
    A(f"s_mul_i32 {sE}, s2, {o['rot']}")
    A(f"s_add_u32 {sE}, {sE}, {sW}")
    def unit_off(n):
        A(f"s_add_u32 s{sU+n}, {sE}, {4*n}")
        A(f"s_and_b32 s{sU+n}, s{sU+n}, 63")
        A(f"s_mulk_i32 s{sU+n}, 6144")
    unit_off(0)
    sG, sRA, sT2, sGT, sSG = "s85", "s[76:77]", "s91", "s99", "s98"
    vT1, vT2 = v(Q), v(Q + 1)
    if o["burst"]:
        sRA = f"s[{sPC}:{sPC+1}]"
        A(f"v_mul_u32_u24 {vT1}, 21846, {vL}"); A(f"v_lshrrev_b32 {vT1}, 16, {vT1}")
        A(f"v_mul_u32_u24 {vT2}, {12288 - 3*128}, {vT1}"); A(f"v_lshl_add_u32 {vT2}, {vL}, 7, {vT2}")
        A(f"s_lshl_b32 {sT2}, {sB}, 2"); A(f"s_add_u32 {sT2}, {sT2}, {sW}"); A(f"s_mul_i32 {sT2}, {sT2}, {20*12288}")
        if o["grp"] == "h":
            A(f"s_lshr_b32 {sG}, {sH}, 3"); A(f"s_mov_b32 {sGT}, {sG}")
        elif o["grp"] == "hb":
            A(f"s_lshr_b32 {sGT}, {sH}, 3"); A(f"s_lshl_b32 {sGT}, {sGT}, 1"); A(f"s_and_b32 {sG}, {sB}, 1"); A(f"s_add_u32 {sG}, {sG}, {sGT}")
        else:
            A(f"s_mov_b32 {sG}, {sB}"); A(f"s_mov_b32 {sGT}, 0")
    A(f"s_mov_b32 s{sX+2}, 1280"); A(f"s_mov_b32 s{sX+3}, 0x20000")
    A(f"s_mov_b32 s{sK+2}, 393216"); A(f"s_mov_b32 s{sK+3}, 0x20000")
    A(f"s_sub_u32 s{sWQ+2}, {640*12288}, {sD}"); A(f"s_mov_b32 s{sWQ+3}, 0x20000")
    A("s_waitcnt lgkmcnt(0)")
    A(f"s_add_u32 s{sX}, s4, {sC}"); A(f"s_addc_u32 s{sX+1}, s5, 0")
    A(f"s_add_u32 s{sK}, s6, {sA}"); A(f"s_addc_u32 s{sK+1}, s7, 0")
    A(f"s_add_u32 s{sWQ}, s10, {sD}"); A(f"s_addc_u32 s{sWQ+1}, s11, 0")

    def late_setup():
        A(f"s_add_u32 s{sV}, s8, {sA}"); A(f"s_addc_u32 s{sV+1}, s9, 0")
        A(f"s_mov_b32 s{sV+2}, 393216"); A(f"s_mov_b32 s{sV+3}, 0x20000")
        A(f"s_add_u32 s{sOUT}, s20, {sC}"); A(f"s_addc_u32 s{sOUT+1}, s21, 0")
        A(f"s_mov_b32 s{sOUT+2}, 1280"); A(f"s_mov_b32 s{sOUT+3}, 0x20000")
        A(f"s_mul_i32 {sD}, {sH}, 245760")
        A(f"s_add_u32 s{sWO}, s12, {sD}"); A(f"s_addc_u32 s{sWO+1}, s13, 0")
        A(f"s_mov_b32 s{sWO+2}, 245760"); A(f"s_mov_b32 s{sWO+3}, 0x20000")
        A(f"s_and_b32 {sA}, {sH}, 7"); A(f"s_lshl_b32 {sA}, {sA}, 2"); A(f"s_lshr_b32 {sC}, {sH}, 3"); A(f"s_add_u32 {sA}, {sA}, {sC}")
        A(f"s_mul_i32 {sD}, {sA}, 96")
        A(f"s_add_u32 s{sW1}, s16, {sD}"); A(f"s_addc_u32 s{sW1+1}, s17, 0")
        A(f"s_sub_u32 s{sW1+2}, {640*3072}, {sD}"); A(f"s_mov_b32 s{sW1+3}, 0x20000")
        A(f"s_mul_i32 {sD}, {sA}, 61440")
        A(f"s_add_u32 s{sW2}, s18, {sD}"); A(f"s_addc_u32 s{sW2+1}, s19, 0")
        A(f"s_mov_b32 s{sW2+2}, 61440"); A(f"s_mov_b32 s{sW2+3}, 0x20000")
        A(f"s_mov_b32 s{sDBG}, s22"); A(f"s_mov_b32 s{sDBG+1}, s23"); A(f"s_mov_b32 s{sDBG+2}, 256"); A(f"s_mov_b32 s{sDBG+3}, 0x20000")
        A(f"s_mov_b32 s{sWS}, s24"); A(f"s_mov_b32 s{sWS+1}, s25"); A(f"s_mov_b32 s{sWS+2}, 0x1000000"); A(f"s_mov_b32 s{sWS+3}, 0x20000")
        if o["prof"]:
            A("s_mov_b32 s4, s100"); nstamp[0] = 1
        for n in range(1, 16): unit_off(n)
        A(f"s_lshl_b32 {sA}, {sW}, 2"); A(f"s_add_u32 {sA}, {sA}, 512"); A(f"s_mul_i32 {sQB1}, {sA}, 12288")
        A(f"s_mul_i32 {sF0}, {sW}, {128*3072}")
        A(f"s_and_b32 {sA}, {sW}, 1"); A(f"s_lshl_b32 {sA}, {sA}, 5"); A(f"s_lshr_b32 {sC}, {sW}, 1"); A(f"s_add_u32 {sA}, {sA}, {sC}")
        A(f"s_add_u32 {sA}, {sA}, 512"); A(f"s_mul_i32 {sF1}, {sA}, 3072")
        A(f"s_sub_u32 {sA}, 8, {sW}"); A(f"s_lshl_b32 {sA}, {sA}, 7"); A(f"s_cmp_lt_u32 {sW}, 2"); A(f"s_cselect_b32 {sZ}, {sA}, 0x100000")
        A("s_mov_b32 s92, 0x01010101"); A("s_mov_b32 s93, 0x01010101")
        A(f"s_lshr_b32 {sSG}, s2, 3"); A(f"s_cmp_eq_u32 {sW}, 0"); A(f"s_cselect_b32 {sSG}, {sSG}, 64")
        A(f"v_mul_u32_u24 {t3}, 384, {vR8}")
        A(f"v_lshl_add_u32 {vV}, {vC}, 4, {t3}")
        A(f"v_lshrrev_b32 {t3}, 4, {vL}"); A(f"s_mul_i32 {sA}, {sW}, 48"); A(f"v_add_u32 {t3}, {sA}, {t3}")
        A(f"v_mul_u32_u24 {t3}, 1280, {t3}"); A(f"v_and_b32 {vWO}, 15, {vL}"); A(f"v_lshl_add_u32 {vWO}, {vWO}, 4, {t3}")
        A(f"v_lshrrev_b32 {t3}, 3, {t0}")
        A(f"v_lshl_add_u32 {t3}, {t1}, 1, {t3}")
        A(f"v_lshl_add_u32 {vW1}, {t2}, 3, {t3}")
        A(f"v_mul_u32_u24 {vW1}, 3072, {vW1}")
        A(f"v_min_u32 {vW2}, 5, {vC}")
        A(f"v_lshl_add_u32 {vW1}, {vW2}, 4, {vW1}")
        A(f"v_add_u32 {t3}, {t3}, {t2}")
        A(f"v_mul_u32_u24 {t3}, 1280, {t3}")
        A(f"v_lshl_add_u32 {t3}, {vC}, 4, {t3}")
        A(f"s_lshl_b32 {sA}, {sW}, 8")
        A(f"v_add_u32 {vW2}, {sA}, {t3}")
        A(f"v_cmp_gt_u32 vcc, 4, {vC}")
        A(f"v_mov_b32 {t3}, 0xffff")
        A(f"v_and_b32 {vIDX}, 3, {vC}")
        A(f"v_cndmask_b32 {v(MK[0])}, 0, {t3}, vcc")
        A(f"v_mul_u32_u24 {vIDX}, 0x5555, {vIDX}")
        A(f"v_xor_b32 {v(MK[1])}, {t3}, {v(MK[0])}")
        A(f"v_lshlrev_b32 {v(MK[2])}, 16, {v(MK[0])}")
        A(f"v_lshlrev_b32 {v(MK[3])}, 16, {v(MK[1])}")
        A(f"v_lshrrev_b32 {t3}, 5, {vL}")
        A(f"v_lshl_add_u32 {t3}, {t1}, 1, {t3}")
        A(f"v_lshl_add_u32 {t3}, {t2}, 2, {t3}")
        A(f"v_lshl_add_u32 {t3}, {vC}, 3, {t3}")
        A(f"s_lshl_b32 {sA}, {sW}, 2")
        A(f"v_lshl_add_u32 {vREDW}, {t3}, 4, {sA}")
        A(f"s_mul_i32 {sA}, s2, 2560"); A(f"s_mul_i32 {sC}, {sW}, 640"); A(f"s_add_u32 {sA}, {sA}, {sC}")
        A(f"v_lshl_add_u32 {vP1ST}, {vL}, 4, {sA}")
        A(f"v_mov_b32 {t3}, {OOB}")
        A(f"v_cmp_gt_u32 vcc, 40, {vL}")
        A(f"s_mul_i32 {sA}, {sB}, 2560"); A(f"s_lshl_b32 {sC}, {sH}, 7"); A(f"s_add_u32 {sA}, {sA}, {sC}"); A(f"s_add_u32 {sA}, {sA}, {HB}")
        A(f"v_cndmask_b32 {vP1ST}, {t3}, {vP1ST}, vcc")
        if o["hbar"]:
            A(f"s_lshl_b32 {sC}, s2, 7"); A(f"s_add_u32 {sC}, {sC}, {HB + 0x10000}")
            A(f"s_cmp_lt_u32 {sH}, 20"); A(f"s_cselect_b32 {sA}, {sA}, {sC}")
            A(f"s_cmp_eq_u32 {sW}, 0"); A(f"s_cselect_b32 {sC}, 32, 0")
        else:
            A(f"s_cmp_lt_u32 {sH}, 20"); A(f"s_cselect_b32 {sC}, 32, 0"); A(f"s_cmp_eq_u32 {sW}, 0"); A(f"s_cselect_b32 {sC}, {sC}, 0")
        A(f"v_lshl_add_u32 {vHST}, {vL}, 2, {sA}")
        A(f"v_cmp_gt_u32 vcc, {sC}, {vL}")
        for k in range(4): A(f"v_mov_b32 {v(AF[1]+k)}, -1")
        A(f"v_cndmask_b32 {vHST}, {t3}, {vHST}, vcc")

    DPPF = "row_mask:0xf bank_mask:0xf"
    def wave_reduce(op, reg, sdst, fill=()):
        fill = list(fill)
        steps = [f"quad_perm:[1,0,3,2] {DPPF}", f"quad_perm:[2,3,0,1] {DPPF}", f"row_half_mirror {DPPF}", f"row_mirror {DPPF}",
                 "row_bcast:15 row_mask:0xa bank_mask:0xf", "row_bcast:31 row_mask:0xc bank_mask:0xf"]
        for st in steps:
            for _ in range(2):
                if fill: A(fill.pop(0))
            A(f"{op}_dpp {reg}, {reg}, {reg} {st}")
        if fill: A(fill.pop(0))
        A(f"v_readlane_b32 {sdst}, {reg}, 63")
        for f in fill: A(f)
    def round_bf16(reg):
        A(f"v_cvt_pk_bf16_f32 {reg}, {reg}, {reg}")
        A(f"v_lshlrev_b32 {reg}, 16, {reg}")
    def layernorm(F, Wk, tp, out):
        p = lambda r: vr(r, 2)
        A(f"v_pk_add_f32 {p(tp)}, {p(F[0])}, {p(F[1])}")
        A(f"v_pk_add_f32 {p(tp+2)}, {p(F[2])}, {p(F[3])}")
        A(f"v_pk_add_f32 {p(tp)}, {p(tp)}, {p(F[4])}")
        A(f"v_pk_add_f32 {p(tp)}, {p(tp)}, {p(tp+2)}")
        A(f"v_add_f32 {v(tp)}, {v(tp)}, {v(tp+1)}")
        wave_reduce("v_add_f32", v(tp), sA, fill=[f"v_mov_b32 {v(tp+2)}, {hex(fbits(-1.0/640))}"])
        A(f"v_mul_f32 {v(tp)}, {sA}, {v(tp+2)}")
        A(f"v_mul_f32 {v(tp+1)}, {sA}, {v(tp+2)}")
        A(f"v_pk_add_f32 {p(tp+2)}, {p(F[0])}, {p(tp)}")
        A(f"v_pk_add_f32 {p(Wk[1])}, {p(F[1])}, {p(tp)}")
        A(f"v_pk_mul_f32 {p(tp+2)}, {p(tp+2)}, {p(tp+2)}")
        A(f"v_pk_add_f32 {p(Wk[2])}, {p(F[2])}, {p(tp)}")
        A(f"v_pk_fma_f32 {p(tp+2)}, {p(Wk[1])}, {p(Wk[1])}, {p(tp+2)}")
        A(f"v_pk_add_f32 {p(Wk[3])}, {p(F[3])}, {p(tp)}")
        A(f"v_pk_fma_f32 {p(tp+2)}, {p(Wk[2])}, {p(Wk[2])}, {p(tp+2)}")
        A(f"v_pk_add_f32 {p(Wk[1])}, {p(F[4])}, {p(tp)}")
        A(f"v_pk_fma_f32 {p(tp+2)}, {p(Wk[3])}, {p(Wk[3])}, {p(tp+2)}")
        A(f"v_pk_fma_f32 {p(tp+2)}, {p(Wk[1])}, {p(Wk[1])}, {p(tp+2)}")
        A(f"v_add_f32 {v(tp+2)}, {v(tp+2)}, {v(tp+3)}")
        a, b, c = Wk[0], Wk[4], Wk[1]
        fill = [f"v_cvt_pk_bf16_f32 {v(tp)}, {v(tp)}, {v(tp)}",
                f"v_lshlrev_b32 {v(tp+1)}, 16, {v(tp)}",
                f"v_lshlrev_b32 {v(tp)}, 16, {v(tp)}",
                f"v_pk_add_f32 {p(a)}, {p(F[0])}, {p(tp)}",
                f"v_pk_add_f32 {p(b)}, {p(F[4])}, {p(tp)}",
                f"v_cvt_pk_bf16_f32 {v(c)}, {v(a)}, {v(a+1)}",
                f"v_cvt_pk_bf16_f32 {v(c+1)}, {v(b)}, {v(b+1)}",
                f"v_lshlrev_b32 {v(a)}, 16, {v(c)}",
                f"v_and_b32 {v(a+1)}, 0xffff0000, {v(c)}",
                f"v_lshlrev_b32 {v(b)}, 16, {v(c+1)}",
                f"v_and_b32 {v(b+1)}, 0xffff0000, {v(c+1)}",
                f"v_mov_b32 {v(tp+4)}, {hex(fbits(1.0/640))}"]
        wave_reduce("v_add_f32", v(tp+2), sA, fill=fill)
        A(f"v_mul_f32 {v(tp)}, {sA}, {v(tp+4)}")
        round_bf16(v(tp))
        A(f"v_add_f32 {v(tp)}, {hex(fbits(1e-5))}, {v(tp)}")
        round_bf16(v(tp))
        A(f"v_sqrt_f32 {v(tp)}, {v(tp)}")
        round_bf16(v(tp))
        A(f"v_rcp_f32 {v(tp)}, {v(tp)}")
        A(f"v_mul_f32 {v(a)}, {v(a)}, {v(tp)}")
        A(f"v_mul_f32 {v(a+1)}, {v(a+1)}, {v(tp)}")
        A(f"v_cvt_pk_bf16_f32 {v(out)}, {v(a)}, {v(a+1)}")
        A(f"v_mul_f32 {v(b)}, {v(b)}, {v(tp)}")
        A(f"v_mul_f32 {v(b+1)}, {v(b+1)}, {v(tp)}")
        A(f"v_mov_b32_dpp {v(out+1)}, {v(out)} row_half_mirror {DPPF}")
        A(f"v_cvt_pk_bf16_f32 {v(out+2)}, {v(b)}, {v(b+1)}")
        A(f"v_mov_b32_dpp {v(out+3)}, {v(out+2)} row_half_mirror {DPPF}")
    def afrag_oct(dst, P, c0):
        lo, hi = ((P, c0), (P + 1, 3 - c0)) if c0 < 4 else ((P + 1, 7 - c0), (P, c0 - 4))
        out = []
        for k in range(4):
            src, x = lo if k % 2 == 0 else hi
            out.append(f"v_and_b32_dpp {v(dst+k)}, {v(src)}, {v(MK[k])} quad_perm:[{x},{x},{x},{x}] {DPPF}")
        return out
    def smf(d, a, slot):
        A(f"v_smfmac_f32_16x16x64_bf16 {vr(d,4)}, {vr(a,4)}, {slot[0]}[{slot[1]}:{slot[1]+7}], {vIDX}")
    def compact(blocks):
        for d in blocks:
            A(f"v_permlane32_swap_b32 {v(d)}, {v(d+1)}")
            A(f"v_permlane32_swap_b32 {v(d+2)}, {v(d+3)}")
        for d in blocks:
            A(f"v_add_f32_dpp {v(d)}, {v(d+1)}, {v(d)} row_ror:8 row_mask:0xf bank_mask:0x3")
        for d in blocks:
            A(f"v_add_f32_dpp {v(d)}, {v(d+2)}, {v(d+3)} row_ror:8 row_mask:0xf bank_mask:0xc")

    def signal(lbl, k=None):
        if k is None: A(f"s_cmp_lg_u32 {sW}, 0")
        else: A(f"s_cmp_lg_u32 {sSG}, {k}")
        A(f"s_cbranch_scc1 {lbl}")
        if k is None: signal_body()
        else: A(f"s_call_b64 {sRA}, L_signal")
        A.label(lbl)
    def signal_body():
        A(f"s_lshl_b32 {sT2}, {sB}, 5")
        A("s_mov_b64 exec, 1")
        A(f"v_mov_b32 {vWQ}, 1")
        if not o["nosig"]: A(f"buffer_atomic_add {vWQ}, off, {srd(sDBG)}, {sT2} sc1")
        A("s_mov_b64 exec, -1")

    freeA = [("a", 8 * i) for i in range(32)]
    freeV = [("v", 64 + 8 * i) for i in range(24)]
    halfV = []
    slots = {}
    def can_alloc(kind):
        if kind == "pair": return bool(freeA or freeV)
        if kind == "half": return bool(halfV or freeV)
        return True
    def alloc(kind, key, preferV=False):
        if kind == "pair":
            s = (freeV if (preferV and freeV) or not freeA else freeA).pop(0)
        else:
            if not halfV:
                s = freeV.pop(0); halfV.extend([s, (s[0], s[1] + 4)])
            s = halfV.pop(0)
        slots[key] = s
        return s
    def release(kind, key):
        s = slots.pop(key)
        if kind == "pair":
            (freeA if s[0] == "a" else freeV).append(s)
        else:
            mate = (s[0], s[1] ^ 4)
            if mate in halfV:
                halfV.remove(mate); freeV.append((s[0], s[1] & ~7))
            else: halfV.append(s)

    def tile_load(reg, vaddr, sr, soff, imm, pol):
        A(f"buffer_load_dwordx4 {reg[0]}[{reg[1]}:{reg[1]+3}], {vaddr}, {srd(sr)}, {soff} offen offset:{imm} {pol}".rstrip())
    def mk_pair(key, Tt, vaddr, sr, soff_fn, imm, pol, preferV=False):
        def emit():
            s = alloc("pair", key, preferV) if key not in slots else slots[key]
            tile_load((s[0], s[1] + 4 * Tt), vaddr, sr, soff_fn(), imm, pol)
        return dict(tag=key + (Tt,), need="pair" if Tt == 0 else None, emit=emit)
    last_soff = [None]
    def soff_add(base, const):
        def f():
            if last_soff[0] != (base, const):
                if base is None: A(f"s_mov_b32 {sT}, {const}")
                else: A(f"s_add_u32 {sT}, {base}, {const}")
                last_soff[0] = (base, const)
            return sT
        return f
    Lx = []
    for s_ in range(4):
        def emit(s_=s_):
            A(f"s_add_u32 {sT}, {sW}, {s_}"); A(f"s_and_b32 {sT}, {sT}, 3"); A(f"s_lshl_b32 {sT}, {sT}, 8")
            A(f"buffer_load_dword {v(T+s_)}, {v(T+5)}, {srd(sX)}, {sT} offen")
        Lx.append(dict(tag=("x", s_), need=None, emit=emit))
    Lx.append(dict(tag=("x", 4), need=None, emit=lambda: A(f"buffer_load_dword {v(T+4)}, {v(T+6)}, {srd(sX)}, 0 offen offset:1024")))
    Lwq = []
    for u in range(10):
        for t in range(3):
            for Tt in range(2):
                base, rows = (sQB0, 64 * Tt + 2 * u) if u < 8 else (sQB1, 64 * Tt + 2 * (u - 8))
                Lwq.append(mk_pair(("wq", u, t), Tt, vWQ, sWQ, soff_add(base, rows * 12288), 128 * t, o["polW"]))
    LK = []
    for n in range(16):
        for hB in range(2):
            for t in range(3):
                def emit(n=n, hB=hB, t=t):
                    s = alloc("half", ("k", n, hB, t))
                    tile_load(s, vK, sK, f"s{sU+n}", hB * 768 + t * 128, o["polKV"])
                LK.append(dict(tag=("k", n, hB, t), need="half", emit=emit))
    LV = []
    for n in range(16):
        for t in range(3):
            for Tt in range(2):
                LV.append(mk_pair(("v", n, t), Tt, vV, sV, (lambda n=n: f"s{sU+n}"), Tt * 3072 + t * 128, o["polKV"], preferV=True))
    Lwo = []
    for u in range(6):
        for blk in range(5):
            for Tt in range(2):
                Lwo.append(mk_pair(("wo", u, blk), Tt, vWO, sWO, soff_add(None, u * 10240 + Tt * 5120), blk * 256, o["polW"]))
    Lw1 = []
    for u in range(10):
        for Tt in range(2):
            base, rows = (sF0, 64 * Tt + 16 * (u & 3) + (u >> 2)) if u < 8 else (sF1, 64 * Tt + 16 * (u - 8))
            Lw1.append(mk_pair(("w1", u), Tt, vW1, sW1, soff_add(base, rows * 3072), 0, o["polW"]))
    Lw2 = []
    for u in range(3):
        for blk in range(3):
            for Tt in range(2):
                rows = 16 * u + 8 * Tt
                if blk < 2: Lw2.append(mk_pair(("w2", u, blk), Tt, vW2, sW2, soff_add(None, rows * 1280), blk * 128, o["polW"]))
                else: Lw2.append(mk_pair(("w2", u, blk), Tt, vW2, sW2, soff_add(sZ, rows * 1280), 0, o["polW"]))
    def misc(tag, fn): return dict(tag=tag, need=None, emit=fn)
    def mix(*lists):
        lists = [l for l in lists if l]
        items = []
        for li, l in enumerate(lists):
            for i, it in enumerate(l): items.append(((i + 0.5) / len(l), li, it))
        items.sort(key=lambda z: (z[0], z[1]))
        return [z[2] for z in items]
    def clr1():
        if o["noclr"]: A(f"buffer_load_dword {v(AF[1])}, off, {srd(sX)}, 0"); return
        A(f"buffer_store_dwordx4 {vr(AF[1],4)}, {vP1ST}, {srd(sWS)}, 0 offen {o['polC']}")
    def clr2():
        if o["noclr"]: A(f"buffer_load_dword {v(AF[1])}, off, {srd(sX)}, 0"); return
        A(f"s_mov_b32 {sT}, {P2}"); last_soff[0] = None
        A(f"buffer_store_dwordx4 {vr(AF[1],4)}, {vP1ST}, {srd(sWS)}, {sT} offen {o['polC']}")
    def clr3():
        if o["noclr"]: A(f"buffer_load_dword {v(AF[1])}, off, {srd(sX)}, 0"); return
        A(f"buffer_store_dword {v(AF[1])}, {vHST}, {srd(sWS)}, 0 offen {o['polC']}")
    def code_pf(label, reg, areg):
        def f():
            A(f"s_getpc_b64 s[{sPC}:{sPC+1}]")
            here = f"L_pc_{label}"
            A.label(here)
            A(f"s_add_u32 s{sPC}, s{sPC}, {label}-{here}"); A(f"s_addc_u32 s{sPC+1}, s{sPC+1}, 0")
            A(f"v_lshlrev_b32 {areg}, 7, {vL}")
            A(f"v_min_u32 {areg}, L_last-{label}, {areg}")
            A(f"global_load_dword {reg}, {areg}, s[{sPC}:{sPC+1}]")
        return f
    def cntload():
        A(f"s_lshl_b32 {sT}, {sB}, 5"); last_soff[0] = None
        A(f"buffer_load_dword {tCNT}, off, {srd(sX if o['nosig'] else sDBG)}, {sT} sc1")
    extra = [misc(("xr",), lambda: A(f"buffer_load_ushort {tXR}, {tOUT}, {srd(sX)}, 0 offen"))]
    if o["codepf"]: extra.append(misc(("pf",), code_pf("L_tail", tPF, tPF)))
    clrs = [misc(("clr", 0), clr1), misc(("clr", 1), clr2), misc(("clr", 2), clr3)]
    qbar_done = [False]
    hooks = {}
    subs = []
    if not o["burst"]:
        phA = mix(Lwq, LK[:o["nKA"]])
        phB = mix(LK[o["nKA"]:], Lwo[:o["nWOB"]])
        rest = Lwo[o["nWOB"]:] + Lw1 + Lw2
        nlast = o["wlast"]
        phC = mix(LV, rest[:len(rest) - nlast]) + rest[len(rest) - nlast:]
        nfirst = o["WA"] - len(Lx)
        phA = phA[:nfirst] + clrs + phA[nfirst:]
        k = len(phC) * 2 // 3
        phC = phC[:k] + extra + phC[k:]
        k = len(phC) - nlast - o["WC"]
        phC = phC[:k] + [misc(("cnt",), cntload)] + phC[k:]
        seq = Lx + phA + phB + phC
        Wn = [o["WA"]] * (len(Lx) + len(phA)) + [o["WB"]] * len(phB) + [o["WC"]] * len(phC)
    else:
        NG = 4 if o["grp"] == "h" else 8
        KV = LK + LV
        pol = o["polT"]
        vDUM = v(T + 12)
        def touch(areg, sr, soff, dst=vDUM):
            A(f"buffer_load_dword {dst}, {areg}, {srd(sr)}, {soff} offen {pol}")
            if o["touch64"]: A(f"buffer_load_dword {dst}, {areg}, {srd(sr)}, {soff} offen offset:64 {pol}")
            if o["polT2"] is not None: A(f"buffer_load_dword {dst}, {areg}, {srd(sr)}, {soff} offen {o['polT2']}")
        ncond = [0]
        def cond(sreg, k, fn):
            def f():
                lbl = f"L_skip{ncond[0]}"; ncond[0] += 1
                A(f"s_cmp_lg_u32 {sreg}, {k}"); A(f"s_cbranch_scc1 {lbl}")
                fn(); A.label(lbl); last_soff[0] = None
            return f
        def reserve(lst):
            def f():
                for it in lst:
                    if it["need"]:
                        while not can_alloc("pair"): force_now()
                        freeV.sort(key=lambda z: -z[1])
                        alloc("pair", it["tag"][:-1])
                if not (lst[0]["tag"][0] == "w1" and o["w12late"]): subs.append((lst[0]["tag"][0], lst, dict(slots)))
            return f
        def touch_wo():
            a = vWQ
            A(f"s_lshl_b32 {sT2}, {sB}, 2"); A(f"s_add_u32 {sT2}, {sT2}, {sW}"); A(f"s_mul_i32 {sT2}, {sT2}, {60*128}")
            A(f"v_lshlrev_b32 {a}, 7, {vL}"); touch(a, sWO, sT2)
        def touch_w12():
            a = vWQ
            A(f"s_lshl_b32 {sT2}, {sB}, 2"); A(f"s_add_u32 {sT2}, {sT2}, {sW}"); A(f"s_mul_i32 {sT}, {sT2}, {15*128}")
            A(f"s_mul_i32 {sT2}, {sT2}, {20*3072}")
            A(f"v_min_u32 {a}, 39, {vL}"); A(f"v_and_b32 {vDUM}, 1, {a}"); A(f"v_lshrrev_b32 {a}, 1, {a}")
            A(f"v_mul_u32_u24 {a}, 3072, {a}"); A(f"v_mul_u32_u24 {vDUM}, 92, {vDUM}"); A(f"v_add_u32 {a}, {a}, {vDUM}")
            A(f"buffer_load_dword {vDUM}, {a}, {srd(sW1)}, {sT2} offen {pol}")
            if o["polT2"] is not None: A(f"buffer_load_dword {vDUM}, {a}, {srd(sW1)}, {sT2} offen {o['polT2']}")
            A(f"v_min_u32 {a}, 14, {vL}"); A(f"v_lshlrev_b32 {a}, 7, {a}"); touch(a, sW2, sT)
        assert o["b0"] - o["tlead"] > o["a0"] + (NG - 1) * o["da"]
        assert o["c0"] - o["tlead"] > o["b0"] + (NG - 1) * o["db"] - o["tlead"] + o["W"]
        def hook(i, fn): hooks.setdefault(KV[i]["tag"], []).append(fn)
        for base, step, lst, tfn in ((o["a0"], o["da"], Lwq, None), (o["b0"], o["db"], Lwo, touch_wo), (o["c0"], o["dc"], Lw1 + Lw2, touch_w12)):
            nm = lst[0]["tag"][0]
            hook(base, reserve(lst))
            for k in range(NG):
                if tfn and o["touch"] and (o["grp"] == "h" or (o["grp"] == "hb" and k % 2 == 0) or k == 0):
                    hook(base + k * step - o["tlead"], cond(sGT, k, tfn))
                if not (nm == "w1" and o["w12late"]):
                    hook(base + k * step, cond(sG, k, lambda nm=nm: A(f"s_call_b64 {sRA}, L_burst_{nm}")))
        if o["dsig"]:
            for k in range(32):
                def f(k=k):
                    assert qbar_done[0]
                    signal(f"L_sig{k}", k)
                hook(o["sig0"] + k * o["dsig"], f)
        lastA = KV[o["a0"] + (NG - 1) * o["da"]]["tag"]
        lastB = KV[o["b0"] + (NG - 1) * o["db"]]["tag"]
        lastC = KV[o["c0"] + (NG - 1) * o["dc"]]["tag"]
        t0l = [misc(("tq",), lambda: touch(vT2, sWQ, sT2, vT1))] if o["touch"] else []
        k1 = 160; k2 = 192 - o["W"]
        seq = Lx + t0l + KV[:6] + clrs + KV[6:k1] + extra + KV[k1:k2] + [misc(("cnt",), cntload)] + KV[k2:]
        nhead = len(Lx) + len(t0l) + 6 + 3
        Wn = [nhead + 2] * (nhead + 2) + [o["W"]] * (len(seq) - nhead - 2)
        if o["Ws"]:
            kvpos = {it["tag"]: i for i, it in enumerate(KV)}
            cw, acc = o["W"], 0.0
            for i, it in enumerate(seq):
                for p_, w_ in o["Ws"]:
                    if kvpos.get(it["tag"]) == p_: cw = w_
                if i >= nhead + 2:
                    acc += cw - int(cw)
                    Wn[i] = int(cw) + (1 if acc >= 0.999 else 0)
                    if acc >= 0.999: acc -= 1
    pos = {it["tag"]: i for i, it in enumerate(seq)}

    acts = []
    def act(needs, fn, before=None): acts.append(dict(needs=[pos[t] for t in needs], fn=fn))
    def a_lnx():
        A.comment("LayerNorm(x)")
        F = D
        for s_ in range(5):
            A(f"v_lshlrev_b32 {v(F+2*s_)}, 16, {v(T+s_)}")
            A(f"v_and_b32 {v(F+2*s_+1)}, 0xffff0000, {v(T+s_)}")
        layernorm([F + 2 * k for k in range(5)], [F + 2 * k for k in range(5)], T, S)
        for k in range(12): A(f"v_mov_b32 {v(D+k)}, 0")
    act([("x", s_) for s_ in range(5)], a_lnx)
    assert pos[("k", 1, 0, 0)] > pos[("clr", 0)]
    if o["burst"]:
        for it in Lwq: pos[it["tag"]] = pos[lastA]
        for it in Lwo: pos[it["tag"]] = pos[lastB]
        assert o["a0"] >= 6
    else:
        assert pos[("wq", 8, 0, 0)] > pos[("clr", 0)]
        assert pos[("x", 4)] + o["WA"] > pos[("clr", 2)]
    for u in range(10):
        for t in range(3):
            def f(u=u, t=t):
                if t == 0:
                    for ins in afrag_oct(AF[u & 1], S + 2 * (u >> 3), u & 7): A(ins)
                smf(D + 4 * t, AF[u & 1], slots[("wq", u, t)]); release("pair", ("wq", u, t))
            act([("wq", u, t, 1)], f); acts[-1]["cost"] = 0.2 if o["burst"] else 1
    def a_qred1():
        A.comment("q: cross-wave reduction")
        compact([D, D + 4, D + 8])
        for t in range(3): A(f"ds_write_b32 {vREDW}, {v(D+4*t)} offset:{RED + 1024*t}")
        A(f"v_lshlrev_b32 {v(T)}, 4, {vL}")
        A(f"s_mul_i32 {sA}, {sW}, 384")
        A(f"v_lshl_add_u32 {v(T+1)}, {vL}, 1, {sA}")
        A(f"v_and_b32 {v(T+2)}, 7, {vL}")
        A(f"v_lshl_add_u32 {v(T+2)}, {v(T+2)}, 4, {sA}")
        A("s_waitcnt lgkmcnt(0)")
        A("s_barrier")
        for t in range(3): A(f"ds_read_b128 {vr(D+4*t,4)}, {v(T)} offset:{RED + 1024*t}")
        if o["burst"] and o["dsig"] == 0: signal("L_nosig")
        qbar_done[0] = True
    act([("clr", 2)], a_qred1)
    def a_qred2():
        A("s_waitcnt lgkmcnt(0)")
        for t in range(3):
            d = D + 4 * t
            A(f"v_pk_add_f32 {vr(d,2)}, {vr(d,2)}, {vr(d+2,2)}")
        for t in range(3):
            d = D + 4 * t
            A(f"v_add_f32 {v(d)}, {v(d)}, {v(d+1)}")
        for t in range(3):
            d = D + 4 * t
            A(f"v_cvt_pk_bf16_f32 {v(d)}, {v(d)}, {v(d)}")
        for t in range(3): A(f"ds_write_b16 {v(T+1)}, {v(D+4*t)} offset:{QB + 128*t}")
        A("s_waitcnt lgkmcnt(0)")
        for t in range(3): A(f"ds_read_b128 {vr(Q+4*t,4)}, {v(T+2)} offset:{QB + 128*t}")
        for k in range(12): A(f"v_mov_b32 {v(D+k)}, 0")
        A("s_waitcnt lgkmcnt(0)")
        stamp()
    act([], a_qred2)
    for n in range(16):
        for hB in range(2):
            def f(n=n, hB=hB):
                acc = v(T + hB)
                first = True
                for t in range(3):
                    s = slots[("k", n, hB, t)]
                    for k in range(4):
                        if first: A(f"v_dot2_f32_bf16 {acc}, v{s[1]+k}, {v(Q+4*t+k)}, 0"); first = False
                        else: A(f"v_dot2_f32_bf16 {acc}, v{s[1]+k}, {v(Q+4*t+k)}, {acc}")
                    release("half", ("k", n, hB, t))
                if hB == 1:
                    A(f"s_lshl_b64 vcc, {sLM}, {n & 7}")
                    for st in (f"quad_perm:[1,0,3,2] {DPPF}", f"quad_perm:[2,3,0,1] {DPPF}", f"row_half_mirror {DPPF}"):
                        for hh in range(2): A(f"v_add_f32_dpp {v(T+hh)}, {v(T+hh)}, {v(T+hh)} {st}")
                    for hh in range(2):
                        d = v(S + 2 * (n >> 3) + hh)
                        A(f"v_cndmask_b32 {d}, {d}, {v(T+hh)}, vcc")
            act([("k", n, hB, 2)], f)
    def a_soft1():
        A.comment("softmax statistics")
        stamp()
        A(f"v_mov_b32 {v(T+4)}, {hex(fbits(192 ** -0.5))}")
        for rnd in range(2):
            for k in range(2): A(f"v_cvt_pk_bf16_f32 {v(T+k)}, {v(S+2*k)}, {v(S+2*k+1)}")
            for k in range(2):
                A(f"v_lshlrev_b32 {v(S+2*k)}, 16, {v(T+k)}")
                A(f"v_and_b32 {v(S+2*k+1)}, 0xffff0000, {v(T+k)}")
            if rnd == 0:
                for k in range(4): A(f"v_mul_f32 {v(S+k)}, {v(S+k)}, {v(T+4)}")
        A(f"v_max3_f32 {v(T)}, {v(S)}, {v(S+1)}, {v(S+2)}")
        A(f"v_max_f32 {v(T)}, {v(T)}, {v(S+3)}")
        wave_reduce("v_max_f32", v(T), sA, fill=[f"v_mov_b32 {v(T+8)}, {hex(LOG2E)}", f"s_lshl_b32 {sC}, {sW}, 3", f"v_mov_b32 {v(T+9)}, {sC}", f"v_mov_b32 {v(T+10)}, 0"])
        for k in range(4): A(f"v_subrev_f32 {v(T+k)}, {sA}, {v(S+k)}")
        for k in range(4): A(f"v_mul_f32 {v(T+k)}, {v(T+k)}, {v(T+8)}")
        for k in range(4): A(f"v_exp_f32 {v(T+k)}, {v(T+k)}")
        A(f"v_mov_b32 {v(T+4)}, {sA}")
        A(f"v_pk_add_f32 {vr(T,2)}, {vr(T,2)}, {vr(T+2,2)}")
        A(f"v_add_f32 {v(T)}, {v(T)}, {v(T+1)}")
        wave_reduce("v_add_f32", v(T), sC)
        A(f"v_mov_b32 {v(T+5)}, {sC}")
        A(f"ds_write_b64 {v(T+9)}, {vr(T+4,2)} offset:{SM}")
    act([], a_soft1)
    def a_soft2():
        A("s_waitcnt lgkmcnt(0)")
        A("s_barrier")
        A(f"ds_read_b128 {vr(T,4)}, {v(T+10)} offset:{SM}")
        A(f"ds_read_b128 {vr(T+4,4)}, {v(T+10)} offset:{SM+16}")
        if not (o["burst"] and o["dsig"] is not None): signal("L_nosig")
        A("s_waitcnt lgkmcnt(0)")
        A(f"v_max3_f32 {v(T+9)}, {v(T)}, {v(T+2)}, {v(T+4)}")
        A(f"v_max_f32 {v(T+9)}, {v(T+9)}, {v(T+6)}")
        for k in range(4): A(f"v_sub_f32 {v(T+2*k)}, {v(T+2*k)}, {v(T+9)}")
        for k in range(4): A(f"v_sub_f32 {v(S+k)}, {v(S+k)}, {v(T+9)}")
        for k in range(4): A(f"v_mul_f32 {v(T+2*k)}, {v(T+2*k)}, {v(T+8)}")
        for k in range(4): A(f"v_mul_f32 {v(S+k)}, {v(S+k)}, {v(T+8)}")
        for k in range(4): A(f"v_exp_f32 {v(T+2*k)}, {v(T+2*k)}")
        for k in range(4): A(f"v_exp_f32 {v(S+k)}, {v(S+k)}")
        A(f"v_mul_f32 {v(T)}, {v(T)}, {v(T+1)}")
        for k in range(1, 4): A(f"v_fmac_f32 {v(T)}, {v(T+2*k)}, {v(T+2*k+1)}")
        A(f"v_rcp_f32 {v(T)}, {v(T)}")
        for k in range(4): A(f"v_mul_f32 {v(S+k)}, {v(S+k)}, {v(T)}")
        A(f"v_cvt_pk_bf16_f32 {v(S)}, {v(S)}, {v(S+1)}")
        A(f"v_cvt_pk_bf16_f32 {v(S+2)}, {v(S+2)}, {v(S+3)}")
        A(f"v_mov_b32_dpp {v(S+1)}, {v(S)} row_half_mirror {DPPF}")
        A(f"v_mov_b32_dpp {v(S+3)}, {v(S+2)} row_half_mirror {DPPF}")
        stamp()
    act([], a_soft2)
    sRD = [f"s{sWQ+k}" for k in range(4)]
    sHL = [f"s{sK+k}" for k in range(4)]
    def a_tailprep():
        A.comment("addresses used by the tail")
        c, r8, i16, b4, b3, b5, tt, oob = [v(T + k) for k in range(8)]
        A(f"v_and_b32 {c}, 7, {vL}"); A(f"v_lshrrev_b32 {r8}, 3, {vL}"); A(f"v_and_b32 {i16}, 15, {vL}")
        A(f"v_bfe_u32 {b4}, {vL}, 4, 1"); A(f"v_bfe_u32 {b3}, {vL}, 3, 1"); A(f"v_lshrrev_b32 {b5}, 5, {vL}")
        A(f"v_mov_b32 {oob}, {OOB}")
        A(f"v_min_u32 {tt}, 5, {i16}"); A(f"v_lshlrev_b32 {tt}, 7, {tt}")
        A(f"v_lshrrev_b32 {tO_R}, 4, {vL}"); A(f"v_lshl_add_u32 {tO_R}, {tO_R}, 5, {tt}")
        A(f"s_mul_i32 {sA}, {sW}, 768"); A(f"v_add_u32 {tO_R}, {sA}, {tO_R}")
        A(f"v_lshlrev_b32 {tt}, 9, {b5}"); A(f"v_lshl_add_u32 {tt}, {i16}, 5, {tt}"); A(f"v_lshl_add_u32 {tt}, {b4}, 4, {tt}")
        A(f"s_mul_i32 {sA}, {sW}, 3072"); A(f"v_add_u32 {tR2W}, {sA}, {tt}")
        A(f"s_mul_i32 {sA}, {sW}, 5"); A(f"v_add_u32 {tt}, {sA}, {r8}")
        A(f"v_lshrrev_b32 {tR2R}, 1, {tt}"); A(f"v_lshlrev_b32 {tR2R}, 8, {tR2R}")
        A(f"v_and_b32 {tt}, 1, {tt}"); A(f"v_lshl_add_u32 {tR2R}, {tt}, 4, {tR2R}"); A(f"v_lshl_add_u32 {tR2R}, {c}, 5, {tR2R}")
        A(f"s_sub_u32 {sC}, {sH}, 20"); A(f"s_cselect_b32 {sC}, {sH}, {sC}")
        A(f"s_mul_i32 {sA}, {sB}, 81920"); A(f"s_lshl_b32 {sC}, {sC}, 7"); A(f"s_add_u32 {sA}, {sA}, {sC}")
        A(f"v_mul_u32_u24 {tt}, 2560, {r8}"); A(f"v_lshl_add_u32 {tt}, {c}, 4, {tt}"); A(f"v_add_u32 {tRD}, {sA}, {tt}")
        A(f"s_mul_i32 {sA}, {sB}, 2560"); A(f"s_add_u32 {sA}, {sA}, {HB}")
        A(f"v_lshl_add_u32 {tHL0}, {vL}, 3, {sA}")
        A(f"s_lshl_b32 {sC}, {sW}, 1"); A(f"v_xor_b32 {tt}, {sC}, {vL}"); A(f"v_lshl_add_u32 {tHL4}, {tt}, 3, {sA}")
        for k in range(4):
            A(f"s_add_u32 {sHL[k]}, {sW}, {k}"); A(f"s_and_b32 {sHL[k]}, {sHL[k]}, 3"); A(f"s_lshl_b32 {sHL[k]}, {sHL[k]}, 9")
            A(f"s_mov_b32 {sRD[k]}, {P1 + k * 20480}")
        A(f"v_and_b32 {tt}, 3, {c}"); A(f"v_min_u32 {tt}, 2, {tt}"); A(f"v_lshlrev_b32 {tt}, 8, {tt}"); A(f"v_lshl_add_u32 {tZR}, {r8}, 5, {tt}")
        A(f"s_mul_i32 {sA}, s2, 2560"); A(f"s_add_u32 {sA}, {sA}, {P2}")
        A(f"v_lshlrev_b32 {tt}, 7, {b4}"); A(f"v_lshl_add_u32 {tt}, {c}, 4, {tt}"); A(f"v_add_u32 {tt}, {sA}, {tt}")
        A(f"s_lshl_b32 {sC}, {sW}, 9"); A(f"v_lshl_add_u32 {tP2ST}, {b5}, 8, {sC}")
        A(f"s_add_u32 {sC}, {sW}, 8"); A(f"s_lshl_b32 {sC}, {sC}, 8"); A(f"s_cmp_lt_u32 {sW}, 2"); A(f"s_cselect_b32 {sC}, {sC}, {OOB}")
        A(f"v_cmp_eq_u32 vcc, 1, {b5}"); A(f"v_mov_b32 {i16}, {sC}")
        A(f"v_cndmask_b32 {i16}, {oob}, {i16}, vcc")
        A(f"v_cmp_eq_u32 vcc, 1, {b3}")
        A(f"v_cndmask_b32 {tP2ST}, {tP2ST}, {i16}, vcc")
        A(f"v_add_u32 {tP2ST}, {tP2ST}, {tt}")
        A(f"s_lshr_b32 {sA}, {sH}, 1"); A(f"s_lshl_b32 {sA}, {sA}, 7"); A(f"s_and_b32 {sC}, {sH}, 1"); A(f"s_lshl_b32 {sC}, {sC}, 3"); A(f"s_add_u32 {sA}, {sA}, {sC}")
        A(f"v_lshl_add_u32 {tt}, {c}, 3, {r8}"); A(f"v_lshl_add_u32 {tt}, {tt}, 1, {sA}")
        A(f"v_cmp_gt_u32 vcc, 32, {vL}")
        A(f"v_cndmask_b32 {tOUT}, {oob}, {tt}, vcc")
    tailprep_done = [False]
    for n in range(16):
        for t in range(3):
            def f(n=n, t=t):
                if t == 0:
                    for ins in afrag_oct(AF[n & 1], S + 2 * (n >> 3), n & 7): A(ins)
                smf(D + 4 * t, AF[n & 1], slots[("v", n, t)]); release("pair", ("v", n, t))
            act([("v", n, t, 1)], f)
        if n == 4:
            def g(): a_tailprep(); tailprep_done[0] = True
            act([], g)

    arrived = -1
    ai = 0
    def wait_for(idx, issued):
        nonlocal arrived
        if idx > arrived:
            A(f"s_waitcnt vmcnt({issued - 1 - idx})"); arrived = idx
    def force_action(issued):
        nonlocal ai
        a = acts[ai]; m = max(a["needs"], default=-1)
        assert m < issued, "action needs a load that is not issued yet"
        wait_for(m, issued); a["fn"](); ai += 1
    forced = 0
    cur = [0]
    def force_now():
        nonlocal forced
        force_action(cur[0]); forced += 1
    for n, it in enumerate(seq):
        cur[0] = n
        if it["tag"] == ("clr", 0): late_setup()
        if it["tag"] == ("xr",): assert tailprep_done[0]
        if n - Wn[n] > arrived: wait_for(n - Wn[n], n)
        for hk in hooks.get(it["tag"], []): hk()
        while it["need"] and not can_alloc(it["need"]):
            force_action(n); forced += 1
        it["emit"]()
        budget = 1.0
        while budget > 0.01 and ai < len(acts) and max(acts[ai]["needs"], default=-1) <= arrived:
            budget -= acts[ai].get("cost", 1); acts[ai]["fn"](); ai += 1
    issued = len(seq)
    A.label("L_tail")
    A(f"s_mov_b32 {sSPIN}, 0")
    late = (Lw1 + Lw2) if o["w12late"] else []
    nlate = [0]
    def late_load(k=1, limit=None):
        nonlocal issued
        for _ in range(k):
            if late and (limit is None or nlate[0] < limit):
                late.pop(0)["emit"](); issued += 1; nlate[0] += 1
    late_load(o["n1"])
    while ai < len(acts):
        force_action(issued); late_load(1, o["n2"])
    o["_forced"] = forced

    stamp()
    if o["notail"]:
        for k in range(nstamp[0], nstamp[0] + 4): A(f"s_memrealtime s[{4+2*k}:{5+2*k}]")
        A("s_branch L_prof")
    assert not halfV
    tv = sorted(s[1] for s in freeV)
    assert len(tv) >= 7, tv
    DO = [tv[0], tv[0] + 4, tv[1], tv[1] + 4, tv[2]]
    G = [tv[3], tv[3] + 4, tv[4], tv[4] + 4]
    F = [tv[5], tv[5] + 2, tv[5] + 4, tv[5] + 6, tv[6]]
    Wk = [tv[0], tv[0] + 2, tv[0] + 4, tv[0] + 6, tv[1]]
    R0, R1 = tv[2], tv[2] + 4
    for d in DO[:2]:
        for k in range(4): A(f"v_mov_b32 {v(d+k)}, 0")
    compact([D, D + 4, D + 8])
    for t in range(3): A(f"ds_write_b32 {vREDW}, {v(D+4*t)} offset:{RED + 1024*t}")
    late_load(1, o["n2"])
    for d in DO[2:4]:
        for k in range(4): A(f"v_mov_b32 {v(d+k)}, 0")
    A("s_waitcnt lgkmcnt(0)")
    A("s_barrier")
    A(f"ds_read_b128 {vr(T,4)}, {tO_R} offset:{RED}")
    A(f"ds_read_b128 {vr(T+4,4)}, {tO_R} offset:{RED+16}")
    late_load(1, o["n2"])
    for k in range(4): A(f"v_mov_b32 {v(DO[4]+k)}, 0")
    wait_for(max(pos[it["tag"]] for it in Lwo), issued)
    A("s_waitcnt lgkmcnt(0)")
    A(f"v_pk_add_f32 {vr(T,2)}, {vr(T,2)}, {vr(T+2,2)}")
    A(f"v_pk_add_f32 {vr(T+4,2)}, {vr(T+4,2)}, {vr(T+6,2)}")
    A(f"v_add_f32 {v(T)}, {v(T)}, {v(T+1)}")
    A(f"v_add_f32 {v(T+4)}, {v(T+4)}, {v(T+5)}")
    A(f"v_cvt_pk_bf16_f32 {v(S)}, {v(T)}, {v(T+4)}")
    def af_row(dst, u): return [f"v_and_b32_dpp {v(dst+k)}, {v(S)}, {v(MK[k])} row_newbcast:{u} {DPPF}" for k in range(4)]
    for ins in af_row(AF[0], 0): A(ins)
    for u in range(6):
        nxt = af_row(AF[(u + 1) & 1], u + 1) if u < 5 else []
        for blk in range(5):
            smf(DO[blk], AF[u & 1], slots[("wo", u, blk)])
            if nxt: A(nxt.pop(0))
            if blk == 4: late_load(1, o["n2"])
    for k in range(4): A(f"v_mov_b32_dpp {v(DO[0]+k)}, {v(DO[1]+k)} quad_perm:[0,1,2,3] row_mask:0xc bank_mask:0xf")
    A(f"ds_write_b128 {tR2W}, {vr(DO[0],4)} offset:{RED2}")
    for k in range(4): A(f"v_mov_b32_dpp {v(DO[2]+k)}, {v(DO[3]+k)} quad_perm:[0,1,2,3] row_mask:0xc bank_mask:0xf")
    A(f"ds_write_b128 {tR2W}, {vr(DO[2],4)} offset:{RED2+1024}")
    A(f"ds_write_b128 {tR2W}, {vr(DO[4],4)} offset:{RED2+2048}")
    A("s_waitcnt lgkmcnt(0)")
    A("s_barrier")
    for k in range(4): A(f"ds_read_b128 {vr(G[k],4)}, {tR2R} offset:{RED2 + 3072*k}")
    for k in range(12): A(f"v_mov_b32 {v(D+k)}, 0")
    A("s_waitcnt lgkmcnt(0)")
    def sum4():
        for hh in (0, 2):
            A(f"v_pk_add_f32 {vr(R0+hh,2)}, {vr(G[0]+hh,2)}, {vr(G[1]+hh,2)}")
            A(f"v_pk_add_f32 {vr(R1+hh,2)}, {vr(G[2]+hh,2)}, {vr(G[3]+hh,2)}")
        for hh in (0, 2):
            A(f"v_pk_add_f32 {vr(R0+hh,2)}, {vr(R0+hh,2)}, {vr(R1+hh,2)}")
    sum4()
    for k in range(4): A(f"v_min_u32 {v(R0+k)}, -2, {v(R0+k)}")
    A(f"buffer_store_dwordx4 {vr(R0,4)}, {vP1ST}, {srd(sWS)}, 0 offen sc1")
    issued += 1
    stamp()
    if o["prof"]:
        stamp(); nstamp[0] -= 1
    def spin_guard():
        A(f"s_add_u32 {sSPIN}, {sSPIN}, 1"); A(f"s_cmp_gt_u32 {sSPIN}, {o['spin']}"); A("s_cbranch_scc1 L_end")
    wait_for(pos[("cnt",)], issued)
    A(f"v_cmp_gt_u32 vcc, 32, {tCNT}")
    if not o["nosig"]: A("s_cbranch_vccnz L_cntwait")
    A.label("L_cntok")
    last_soff[0] = None
    while late:
        A(f"s_waitcnt vmcnt({o['Wb'] - 2})"); late_load(2)
    A(f"s_cmp_lg_u32 {sW}, 0"); A("s_cbranch_scc1 L_hpoll0")
    if not o["hbar"]:
        A(f"s_cmp_ge_u32 {sH}, 20"); A("s_cbranch_scc1 L_hpoll0")
    def reduce_stage(lbl, dep):
        def loads():
            for k in range(4): A(f"buffer_load_dwordx4 {vr(G[k],4)}, {tRD}, {srd(sWS)}, {sRD[k]} offen sc1")
        for _ in range(dep - 1): loads()
        A.label(lbl)
        loads()
        spin_guard()
        A(f"s_waitcnt vmcnt({4 * (dep - 1)})")
        regs = [G[k] + j for k in range(4) for j in range(4)]
        A(f"v_max3_u32 {v(T)}, {v(regs[0])}, {v(regs[1])}, {v(regs[2])}")
        A(f"v_max3_u32 {v(T+1)}, {v(regs[3])}, {v(regs[4])}, {v(regs[5])}")
        for k in range(6, 16, 2):
            d = v(T + ((k >> 1) & 1))
            A(f"v_max3_u32 {d}, {d}, {v(regs[k])}, {v(regs[k+1])}")
        A(f"v_max_u32 {v(T)}, {v(T)}, {v(T+1)}")
        A(f"v_cmp_eq_u32 vcc, -1, {v(T)}")
        A(f"s_cbranch_vccnz {lbl}")
        sum4()
        g = R0
        A(f"v_add_f32_dpp {v(T)}, {v(g)}, {v(g)} row_ror:8 row_mask:0xf bank_mask:0x3")
        A(f"v_add_f32_dpp {v(T+1)}, {v(g+2)}, {v(g+2)} row_ror:8 row_mask:0xf bank_mask:0x3")
        A(f"v_add_f32_dpp {v(T)}, {v(g+1)}, {v(g+1)} row_ror:8 row_mask:0xf bank_mask:0xc")
        A(f"v_add_f32_dpp {v(T+1)}, {v(g+3)}, {v(g+3)} row_ror:8 row_mask:0xf bank_mask:0xc")
        A(f"v_permlane16_swap_b32 {v(T)}, {v(T+1)}")
        A(f"v_add_f32 {v(T)}, {v(T)}, {v(T+1)}")
        A(f"v_mov_b32 {v(T+1)}, {v(T)}")
        A(f"v_permlane32_swap_b32 {v(T)}, {v(T+1)}")
        A(f"v_add_f32 {v(T)}, {v(T)}, {v(T+1)}")
        round_bf16(v(T))
    A(f"v_lshlrev_b32 {tXR}, 16, {tXR}")
    reduce_stage("L_red1", o["dR"])
    A(f"v_add_f32 {tXR}, {tXR}, {v(T)}")
    round_bf16(tXR)
    A(f"buffer_store_dword {tXR}, {vHST}, {srd(sWS)}, 0 offen sc1")
    if o["prof"]:
        A("s_waitcnt lgkmcnt(0)"); stamp()
    if o["hbar"] and o["ack2"]: A("s_waitcnt vmcnt(0)")
    A.label("L_hpoll0")
    if o["hbar"]: A("s_barrier")
    def hloads():
        for k in range(4): A(f"buffer_load_dwordx2 {vr(F[k],2)}, {tHL0}, {srd(sWS)}, {sHL[k]} offen sc1")
        A(f"buffer_load_dwordx2 {vr(F[4],2)}, {tHL4}, {srd(sWS)}, 0 offen offset:2048 sc1")
    for _ in range(o["dH"] - 1): hloads()
    A.label("L_hpoll")
    hloads()
    spin_guard()
    A(f"s_waitcnt vmcnt({5 * (o['dH'] - 1)})")
    A(f"v_max3_u32 {v(T)}, {v(F[0])}, {v(F[0]+1)}, {v(F[1])}")
    A(f"v_max3_u32 {v(T+1)}, {v(F[1]+1)}, {v(F[2])}, {v(F[2]+1)}")
    A(f"v_max3_u32 {v(T)}, {v(T)}, {v(F[3])}, {v(F[3]+1)}")
    A(f"v_max3_u32 {v(T+1)}, {v(T+1)}, {v(F[4])}, {v(F[4]+1)}")
    A(f"v_max_u32 {v(T)}, {v(T)}, {v(T+1)}")
    A(f"v_cmp_eq_u32 vcc, -1, {v(T)}")
    if o["sleep"]:
        A("s_cbranch_vccz L_hok"); A(f"s_sleep {o['sleep']}"); A("s_branch L_hpoll"); A.label("L_hok")
    else:
        A("s_cbranch_vccnz L_hpoll")
    stamp()
    layernorm(F, Wk, T, S)
    for ins in afrag_oct(AF[0], S, 0): A(ins)
    for u in range(10):
        nxt = afrag_oct(AF[(u + 1) & 1], S + 2 * ((u + 1) >> 3), (u + 1) & 7) if u < 9 else []
        if nxt: A(nxt.pop(0)); A(nxt.pop(0))
        smf(D, AF[u & 1], slots[("w1", u)])
        for ins in nxt: A(ins)
    A(f"v_mov_b32 {v(T+8)}, {hex(LOG2E ^ 0x80000000)}")
    compact([D])
    A(f"ds_write_b32 {vREDW}, {v(D)} offset:{REDZ}")
    A("s_waitcnt lgkmcnt(0)")
    A("s_barrier")
    A(f"ds_read_b128 {vr(T,4)}, {tZR} offset:{REDZ}")
    A(f"ds_read_b128 {vr(T+4,4)}, {tZR} offset:{REDZ+16}")
    for k in range(4): A(f"v_mov_b32 {v(D+k)}, 0")
    for k in range(4): A(f"s_add_u32 {sRD[k]}, {sRD[k]}, {P2 - P1}")
    A("s_waitcnt lgkmcnt(0)")
    A(f"v_pk_add_f32 {vr(T,2)}, {vr(T,2)}, {vr(T+2,2)}")
    A(f"v_pk_add_f32 {vr(T+4,2)}, {vr(T+4,2)}, {vr(T+6,2)}")
    A(f"v_add_f32 {v(T)}, {v(T)}, {v(T+1)}")
    A(f"v_add_f32 {v(T+4)}, {v(T+4)}, {v(T+5)}")
    A(f"v_cvt_pk_bf16_f32 {v(T+1)}, {v(T)}, {v(T+4)}")
    A(f"v_lshlrev_b32 {v(T)}, 16, {v(T+1)}")
    A(f"v_and_b32 {v(T+1)}, 0xffff0000, {v(T+1)}")
    for k in range(2): A(f"v_mul_f32 {v(T+2+k)}, {v(T+k)}, {v(T+8)}")
    for k in range(2): A(f"v_exp_f32 {v(T+2+k)}, {v(T+2+k)}")
    for k in range(2): A(f"v_add_f32 {v(T+2+k)}, 1.0, {v(T+2+k)}")
    for k in range(2): A(f"v_rcp_f32 {v(T+2+k)}, {v(T+2+k)}")
    for k in range(2): A(f"v_mul_f32 {v(T+k)}, {v(T+k)}, {v(T+2+k)}")
    A(f"v_cvt_pk_bf16_f32 {v(S)}, {v(T)}, {v(T+1)}")
    def af_quad(dst, u): return [f"v_and_b32_dpp {v(dst+k)}, {v(S)}, {v(MK[k])} quad_perm:[{u},{u},{u},{u}] {DPPF}" for k in range(4)]
    for ins in af_quad(AF[0], 0): A(ins)
    for u in range(3):
        nxt = af_quad(AF[(u + 1) & 1], u + 1) if u < 2 else []
        if nxt: A(nxt.pop(0)); A(nxt.pop(0))
        for blk in range(3):
            smf(D + 4 * blk, AF[u & 1], slots[("w2", u, blk)])
            if nxt: A(nxt.pop(0))
    X, Y, Z = D, D + 4, D + 8
    for e in range(4): A(f"v_permlane32_swap_b32 {v(X+e)}, {v(Y+e)}")
    for e in range(4): A(f"v_add_f32_dpp {v(X+e)}, {v(Y+e)}, {v(X+e)} row_ror:8 row_mask:0xf bank_mask:0x3")
    for e in range(4): A(f"v_permlane32_swap_b32 {v(Y+e)}, {v(Z+e)}")
    for e in range(4): A(f"v_add_f32_dpp {v(X+e)}, {v(Y+e)}, {v(Z+e)} row_ror:8 row_mask:0xc bank_mask:0xc")
    for e in range(4): A(f"v_min_u32 {v(X+e)}, -2, {v(X+e)}")
    A(f"buffer_store_dwordx4 {vr(X,4)}, {tP2ST}, {srd(sWS)}, 0 offen sc1")
    stamp()
    fin = "L_prof" if o["prof"] else "L_end"
    A(f"s_cmp_lg_u32 {sW}, 0"); A(f"s_cbranch_scc1 {fin}")
    A(f"s_cmp_ge_u32 {sH}, 20"); A(f"s_cbranch_scc1 {fin}")
    if o["ack3"]: A("s_waitcnt vmcnt(0)")
    reduce_stage("L_red2", o.get("dR2", o["dR"]))
    A(f"v_add_f32 {v(T)}, {tXR}, {v(T)}")
    A(f"v_cvt_pk_bf16_f32 {v(T)}, {v(T)}, {v(T)}")
    A(f"buffer_store_short {v(T)}, {tOUT}, {srd(sOUT)}, 0 offen")
    if o["prof"]:
        A.label("L_prof")
        stamp()
        A("s_getreg_b32 s25, hwreg(HW_REG_XCC_ID)")
        A("s_waitcnt lgkmcnt(0)")
        A(f"s_lshl_b32 {sA}, s2, 2"); A(f"s_add_u32 {sA}, {sA}, {sW}"); A(f"s_lshl_b32 {sA}, {sA}, 6"); A(f"s_add_u32 {sA}, {sA}, {PROF}")
        for k in range(nstamp[0]):
            A(f"v_mov_b32 {v(T)}, s{4+2*k}")
            A(f"buffer_store_dword {v(T)}, off, {srd(sWS)}, {sA} offset:{4*k}")
        A(f"v_mov_b32 {v(T)}, s25"); A(f"buffer_store_dword {v(T)}, off, {srd(sWS)}, {sA} offset:56")
        A(f"v_mov_b32 {v(T)}, {sSPIN}"); A(f"buffer_store_dword {v(T)}, off, {srd(sWS)}, {sA} offset:60")
    A.label("L_end")
    A("s_endpgm")
    A.label("L_cntwait")
    A(f"s_lshl_b32 {sT}, {sB}, 5")
    A(f"buffer_load_dword {tCNT}, off, {srd(sDBG)}, {sT} sc1")
    spin_guard()
    A("s_waitcnt vmcnt(0)")
    A(f"v_cmp_gt_u32 vcc, 32, {tCNT}")
    A("s_cbranch_vccnz L_cntwait")
    A.label("L_last")
    A("s_branch L_cntok")
    if o["burst"] and o["dsig"]:
        A.label("L_signal"); signal_body(); A(f"s_setpc_b64 {sRA}")
    for nm, lst, snap in subs:
        A.label(f"L_burst_{nm}")
        slots.clear(); slots.update(snap); last_soff[0] = None
        for i, it in enumerate(lst):
            if nm in o["skip"]: break
            if i % 2 == 0: A(f"s_waitcnt vmcnt({o['Wb'] - 2})")
            it["emit"]()
        A(f"s_setpc_b64 {sRA}")
    A.raw('.section .rodata,"a"'); A.raw(".p2align 6"); A.raw(f".amdhsa_kernel {KNAME}")
    A.raw("  .amdhsa_next_free_vgpr 512"); A.raw("  .amdhsa_next_free_sgpr 102"); A.raw("  .amdhsa_accum_offset 256")
    A.raw("  .amdhsa_float_denorm_mode_32 3")
    A.raw("  .amdhsa_group_segment_fixed_size 0"); A.raw("  .amdhsa_kernarg_size 88"); A.raw("  .amdhsa_user_sgpr_count 2")
    A.raw("  .amdhsa_user_sgpr_kernarg_segment_ptr 1"); A.raw("  .amdhsa_system_sgpr_workgroup_id_x 1"); A.raw(".end_amdhsa_kernel")
    o["_nstamp"] = nstamp[0]
    return A.text(), o

if __name__ == "__main__":
    out = sys.argv[1]
    kw = eval("dict(" + (sys.argv[2] if len(sys.argv) > 2 else "") + ")")
    txt, o = gen(**kw)
    open(out, "w").write(txt)
    print("forced", o["_forced"], "lines", txt.count("\n"))
```

```python
import sys, os
sys.path.insert(0, os.path.dirname(os.path.abspath(__file__)))
from asmlib import Asm

NAME = "sequential_preLN__sliding_block_cached__dense_activation_silu__decode"
KNAME = NAME + "_kernel"

DEF = dict(
    WA=15, WB=12, WC=12,
    nKA=30,
    nWOB=30,
    rot=4,
    polKV="nt", polW="",
    prof=False,
    wlast=0,
    codepf=True,
    burst=True, W=12, Wb=12,
    grp="b",
    a0=7, da=7, b0=86, db=6, c0=140, dc=6, tlead=14, touch64=False, touch=True, polT="nt", polT2="sc1", skip=(), notail=False, sleep=0, dR=1, dH=1, ack3=True, hbar=True, ack2=True, Ws=None, perm=False, nosig=False, noclr=False, sig0=46, dsig=0, xorid=0, warm=0, polWm="", warmpos=192, tag=True, nL=10, rL=4, tqs=None, tws=2, dtw=3, qkcost=1.0, pf0=False, st0=False, tB=None, tC=None, polC="sc1", clrpos=6, w12late=False, n1=6, n2=14,
    spin=200000,
)

RED, QB, SM, RED2, REDZ, LDS_BYTES = 0, 3072, 4608, 5120, 17408, 18432
P1, P2, HB, PROF = 0, 0x100000, 0x200000, 0x800000
OOB = 0x40000000
LOG2E = 0x3fb8aa3b
import struct
def fbits(x): return struct.unpack("<I", struct.pack("<f", x))[0]

def gen(**kw):
    o = dict(DEF); o.update(kw)
    A = Asm()
    hdr = open(os.path.join(os.path.dirname(os.path.abspath(__file__)), "..", "cdna_kernels", NAME + ".s.ref")).read().splitlines()
    for ln in hdr:
        if ln.startswith("; Override") : break
        A.raw(ln)
    KL = RED2
    lds_bytes = max(LDS_BYTES, KL + 4 * o["nL"] * 3072)
    assert lds_bytes <= 163840 and o["nL"] % 2 == 0
    A.raw(f"; @launch grid=(256,1,1) block=(256,1,1) lds={lds_bytes}")
    A.raw('.amdgcn_target "amdgcn-amd-amdhsa--gfx950"')
    A.raw(".text"); A.raw(f".globl {KNAME}"); A.raw(".p2align 8"); A.raw(f".type {KNAME},@function"); A.label(KNAME)

    sW, sB, sH = "s3", "s26", "s27"
    sX, sK, sV, sWQ, sWO, sW1, sW2, sOUT, sDBG, sWS = [28 + 4 * i for i in range(10)]
    srd = lambda n: f"s[{n}:{n+3}]"
    sU = 68
    sT = "s84"
    sQB0, sQB1, sF0, sF1, sZ = "s86", "s87", "s88", "s89", "s1"
    sLM = "s[92:93]"
    sA, sC, sD, sE = "s94", "s95", "s96", "s97"
    sSPIN = "s98"
    sPC = 100
    vL, vK, vV, vWQ, vWO, vW2, vW1, vIDX = [f"v{i}" for i in range(8)]
    MK = [8, 9, 10, 11]
    AF = [12, 16]
    D = 20
    Q = 32
    S = 44
    T = 48
    vHST, vP1ST, vREDW = "v61", "v62", "v63"
    tO_R, tR2W, tR2R, tCNT, tRD, tPF, tHL0, tHL4, tZR, tP2ST, tOUT, tXR = [f"v{Q+i}" for i in range(12)]
    v = lambda n: f"v{n}"
    vr = lambda n, k: f"v[{n}:{n+k-1}]"
    nstamp = [0]
    def stamp():
        if o["prof"]:
            k = nstamp[0]; nstamp[0] += 1
            assert k < 11
            A(f"s_memrealtime s[{4+2*k}:{5+2*k}]")

    A("s_load_dwordx16 s[4:19], s[0:1], 0")
    A("s_load_dwordx4 s[20:23], s[0:1], 64")
    A("s_load_dwordx2 s[24:25], s[0:1], 80")
    A("s_cmpk_ge_u32 s2, 256")
    A("s_cbranch_scc1 L_end")
    if o["xorid"]: A(f"s_xor_b32 s2, s2, {o['xorid']}")
    if o["perm"]:
        A("s_lshr_b32 s3, s2, 3"); A("s_add_u32 s3, s3, s2"); A("s_and_b32 s3, s3, 7"); A("s_and_b32 s2, s2, 0xf8"); A("s_or_b32 s2, s2, s3")
    if o["prof"]: A("s_memrealtime s[100:101]")
    A(f"v_readfirstlane_b32 {sW}, v0")
    A(f"v_and_b32 {vL}, 63, v0")
    A(f"s_lshr_b32 {sW}, {sW}, 6")
    A(f"s_lshr_b32 {sB}, s2, 5")
    A(f"s_and_b32 {sH}, s2, 31")
    vR8, vC, t0, t1, t2, t3 = v(T+7), v(T+8), v(T+9), v(T+10), v(T+11), v(T+12)
    A(f"v_lshrrev_b32 {vR8}, 3, {vL}")
    A(f"v_and_b32 {vC}, 7, {vL}")
    A(f"v_lshlrev_b32 {v(T+5)}, 2, {vL}")
    A(f"s_lshl_b32 {sA}, {sW}, 3")
    A(f"v_xor_b32 {v(T+6)}, {sA}, {v(T+5)}")
    A(f"v_and_b32 {t0}, 32, {vL}")
    A(f"v_bfe_u32 {t1}, {vL}, 3, 1")
    A(f"v_bfe_u32 {t2}, {vL}, 4, 1")
    A(f"v_lshl_add_u32 {t3}, {t1}, 4, {t0}")
    A(f"v_add_u32 {t3}, {t3}, {t2}")
    A(f"v_mul_u32_u24 {t3}, 12288, {t3}")
    A(f"v_lshl_add_u32 {vWQ}, {vC}, 4, {t3}")
    A(f"v_lshrrev_b32 {t3}, 2, {t0}")
    A(f"v_lshl_add_u32 {t3}, {t2}, 2, {t3}")
    A(f"v_add_u32 {t3}, {t3}, {t1}")
    A(f"v_mul_u32_u24 {t3}, 384, {t3}")
    A(f"v_lshl_add_u32 {vK}, {vC}, 4, {t3}")
    A(f"s_mul_i32 {sA}, s2, 1572864")
    A(f"s_add_u32 {sA}, {sA}, 1179648")
    A(f"s_mul_i32 {sC}, {sB}, 1280")
    A(f"s_mul_i32 {sD}, {sH}, 384")
    A(f"s_mul_i32 {sQB0}, {sW}, {128*12288}")
    A(f"s_mul_i32 {sE}, s2, {o['rot']}")
    A(f"s_add_u32 {sE}, {sE}, {sW}")
    def unit_off(n):
        A(f"s_add_u32 s{sU+n}, {sE}, {4*n}")
        A(f"s_and_b32 s{sU+n}, s{sU+n}, 63")
        A(f"s_mulk_i32 s{sU+n}, 6144")
    unit_off(0)
    sKL = "s90"
    if o["nL"]:
        A(f"s_mul_i32 {sKL}, {sW}, {o['nL'] * 3072}"); A(f"s_add_u32 {sKL}, {sKL}, {KL}")
    sG, sRA, sT2, sGT, sSG = "s85", "s[76:77]", "s91", "s99", "s98"
    vT1, vT2 = v(Q), v(Q + 1)
    if o["burst"]:
        sRA = f"s[{sPC}:{sPC+1}]"
        A(f"v_mul_u32_u24 {vT1}, 21846, {vL}"); A(f"v_lshrrev_b32 {vT1}, 16, {vT1}")
        A(f"v_mul_u32_u24 {vT2}, {12288 - 3*128}, {vT1}"); A(f"v_lshl_add_u32 {vT2}, {vL}, 7, {vT2}")
        sQT = sGT
        A(f"s_lshl_b32 {sQT}, {sB}, 2"); A(f"s_add_u32 {sQT}, {sQT}, {sW}"); A(f"s_mul_i32 {sQT}, {sQT}, {20*12288}")
        if o["grp"] == "h":
            A(f"s_lshr_b32 {sG}, {sH}, 3"); A(f"s_mov_b32 {sGT}, {sG}")
        elif o["grp"] == "hb":
            A(f"s_lshr_b32 {sGT}, {sH}, 3"); A(f"s_lshl_b32 {sGT}, {sGT}, 1"); A(f"s_and_b32 {sG}, {sB}, 1"); A(f"s_add_u32 {sG}, {sG}, {sGT}")
        else:
            A(f"s_mov_b32 {sG}, {sB}")
    A(f"s_mov_b32 s{sX+2}, 1280"); A(f"s_mov_b32 s{sX+3}, 0x20000")
    A(f"s_mov_b32 s{sK+2}, 393216"); A(f"s_mov_b32 s{sK+3}, 0x20000")
    A(f"s_sub_u32 s{sWQ+2}, {640*12288}, {sD}"); A(f"s_mov_b32 s{sWQ+3}, 0x20000")
    if o["pf0"]:
        A("s_cmp_ge_u32 s2, 8"); A("s_cbranch_scc1 L_nopf0")
        A(f"s_getpc_b64 s[{sOUT}:{sOUT+1}]")
        A.label("L_pc0")
        A(f"s_lshl_b32 {sT}, {sW}, 13")
        A(f"v_lshl_add_u32 {v(Q+2)}, {vL}, 7, {sT}")
        A(f"v_min_u32 {v(Q+2)}, L_codeend-L_pc0-4, {v(Q+2)}")
        A(f"global_load_dword {v(Q+2)}, {v(Q+2)}, s[{sOUT}:{sOUT+1}]")
        A.label("L_nopf0")
    A("s_waitcnt lgkmcnt(0)")
    if o["st0"]: A("s_memrealtime s[72:73]")
    A(f"s_add_u32 s{sX}, s4, {sC}"); A(f"s_addc_u32 s{sX+1}, s5, 0")
    A(f"s_add_u32 s{sK}, s6, {sA}"); A(f"s_addc_u32 s{sK+1}, s7, 0")
    A(f"s_add_u32 s{sWQ}, s10, {sD}"); A(f"s_addc_u32 s{sWQ+1}, s11, 0")

    def late_setup():
        A(f"s_add_u32 s{sV}, s8, {sA}"); A(f"s_addc_u32 s{sV+1}, s9, 0")
        A(f"s_mov_b32 s{sV+2}, 393216"); A(f"s_mov_b32 s{sV+3}, 0x20000")
        A(f"s_add_u32 s{sOUT}, s20, {sC}"); A(f"s_addc_u32 s{sOUT+1}, s21, 0")
        A(f"s_mov_b32 s{sOUT+2}, 1280"); A(f"s_mov_b32 s{sOUT+3}, 0x20000")
        A(f"s_mul_i32 {sD}, {sH}, 245760")
        A(f"s_add_u32 s{sWO}, s12, {sD}"); A(f"s_addc_u32 s{sWO+1}, s13, 0")
        A(f"s_mov_b32 s{sWO+2}, 245760"); A(f"s_mov_b32 s{sWO+3}, 0x20000")
        A(f"s_and_b32 {sA}, {sH}, 7"); A(f"s_lshl_b32 {sA}, {sA}, 2"); A(f"s_lshr_b32 {sC}, {sH}, 3"); A(f"s_add_u32 {sA}, {sA}, {sC}")
        A(f"s_mul_i32 {sD}, {sA}, 96")
        A(f"s_add_u32 s{sW1}, s16, {sD}"); A(f"s_addc_u32 s{sW1+1}, s17, 0")
        A(f"s_sub_u32 s{sW1+2}, {640*3072}, {sD}"); A(f"s_mov_b32 s{sW1+3}, 0x20000")
        A(f"s_mul_i32 {sD}, {sA}, 61440")
        A(f"s_add_u32 s{sW2}, s18, {sD}"); A(f"s_addc_u32 s{sW2+1}, s19, 0")
        A(f"s_mov_b32 s{sW2+2}, 61440"); A(f"s_mov_b32 s{sW2+3}, 0x20000")
        A(f"s_mov_b32 s{sDBG}, s22"); A(f"s_mov_b32 s{sDBG+1}, s23"); A(f"s_mov_b32 s{sDBG+2}, 256"); A(f"s_mov_b32 s{sDBG+3}, 0x20000")
        A(f"s_mov_b32 s{sWS}, s24"); A(f"s_mov_b32 s{sWS+1}, s25"); A(f"s_mov_b32 s{sWS+2}, 0x1000000"); A(f"s_mov_b32 s{sWS+3}, 0x20000")
        if o["prof"]:
            A("s_mov_b32 s4, s100"); nstamp[0] = 1
            if o["st0"]:
                A("s_waitcnt lgkmcnt(0)"); A("s_mov_b32 s6, s72"); A("s_memrealtime s[8:9]"); nstamp[0] = 3
        for n in range(1, 16): unit_off(n)
        A(f"s_lshl_b32 {sA}, {sW}, 2"); A(f"s_add_u32 {sA}, {sA}, 512"); A(f"s_mul_i32 {sQB1}, {sA}, 12288")
        A(f"s_mul_i32 {sF0}, {sW}, {128*3072}")
        A(f"s_and_b32 {sA}, {sW}, 1"); A(f"s_lshl_b32 {sA}, {sA}, 5"); A(f"s_lshr_b32 {sC}, {sW}, 1"); A(f"s_add_u32 {sA}, {sA}, {sC}")
        A(f"s_add_u32 {sA}, {sA}, 512"); A(f"s_mul_i32 {sF1}, {sA}, 3072")
        A(f"s_sub_u32 {sA}, 8, {sW}"); A(f"s_lshl_b32 {sA}, {sA}, 7"); A(f"s_cmp_lt_u32 {sW}, 2"); A(f"s_cselect_b32 {sZ}, {sA}, 0x100000")
        A("s_mov_b32 s92, 0x01010101"); A("s_mov_b32 s93, 0x01010101")
        A(f"s_lshr_b32 {sSG}, s2, 3"); A(f"s_cmp_eq_u32 {sW}, 0"); A(f"s_cselect_b32 {sSG}, {sSG}, 64")
        A(f"v_mul_u32_u24 {t3}, 384, {vR8}")
        A(f"v_lshl_add_u32 {vV}, {vC}, 4, {t3}")
        A(f"v_lshrrev_b32 {t3}, 4, {vL}"); A(f"s_mul_i32 {sA}, {sW}, 48"); A(f"v_add_u32 {t3}, {sA}, {t3}")
        A(f"v_mul_u32_u24 {t3}, 1280, {t3}"); A(f"v_and_b32 {vWO}, 15, {vL}"); A(f"v_lshl_add_u32 {vWO}, {vWO}, 4, {t3}")
        A(f"v_lshrrev_b32 {t3}, 3, {t0}")
        A(f"v_lshl_add_u32 {t3}, {t1}, 1, {t3}")
        A(f"v_lshl_add_u32 {vW1}, {t2}, 3, {t3}")
        A(f"v_mul_u32_u24 {vW1}, 3072, {vW1}")
        A(f"v_min_u32 {vW2}, 5, {vC}")
        A(f"v_lshl_add_u32 {vW1}, {vW2}, 4, {vW1}")
        A(f"v_add_u32 {t3}, {t3}, {t2}")
        A(f"v_mul_u32_u24 {t3}, 1280, {t3}")
        A(f"v_lshl_add_u32 {t3}, {vC}, 4, {t3}")
        A(f"s_lshl_b32 {sA}, {sW}, 8")
        A(f"v_add_u32 {vW2}, {sA}, {t3}")
        A(f"v_cmp_gt_u32 vcc, 4, {vC}")
        A(f"v_mov_b32 {t3}, 0xffff")
        A(f"v_and_b32 {vIDX}, 3, {vC}")
        A(f"v_cndmask_b32 {v(MK[0])}, 0, {t3}, vcc")
        A(f"v_mul_u32_u24 {vIDX}, 0x5555, {vIDX}")
        A(f"v_xor_b32 {v(MK[1])}, {t3}, {v(MK[0])}")
        A(f"v_lshlrev_b32 {v(MK[2])}, 16, {v(MK[0])}")
        A(f"v_lshlrev_b32 {v(MK[3])}, 16, {v(MK[1])}")
        A(f"v_lshrrev_b32 {t3}, 5, {vL}")
        A(f"v_lshl_add_u32 {t3}, {t1}, 1, {t3}")
        A(f"v_lshl_add_u32 {t3}, {t2}, 2, {t3}")
        A(f"v_lshl_add_u32 {t3}, {vC}, 3, {t3}")
        A(f"s_lshl_b32 {sA}, {sW}, 2")
        A(f"v_lshl_add_u32 {vREDW}, {t3}, 4, {sA}")
        A(f"s_mul_i32 {sA}, s2, 2560"); A(f"s_mul_i32 {sC}, {sW}, 640"); A(f"s_add_u32 {sA}, {sA}, {sC}")
        A(f"v_lshl_add_u32 {vP1ST}, {vL}, 4, {sA}")
        A(f"v_mov_b32 {t3}, {OOB}")
        A(f"v_cmp_gt_u32 vcc, 40, {vL}")
        A(f"s_mul_i32 {sA}, {sB}, 2560"); A(f"s_lshl_b32 {sC}, {sH}, 7"); A(f"s_add_u32 {sA}, {sA}, {sC}"); A(f"s_add_u32 {sA}, {sA}, {HB}")
        A(f"v_cndmask_b32 {vP1ST}, {t3}, {vP1ST}, vcc")
        if o["hbar"]:
            A(f"s_lshl_b32 {sC}, s2, 7"); A(f"s_add_u32 {sC}, {sC}, {HB + 0x10000}")
            A(f"s_cmp_lt_u32 {sH}, 20"); A(f"s_cselect_b32 {sA}, {sA}, {sC}")
            A(f"s_cmp_eq_u32 {sW}, 0"); A(f"s_cselect_b32 {sC}, 32, 0")
        else:
            A(f"s_cmp_lt_u32 {sH}, 20"); A(f"s_cselect_b32 {sC}, 32, 0"); A(f"s_cmp_eq_u32 {sW}, 0"); A(f"s_cselect_b32 {sC}, {sC}, 0")
        A(f"v_lshl_add_u32 {vHST}, {vL}, 2, {sA}")
        A(f"v_cmp_gt_u32 vcc, {sC}, {vL}")
        if not o["tag"]:
            for k in range(4): A(f"v_mov_b32 {v(AF[1]+k)}, -1")
        A(f"v_cndmask_b32 {vHST}, {t3}, {vHST}, vcc")
        if o["tag"]:
            A(f"s_or_b32 {sA}, s2, {sW}"); A("s_cbranch_scc1 L_nononce")
            A(f"s_memrealtime s[{sPC}:{sPC+1}]"); A("s_waitcnt lgkmcnt(0)")
            A(f"s_mul_i32 {sA}, s{sPC}, 0x9e3779b1"); A(f"s_max_u32 {sA}, {sA}, 1")
            A("s_mov_b64 exec, 1")
            A(f"v_mov_b32 {t3}, {sA}")
            A(f"buffer_store_dword {t3}, off, {srd(sDBG)}, 0 sc1")
            A("s_mov_b64 exec, -1")
            A.label("L_nononce")

    DPPF = "row_mask:0xf bank_mask:0xf"
    def wave_reduce(op, reg, sdst, fill=()):
        fill = list(fill)
        steps = [f"quad_perm:[1,0,3,2] {DPPF}", f"quad_perm:[2,3,0,1] {DPPF}", f"row_half_mirror {DPPF}", f"row_mirror {DPPF}",
                 "row_bcast:15 row_mask:0xa bank_mask:0xf", "row_bcast:31 row_mask:0xc bank_mask:0xf"]
        for st in steps:
            for _ in range(2):
                if fill: A(fill.pop(0))
            A(f"{op}_dpp {reg}, {reg}, {reg} {st}")
        if fill: A(fill.pop(0))
        A(f"v_readlane_b32 {sdst}, {reg}, 63")
        for f in fill: A(f)
    def round_bf16(reg):
        A(f"v_cvt_pk_bf16_f32 {reg}, {reg}, {reg}")
        A(f"v_lshlrev_b32 {reg}, 16, {reg}")
    def layernorm(F, Wk, tp, out):
        p = lambda r: vr(r, 2)
        A(f"v_pk_add_f32 {p(tp)}, {p(F[0])}, {p(F[1])}")
        A(f"v_pk_add_f32 {p(tp+2)}, {p(F[2])}, {p(F[3])}")
        A(f"v_pk_add_f32 {p(tp)}, {p(tp)}, {p(F[4])}")
        A(f"v_pk_add_f32 {p(tp)}, {p(tp)}, {p(tp+2)}")
        A(f"v_add_f32 {v(tp)}, {v(tp)}, {v(tp+1)}")
        wave_reduce("v_add_f32", v(tp), sA, fill=[f"v_mov_b32 {v(tp+2)}, {hex(fbits(-1.0/640))}"])
        A(f"v_mul_f32 {v(tp)}, {sA}, {v(tp+2)}")
        A(f"v_mul_f32 {v(tp+1)}, {sA}, {v(tp+2)}")
        A(f"v_pk_add_f32 {p(tp+2)}, {p(F[0])}, {p(tp)}")
        A(f"v_pk_add_f32 {p(Wk[1])}, {p(F[1])}, {p(tp)}")
        A(f"v_pk_mul_f32 {p(tp+2)}, {p(tp+2)}, {p(tp+2)}")
        A(f"v_pk_add_f32 {p(Wk[2])}, {p(F[2])}, {p(tp)}")
        A(f"v_pk_fma_f32 {p(tp+2)}, {p(Wk[1])}, {p(Wk[1])}, {p(tp+2)}")
        A(f"v_pk_add_f32 {p(Wk[3])}, {p(F[3])}, {p(tp)}")
        A(f"v_pk_fma_f32 {p(tp+2)}, {p(Wk[2])}, {p(Wk[2])}, {p(tp+2)}")
        A(f"v_pk_add_f32 {p(Wk[1])}, {p(F[4])}, {p(tp)}")
        A(f"v_pk_fma_f32 {p(tp+2)}, {p(Wk[3])}, {p(Wk[3])}, {p(tp+2)}")
        A(f"v_pk_fma_f32 {p(tp+2)}, {p(Wk[1])}, {p(Wk[1])}, {p(tp+2)}")
        A(f"v_add_f32 {v(tp+2)}, {v(tp+2)}, {v(tp+3)}")
        a, b, c = Wk[0], Wk[4], Wk[1]
        fill = [f"v_cvt_pk_bf16_f32 {v(tp)}, {v(tp)}, {v(tp)}",
                f"v_lshlrev_b32 {v(tp+1)}, 16, {v(tp)}",
                f"v_lshlrev_b32 {v(tp)}, 16, {v(tp)}",
                f"v_pk_add_f32 {p(a)}, {p(F[0])}, {p(tp)}",
                f"v_pk_add_f32 {p(b)}, {p(F[4])}, {p(tp)}",
                f"v_cvt_pk_bf16_f32 {v(c)}, {v(a)}, {v(a+1)}",
                f"v_cvt_pk_bf16_f32 {v(c+1)}, {v(b)}, {v(b+1)}",
                f"v_lshlrev_b32 {v(a)}, 16, {v(c)}",
                f"v_and_b32 {v(a+1)}, 0xffff0000, {v(c)}",
                f"v_lshlrev_b32 {v(b)}, 16, {v(c+1)}",
                f"v_and_b32 {v(b+1)}, 0xffff0000, {v(c+1)}",
                f"v_mov_b32 {v(tp+4)}, {hex(fbits(1.0/640))}"]
        wave_reduce("v_add_f32", v(tp+2), sA, fill=fill)
        A(f"v_mul_f32 {v(tp)}, {sA}, {v(tp+4)}")
        round_bf16(v(tp))
        A(f"v_add_f32 {v(tp)}, {hex(fbits(1e-5))}, {v(tp)}")
        round_bf16(v(tp))
        A(f"v_sqrt_f32 {v(tp)}, {v(tp)}")
        round_bf16(v(tp))
        A(f"v_rcp_f32 {v(tp)}, {v(tp)}")
        A(f"v_mul_f32 {v(a)}, {v(a)}, {v(tp)}")
        A(f"v_mul_f32 {v(a+1)}, {v(a+1)}, {v(tp)}")
        A(f"v_cvt_pk_bf16_f32 {v(out)}, {v(a)}, {v(a+1)}")
        A(f"v_mul_f32 {v(b)}, {v(b)}, {v(tp)}")
        A(f"v_mul_f32 {v(b+1)}, {v(b+1)}, {v(tp)}")
        A(f"v_mov_b32_dpp {v(out+1)}, {v(out)} row_half_mirror {DPPF}")
        A(f"v_cvt_pk_bf16_f32 {v(out+2)}, {v(b)}, {v(b+1)}")
        A(f"v_mov_b32_dpp {v(out+3)}, {v(out+2)} row_half_mirror {DPPF}")
    def afrag_oct(dst, P, c0):
        lo, hi = ((P, c0), (P + 1, 3 - c0)) if c0 < 4 else ((P + 1, 7 - c0), (P, c0 - 4))
        out = []
        for k in range(4):
            src, x = lo if k % 2 == 0 else hi
            out.append(f"v_and_b32_dpp {v(dst+k)}, {v(src)}, {v(MK[k])} quad_perm:[{x},{x},{x},{x}] {DPPF}")
        return out
    def smf(d, a, slot):
        A(f"v_smfmac_f32_16x16x64_bf16 {vr(d,4)}, {vr(a,4)}, {slot[0]}[{slot[1]}:{slot[1]+7}], {vIDX}")
    def compact(blocks):
        for d in blocks:
            A(f"v_permlane32_swap_b32 {v(d)}, {v(d+1)}")
            A(f"v_permlane32_swap_b32 {v(d+2)}, {v(d+3)}")
        for d in blocks:
            A(f"v_add_f32_dpp {v(d)}, {v(d+1)}, {v(d)} row_ror:8 row_mask:0xf bank_mask:0x3")
        for d in blocks:
            A(f"v_add_f32_dpp {v(d)}, {v(d+2)}, {v(d+3)} row_ror:8 row_mask:0xf bank_mask:0xc")

    def signal(lbl, k=None):
        if k is None: A(f"s_cmp_lg_u32 {sW}, 0")
        else: A(f"s_cmp_lg_u32 {sSG}, {k}")
        A(f"s_cbranch_scc1 {lbl}")
        if k is None: signal_body()
        else: A(f"s_call_b64 {sRA}, L_signal")
        A.label(lbl)
    def signal_body():
        A(f"s_lshl_b32 {sT2}, {sB}, 5")
        A("s_mov_b64 exec, 1")
        A(f"v_mov_b32 {vWQ}, 1")
        if not o["nosig"]: A(f"buffer_atomic_add {vWQ}, off, {srd(sDBG)}, {sT2} sc1")
        A("s_mov_b64 exec, -1")

    freeA = [("a", 8 * i) for i in range(32)]
    freeV = [("v", 64 + 8 * i) for i in range(24)]
    halfV = []
    slots = {}
    def can_alloc(kind):
        if kind == "pair": return bool(freeA or freeV)
        if kind == "half": return bool(halfV or freeV)
        return True
    def alloc(kind, key, preferV=False):
        if kind == "pair":
            s = (freeV if (preferV and freeV) or not freeA else freeA).pop(0)
        else:
            if not halfV:
                s = freeV.pop(0); halfV.extend([s, (s[0], s[1] + 4)])
            s = halfV.pop(0)
        slots[key] = s
        return s
    def release(kind, key):
        s = slots.pop(key)
        if kind == "pair":
            (freeA if s[0] == "a" else freeV).append(s)
        else:
            mate = (s[0], s[1] ^ 4)
            if mate in halfV:
                halfV.remove(mate); freeV.append((s[0], s[1] & ~7))
            else: halfV.append(s)

    def tile_load(reg, vaddr, sr, soff, imm, pol):
        A(f"buffer_load_dwordx4 {reg[0]}[{reg[1]}:{reg[1]+3}], {vaddr}, {srd(sr)}, {soff} offen offset:{imm} {pol}".rstrip())
    def mk_pair(key, Tt, vaddr, sr, soff_fn, imm, pol, preferV=False):
        def emit():
            s = alloc("pair", key, preferV) if key not in slots else slots[key]
            tile_load((s[0], s[1] + 4 * Tt), vaddr, sr, soff_fn(), imm, pol)
        return dict(tag=key + (Tt,), need="pair" if Tt == 0 else None, emit=emit)
    last_soff = [None]
    def soff_add(base, const):
        def f():
            if last_soff[0] != (base, const):
                if base is None: A(f"s_mov_b32 {sT}, {const}")
                else: A(f"s_add_u32 {sT}, {base}, {const}")
                last_soff[0] = (base, const)
            return sT
        return f
    Lx = []
    for s_ in range(4):
        def emit(s_=s_):
            A(f"s_add_u32 {sT}, {sW}, {s_}"); A(f"s_and_b32 {sT}, {sT}, 3"); A(f"s_lshl_b32 {sT}, {sT}, 8")
            A(f"buffer_load_dword {v(T+s_)}, {v(T+5)}, {srd(sX)}, {sT} offen")
        Lx.append(dict(tag=("x", s_), need=None, emit=emit))
    Lx.append(dict(tag=("x", 4), need=None, emit=lambda: A(f"buffer_load_dword {v(T+4)}, {v(T+6)}, {srd(sX)}, 0 offen offset:1024")))
    Lwq = []
    for u in range(10):
        for t in range(3):
            for Tt in range(2):
                base, rows = (sQB0, 64 * Tt + 2 * u) if u < 8 else (sQB1, 64 * Tt + 2 * (u - 8))
                Lwq.append(mk_pair(("wq", u, t), Tt, vWQ, sWQ, soff_add(base, rows * 12288), 128 * t, o["polW"]))
    LK = []
    for n in range(16):
        for hB in range(2):
            for t in range(3):
                def emit(n=n, hB=hB, t=t):
                    s = alloc("half", ("k", n, hB, t))
                    tile_load(s, vK, sK, f"s{sU+n}", hB * 768 + t * 128, o["polKV"])
                def emitL(n=n, hB=hB, t=t):
                    imm = hB * 768 + t * 128
                    A(f"s_add_u32 m0, {sKL}, {((2 * n + hB) * 3 + t) * 1024 - imm}")
                    A("s_nop 0")
                    A(f"buffer_load_dwordx4 {vK}, {srd(sK)}, s{sU+n} offen offset:{imm} {o['polKV']} lds")
                if 2 * n + hB < o["nL"]: LK.append(dict(tag=("k", n, hB, t), need=None, emit=emitL))
                else: LK.append(dict(tag=("k", n, hB, t), need="half", emit=emit))
    LV = []
    for n in range(16):
        for t in range(3):
            for Tt in range(2):
                LV.append(mk_pair(("v", n, t), Tt, vV, sV, (lambda n=n: f"s{sU+n}"), Tt * 3072 + t * 128, o["polKV"], preferV=True))
    Lwo = []
    for u in range(6):
        for blk in range(5):
            for Tt in range(2):
                Lwo.append(mk_pair(("wo", u, blk), Tt, vWO, sWO, soff_add(None, u * 10240 + Tt * 5120), blk * 256, o["polW"]))
    Lw1 = []
    for u in range(10):
        for Tt in range(2):
            base, rows = (sF0, 64 * Tt + 16 * (u & 3) + (u >> 2)) if u < 8 else (sF1, 64 * Tt + 16 * (u - 8))
            Lw1.append(mk_pair(("w1", u), Tt, vW1, sW1, soff_add(base, rows * 3072), 0, o["polW"]))
    Lw2 = []
    for u in range(3):
        for blk in range(3):
            for Tt in range(2):
                rows = 16 * u + 8 * Tt
                if blk < 2: Lw2.append(mk_pair(("w2", u, blk), Tt, vW2, sW2, soff_add(None, rows * 1280), blk * 128, o["polW"]))
                else: Lw2.append(mk_pair(("w2", u, blk), Tt, vW2, sW2, soff_add(sZ, rows * 1280), 0, o["polW"]))
    def misc(tag, fn): return dict(tag=tag, need=None, emit=fn)
    def mix(*lists):
        lists = [l for l in lists if l]
        items = []
        for li, l in enumerate(lists):
            for i, it in enumerate(l): items.append(((i + 0.5) / len(l), li, it))
        items.sort(key=lambda z: (z[0], z[1]))
        return [z[2] for z in items]
    def clr1():
        if o["noclr"]: A(f"buffer_load_dword {v(AF[1])}, off, {srd(sX)}, 0"); return
        A(f"buffer_store_dwordx4 {vr(AF[1],4)}, {vP1ST}, {srd(sWS)}, 0 offen {o['polC']}")
    def clr2():
        if o["noclr"]: A(f"buffer_load_dword {v(AF[1])}, off, {srd(sX)}, 0"); return
        A(f"s_mov_b32 {sT}, {P2}"); last_soff[0] = None
        A(f"buffer_store_dwordx4 {vr(AF[1],4)}, {vP1ST}, {srd(sWS)}, {sT} offen {o['polC']}")
    def clr3():
        if o["noclr"]: A(f"buffer_load_dword {v(AF[1])}, off, {srd(sX)}, 0"); return
        A(f"buffer_store_dword {v(AF[1])}, {vHST}, {srd(sWS)}, 0 offen {o['polC']}")
    def code_pf(label, reg, areg):
        def f():
            A(f"s_getpc_b64 s[{sPC}:{sPC+1}]")
            here = f"L_pc_{label}"
            A.label(here)
            A(f"s_add_u32 s{sPC}, s{sPC}, {label}-{here}"); A(f"s_addc_u32 s{sPC+1}, s{sPC+1}, 0")
            A(f"v_lshlrev_b32 {areg}, 7, {vL}")
            A(f"v_min_u32 {areg}, L_last-{label}, {areg}")
            A(f"global_load_dword {reg}, {areg}, s[{sPC}:{sPC+1}]")
        return f
    def cntload():
        if o["tag"]:
            A(f"buffer_load_dword {tCNT}, off, {srd(sDBG)}, 0 sc1"); return
        A(f"s_lshl_b32 {sT}, {sB}, 5"); last_soff[0] = None
        A(f"buffer_load_dword {tCNT}, off, {srd(sX if o['nosig'] else sDBG)}, {sT} sc1")
    extra = [misc(("xr",), lambda: A(f"buffer_load_ushort {tXR}, {tOUT}, {srd(sX)}, 0 offen"))]
    if o["codepf"]: extra.append(misc(("pf",), code_pf("L_tail", tPF, tPF)))
    clrs = [misc(("clr", 0), clr1), misc(("clr", 1), clr2), misc(("clr", 2), clr3)]
    if o["tag"]: clrs = []
    qbar_done = [False]
    def warm_lines():
        n_ = 0
        if o["warm"] & 1:
            A(f"buffer_load_dword {v(T+12)}, {vP1ST}, {srd(sWS)}, 0 offen {o['polWm']}"); n_ += 1
        if o["warm"] & 2:
            A(f"buffer_load_dword {v(T+12)}, {vHST}, {srd(sWS)}, 0 offen {o['polWm']}"); n_ += 1
        if o["warm"] & 4:
            A(f"buffer_load_dword {v(T+12)}, {tP2ST}, {srd(sWS)}, 0 offen {o['polWm']}"); n_ += 1
        return n_
    hooks = {}
    subs = []
    if not o["burst"]:
        phA = mix(Lwq, LK[:o["nKA"]])
        phB = mix(LK[o["nKA"]:], Lwo[:o["nWOB"]])
        rest = Lwo[o["nWOB"]:] + Lw1 + Lw2
        nlast = o["wlast"]
        phC = mix(LV, rest[:len(rest) - nlast]) + rest[len(rest) - nlast:]
        nfirst = o["WA"] - len(Lx)
        phA = phA[:nfirst] + clrs + phA[nfirst:]
        k = len(phC) * 2 // 3
        phC = phC[:k] + extra + phC[k:]
        k = len(phC) - nlast - o["WC"]
        phC = phC[:k] + [misc(("cnt",), cntload)] + phC[k:]
        seq = Lx + phA + phB + phC
        Wn = [o["WA"]] * (len(Lx) + len(phA)) + [o["WB"]] * len(phB) + [o["WC"]] * len(phC)
    else:
        NG = 4 if o["grp"] == "h" else 8
        KV = LK + LV
        pol = o["polT"]
        vDUM = v(T + 12)
        vTA = v(T + 11)
        def touch(areg, sr, soff, dst=vDUM, lanes=None):
            if lanes is not None:
                m = ((1 << lanes[1]) - 1) ^ ((1 << lanes[0]) - 1)
                A(f"s_mov_b32 exec_lo, {hex(m & 0xffffffff)}"); A(f"s_mov_b32 exec_hi, {hex(m >> 32)}")
                touch(areg, sr, soff, dst); A("s_mov_b64 exec, -1")
                return
            A(f"buffer_load_dword {dst}, {areg}, {srd(sr)}, {soff} offen {pol}")
            if o["touch64"]: A(f"buffer_load_dword {dst}, {areg}, {srd(sr)}, {soff} offen offset:64 {pol}")
            if o["polT2"] is not None: A(f"buffer_load_dword {dst}, {areg}, {srd(sr)}, {soff} offen {o['polT2']}")
        ncond = [0]
        def cond(sreg, k, fn):
            def f():
                lbl = f"L_skip{ncond[0]}"; ncond[0] += 1
                A(f"s_cmp_lg_u32 {sreg}, {k}"); A(f"s_cbranch_scc1 {lbl}")
                fn(); A.label(lbl); last_soff[0] = None
            return f
        def reserve(lst):
            def f():
                if lst[0]["tag"][0] == "wo": assert len(freeA) >= 30, "wo reserved before the q projection finished"
                for it in lst:
                    if it["need"]:
                        while not can_alloc("pair"): force_now()
                        freeV.sort(key=lambda z: -z[1])
                        alloc("pair", it["tag"][:-1])
                if not (lst[0]["tag"][0] == "w1" and o["w12late"]): subs.append((lst[0]["tag"][0], lst, dict(slots)))
            return f
        def piece(nl, p_, np_): return (nl * p_ // np_, nl * (p_ + 1) // np_)
        def touch_wo(p_=0, np_=1):
            a = vTA
            A(f"s_lshl_b32 {sT2}, {sB}, 2"); A(f"s_add_u32 {sT2}, {sT2}, {sW}"); A(f"s_mul_i32 {sT2}, {sT2}, {60*128}")
            A(f"v_lshlrev_b32 {a}, 7, {vL}"); touch(a, sWO, sT2, lanes=piece(60, p_, np_))
        def touch_w12(p_=0, np_=1):
            a = vTA
            A(f"s_lshl_b32 {sT2}, {sB}, 2"); A(f"s_add_u32 {sT2}, {sT2}, {sW}"); A(f"s_mul_i32 {sT}, {sT2}, {15*128}")
            A(f"s_mul_i32 {sT2}, {sT2}, {20*3072}")
            A(f"v_and_b32 {a}, 1, {vL}"); A(f"v_mul_u32_u24 {a}, {1536 - 92}, {a}")
            A(f"v_mul_u32_u24 {vWQ}, 1536, {vL}"); A(f"v_sub_u32 {a}, {vWQ}, {a}")
            touch(a, sW1, sT2, lanes=piece(40, p_, np_))
            A(f"v_lshlrev_b32 {a}, 7, {vL}"); touch(a, sW2, sT, lanes=piece(15, p_, np_))
            last_soff[0] = None
        tb_ = o["b0"] - o["tlead"] if o["tB"] is None else o["tB"]
        tc_ = o["c0"] - o["tlead"] if o["tC"] is None else o["tC"]
        assert o["grp"] == "b" and tb_ >= 6 and tc_ > tb_ + o["W"]
        def hook(i, fn): hooks.setdefault(KV[i]["tag"], []).append(fn)
        for base, step, lst, tfn in ((o["a0"], o["da"], Lwq, None), (o["b0"], o["db"], Lwo, touch_wo), (o["c0"], o["dc"], Lw1 + Lw2, touch_w12)):
            nm = lst[0]["tag"][0]
            hook(base, reserve(lst))
            for k in range(NG):
                if tfn and o["touch"] and (o["grp"] == "h" or (o["grp"] == "hb" and k % 2 == 0) or k == 0):
                    tp = o["tB"] if nm == "wo" else o["tC"]
                    tp = base - o["tlead"] if tp is None else tp
                    for p_ in range(o["tws"]):
                        hook(tp - (o["tws"] - 1 - p_) * o["dtw"], lambda p_=p_, tfn=tfn: tfn(p_, o["tws"]))
                if not (nm == "w1" and o["w12late"]):
                    hook(base + k * step, cond(sG, k, lambda nm=nm: A(f"s_call_b64 {sRA}, L_burst_{nm}")))
        if o["dsig"]:
            for k in range(32):
                def f(k=k):
                    assert qbar_done[0]
                    signal(f"L_sig{k}", k)
                hook(o["sig0"] + k * o["dsig"], f)
        if o["warmpos"] < 192: hook(o["warmpos"], warm_lines)
        lastA = KV[o["a0"] + (NG - 1) * o["da"]]["tag"]
        lastB = KV[o["b0"] + (NG - 1) * o["db"]]["tag"]
        lastC = KV[o["c0"] + (NG - 1) * o["dc"]]["tag"]
        t0l = [misc(("tq",), lambda: touch(vT2, sWQ, sQT, vT1, lanes=(0, 60)))] if o["touch"] else []
        if o["tqs"] and o["touch"]:
            t0l = []
            for p_, at in enumerate(o["tqs"]):
                hook(at, lambda p_=p_: touch(vT2, sWQ, sQT, vT1, lanes=piece(60, p_, len(o["tqs"]))))
            assert max(o["tqs"]) < o["a0"]
        k1 = 150; k2 = 151 if o["tag"] else 192 - o["W"]
        seq = Lx + t0l + KV[:6] + clrs + KV[6:k1] + extra + KV[k1:k2] + [misc(("cnt",), cntload)] + KV[k2:]
        nhead = len(Lx) + len(t0l) + 6 + len(clrs)
        Wn = [nhead + 2] * (nhead + 2) + [o["W"]] * (len(seq) - nhead - 2)
        if o["Ws"]:
            kvpos = {it["tag"]: i for i, it in enumerate(KV)}
            cw, acc = o["W"], 0.0
            for i, it in enumerate(seq):
                for p_, w_ in o["Ws"]:
                    if kvpos.get(it["tag"]) == p_: cw = w_
                if i >= nhead + 2:
                    acc += cw - int(cw)
                    Wn[i] = int(cw) + (1 if acc >= 0.999 else 0)
                    if acc >= 0.999: acc -= 1
    pos = {it["tag"]: i for i, it in enumerate(seq)}

    acts = []
    def act(needs, fn, before=None): acts.append(dict(needs=[pos[t] for t in needs], fn=fn))
    def a_lnx():
        A.comment("LayerNorm(x)")
        if o["st0"]: stamp()
        F = D
        for s_ in range(5):
            A(f"v_lshlrev_b32 {v(F+2*s_)}, 16, {v(T+s_)}")
            A(f"v_and_b32 {v(F+2*s_+1)}, 0xffff0000, {v(T+s_)}")
        layernorm([F + 2 * k for k in range(5)], [F + 2 * k for k in range(5)], T, S)
        for k in range(12): A(f"v_mov_b32 {v(D+k)}, 0")
    act([("x", s_) for s_ in range(5)], a_lnx)
    setup_tag = ("k", 1, 0, 0) if o["tag"] else ("clr", 0)
    assert pos[("k", 1, 0, 0)] >= pos[setup_tag]
    if o["burst"]:
        for it in Lwq: pos[it["tag"]] = pos[lastA]
        for it in Lwo: pos[it["tag"]] = pos[lastB]
        assert o["a0"] >= 6
    else:
        assert pos[("wq", 8, 0, 0)] > pos[("clr", 0)]
        assert pos[("x", 4)] + o["WA"] > pos[("clr", 2)]
    for u in range(10):
        for t in range(3):
            def f(u=u, t=t):
                if t == 0:
                    for ins in afrag_oct(AF[u & 1], S + 2 * (u >> 3), u & 7): A(ins)
                smf(D + 4 * t, AF[u & 1], slots[("wq", u, t)]); release("pair", ("wq", u, t))
            act([("wq", u, t, 1)], f); acts[-1]["cost"] = 0.2 if o["burst"] else 1
    def a_qred1():
        A.comment("q: cross-wave reduction")
        compact([D, D + 4, D + 8])
        for t in range(3): A(f"ds_write_b32 {vREDW}, {v(D+4*t)} offset:{RED + 1024*t}")
        A(f"v_lshlrev_b32 {v(T)}, 4, {vL}")
        A(f"s_mul_i32 {sA}, {sW}, 384")
        A(f"v_lshl_add_u32 {v(T+1)}, {vL}, 1, {sA}")
        A(f"v_and_b32 {v(T+2)}, 7, {vL}")
        A(f"v_lshl_add_u32 {v(T+2)}, {v(T+2)}, 4, {sA}")
        A("s_waitcnt lgkmcnt(0)")
        A("s_barrier")
        for t in range(3): A(f"ds_read_b128 {vr(D+4*t,4)}, {v(T)} offset:{RED + 1024*t}")
        if o["burst"] and o["dsig"] == 0 and not o["tag"]: signal("L_nosig")
        qbar_done[0] = True
    act([] if o["tag"] else [("clr", 2)], a_qred1)
    def a_qred2():
        A("s_waitcnt lgkmcnt(0)")
        for t in range(3):
            d = D + 4 * t
            A(f"v_pk_add_f32 {vr(d,2)}, {vr(d,2)}, {vr(d+2,2)}")
        for t in range(3):
            d = D + 4 * t
            A(f"v_add_f32 {v(d)}, {v(d)}, {v(d+1)}")
        for t in range(3):
            d = D + 4 * t
            A(f"v_cvt_pk_bf16_f32 {v(d)}, {v(d)}, {v(d)}")
        for t in range(3): A(f"ds_write_b16 {v(T+1)}, {v(D+4*t)} offset:{QB + 128*t}")
        A("s_waitcnt lgkmcnt(0)")
        for t in range(3): A(f"ds_read_b128 {vr(Q+4*t,4)}, {v(T+2)} offset:{QB + 128*t}")
        for k in range(12): A(f"v_mov_b32 {v(D+k)}, 0")
        A("s_waitcnt lgkmcnt(0)")
        if not o["st0"]: stamp()
    act([], a_qred2)
    nLu = o["nL"] // 2
    order = list(range(nLu, nLu + o["rL"])) + list(range(nLu)) + list(range(nLu + o["rL"], 16)) if nLu else list(range(16))
    vKL = v(T + 3)
    def lds_reads(n, hB):
        for t in range(3):
            while not can_alloc("half"): raise AssertionError("no register for LDS K tile")
            s = alloc("half", ("k", n, hB, t))
            A(f"ds_read_b128 v[{s[1]}:{s[1]+3}], {vKL} offset:{((2 * n + hB) * 3 + t) * 1024}")
    halves = [(n, hB) for n in order for hB in range(2)]
    for i, (n, hB) in enumerate(halves):
        def f(i=i, n=n, hB=hB):
            if i == 0 and nLu: A(f"v_lshl_add_u32 {vKL}, {vL}, 4, {sKL}")
            if n < nLu: A("s_waitcnt lgkmcnt(0)")
            if i + 1 < 32 and halves[i + 1][0] < nLu: lds_reads(*halves[i + 1])
            acc = v(T + hB)
            first = True
            for t in range(3):
                s = slots[("k", n, hB, t)]
                for k in range(4):
                    if first: A(f"v_dot2_f32_bf16 {acc}, v{s[1]+k}, {v(Q+4*t+k)}, 0"); first = False
                    else: A(f"v_dot2_f32_bf16 {acc}, v{s[1]+k}, {v(Q+4*t+k)}, {acc}")
                release("half", ("k", n, hB, t))
            if hB == 1:
                A(f"s_lshl_b64 vcc, {sLM}, {n & 7}")
                for st in (f"quad_perm:[1,0,3,2] {DPPF}", f"quad_perm:[2,3,0,1] {DPPF}", f"row_half_mirror {DPPF}"):
                    for hh in range(2): A(f"v_add_f32_dpp {v(T+hh)}, {v(T+hh)}, {v(T+hh)} {st}")
                for hh in range(2):
                    d = v(S + 2 * (n >> 3) + hh)
                    A(f"v_cndmask_b32 {d}, {d}, {v(T+hh)}, vcc")
        act([("k", n, hB, 2)], f); acts[-1]["cost"] = o["qkcost"]
    assert not nLu or o["rL"] >= 1
    def a_soft1():
        A.comment("softmax statistics")
        if not o["st0"]: stamp()
        A(f"v_mov_b32 {v(T+4)}, {hex(fbits(192 ** -0.5))}")
        for rnd in range(2):
            for k in range(2): A(f"v_cvt_pk_bf16_f32 {v(T+k)}, {v(S+2*k)}, {v(S+2*k+1)}")
            for k in range(2):
                A(f"v_lshlrev_b32 {v(S+2*k)}, 16, {v(T+k)}")
                A(f"v_and_b32 {v(S+2*k+1)}, 0xffff0000, {v(T+k)}")
            if rnd == 0:
                for k in range(4): A(f"v_mul_f32 {v(S+k)}, {v(S+k)}, {v(T+4)}")
        A(f"v_max3_f32 {v(T)}, {v(S)}, {v(S+1)}, {v(S+2)}")
        A(f"v_max_f32 {v(T)}, {v(T)}, {v(S+3)}")
        wave_reduce("v_max_f32", v(T), sA, fill=[f"v_mov_b32 {v(T+8)}, {hex(LOG2E)}", f"s_lshl_b32 {sC}, {sW}, 3", f"v_mov_b32 {v(T+9)}, {sC}", f"v_mov_b32 {v(T+10)}, 0"])
        for k in range(4): A(f"v_subrev_f32 {v(T+k)}, {sA}, {v(S+k)}")
        for k in range(4): A(f"v_mul_f32 {v(T+k)}, {v(T+k)}, {v(T+8)}")
        for k in range(4): A(f"v_exp_f32 {v(T+k)}, {v(T+k)}")
        A(f"v_mov_b32 {v(T+4)}, {sA}")
        A(f"v_pk_add_f32 {vr(T,2)}, {vr(T,2)}, {vr(T+2,2)}")
        A(f"v_add_f32 {v(T)}, {v(T)}, {v(T+1)}")
        wave_reduce("v_add_f32", v(T), sC)
        A(f"v_mov_b32 {v(T+5)}, {sC}")
        A(f"ds_write_b64 {v(T+9)}, {vr(T+4,2)} offset:{SM}")
    act([], a_soft1)
    def a_soft2():
        A("s_waitcnt lgkmcnt(0)")
        A("s_barrier")
        A(f"ds_read_b128 {vr(T,4)}, {v(T+10)} offset:{SM}")
        A(f"ds_read_b128 {vr(T+4,4)}, {v(T+10)} offset:{SM+16}")
        if not (o["burst"] and o["dsig"] is not None): signal("L_nosig")
        A("s_waitcnt lgkmcnt(0)")
        A(f"v_max3_f32 {v(T+9)}, {v(T)}, {v(T+2)}, {v(T+4)}")
        A(f"v_max_f32 {v(T+9)}, {v(T+9)}, {v(T+6)}")
        for k in range(4): A(f"v_sub_f32 {v(T+2*k)}, {v(T+2*k)}, {v(T+9)}")
        for k in range(4): A(f"v_sub_f32 {v(S+k)}, {v(S+k)}, {v(T+9)}")
        for k in range(4): A(f"v_mul_f32 {v(T+2*k)}, {v(T+2*k)}, {v(T+8)}")
        for k in range(4): A(f"v_mul_f32 {v(S+k)}, {v(S+k)}, {v(T+8)}")
        for k in range(4): A(f"v_exp_f32 {v(T+2*k)}, {v(T+2*k)}")
        for k in range(4): A(f"v_exp_f32 {v(S+k)}, {v(S+k)}")
        A(f"v_mul_f32 {v(T)}, {v(T)}, {v(T+1)}")
        for k in range(1, 4): A(f"v_fmac_f32 {v(T)}, {v(T+2*k)}, {v(T+2*k+1)}")
        A(f"v_rcp_f32 {v(T)}, {v(T)}")
        for k in range(4): A(f"v_mul_f32 {v(S+k)}, {v(S+k)}, {v(T)}")
        A(f"v_cvt_pk_bf16_f32 {v(S)}, {v(S)}, {v(S+1)}")
        A(f"v_cvt_pk_bf16_f32 {v(S+2)}, {v(S+2)}, {v(S+3)}")
        A(f"v_mov_b32_dpp {v(S+1)}, {v(S)} row_half_mirror {DPPF}")
        A(f"v_mov_b32_dpp {v(S+3)}, {v(S+2)} row_half_mirror {DPPF}")
        if not o["st0"]: stamp()
    act([], a_soft2)
    sRD = [f"s{sWQ+k}" for k in range(4)]
    sHL = [f"s{sK+k}" for k in range(4)]
    def a_tailprep():
        A.comment("addresses used by the tail")
        c, r8, i16, b4, b3, b5, tt, oob = [v(T + k) for k in range(8)]
        A(f"v_and_b32 {c}, 7, {vL}"); A(f"v_lshrrev_b32 {r8}, 3, {vL}"); A(f"v_and_b32 {i16}, 15, {vL}")
        A(f"v_bfe_u32 {b4}, {vL}, 4, 1"); A(f"v_bfe_u32 {b3}, {vL}, 3, 1"); A(f"v_lshrrev_b32 {b5}, 5, {vL}")
        A(f"v_mov_b32 {oob}, {OOB}")
        A(f"v_min_u32 {tt}, 5, {i16}"); A(f"v_lshlrev_b32 {tt}, 7, {tt}")
        A(f"v_lshrrev_b32 {tO_R}, 4, {vL}"); A(f"v_lshl_add_u32 {tO_R}, {tO_R}, 5, {tt}")
        A(f"s_mul_i32 {sA}, {sW}, 768"); A(f"v_add_u32 {tO_R}, {sA}, {tO_R}")
        A(f"v_lshlrev_b32 {tt}, 9, {b5}"); A(f"v_lshl_add_u32 {tt}, {i16}, 5, {tt}"); A(f"v_lshl_add_u32 {tt}, {b4}, 4, {tt}")
        A(f"s_mul_i32 {sA}, {sW}, 3072"); A(f"v_add_u32 {tR2W}, {sA}, {tt}")
        A(f"s_mul_i32 {sA}, {sW}, 5"); A(f"v_add_u32 {tt}, {sA}, {r8}")
        A(f"v_lshrrev_b32 {tR2R}, 1, {tt}"); A(f"v_lshlrev_b32 {tR2R}, 8, {tR2R}")
        A(f"v_and_b32 {tt}, 1, {tt}"); A(f"v_lshl_add_u32 {tR2R}, {tt}, 4, {tR2R}"); A(f"v_lshl_add_u32 {tR2R}, {c}, 5, {tR2R}")
        A(f"s_sub_u32 {sC}, {sH}, 20"); A(f"s_cselect_b32 {sC}, {sH}, {sC}")
        A(f"s_mul_i32 {sA}, {sB}, 81920"); A(f"s_lshl_b32 {sC}, {sC}, 7"); A(f"s_add_u32 {sA}, {sA}, {sC}")
        A(f"v_mul_u32_u24 {tt}, 2560, {r8}"); A(f"v_lshl_add_u32 {tt}, {c}, 4, {tt}"); A(f"v_add_u32 {tRD}, {sA}, {tt}")
        A(f"s_mul_i32 {sA}, {sB}, 2560"); A(f"s_add_u32 {sA}, {sA}, {HB}")
        A(f"v_lshl_add_u32 {tHL0}, {vL}, 3, {sA}")
        A(f"s_lshl_b32 {sC}, {sW}, 1"); A(f"v_xor_b32 {tt}, {sC}, {vL}"); A(f"v_lshl_add_u32 {tHL4}, {tt}, 3, {sA}")
        for k in range(4):
            A(f"s_add_u32 {sHL[k]}, {sW}, {k}"); A(f"s_and_b32 {sHL[k]}, {sHL[k]}, 3"); A(f"s_lshl_b32 {sHL[k]}, {sHL[k]}, 9")
            A(f"s_mov_b32 {sRD[k]}, {P1 + k * 20480}")
        A(f"v_and_b32 {tt}, 3, {c}"); A(f"v_min_u32 {tt}, 2, {tt}"); A(f"v_lshlrev_b32 {tt}, 8, {tt}"); A(f"v_lshl_add_u32 {tZR}, {r8}, 5, {tt}")
        A(f"s_mul_i32 {sA}, s2, 2560"); A(f"s_add_u32 {sA}, {sA}, {P2}")
        A(f"v_lshlrev_b32 {tt}, 7, {b4}"); A(f"v_lshl_add_u32 {tt}, {c}, 4, {tt}"); A(f"v_add_u32 {tt}, {sA}, {tt}")
        A(f"s_lshl_b32 {sC}, {sW}, 9"); A(f"v_lshl_add_u32 {tP2ST}, {b5}, 8, {sC}")
        A(f"s_add_u32 {sC}, {sW}, 8"); A(f"s_lshl_b32 {sC}, {sC}, 8"); A(f"s_cmp_lt_u32 {sW}, 2"); A(f"s_cselect_b32 {sC}, {sC}, {OOB}")
        A(f"v_cmp_eq_u32 vcc, 1, {b5}"); A(f"v_mov_b32 {i16}, {sC}")
        A(f"v_cndmask_b32 {i16}, {oob}, {i16}, vcc")
        A(f"v_cmp_eq_u32 vcc, 1, {b3}")
        A(f"v_cndmask_b32 {tP2ST}, {tP2ST}, {i16}, vcc")
        A(f"v_add_u32 {tP2ST}, {tP2ST}, {tt}")
        A(f"s_lshr_b32 {sA}, {sH}, 1"); A(f"s_lshl_b32 {sA}, {sA}, 7"); A(f"s_and_b32 {sC}, {sH}, 1"); A(f"s_lshl_b32 {sC}, {sC}, 3"); A(f"s_add_u32 {sA}, {sA}, {sC}")
        A(f"v_lshl_add_u32 {tt}, {c}, 3, {r8}"); A(f"v_lshl_add_u32 {tt}, {tt}, 1, {sA}")
        A(f"v_cmp_gt_u32 vcc, 32, {vL}")
        A(f"v_cndmask_b32 {tOUT}, {oob}, {tt}, vcc")
    sTB = [f"s{sU+k}" for k in range(4)]; sTL, sTH = f"s{sU+4}", f"s{sU+5}"
    vMH, vTGH = vK, vWQ
    def spin_guard():
        A(f"s_add_u32 {sSPIN}, {sSPIN}, 1"); A(f"s_cmp_gt_u32 {sSPIN}, {o['spin']}"); A("s_cbranch_scc1 L_end")
    def a_tagprep():
        A(f"s_mov_b32 {sSPIN}, 0")
        A(f"v_cmp_eq_u32 vcc, 0, {tCNT}")
        A("s_cbranch_vccnz L_cntwait")
        A.label("L_cntok")
        A(f"v_readfirstlane_b32 {sA}, {tCNT}")
        A(f"v_mov_b32 {vMH}, 0xffffff00")
        A(f"v_and_b32 {vTGH}, 1, {vL}")
        for k in range(4): A(f"s_bfe_u32 {sTB[k]}, {sA}, {hex(0x80000 | (8 * k))}")
        A(f"s_and_b32 {sTL}, {sA}, 0xffff"); A(f"s_lshr_b32 {sTH}, {sA}, 16")
        A(f"v_lshlrev_b32 {vTGH}, 4, {vTGH}")
        A(f"v_bfe_u32 {vTGH}, {tCNT}, {vTGH}, 16")
    tailprep_done = [False]
    for n in range(16):
        for t in range(3):
            def f(n=n, t=t):
                if t == 0:
                    for ins in afrag_oct(AF[n & 1], S + 2 * (n >> 3), n & 7): A(ins)
                smf(D + 4 * t, AF[n & 1], slots[("v", n, t)]); release("pair", ("v", n, t))
            act([("v", n, t, 1)], f)
        if n == 4:
            def g(): a_tailprep(); tailprep_done[0] = True
            act([], g)
        if n == 10 and o["tag"]: act([("cnt",)], a_tagprep)

    arrived = -1
    ai = 0
    def wait_for(idx, issued):
        nonlocal arrived
        if idx > arrived:
            A(f"s_waitcnt vmcnt({issued - 1 - idx})"); arrived = idx
    def force_action(issued):
        nonlocal ai
        a = acts[ai]; m = max(a["needs"], default=-1)
        assert m < issued, "action needs a load that is not issued yet"
        wait_for(m, issued); a["fn"](); ai += 1
    forced = 0
    cur = [0]
    def force_now():
        nonlocal forced
        force_action(cur[0]); forced += 1
    for n, it in enumerate(seq):
        cur[0] = n
        if it["tag"] == setup_tag: late_setup()
        if it["tag"] == ("xr",): assert tailprep_done[0]
        if n - Wn[n] > arrived: wait_for(n - Wn[n], n)
        for hk in hooks.get(it["tag"], []): hk()
        while it["need"] and not can_alloc(it["need"]):
            force_action(n); forced += 1
        it["emit"]()
        budget = 1.0
        while budget > 0.01 and ai < len(acts) and max(acts[ai]["needs"], default=-1) <= arrived:
            budget -= acts[ai].get("cost", 1); acts[ai]["fn"](); ai += 1
    issued = len(seq)
    A.label("L_tail")
    if not o["tag"]: A(f"s_mov_b32 {sSPIN}, 0")
    late = (Lw1 + Lw2) if o["w12late"] else []
    nlate = [0]
    def late_load(k=1, limit=None):
        nonlocal issued
        for _ in range(k):
            if late and (limit is None or nlate[0] < limit):
                late.pop(0)["emit"](); issued += 1; nlate[0] += 1
    late_load(o["n1"])
    if o["warmpos"] >= 192: issued += warm_lines()
    while ai < len(acts):
        force_action(issued); late_load(1, o["n2"])
    o["_forced"] = forced

    stamp()
    if o["notail"]:
        for k in range(nstamp[0], nstamp[0] + 4): A(f"s_memrealtime s[{4+2*k}:{5+2*k}]")
        A("s_branch L_prof")
    assert not halfV
    tv = sorted(s[1] for s in freeV)
    assert len(tv) >= 7, tv
    DO = [tv[0], tv[0] + 4, tv[1], tv[1] + 4, tv[2]]
    G = [tv[3], tv[3] + 4, tv[4], tv[4] + 4]
    F = [tv[5], tv[5] + 2, tv[5] + 4, tv[5] + 6, tv[6]]
    Wk = [tv[0], tv[0] + 2, tv[0] + 4, tv[0] + 6, tv[1]]
    R0, R1 = tv[2], tv[2] + 4
    for d in DO[:2]:
        for k in range(4): A(f"v_mov_b32 {v(d+k)}, 0")
    compact([D, D + 4, D + 8])
    for t in range(3): A(f"ds_write_b32 {vREDW}, {v(D+4*t)} offset:{RED + 1024*t}")
    late_load(1, o["n2"])
    for d in DO[2:4]:
        for k in range(4): A(f"v_mov_b32 {v(d+k)}, 0")
    A("s_waitcnt lgkmcnt(0)")
    A("s_barrier")
    A(f"ds_read_b128 {vr(T,4)}, {tO_R} offset:{RED}")
    A(f"ds_read_b128 {vr(T+4,4)}, {tO_R} offset:{RED+16}")
    late_load(1, o["n2"])
    for k in range(4): A(f"v_mov_b32 {v(DO[4]+k)}, 0")
    wait_for(max(pos[it["tag"]] for it in Lwo), issued)
    A("s_waitcnt lgkmcnt(0)")
    A(f"v_pk_add_f32 {vr(T,2)}, {vr(T,2)}, {vr(T+2,2)}")
    A(f"v_pk_add_f32 {vr(T+4,2)}, {vr(T+4,2)}, {vr(T+6,2)}")
    A(f"v_add_f32 {v(T)}, {v(T)}, {v(T+1)}")
    A(f"v_add_f32 {v(T+4)}, {v(T+4)}, {v(T+5)}")
    A(f"v_cvt_pk_bf16_f32 {v(S)}, {v(T)}, {v(T+4)}")
    def af_row(dst, u): return [f"v_and_b32_dpp {v(dst+k)}, {v(S)}, {v(MK[k])} row_newbcast:{u} {DPPF}" for k in range(4)]
    for ins in af_row(AF[0], 0): A(ins)
    for u in range(6):
        nxt = af_row(AF[(u + 1) & 1], u + 1) if u < 5 else []
        for blk in range(5):
            smf(DO[blk], AF[u & 1], slots[("wo", u, blk)])
            if nxt: A(nxt.pop(0))
            if blk == 4: late_load(1, o["n2"])
    for k in range(4): A(f"v_mov_b32_dpp {v(DO[0]+k)}, {v(DO[1]+k)} quad_perm:[0,1,2,3] row_mask:0xc bank_mask:0xf")
    A(f"ds_write_b128 {tR2W}, {vr(DO[0],4)} offset:{RED2}")
    for k in range(4): A(f"v_mov_b32_dpp {v(DO[2]+k)}, {v(DO[3]+k)} quad_perm:[0,1,2,3] row_mask:0xc bank_mask:0xf")
    A(f"ds_write_b128 {tR2W}, {vr(DO[2],4)} offset:{RED2+1024}")
    A(f"ds_write_b128 {tR2W}, {vr(DO[4],4)} offset:{RED2+2048}")
    A("s_waitcnt lgkmcnt(0)")
    A("s_barrier")
    for k in range(4): A(f"ds_read_b128 {vr(G[k],4)}, {tR2R} offset:{RED2 + 3072*k}")
    for k in range(12): A(f"v_mov_b32 {v(D+k)}, 0")
    A("s_waitcnt lgkmcnt(0)")
    def sum4():
        for hh in (0, 2):
            A(f"v_pk_add_f32 {vr(R0+hh,2)}, {vr(G[0]+hh,2)}, {vr(G[1]+hh,2)}")
            A(f"v_pk_add_f32 {vr(R1+hh,2)}, {vr(G[2]+hh,2)}, {vr(G[3]+hh,2)}")
        for hh in (0, 2):
            A(f"v_pk_add_f32 {vr(R0+hh,2)}, {vr(R0+hh,2)}, {vr(R1+hh,2)}")
    sum4()
    def seal(r):
        for k in range(4):
            if o["tag"]: A(f"v_and_or_b32 {v(r+k)}, {v(r+k)}, {vMH}, {sTB[k]}")
            else: A(f"v_min_u32 {v(r+k)}, -2, {v(r+k)}")
    seal(R0)
    A(f"buffer_store_dwordx4 {vr(R0,4)}, {vP1ST}, {srd(sWS)}, 0 offen sc1")
    issued += 1
    stamp()
    if o["prof"]:
        stamp(); nstamp[0] -= 1
    if not o["tag"]:
        wait_for(pos[("cnt",)], issued)
        A(f"v_cmp_gt_u32 vcc, 32, {tCNT}")
        if not o["nosig"]: A("s_cbranch_vccnz L_cntwait")
        A.label("L_cntok")
    last_soff[0] = None
    while late:
        A(f"s_waitcnt vmcnt({o['Wb'] - 2})"); late_load(2)
    A(f"s_cmp_lg_u32 {sW}, 0"); A("s_cbranch_scc1 L_hpoll0")
    if not o["hbar"]:
        A(f"s_cmp_ge_u32 {sH}, 20"); A("s_cbranch_scc1 L_hpoll0")
    def reduce_stage(lbl, dep):
        def loads():
            for k in range(4): A(f"buffer_load_dwordx4 {vr(G[k],4)}, {tRD}, {srd(sWS)}, {sRD[k]} offen sc1")
        for _ in range(dep - 1): loads()
        A.label(lbl)
        loads()
        spin_guard()
        A(f"s_waitcnt vmcnt({4 * (dep - 1)})")
        regs = [G[k] + j for k in range(4) for j in range(4)]
        op3, op2 = ("v_or3_b32", "v_or_b32") if o["tag"] else ("v_max3_u32", "v_max_u32")
        if o["tag"]:
            assert dep == 1
            for i_, r_ in enumerate(regs): A(f"v_xor_b32 {v(r_)}, {sTB[i_ & 3]}, {v(r_)}")
        A(f"{op3} {v(T)}, {v(regs[0])}, {v(regs[1])}, {v(regs[2])}")
        A(f"{op3} {v(T+1)}, {v(regs[3])}, {v(regs[4])}, {v(regs[5])}")
        for k in range(6, 16, 2):
            d = v(T + ((k >> 1) & 1))
            A(f"{op3} {d}, {d}, {v(regs[k])}, {v(regs[k+1])}")
        if o["tag"]:
            A(f"v_or3_b32 {v(T)}, {v(T)}, {v(T+1)}, {vMH}")
            A(f"v_cmp_ne_u32 vcc, {v(T)}, {vMH}")
        else:
            A(f"v_max_u32 {v(T)}, {v(T)}, {v(T+1)}")
            A(f"v_cmp_eq_u32 vcc, -1, {v(T)}")
        A(f"s_cbranch_vccnz {lbl}")
        sum4()
        g = R0
        A(f"v_add_f32_dpp {v(T)}, {v(g)}, {v(g)} row_ror:8 row_mask:0xf bank_mask:0x3")
        A(f"v_add_f32_dpp {v(T+1)}, {v(g+2)}, {v(g+2)} row_ror:8 row_mask:0xf bank_mask:0x3")
        A(f"v_add_f32_dpp {v(T)}, {v(g+1)}, {v(g+1)} row_ror:8 row_mask:0xf bank_mask:0xc")
        A(f"v_add_f32_dpp {v(T+1)}, {v(g+3)}, {v(g+3)} row_ror:8 row_mask:0xf bank_mask:0xc")
        A(f"v_permlane16_swap_b32 {v(T)}, {v(T+1)}")
        A(f"v_add_f32 {v(T)}, {v(T)}, {v(T+1)}")
        A(f"v_mov_b32 {v(T+1)}, {v(T)}")
        A(f"v_permlane32_swap_b32 {v(T)}, {v(T+1)}")
        A(f"v_add_f32 {v(T)}, {v(T)}, {v(T+1)}")
        round_bf16(v(T))
    A(f"v_lshlrev_b32 {tXR}, 16, {tXR}")
    reduce_stage("L_red1", o["dR"])
    A(f"v_add_f32 {tXR}, {tXR}, {v(T)}")
    if o["tag"]:
        A(f"v_cvt_pk_bf16_f32 {tXR}, {tXR}, {tXR}")
        A(f"v_lshl_or_b32 {v(T)}, {tXR}, 16, {vTGH}")
        A(f"buffer_store_dword {v(T)}, {vHST}, {srd(sWS)}, 0 offen sc1")
        A(f"v_lshlrev_b32 {tXR}, 16, {tXR}")
    else:
        round_bf16(tXR)
        A(f"buffer_store_dword {tXR}, {vHST}, {srd(sWS)}, 0 offen sc1")
    if o["prof"]:
        A("s_waitcnt lgkmcnt(0)"); stamp()
    if o["hbar"] and o["ack2"]: A("s_waitcnt vmcnt(0)")
    A.label("L_hpoll0")
    if o["hbar"]: A("s_barrier")
    def hloads():
        for k in range(4): A(f"buffer_load_dwordx2 {vr(F[k],2)}, {tHL0}, {srd(sWS)}, {sHL[k]} offen sc1")
        A(f"buffer_load_dwordx2 {vr(F[4],2)}, {tHL4}, {srd(sWS)}, 0 offen offset:2048 sc1")
    for _ in range(o["dH"] - 1): hloads()
    A.label("L_hpoll")
    hloads()
    spin_guard()
    A(f"s_waitcnt vmcnt({5 * (o['dH'] - 1)})")
    op3 = "v_or3_b32" if o["tag"] else "v_max3_u32"
    if o["tag"]:
        assert o["dH"] == 1
        for k in range(5):
            A(f"v_xor_b32 {v(F[k])}, {sTL}, {v(F[k])}"); A(f"v_xor_b32 {v(F[k]+1)}, {sTH}, {v(F[k]+1)}")
    A(f"{op3} {v(T)}, {v(F[0])}, {v(F[0]+1)}, {v(F[1])}")
    A(f"{op3} {v(T+1)}, {v(F[1]+1)}, {v(F[2])}, {v(F[2]+1)}")
    A(f"{op3} {v(T)}, {v(T)}, {v(F[3])}, {v(F[3]+1)}")
    A(f"{op3} {v(T+1)}, {v(T+1)}, {v(F[4])}, {v(F[4]+1)}")
    if o["tag"]:
        A(f"v_or_b32 {v(T)}, {v(T)}, {v(T+1)}")
        A(f"v_cmp_ne_u16 vcc, 0, {v(T)}")
    else:
        A(f"v_max_u32 {v(T)}, {v(T)}, {v(T+1)}")
        A(f"v_cmp_eq_u32 vcc, -1, {v(T)}")
    if o["sleep"]:
        A("s_cbranch_vccz L_hok"); A(f"s_sleep {o['sleep']}"); A("s_branch L_hpoll"); A.label("L_hok")
    else:
        A("s_cbranch_vccnz L_hpoll")
    stamp()
    layernorm(F, Wk, T, S)
    for ins in afrag_oct(AF[0], S, 0): A(ins)
    for u in range(10):
        nxt = afrag_oct(AF[(u + 1) & 1], S + 2 * ((u + 1) >> 3), (u + 1) & 7) if u < 9 else []
        if nxt: A(nxt.pop(0)); A(nxt.pop(0))
        smf(D, AF[u & 1], slots[("w1", u)])
        for ins in nxt: A(ins)
    A(f"v_mov_b32 {v(T+8)}, {hex(LOG2E ^ 0x80000000)}")
    compact([D])
    A(f"ds_write_b32 {vREDW}, {v(D)} offset:{REDZ}")
    A("s_waitcnt lgkmcnt(0)")
    A("s_barrier")
    A(f"ds_read_b128 {vr(T,4)}, {tZR} offset:{REDZ}")
    A(f"ds_read_b128 {vr(T+4,4)}, {tZR} offset:{REDZ+16}")
    for k in range(4): A(f"v_mov_b32 {v(D+k)}, 0")
    for k in range(4): A(f"s_add_u32 {sRD[k]}, {sRD[k]}, {P2 - P1}")
    A("s_waitcnt lgkmcnt(0)")
    A(f"v_pk_add_f32 {vr(T,2)}, {vr(T,2)}, {vr(T+2,2)}")
    A(f"v_pk_add_f32 {vr(T+4,2)}, {vr(T+4,2)}, {vr(T+6,2)}")
    A(f"v_add_f32 {v(T)}, {v(T)}, {v(T+1)}")
    A(f"v_add_f32 {v(T+4)}, {v(T+4)}, {v(T+5)}")
    A(f"v_cvt_pk_bf16_f32 {v(T+1)}, {v(T)}, {v(T+4)}")
    A(f"v_lshlrev_b32 {v(T)}, 16, {v(T+1)}")
    A(f"v_and_b32 {v(T+1)}, 0xffff0000, {v(T+1)}")
    for k in range(2): A(f"v_mul_f32 {v(T+2+k)}, {v(T+k)}, {v(T+8)}")
    for k in range(2): A(f"v_exp_f32 {v(T+2+k)}, {v(T+2+k)}")
    for k in range(2): A(f"v_add_f32 {v(T+2+k)}, 1.0, {v(T+2+k)}")
    for k in range(2): A(f"v_rcp_f32 {v(T+2+k)}, {v(T+2+k)}")
    for k in range(2): A(f"v_mul_f32 {v(T+k)}, {v(T+k)}, {v(T+2+k)}")
    A(f"v_cvt_pk_bf16_f32 {v(S)}, {v(T)}, {v(T+1)}")
    def af_quad(dst, u): return [f"v_and_b32_dpp {v(dst+k)}, {v(S)}, {v(MK[k])} quad_perm:[{u},{u},{u},{u}] {DPPF}" for k in range(4)]
    for ins in af_quad(AF[0], 0): A(ins)
    for u in range(3):
        nxt = af_quad(AF[(u + 1) & 1], u + 1) if u < 2 else []
        if nxt: A(nxt.pop(0)); A(nxt.pop(0))
        for blk in range(3):
            smf(D + 4 * blk, AF[u & 1], slots[("w2", u, blk)])
            if nxt: A(nxt.pop(0))
    X, Y, Z = D, D + 4, D + 8
    for e in range(4): A(f"v_permlane32_swap_b32 {v(X+e)}, {v(Y+e)}")
    for e in range(4): A(f"v_add_f32_dpp {v(X+e)}, {v(Y+e)}, {v(X+e)} row_ror:8 row_mask:0xf bank_mask:0x3")
    for e in range(4): A(f"v_permlane32_swap_b32 {v(Y+e)}, {v(Z+e)}")
    for e in range(4): A(f"v_add_f32_dpp {v(X+e)}, {v(Y+e)}, {v(Z+e)} row_ror:8 row_mask:0xc bank_mask:0xc")
    seal(X)
    A(f"buffer_store_dwordx4 {vr(X,4)}, {tP2ST}, {srd(sWS)}, 0 offen sc1")
    stamp()
    fin = "L_prof" if o["prof"] else "L_end"
    A(f"s_cmp_lg_u32 {sW}, 0"); A(f"s_cbranch_scc1 {fin}")
    A(f"s_cmp_ge_u32 {sH}, 20"); A(f"s_cbranch_scc1 {fin}")
    if o["ack3"]: A("s_waitcnt vmcnt(0)")
    reduce_stage("L_red2", o.get("dR2", o["dR"]))
    A(f"v_add_f32 {v(T)}, {tXR}, {v(T)}")
    A(f"v_cvt_pk_bf16_f32 {v(T)}, {v(T)}, {v(T)}")
    A(f"buffer_store_short {v(T)}, {tOUT}, {srd(sOUT)}, 0 offen")
    if o["prof"]:
        A.label("L_prof")
        stamp()
        A("s_getreg_b32 s25, hwreg(HW_REG_XCC_ID)")
        A("s_waitcnt lgkmcnt(0)")
        A(f"s_lshl_b32 {sA}, s2, 2"); A(f"s_add_u32 {sA}, {sA}, {sW}"); A(f"s_lshl_b32 {sA}, {sA}, 6"); A(f"s_add_u32 {sA}, {sA}, {PROF}")
        for k in range(nstamp[0]):
            A(f"v_mov_b32 {v(T)}, s{4+2*k}")
            A(f"buffer_store_dword {v(T)}, off, {srd(sWS)}, {sA} offset:{4*k}")
        A(f"v_mov_b32 {v(T)}, s25"); A(f"buffer_store_dword {v(T)}, off, {srd(sWS)}, {sA} offset:56")
        A(f"v_mov_b32 {v(T)}, {sSPIN}"); A(f"buffer_store_dword {v(T)}, off, {srd(sWS)}, {sA} offset:60")
    A.label("L_end")
    A("s_endpgm")
    A.label("L_cntwait")
    if o["tag"]: A(f"s_mov_b32 {sT2}, 0")
    else: A(f"s_lshl_b32 {sT2}, {sB}, 5")
    A(f"buffer_load_dword {tCNT}, off, {srd(sDBG)}, {sT2} sc1")
    spin_guard()
    A("s_waitcnt vmcnt(0)")
    if o["tag"]: A(f"v_cmp_eq_u32 vcc, 0, {tCNT}")
    else: A(f"v_cmp_gt_u32 vcc, 32, {tCNT}")
    A("s_cbranch_vccnz L_cntwait")
    A.label("L_last")
    A("s_branch L_cntok")
    if o["burst"] and o["dsig"]:
        A.label("L_signal"); signal_body(); A(f"s_setpc_b64 {sRA}")
    for nm, lst, snap in subs:
        A.label(f"L_burst_{nm}")
        slots.clear(); slots.update(snap); last_soff[0] = None
        for i, it in enumerate(lst):
            if nm in o["skip"]: break
            if i % 2 == 0: A(f"s_waitcnt vmcnt({o['Wb'] - 2})")
            it["emit"]()
        A(f"s_setpc_b64 {sRA}")
    A.label("L_codeend")
    A.raw('.section .rodata,"a"'); A.raw(".p2align 6"); A.raw(f".amdhsa_kernel {KNAME}")
    A.raw("  .amdhsa_next_free_vgpr 512"); A.raw("  .amdhsa_next_free_sgpr 102"); A.raw("  .amdhsa_accum_offset 256")
    A.raw("  .amdhsa_float_denorm_mode_32 3")
    A.raw("  .amdhsa_group_segment_fixed_size 0"); A.raw("  .amdhsa_kernarg_size 88"); A.raw("  .amdhsa_user_sgpr_count 2")
    A.raw("  .amdhsa_user_sgpr_kernarg_segment_ptr 1"); A.raw("  .amdhsa_system_sgpr_workgroup_id_x 1"); A.raw(".end_amdhsa_kernel")
    o["_nstamp"] = nstamp[0]
    return A.text(), o

if __name__ == "__main__":
    out = sys.argv[1]
    kw = eval("dict(" + (sys.argv[2] if len(sys.argv) > 2 else "") + ")")
    txt, o = gen(**kw)
    open(out, "w").write(txt)
    print("forced", o["_forced"], "lines", txt.count("\n"))
```

```python
import sys, os
sys.path.insert(0, os.path.dirname(os.path.abspath(__file__)))
from asmlib import Asm

NAME = "sequential_preLN__sliding_block_cached__dense_activation_silu__decode"
KNAME = NAME + "_kernel"

DEF = dict(
    WA=15, WB=12, WC=12,
    nKA=30,
    nWOB=30,
    rot=5,
    polKV="nt", polW="",
    prof=False,
    wlast=0,
    codepf=True,
    burst=True, W=12, Wb=12,
    grp="b",
    a0=7, da=8, b0=94, db=6, c0=146, dc=5, tlead=14, touch64=False, touch=True, polT="", polT2=None, skip=(), notail=False, sleep=0, dR=1, dH=1, ack3=True, hbar=True, ack2=True, Ws=None, perm=False, nosig=False, noclr=False, sig0=46, dsig=0, xorid=0, hcopy=True, p32=False, offs=(172, 172, 168), batch=1, vorder="t", umode="int", dw=(0, 0), rot2=0, tag1=True, tsplit=True, kfirst=True, polO="", ack1=False, warm=6, warm2=6, polWm="", warmpos=152, tag=True, nL=12, rL=4, tqs=None, tws=4, dtw=3, qkcost=0.5, pf0=False, st0=False, tB=None, tC=None, polC="sc1", clrpos=6, w12late=False, n1=6, n2=14,
    spin=200000,
)

RED, QB, SM, RED2, REDZ, LDS_BYTES = 0, 3072, 4608, 5120, 17408, 18432
P1, P2, HB, PROF = 0, 0x200000, 0x400000, 0x800000
OOB = 0x40000000
LOG2E = 0x3fb8aa3b
import struct
def fbits(x): return struct.unpack("<I", struct.pack("<f", x))[0]

def gen(**kw):
    o = dict(DEF); o.update(kw)
    A = Asm()
    hdr = open(os.path.join(os.path.dirname(os.path.abspath(__file__)), "..", "cdna_kernels", NAME + ".s.ref")).read().splitlines()
    for ln in hdr:
        if ln.startswith("; Override") : break
        A.raw(ln)
    KL = RED2
    PS = o.get("PS", 4096 if o["p32"] else 2560)
    assert o["tag"] or not o["p32"]
    lds_bytes = max(LDS_BYTES, KL + 4 * o["nL"] * 3072)
    assert lds_bytes <= 163840 and o["nL"] % 2 == 0
    A.raw(f"; @launch grid=(256,1,1) block=(256,1,1) lds={lds_bytes}")
    A.raw('.amdgcn_target "amdgcn-amd-amdhsa--gfx950"')
    A.raw(".text"); A.raw(f".globl {KNAME}"); A.raw(".p2align 8"); A.raw(f".type {KNAME},@function"); A.label(KNAME)

    sW, sB, sH = "s3", "s26", "s27"
    sX, sK, sV, sWQ, sWO, sW1, sW2, sOUT, sDBG, sWS = [28 + 4 * i for i in range(10)]
    srd = lambda n: f"s[{n}:{n+3}]"
    sU = 68
    sT = "s84"
    sQB0, sQB1, sF0, sF1, sZ = "s86", "s87", "s88", "s89", "s1"
    sLM = "s[92:93]"
    sA, sC, sD, sE = "s94", "s95", "s96", "s97"
    sSPIN = "s98"
    sPC = 100
    vL, vK, vV, vWQ, vWO, vW2, vW1, vIDX = [f"v{i}" for i in range(8)]
    MK = [8, 9, 10, 11]
    AF = [12, 16]
    D = 20
    Q = 32
    S = 44
    T = 48
    vHST, vP1ST, vREDW = "v61", "v62", "v63"
    tO_R, tR2W, tR2R, tCNT, tRD, tPF, tHL0, tHL4, tZR, tP2ST, tOUT, tXR = [f"v{Q+i}" for i in range(12)]
    v = lambda n: f"v{n}"
    vr = lambda n, k: f"v[{n}:{n+k-1}]"
    nstamp = [0]
    def stamp():
        if o["prof"]:
            k = nstamp[0]; nstamp[0] += 1
            assert k < 11
            A(f"s_memrealtime s[{4+2*k}:{5+2*k}]")

    A("s_load_dwordx16 s[4:19], s[0:1], 0")
    A("s_load_dwordx4 s[20:23], s[0:1], 64")
    A("s_load_dwordx2 s[24:25], s[0:1], 80")
    A("s_cmpk_ge_u32 s2, 256")
    A("s_cbranch_scc1 L_end")
    if o["xorid"]: A(f"s_xor_b32 s2, s2, {o['xorid']}")
    if o["perm"]:
        A("s_lshr_b32 s3, s2, 3"); A("s_add_u32 s3, s3, s2"); A("s_and_b32 s3, s3, 7"); A("s_and_b32 s2, s2, 0xf8"); A("s_or_b32 s2, s2, s3")
    if o["prof"]: A("s_memrealtime s[100:101]")
    A(f"v_readfirstlane_b32 {sW}, v0")
    A(f"v_and_b32 {vL}, 63, v0")
    A(f"s_lshr_b32 {sW}, {sW}, 6")
    A(f"s_lshr_b32 {sB}, s2, 5")
    A(f"s_and_b32 {sH}, s2, 31")
    vR8, vC, t0, t1, t2, t3 = v(T+7), v(T+8), v(T+9), v(T+10), v(T+11), v(T+12)
    A(f"v_lshrrev_b32 {vR8}, 3, {vL}")
    A(f"v_and_b32 {vC}, 7, {vL}")
    A(f"v_lshlrev_b32 {v(T+5)}, 2, {vL}")
    A(f"s_lshl_b32 {sA}, {sW}, 3")
    A(f"v_xor_b32 {v(T+6)}, {sA}, {v(T+5)}")
    A(f"v_and_b32 {t0}, 32, {vL}")
    A(f"v_bfe_u32 {t1}, {vL}, 3, 1")
    A(f"v_bfe_u32 {t2}, {vL}, 4, 1")
    A(f"v_lshl_add_u32 {t3}, {t1}, 4, {t0}")
    A(f"v_add_u32 {t3}, {t3}, {t2}")
    A(f"v_mul_u32_u24 {t3}, 12288, {t3}")
    A(f"v_lshl_add_u32 {vWQ}, {vC}, 4, {t3}")
    if o["offs"]:
        A(f"v_lshrrev_b32 {t3}, 4, {vL}")
    else:
        A(f"v_lshrrev_b32 {t3}, 2, {t0}")
        A(f"v_lshl_add_u32 {t3}, {t2}, 2, {t3}")
        A(f"v_add_u32 {t3}, {t3}, {t1}")
    A(f"v_mul_u32_u24 {t3}, 384, {t3}")
    A(f"v_lshl_add_u32 {vK}, {vC}, 4, {t3}")
    A(f"s_mul_i32 {sA}, s2, 1572864")
    A(f"s_add_u32 {sA}, {sA}, 1179648")
    A(f"s_mul_i32 {sC}, {sB}, 1280")
    A(f"s_mul_i32 {sD}, {sH}, 384")
    A(f"s_mul_i32 {sQB0}, {sW}, {128*12288}")
    sE2 = "s0"
    A(f"s_mul_i32 {sE}, s2, {o['rot']}")
    if o["rot2"]:
        A(f"s_lshr_b32 s{sU}, s2, {o['rot2'][0]}"); A(f"s_mul_i32 s{sU}, s{sU}, {o['rot2'][1]}"); A(f"s_add_u32 {sE}, {sE}, s{sU}")
    if o["umode"] == "int":
        A(f"s_add_u32 {sE}, {sE}, {sW}")
    elif o["umode"] == "blk":
        A(f"s_mul_i32 s{sU}, {sW}, {o['dw'][0]}"); A(f"s_lshr_b32 s{sU}, s{sU}, {o['dw'][1]}"); A(f"s_add_u32 {sE}, {sE}, s{sU}")
    else:
        A(f"s_and_b32 s{sU}, {sW}, 1"); A(f"s_add_u32 {sE}, {sE}, s{sU}")
        A(f"s_lshr_b32 s{sU}, {sW}, 1"); A(f"s_mul_i32 s{sU}, s{sU}, {o['dw'][0]}"); A(f"s_add_u32 {sE}, {sE}, s{sU}")
    def unit_off(n):
        d = f"s{sU+n}"
        if o["umode"] == "int":
            A(f"s_add_u32 {d}, {sE}, {4*n}"); A(f"s_and_b32 {d}, {d}, 63")
        elif o["umode"] == "blk":
            A(f"s_add_u32 {d}, {sE}, {n}"); A(f"s_and_b32 {d}, {d}, 15")
            A(f"s_lshl4_add_u32 {d}, {sW}, {d}")
        else:
            A(f"s_add_u32 {d}, {sE}, {2*(n & 7)}"); A(f"s_and_b32 {d}, {d}, 15")
            A(f"s_lshr_b32 {sT}, {sW}, 1"); A(f"s_lshl4_add_u32 {d}, {sT}, {d}"); A(f"s_add_u32 {d}, {d}, {32*(n >> 3)}")
        A(f"s_mulk_i32 {d}, 6144")
    offs = o["offs"]
    sSO, sCO, sCD = [f"s{sU+10}", f"s{sU+11}"], [f"s{sU+12}", f"s{sU+13}"], [f"s{sU+14}", f"s{sU+15}"]
    sP0, sP1, sP2, sP3 = f"s{sU}", f"s{sU+1}", f"s{sU+2}", f"s{sU+3}"
    if offs:
        assert sum(offs) == 512 and all(x % 4 == 0 for x in offs) and o["umode"] == "int"
        jst = [sum(offs[:k]) // 4 for k in range(len(offs))]
        for k in range(1, len(offs)): assert jst[k] % 2 == 0 or offs[k] == offs[k - 1]
        for r_ in sCO + sCD: A(f"s_mov_b32 {r_}, 0")
        unit_off = lambda n: None
    def half_params(n, hB, dB, dO):
        A(f"s_add_u32 {sP3}, {sE}, {4*n}"); A(f"s_and_b32 {sP3}, {sP3}, 63")
        A(f"s_lshl1_add_u32 {sP3}, {sP3}, {hB}")
        A(f"s_mul_i32 {dB}, {sP3}, 1536")
        if dO: A(f"s_mov_b32 {dO}, {offs[0] * 384}")
        for k in range(1, len(offs)):
            A(f"s_cmp_ge_u32 {sP3}, {jst[k]}")
            if dO and offs[k] != offs[k - 1]: A(f"s_cselect_b32 {dO}, {offs[k] * 384}, {dO}")
            A(f"s_cselect_b32 {sP2}, {offs[k - 1] * 384}, 0")
            A(f"s_add_u32 {dB}, {dB}, {sP2}")
    def lane_add(reg, mask, cur, new):
        A(f"s_sub_u32 {sP2}, {new}, {cur}"); A(f"s_mov_b32 {cur}, {new}")
        A(f"s_mov_b32 exec_lo, {hex(mask)}"); A(f"s_mov_b32 exec_hi, {hex(mask)}")
        A(f"v_add_u32 {reg}, {sP2}, {reg}")
        A("s_mov_b64 exec, -1")
    def k_addr(n, hB):
        half_params(n, hB, sSO[0], sP0); lane_add(vK, 0xff00ff00, sCO[1], sP0)
    def v_addr(n):
        p_ = n & 1; reg = (vV, vK)[p_]
        if n == 1:
            A(f"v_mov_b32 {vK}, {vV}"); A(f"s_mov_b32 {sCO[1]}, {sCO[0]}"); A(f"s_mov_b32 {sCD[1]}, {sCD[0]}")
        half_params(n, 0, sSO[p_], sP0); half_params(n, 1, sP1, None)
        A(f"s_sub_u32 {sP1}, {sP1}, {sSO[p_]}")
        lane_add(reg, 0xff00ff00, sCO[p_], sP0); lane_add(reg, 0xffff0000, sCD[p_], sP1)
    unit_off(0)
    sKL = "s90"
    if o["nL"]:
        A(f"s_mul_i32 {sKL}, {sW}, {o['nL'] * 3072}"); A(f"s_add_u32 {sKL}, {sKL}, {KL}")
    sG, sRA, sT2, sGT, sSG = "s85", "s[76:77]", "s91", "s99", "s98"
    vT1, vT2 = v(Q), v(Q + 1)
    if o["burst"]:
        sRA = f"s[{sPC}:{sPC+1}]"
        A(f"v_mul_u32_u24 {vT1}, 21846, {vL}"); A(f"v_lshrrev_b32 {vT1}, 16, {vT1}")
        A(f"v_mul_u32_u24 {vT2}, {12288 - 3*128}, {vT1}"); A(f"v_lshl_add_u32 {vT2}, {vL}, 7, {vT2}")
        sQT = sGT
        A(f"s_lshl_b32 {sQT}, {sB}, 2"); A(f"s_add_u32 {sQT}, {sQT}, {sW}"); A(f"s_mul_i32 {sQT}, {sQT}, {20*12288}")
        if o["grp"] == "h":
            A(f"s_lshr_b32 {sG}, {sH}, 3"); A(f"s_mov_b32 {sGT}, {sG}")
        elif o["grp"] == "hb":
            A(f"s_lshr_b32 {sGT}, {sH}, 3"); A(f"s_lshl_b32 {sGT}, {sGT}, 1"); A(f"s_and_b32 {sG}, {sB}, 1"); A(f"s_add_u32 {sG}, {sG}, {sGT}")
        else:
            A(f"s_mov_b32 {sG}, {sB}")
    if offs: k_addr(0, 0)
    A(f"s_mov_b32 s{sX+2}, 1280"); A(f"s_mov_b32 s{sX+3}, 0x20000")
    A(f"s_mov_b32 s{sK+2}, 393216"); A(f"s_mov_b32 s{sK+3}, 0x20000")
    A(f"s_sub_u32 s{sWQ+2}, {640*12288}, {sD}"); A(f"s_mov_b32 s{sWQ+3}, 0x20000")
    if o["pf0"]:
        A("s_cmp_ge_u32 s2, 8"); A("s_cbranch_scc1 L_nopf0")
        A(f"s_getpc_b64 s[{sOUT}:{sOUT+1}]")
        A.label("L_pc0")
        A(f"s_lshl_b32 {sT}, {sW}, 13")
        A(f"v_lshl_add_u32 {v(Q+2)}, {vL}, 7, {sT}")
        A(f"v_min_u32 {v(Q+2)}, L_codeend-L_pc0-4, {v(Q+2)}")
        A(f"global_load_dword {v(Q+2)}, {v(Q+2)}, s[{sOUT}:{sOUT+1}]")
        A.label("L_nopf0")
    A("s_waitcnt lgkmcnt(0)")
    if o["st0"]: A("s_memrealtime s[72:73]")
    A(f"s_add_u32 s{sX}, s4, {sC}"); A(f"s_addc_u32 s{sX+1}, s5, 0")
    A(f"s_add_u32 s{sK}, s6, {sA}"); A(f"s_addc_u32 s{sK+1}, s7, 0")
    A(f"s_add_u32 s{sWQ}, s10, {sD}"); A(f"s_addc_u32 s{sWQ+1}, s11, 0")

    def late_setup():
        A(f"s_add_u32 s{sV}, s8, {sA}"); A(f"s_addc_u32 s{sV+1}, s9, 0")
        A(f"s_mov_b32 s{sV+2}, 393216"); A(f"s_mov_b32 s{sV+3}, 0x20000")
        A(f"s_add_u32 s{sOUT}, s20, {sC}"); A(f"s_addc_u32 s{sOUT+1}, s21, 0")
        A(f"s_mov_b32 s{sOUT+2}, 1280"); A(f"s_mov_b32 s{sOUT+3}, 0x20000")
        A(f"s_mul_i32 {sD}, {sH}, 245760")
        A(f"s_add_u32 s{sWO}, s12, {sD}"); A(f"s_addc_u32 s{sWO+1}, s13, 0")
        A(f"s_mov_b32 s{sWO+2}, 245760"); A(f"s_mov_b32 s{sWO+3}, 0x20000")
        A(f"s_and_b32 {sA}, {sH}, 7"); A(f"s_lshl_b32 {sA}, {sA}, 2"); A(f"s_lshr_b32 {sC}, {sH}, 3"); A(f"s_add_u32 {sA}, {sA}, {sC}")
        A(f"s_mul_i32 {sD}, {sA}, 96")
        A(f"s_add_u32 s{sW1}, s16, {sD}"); A(f"s_addc_u32 s{sW1+1}, s17, 0")
        A(f"s_sub_u32 s{sW1+2}, {640*3072}, {sD}"); A(f"s_mov_b32 s{sW1+3}, 0x20000")
        A(f"s_mul_i32 {sD}, {sA}, 61440")
        A(f"s_add_u32 s{sW2}, s18, {sD}"); A(f"s_addc_u32 s{sW2+1}, s19, 0")
        A(f"s_mov_b32 s{sW2+2}, 61440"); A(f"s_mov_b32 s{sW2+3}, 0x20000")
        A(f"s_mov_b32 s{sDBG}, s22"); A(f"s_mov_b32 s{sDBG+1}, s23"); A(f"s_mov_b32 s{sDBG+2}, 256"); A(f"s_mov_b32 s{sDBG+3}, 0x20000")
        A(f"s_mov_b32 s{sWS}, s24"); A(f"s_mov_b32 s{sWS+1}, s25"); A(f"s_mov_b32 s{sWS+2}, 0x1000000"); A(f"s_mov_b32 s{sWS+3}, 0x20000")
        if o["prof"]:
            A("s_mov_b32 s4, s100"); nstamp[0] = 1
            if o["st0"]:
                A("s_waitcnt lgkmcnt(0)"); A("s_mov_b32 s6, s72"); A("s_memrealtime s[8:9]"); nstamp[0] = 3
        for n in range(1, 16): unit_off(n)
        A(f"s_lshl_b32 {sA}, {sW}, 2"); A(f"s_add_u32 {sA}, {sA}, 512"); A(f"s_mul_i32 {sQB1}, {sA}, 12288")
        A(f"s_mul_i32 {sF0}, {sW}, {128*3072}")
        A(f"s_and_b32 {sA}, {sW}, 1"); A(f"s_lshl_b32 {sA}, {sA}, 5"); A(f"s_lshr_b32 {sC}, {sW}, 1"); A(f"s_add_u32 {sA}, {sA}, {sC}")
        A(f"s_add_u32 {sA}, {sA}, 512"); A(f"s_mul_i32 {sF1}, {sA}, 3072")
        A(f"s_sub_u32 {sA}, 8, {sW}"); A(f"s_lshl_b32 {sA}, {sA}, 7"); A(f"s_cmp_lt_u32 {sW}, 2"); A(f"s_cselect_b32 {sZ}, {sA}, 0x100000")
        A("s_mov_b32 s92, 0x01010101"); A("s_mov_b32 s93, 0x01010101")
        A(f"s_lshr_b32 {sSG}, s2, 3"); A(f"s_cmp_eq_u32 {sW}, 0"); A(f"s_cselect_b32 {sSG}, {sSG}, 64")
        if o["offs"]: A(f"v_mul_u32_u24 {t3}, 12, {t0}")
        else: A(f"v_mul_u32_u24 {t3}, 384, {vR8}")
        A(f"v_lshl_add_u32 {vV}, {vC}, 4, {t3}")
        A(f"v_lshrrev_b32 {t3}, 4, {vL}"); A(f"s_mul_i32 {sA}, {sW}, {16 if o['tsplit'] else 48}"); A(f"v_add_u32 {t3}, {sA}, {t3}")
        A(f"v_mul_u32_u24 {t3}, 1280, {t3}"); A(f"v_and_b32 {vWO}, 15, {vL}"); A(f"v_lshl_add_u32 {vWO}, {vWO}, 4, {t3}")
        A(f"v_lshrrev_b32 {t3}, 3, {t0}")
        A(f"v_lshl_add_u32 {t3}, {t1}, 1, {t3}")
        A(f"v_lshl_add_u32 {vW1}, {t2}, 3, {t3}")
        A(f"v_mul_u32_u24 {vW1}, 3072, {vW1}")
        A(f"v_min_u32 {vW2}, 5, {vC}")
        A(f"v_lshl_add_u32 {vW1}, {vW2}, 4, {vW1}")
        A(f"v_add_u32 {t3}, {t3}, {t2}")
        A(f"v_mul_u32_u24 {t3}, 1280, {t3}")
        A(f"v_lshl_add_u32 {t3}, {vC}, 4, {t3}")
        A(f"s_lshl_b32 {sA}, {sW}, 8")
        A(f"v_add_u32 {vW2}, {sA}, {t3}")
        A(f"v_cmp_gt_u32 vcc, 4, {vC}")
        A(f"v_mov_b32 {t3}, 0xffff")
        A(f"v_and_b32 {vIDX}, 3, {vC}")
        A(f"v_cndmask_b32 {v(MK[0])}, 0, {t3}, vcc")
        A(f"v_mul_u32_u24 {vIDX}, 0x5555, {vIDX}")
        A(f"v_xor_b32 {v(MK[1])}, {t3}, {v(MK[0])}")
        A(f"v_lshlrev_b32 {v(MK[2])}, 16, {v(MK[0])}")
        A(f"v_lshlrev_b32 {v(MK[3])}, 16, {v(MK[1])}")
        A(f"v_lshrrev_b32 {t3}, 5, {vL}")
        A(f"v_lshl_add_u32 {t3}, {t1}, 1, {t3}")
        A(f"v_lshl_add_u32 {t3}, {t2}, 2, {t3}")
        A(f"v_lshl_add_u32 {t3}, {vC}, 3, {t3}")
        A(f"s_lshl_b32 {sA}, {sW}, 2")
        A(f"v_lshl_add_u32 {vREDW}, {t3}, 4, {sA}")
        A(f"s_mul_i32 {sA}, s2, {PS}"); A(f"s_mul_i32 {sC}, {sW}, 640"); A(f"s_add_u32 {sC}, {sA}, {sC}")
        A(f"v_lshl_add_u32 {vP1ST}, {vL}, 4, {sC}")
        if o["p32"]:
            A(f"s_mul_i32 {sC}, {sW}, 384"); A(f"s_add_u32 {sC}, {sA}, {sC}"); A(f"s_add_u32 {sC}, {sC}, {2560 - 640}")
            A(f"v_lshl_add_u32 {vHST}, {vL}, 4, {sC}")
        A(f"v_mov_b32 {t3}, {OOB}")
        A(f"v_cmp_gt_u32 vcc, 40, {vL}")
        A(f"s_mul_i32 {sA}, {sB}, 2560"); A(f"s_lshl_b32 {sC}, {sH}, 7"); A(f"s_add_u32 {sA}, {sA}, {sC}"); A(f"s_add_u32 {sA}, {sA}, {HB}")
        A(f"v_cndmask_b32 {vP1ST}, {vHST if o['p32'] else t3}, {vP1ST}, vcc")
        if o["hbar"]:
            A(f"s_lshl_b32 {sC}, s2, 7"); A(f"s_add_u32 {sC}, {sC}, {HB + 0x80000}")
            A(f"s_cmp_lt_u32 {sH}, 20"); A(f"s_cselect_b32 {sA}, {sA}, {sC}")
            A(f"s_cmp_eq_u32 {sW}, 0"); A(f"s_cselect_b32 {sC}, 32, 0")
        else:
            A(f"s_cmp_lt_u32 {sH}, 20"); A(f"s_cselect_b32 {sC}, 32, 0"); A(f"s_cmp_eq_u32 {sW}, 0"); A(f"s_cselect_b32 {sC}, {sC}, 0")
        if o["hcopy"]:
            A(f"v_and_b32 {vHST}, 31, {vL}"); A(f"v_lshl_add_u32 {vHST}, {vHST}, 2, {sA}")
            A(f"v_lshl_add_u32 {vHST}, {t0}, 10, {vHST}"); A(f"s_lshl_b32 {sC}, {sC}, 1")
        else:
            A(f"v_lshl_add_u32 {vHST}, {vL}, 2, {sA}")
        A(f"v_cmp_gt_u32 vcc, {sC}, {vL}")
        if not o["tag"]:
            for k in range(4): A(f"v_mov_b32 {v(AF[1]+k)}, -1")
        A(f"v_cndmask_b32 {vHST}, {t3}, {vHST}, vcc")
        if o["tag"]:
            A(f"s_or_b32 {sA}, s2, {sW}"); A("s_cbranch_scc1 L_nononce")
            A(f"s_memrealtime s[{sPC}:{sPC+1}]"); A("s_waitcnt lgkmcnt(0)")
            A(f"s_mul_i32 {sA}, s{sPC}, 0x9e3779b1"); A(f"s_max_u32 {sA}, {sA}, 1")
            A("s_mov_b64 exec, 1")
            A(f"v_mov_b32 {t3}, {sA}")
            A(f"buffer_store_dword {t3}, off, {srd(sDBG)}, 0 sc1")
            A("s_mov_b64 exec, -1")
            A.label("L_nononce")

    DPPF = "row_mask:0xf bank_mask:0xf"
    def wave_reduce(op, reg, sdst, fill=()):
        fill = list(fill)
        steps = [f"quad_perm:[1,0,3,2] {DPPF}", f"quad_perm:[2,3,0,1] {DPPF}", f"row_half_mirror {DPPF}", f"row_mirror {DPPF}",
                 "row_bcast:15 row_mask:0xa bank_mask:0xf", "row_bcast:31 row_mask:0xc bank_mask:0xf"]
        for st in steps:
            for _ in range(2):
                if fill: A(fill.pop(0))
            A(f"{op}_dpp {reg}, {reg}, {reg} {st}")
        if fill: A(fill.pop(0))
        A(f"v_readlane_b32 {sdst}, {reg}, 63")
        for f in fill: A(f)
    def round_bf16(reg):
        A(f"v_cvt_pk_bf16_f32 {reg}, {reg}, {reg}")
        A(f"v_lshlrev_b32 {reg}, 16, {reg}")
    def layernorm(F, Wk, tp, out):
        p = lambda r: vr(r, 2)
        A(f"v_pk_add_f32 {p(tp)}, {p(F[0])}, {p(F[1])}")
        A(f"v_pk_add_f32 {p(tp+2)}, {p(F[2])}, {p(F[3])}")
        A(f"v_pk_add_f32 {p(tp)}, {p(tp)}, {p(F[4])}")
        A(f"v_pk_add_f32 {p(tp)}, {p(tp)}, {p(tp+2)}")
        A(f"v_add_f32 {v(tp)}, {v(tp)}, {v(tp+1)}")
        wave_reduce("v_add_f32", v(tp), sA, fill=[f"v_mov_b32 {v(tp+2)}, {hex(fbits(-1.0/640))}"])
        A(f"v_mul_f32 {v(tp)}, {sA}, {v(tp+2)}")
        A(f"v_mul_f32 {v(tp+1)}, {sA}, {v(tp+2)}")
        A(f"v_pk_add_f32 {p(tp+2)}, {p(F[0])}, {p(tp)}")
        A(f"v_pk_add_f32 {p(Wk[1])}, {p(F[1])}, {p(tp)}")
        A(f"v_pk_mul_f32 {p(tp+2)}, {p(tp+2)}, {p(tp+2)}")
        A(f"v_pk_add_f32 {p(Wk[2])}, {p(F[2])}, {p(tp)}")
        A(f"v_pk_fma_f32 {p(tp+2)}, {p(Wk[1])}, {p(Wk[1])}, {p(tp+2)}")
        A(f"v_pk_add_f32 {p(Wk[3])}, {p(F[3])}, {p(tp)}")
        A(f"v_pk_fma_f32 {p(tp+2)}, {p(Wk[2])}, {p(Wk[2])}, {p(tp+2)}")
        A(f"v_pk_add_f32 {p(Wk[1])}, {p(F[4])}, {p(tp)}")
        A(f"v_pk_fma_f32 {p(tp+2)}, {p(Wk[3])}, {p(Wk[3])}, {p(tp+2)}")
        A(f"v_pk_fma_f32 {p(tp+2)}, {p(Wk[1])}, {p(Wk[1])}, {p(tp+2)}")
        A(f"v_add_f32 {v(tp+2)}, {v(tp+2)}, {v(tp+3)}")
        a, b, c = Wk[0], Wk[4], Wk[1]
        fill = [f"v_cvt_pk_bf16_f32 {v(tp)}, {v(tp)}, {v(tp)}",
                f"v_lshlrev_b32 {v(tp+1)}, 16, {v(tp)}",
                f"v_lshlrev_b32 {v(tp)}, 16, {v(tp)}",
                f"v_pk_add_f32 {p(a)}, {p(F[0])}, {p(tp)}",
                f"v_pk_add_f32 {p(b)}, {p(F[4])}, {p(tp)}",
                f"v_cvt_pk_bf16_f32 {v(c)}, {v(a)}, {v(a+1)}",
                f"v_cvt_pk_bf16_f32 {v(c+1)}, {v(b)}, {v(b+1)}",
                f"v_lshlrev_b32 {v(a)}, 16, {v(c)}",
                f"v_and_b32 {v(a+1)}, 0xffff0000, {v(c)}",
                f"v_lshlrev_b32 {v(b)}, 16, {v(c+1)}",
                f"v_and_b32 {v(b+1)}, 0xffff0000, {v(c+1)}",
                f"v_mov_b32 {v(tp+4)}, {hex(fbits(1.0/640))}"]
        wave_reduce("v_add_f32", v(tp+2), sA, fill=fill)
        A(f"v_mul_f32 {v(tp)}, {sA}, {v(tp+4)}")
        round_bf16(v(tp))
        A(f"v_add_f32 {v(tp)}, {hex(fbits(1e-5))}, {v(tp)}")
        round_bf16(v(tp))
        A(f"v_sqrt_f32 {v(tp)}, {v(tp)}")
        round_bf16(v(tp))
        A(f"v_rcp_f32 {v(tp)}, {v(tp)}")
        A(f"v_mul_f32 {v(a)}, {v(a)}, {v(tp)}")
        A(f"v_mul_f32 {v(a+1)}, {v(a+1)}, {v(tp)}")
        A(f"v_cvt_pk_bf16_f32 {v(out)}, {v(a)}, {v(a+1)}")
        A(f"v_mul_f32 {v(b)}, {v(b)}, {v(tp)}")
        A(f"v_mul_f32 {v(b+1)}, {v(b+1)}, {v(tp)}")
        A(f"v_mov_b32_dpp {v(out+1)}, {v(out)} row_half_mirror {DPPF}")
        A(f"v_cvt_pk_bf16_f32 {v(out+2)}, {v(b)}, {v(b+1)}")
        A(f"v_mov_b32_dpp {v(out+3)}, {v(out+2)} row_half_mirror {DPPF}")
    def afrag_oct(dst, P, c0):
        lo, hi = ((P, c0), (P + 1, 3 - c0)) if c0 < 4 else ((P + 1, 7 - c0), (P, c0 - 4))
        out = []
        for k in range(4):
            src, x = lo if k % 2 == 0 else hi
            out.append(f"v_and_b32_dpp {v(dst+k)}, {v(src)}, {v(MK[k])} quad_perm:[{x},{x},{x},{x}] {DPPF}")
        return out
    def smf(d, a, slot):
        A(f"v_smfmac_f32_16x16x64_bf16 {vr(d,4)}, {vr(a,4)}, {slot[0]}[{slot[1]}:{slot[1]+7}], {vIDX}")
    def compact(blocks):
        for d in blocks:
            A(f"v_permlane32_swap_b32 {v(d)}, {v(d+1)}")
            A(f"v_permlane32_swap_b32 {v(d+2)}, {v(d+3)}")
        for d in blocks:
            A(f"v_add_f32_dpp {v(d)}, {v(d+1)}, {v(d)} row_ror:8 row_mask:0xf bank_mask:0x3")
        for d in blocks:
            A(f"v_add_f32_dpp {v(d)}, {v(d+2)}, {v(d+3)} row_ror:8 row_mask:0xf bank_mask:0xc")

    def signal(lbl, k=None):
        if k is None: A(f"s_cmp_lg_u32 {sW}, 0")
        else: A(f"s_cmp_lg_u32 {sSG}, {k}")
        A(f"s_cbranch_scc1 {lbl}")
        if k is None: signal_body()
        else: A(f"s_call_b64 {sRA}, L_signal")
        A.label(lbl)
    def signal_body():
        A(f"s_lshl_b32 {sT2}, {sB}, 5")
        A("s_mov_b64 exec, 1")
        A(f"v_mov_b32 {vWQ}, 1")
        if not o["nosig"]: A(f"buffer_atomic_add {vWQ}, off, {srd(sDBG)}, {sT2} sc1")
        A("s_mov_b64 exec, -1")

    freeA = [("a", 8 * i) for i in range(32)]
    freeV = [("v", 64 + 8 * i) for i in range(24)]
    halfV = []
    slots = {}
    def can_alloc(kind):
        if kind == "pair": return bool(freeA or freeV)
        if kind == "half": return bool(halfV or freeV)
        return True
    def alloc(kind, key, preferV=False):
        if kind == "pair":
            s = (freeV if (preferV and freeV) or not freeA else freeA).pop(0)
        else:
            if not halfV:
                s = freeV.pop(0); halfV.extend([s, (s[0], s[1] + 4)])
            s = halfV.pop(0)
        slots[key] = s
        return s
    def release(kind, key):
        s = slots.pop(key)
        if kind == "pair":
            (freeA if s[0] == "a" else freeV).append(s)
        else:
            mate = (s[0], s[1] ^ 4)
            if mate in halfV:
                halfV.remove(mate); freeV.append((s[0], s[1] & ~7))
            else: halfV.append(s)

    def tile_load(reg, vaddr, sr, soff, imm, pol):
        A(f"buffer_load_dwordx4 {reg[0]}[{reg[1]}:{reg[1]+3}], {vaddr}, {srd(sr)}, {soff} offen offset:{imm} {pol}".rstrip())
    def mk_pair(key, Tt, vaddr, sr, soff_fn, imm, pol, preferV=False):
        def emit():
            s = alloc("pair", key, preferV) if key not in slots else slots[key]
            tile_load((s[0], s[1] + 4 * Tt), vaddr, sr, soff_fn(), imm, pol)
        return dict(tag=key + (Tt,), need="pair" if Tt == 0 else None, emit=emit)
    last_soff = [None]
    def soff_add(base, const):
        def f():
            if last_soff[0] != (base, const):
                if base is None: A(f"s_mov_b32 {sT}, {const}")
                else: A(f"s_add_u32 {sT}, {base}, {const}")
                last_soff[0] = (base, const)
            return sT
        return f
    Lx = []
    for s_ in range(4):
        def emit(s_=s_):
            A(f"s_add_u32 {sT}, {sW}, {s_}"); A(f"s_and_b32 {sT}, {sT}, 3"); A(f"s_lshl_b32 {sT}, {sT}, 8")
            A(f"buffer_load_dword {v(T+s_)}, {v(T+5)}, {srd(sX)}, {sT} offen")
        Lx.append(dict(tag=("x", s_), need=None, emit=emit))
    Lx.append(dict(tag=("x", 4), need=None, emit=lambda: A(f"buffer_load_dword {v(T+4)}, {v(T+6)}, {srd(sX)}, 0 offen offset:1024")))
    Lwq = []
    for u in range(10):
        for t in range(3):
            for Tt in range(2):
                base, rows = (sQB0, 64 * Tt + 2 * u) if u < 8 else (sQB1, 64 * Tt + 2 * (u - 8))
                Lwq.append(mk_pair(("wq", u, t), Tt, vWQ, sWQ, soff_add(base, rows * 12288), 128 * t, o["polW"]))
    def next_addr(n, hB):
        j = 2 * n + hB + 1
        if j < 32: k_addr(j >> 1, j & 1)
        else: v_addr(0); v_addr(1)
    LK = []
    for n in range(16):
        for hB in range(2):
            for t in range(3):
                def emit(n=n, hB=hB, t=t):
                    s = alloc("half", ("k", n, hB, t))
                    if offs: tile_load(s, vK, sK, sSO[0], t * 128, o["polKV"])
                    else: tile_load(s, vK, sK, f"s{sU+n}", hB * 768 + t * 128, o["polKV"])
                    if offs and t == 2: next_addr(n, hB)
                def emitL(n=n, hB=hB, t=t):
                    imm = t * 128 if offs else hB * 768 + t * 128
                    A(f"s_add_u32 m0, {sKL}, {((2 * n + hB) * 3 + t) * 1024 - imm}")
                    A("s_nop 0")
                    A(f"buffer_load_dwordx4 {vK}, {srd(sK)}, {sSO[0] if offs else 's%d' % (sU+n)} offen offset:{imm} {o['polKV']} lds")
                    if offs and t == 2: next_addr(n, hB)
                if 2 * n + hB < o["nL"]: LK.append(dict(tag=("k", n, hB, t), need=None, emit=emitL))
                else: LK.append(dict(tag=("k", n, hB, t), need="half", emit=emit))
    LV = []
    for n in range(16):
        for t in range(3):
            for Tt in range(2):
                if offs:
                    it = mk_pair(("v", n, t), Tt, (vV, vK)[n & 1], sV, (lambda n=n: sSO[n & 1]), Tt * 768 + t * 128, o["polKV"], preferV=True)
                    if t == 2 and Tt == 1 and n + 2 < 16:
                        it["emit"] = (lambda e=it["emit"], n=n: (e(), v_addr(n + 2)))
                    LV.append(it)
                else:
                    LV.append(mk_pair(("v", n, t), Tt, vV, sV, (lambda n=n: f"s{sU+n}"), Tt * 3072 + t * 128, o["polKV"], preferV=True))
    if o["vorder"] == "T":
        nT = 14 if o["tsplit"] else 16
        LV = [it for n in range(nT) for Tt in range(2) for it in LV[6*n:6*n+6] if it["tag"][3] == Tt] + LV[6*nT:]
    if o["tsplit"]:
        LV = LV[:84] + [it for t in range(3) for n in (14, 15) for it in LV[84:] if it["tag"][1:3] == (n, t)]
    Lwo = []
    for u in range(6):
        for blk in range(5):
            for Tt in range(2):
                row0 = (64 * (u >> 1) + 8 * (u & 1) if o["tsplit"] else 8 * u) + 4 * Tt
                Lwo.append(mk_pair(("wo", u, blk), Tt, vWO, sWO, soff_add(None, row0 * 1280), blk * 256, o["polW"]))
    Lw1 = []
    for u in range(10):
        for Tt in range(2):
            base, rows = (sF0, 64 * Tt + 16 * (u & 3) + (u >> 2)) if u < 8 else (sF1, 64 * Tt + 16 * (u - 8))
            Lw1.append(mk_pair(("w1", u), Tt, vW1, sW1, soff_add(base, rows * 3072), 0, o["polW"]))
    Lw2 = []
    for u in range(3):
        for blk in range(3):
            for Tt in range(2):
                rows = 16 * u + 8 * Tt
                if blk < 2: Lw2.append(mk_pair(("w2", u, blk), Tt, vW2, sW2, soff_add(None, rows * 1280), blk * 128, o["polW"]))
                else: Lw2.append(mk_pair(("w2", u, blk), Tt, vW2, sW2, soff_add(sZ, rows * 1280), 0, o["polW"]))
    def misc(tag, fn): return dict(tag=tag, need=None, emit=fn)
    def mix(*lists):
        lists = [l for l in lists if l]
        items = []
        for li, l in enumerate(lists):
            for i, it in enumerate(l): items.append(((i + 0.5) / len(l), li, it))
        items.sort(key=lambda z: (z[0], z[1]))
        return [z[2] for z in items]
    def clr1():
        if o["noclr"]: A(f"buffer_load_dword {v(AF[1])}, off, {srd(sX)}, 0"); return
        A(f"buffer_store_dwordx4 {vr(AF[1],4)}, {vP1ST}, {srd(sWS)}, 0 offen {o['polC']}")
    def clr2():
        if o["noclr"]: A(f"buffer_load_dword {v(AF[1])}, off, {srd(sX)}, 0"); return
        A(f"s_mov_b32 {sT}, {P2}"); last_soff[0] = None
        A(f"buffer_store_dwordx4 {vr(AF[1],4)}, {vP1ST}, {srd(sWS)}, {sT} offen {o['polC']}")
    def clr3():
        if o["noclr"]: A(f"buffer_load_dword {v(AF[1])}, off, {srd(sX)}, 0"); return
        A(f"buffer_store_dword {v(AF[1])}, {vHST}, {srd(sWS)}, 0 offen {o['polC']}")
    def code_pf(label, reg, areg):
        def f():
            A(f"s_getpc_b64 s[{sPC}:{sPC+1}]")
            here = f"L_pc_{label}"
            A.label(here)
            A(f"s_add_u32 s{sPC}, s{sPC}, {label}-{here}"); A(f"s_addc_u32 s{sPC+1}, s{sPC+1}, 0")
            A(f"v_lshlrev_b32 {areg}, 7, {vL}")
            A(f"v_min_u32 {areg}, L_last-{label}, {areg}")
            A(f"global_load_dword {reg}, {areg}, s[{sPC}:{sPC+1}]")
        return f
    def cntload():
        if o["tag"]:
            A(f"buffer_load_dword {tCNT}, off, {srd(sDBG)}, 0 sc1"); return
        A(f"s_lshl_b32 {sT}, {sB}, 5"); last_soff[0] = None
        A(f"buffer_load_dword {tCNT}, off, {srd(sX if o['nosig'] else sDBG)}, {sT} sc1")
    extra = [misc(("xr",), lambda: A(f"buffer_load_ushort {tXR}, {tXR}, {srd(sX)}, 0 offen"))]
    if o["codepf"]: extra.append(misc(("pf",), code_pf("L_tail", tPF, tPF)))
    clrs = [misc(("clr", 0), clr1), misc(("clr", 1), clr2), misc(("clr", 2), clr3)]
    if o["tag"]: clrs = []
    qbar_done = [False]
    def warm_lines(msk=None):
        n_ = 0
        wm = o["warm"] & ~o["warm2"] if msk is None else msk
        o_ = dict(o); o_["warm"] = wm
        return warm_lines_(o_)
    def warm_lines_(o):
        n_ = 0
        if o["warm"] & 1:
            A(f"buffer_load_dword {v(T+12)}, {vP1ST}, {srd(sWS)}, 0 offen {o['polWm']}"); n_ += 1
        if o["warm"] & 2:
            for k in range(4 if o["hcopy"] else 1):
                A(f"s_mov_b32 {sT2}, {k * 0x10000}")
                A(f"buffer_load_dword {v(T+12)}, {vHST}, {srd(sWS)}, {sT2} offen {o['polWm']}"); n_ += 1
        if o["warm"] & 4:
            A(f"buffer_load_dword {v(T+12)}, {tP2ST}, {srd(sWS)}, 0 offen {o['polWm']}"); n_ += 1
        return n_
    hooks = {}
    subs = []
    if not o["burst"]:
        phA = mix(Lwq, LK[:o["nKA"]])
        phB = mix(LK[o["nKA"]:], Lwo[:o["nWOB"]])
        rest = Lwo[o["nWOB"]:] + Lw1 + Lw2
        nlast = o["wlast"]
        phC = mix(LV, rest[:len(rest) - nlast]) + rest[len(rest) - nlast:]
        nfirst = o["WA"] - len(Lx)
        phA = phA[:nfirst] + clrs + phA[nfirst:]
        k = len(phC) * 2 // 3
        phC = phC[:k] + extra + phC[k:]
        k = len(phC) - nlast - o["WC"]
        phC = phC[:k] + [misc(("cnt",), cntload)] + phC[k:]
        seq = Lx + phA + phB + phC
        Wn = [o["WA"]] * (len(Lx) + len(phA)) + [o["WB"]] * len(phB) + [o["WC"]] * len(phC)
    else:
        NG = 4 if o["grp"] == "h" else 8
        KV = LK + LV
        pol = o["polT"]
        vDUM = v(T + 12)
        vTA = v(T + 11)
        def touch(areg, sr, soff, dst=vDUM, lanes=None):
            if lanes is not None:
                m = ((1 << lanes[1]) - 1) ^ ((1 << lanes[0]) - 1)
                A(f"s_mov_b32 exec_lo, {hex(m & 0xffffffff)}"); A(f"s_mov_b32 exec_hi, {hex(m >> 32)}")
                touch(areg, sr, soff, dst); A("s_mov_b64 exec, -1")
                return
            A(f"buffer_load_dword {dst}, {areg}, {srd(sr)}, {soff} offen {pol}")
            if o["touch64"]: A(f"buffer_load_dword {dst}, {areg}, {srd(sr)}, {soff} offen offset:64 {pol}")
            if o["polT2"] is not None: A(f"buffer_load_dword {dst}, {areg}, {srd(sr)}, {soff} offen {o['polT2']}")
        ncond = [0]
        def cond(sreg, k, fn):
            def f():
                lbl = f"L_skip{ncond[0]}"; ncond[0] += 1
                A(f"s_cmp_lg_u32 {sreg}, {k}"); A(f"s_cbranch_scc1 {lbl}")
                fn(); A.label(lbl); last_soff[0] = None
            return f
        def reserve(lst):
            def f():
                if lst[0]["tag"][0] == "wo": assert len(freeA) >= 30, "wo reserved before the q projection finished"
                for it in lst:
                    if it["need"]:
                        while not can_alloc("pair"): force_now()
                        freeV.sort(key=lambda z: -z[1])
                        alloc("pair", it["tag"][:-1])
                if not (lst[0]["tag"][0] == "w1" and o["w12late"]): subs.append((lst[0]["tag"][0], lst, dict(slots)))
            return f
        def piece(nl, p_, np_): return (nl * p_ // np_, nl * (p_ + 1) // np_)
        def touch_wo(p_=0, np_=1):
            a = vTA
            A(f"s_lshl_b32 {sT2}, {sB}, 2"); A(f"s_add_u32 {sT2}, {sT2}, {sW}"); A(f"s_mul_i32 {sT2}, {sT2}, {60*128}")
            A(f"v_lshlrev_b32 {a}, 7, {vL}"); touch(a, sWO, sT2, lanes=piece(60, p_, np_))
        def touch_w12(p_=0, np_=1):
            a = vTA
            A(f"s_lshl_b32 {sT2}, {sB}, 2"); A(f"s_add_u32 {sT2}, {sT2}, {sW}"); A(f"s_mul_i32 {sT}, {sT2}, {15*128}")
            A(f"s_mul_i32 {sT2}, {sT2}, {20*3072}")
            A(f"v_and_b32 {a}, 1, {vL}"); A(f"v_mul_u32_u24 {a}, {1536 - 92}, {a}")
            A(f"v_mul_u32_u24 {vWQ}, 1536, {vL}"); A(f"v_sub_u32 {a}, {vWQ}, {a}")
            touch(a, sW1, sT2, lanes=piece(40, p_, np_))
            A(f"v_lshlrev_b32 {a}, 7, {vL}"); touch(a, sW2, sT, lanes=piece(15, p_, np_))
            last_soff[0] = None
        tb_ = o["b0"] - o["tlead"] if o["tB"] is None else o["tB"]
        tc_ = o["c0"] - o["tlead"] if o["tC"] is None else o["tC"]
        assert o["grp"] == "b" and tb_ >= 6 and tc_ > tb_ + o["W"]
        def hook(i, fn): hooks.setdefault(KV[i]["tag"], []).append(fn)
        for base, step, lst, tfn in ((o["a0"], o["da"], Lwq, None), (o["b0"], o["db"], Lwo, touch_wo), (o["c0"], o["dc"], Lw1 + Lw2, touch_w12)):
            nm = lst[0]["tag"][0]
            hook(base, reserve(lst))
            for k in range(NG):
                if tfn and o["touch"] and (o["grp"] == "h" or (o["grp"] == "hb" and k % 2 == 0) or k == 0):
                    tp = o["tB"] if nm == "wo" else o["tC"]
                    tp = base - o["tlead"] if tp is None else tp
                    for p_ in range(o["tws"]):
                        hook(tp - (o["tws"] - 1 - p_) * o["dtw"], lambda p_=p_, tfn=tfn: tfn(p_, o["tws"]))
                if not (nm == "w1" and o["w12late"]):
                    hook(base + k * step, cond(sG, k, lambda nm=nm: A(f"s_call_b64 {sRA}, L_burst_{nm}")))
        if o["dsig"]:
            for k in range(32):
                def f(k=k):
                    assert qbar_done[0]
                    signal(f"L_sig{k}", k)
                hook(o["sig0"] + k * o["dsig"], f)
        if o["warmpos"] < 192: hook(o["warmpos"], warm_lines)
        lastA = KV[o["a0"] + (NG - 1) * o["da"]]["tag"]
        lastB = KV[o["b0"] + (NG - 1) * o["db"]]["tag"]
        lastC = KV[o["c0"] + (NG - 1) * o["dc"]]["tag"]
        t0l = [misc(("tq",), lambda: touch(vT2, sWQ, sQT, vT1, lanes=(0, 60)))] if o["touch"] else []
        if o["tqs"] and o["touch"]:
            t0l = []
            for p_, at in enumerate(o["tqs"]):
                hook(at, lambda p_=p_: touch(vT2, sWQ, sQT, vT1, lanes=piece(60, p_, len(o["tqs"]))))
            assert max(o["tqs"]) < o["a0"]
        k1 = 150; k2 = 151 if o["tag"] else 192 - o["W"]
        head = (KV[:3] + t0l + Lx + KV[3:6]) if o["kfirst"] else (Lx + t0l + KV[:6])
        seq = head + clrs + KV[6:k1] + extra + KV[k1:k2] + [misc(("cnt",), cntload)] + KV[k2:]
        nhead = len(Lx) + len(t0l) + 6 + len(clrs)
        Wn = [nhead + 2] * (nhead + 2) + [o["W"]] * (len(seq) - nhead - 2)
        if o["Ws"]:
            kvpos = {it["tag"]: i for i, it in enumerate(KV)}
            cw, acc = o["W"], 0.0
            for i, it in enumerate(seq):
                for p_, w_ in o["Ws"]:
                    if kvpos.get(it["tag"]) == p_: cw = w_
                if i >= nhead + 2:
                    acc += cw - int(cw)
                    Wn[i] = int(cw) + (1 if acc >= 0.999 else 0)
                    if acc >= 0.999: acc -= 1
    pos = {it["tag"]: i for i, it in enumerate(seq)}

    acts = []
    def act(needs, fn, before=None): acts.append(dict(needs=[pos[t] for t in needs], fn=fn))
    def a_lnx():
        A.comment("LayerNorm(x)")
        if o["st0"]: stamp()
        F = D
        for s_ in range(5):
            A(f"v_lshlrev_b32 {v(F+2*s_)}, 16, {v(T+s_)}")
            A(f"v_and_b32 {v(F+2*s_+1)}, 0xffff0000, {v(T+s_)}")
        layernorm([F + 2 * k for k in range(5)], [F + 2 * k for k in range(5)], T, S)
        for k in range(12): A(f"v_mov_b32 {v(D+k)}, 0")
    act([("x", s_) for s_ in range(5)], a_lnx)
    setup_tag = ("k", 1, 0, 0) if o["tag"] else ("clr", 0)
    assert pos[("k", 1, 0, 0)] >= pos[setup_tag]
    if o["burst"]:
        for it in Lwq: pos[it["tag"]] = pos[lastA]
        for it in Lwo: pos[it["tag"]] = pos[lastB]
        assert o["a0"] >= 6
    else:
        assert pos[("wq", 8, 0, 0)] > pos[("clr", 0)]
        assert pos[("x", 4)] + o["WA"] > pos[("clr", 2)]
    for u in range(10):
        for t in range(3):
            def f(u=u, t=t):
                if t == 0:
                    for ins in afrag_oct(AF[u & 1], S + 2 * (u >> 3), u & 7): A(ins)
                smf(D + 4 * t, AF[u & 1], slots[("wq", u, t)]); release("pair", ("wq", u, t))
            act([("wq", u, t, 1)], f); acts[-1]["cost"] = 0.2 if o["burst"] else 1
    def a_qred1():
        A.comment("q: cross-wave reduction")
        compact([D, D + 4, D + 8])
        for t in range(3): A(f"ds_write_b32 {vREDW}, {v(D+4*t)} offset:{RED + 1024*t}")
        A(f"v_lshlrev_b32 {v(T)}, 4, {vL}")
        A(f"s_mul_i32 {sA}, {sW}, 384")
        A(f"v_lshl_add_u32 {v(T+1)}, {vL}, 1, {sA}")
        A(f"v_and_b32 {v(T+2)}, 7, {vL}")
        A(f"v_lshl_add_u32 {v(T+2)}, {v(T+2)}, 4, {sA}")
        A("s_waitcnt lgkmcnt(0)")
        A("s_barrier")
        for t in range(3): A(f"ds_read_b128 {vr(D+4*t,4)}, {v(T)} offset:{RED + 1024*t}")
        if o["burst"] and o["dsig"] == 0 and not o["tag"]: signal("L_nosig")
        qbar_done[0] = True
    act([] if o["tag"] else [("clr", 2)], a_qred1)
    def a_qred2():
        A("s_waitcnt lgkmcnt(0)")
        for t in range(3):
            d = D + 4 * t
            A(f"v_pk_add_f32 {vr(d,2)}, {vr(d,2)}, {vr(d+2,2)}")
        for t in range(3):
            d = D + 4 * t
            A(f"v_add_f32 {v(d)}, {v(d)}, {v(d+1)}")
        for t in range(3):
            d = D + 4 * t
            A(f"v_cvt_pk_bf16_f32 {v(d)}, {v(d)}, {v(d)}")
        for t in range(3): A(f"ds_write_b16 {v(T+1)}, {v(D+4*t)} offset:{QB + 128*t}")
        A("s_waitcnt lgkmcnt(0)")
        for t in range(3): A(f"ds_read_b128 {vr(Q+4*t,4)}, {v(T+2)} offset:{QB + 128*t}")
        for k in range(12): A(f"v_mov_b32 {v(D+k)}, 0")
        A("s_waitcnt lgkmcnt(0)")
        if not o["st0"]: stamp()
    act([], a_qred2)
    nLu = o["nL"] // 2
    order = list(range(nLu, nLu + o["rL"])) + list(range(nLu)) + list(range(nLu + o["rL"], 16)) if nLu else list(range(16))
    vKL = v(T + 3)
    def lds_reads(n, hB):
        for t in range(3):
            while not can_alloc("half"): raise AssertionError("no register for LDS K tile")
            s = alloc("half", ("k", n, hB, t))
            A(f"ds_read_b128 v[{s[1]}:{s[1]+3}], {vKL} offset:{((2 * n + hB) * 3 + t) * 1024}")
    halves = [(n, hB) for n in order for hB in range(2)]
    for i, (n, hB) in enumerate(halves):
        def f(i=i, n=n, hB=hB):
            if i == 0 and nLu: A(f"v_lshl_add_u32 {vKL}, {vL}, 4, {sKL}")
            if n < nLu: A("s_waitcnt lgkmcnt(0)")
            if i + 1 < 32 and halves[i + 1][0] < nLu: lds_reads(*halves[i + 1])
            acc = v(T + hB)
            first = True
            for t in range(3):
                s = slots[("k", n, hB, t)]
                for k in range(4):
                    if first: A(f"v_dot2_f32_bf16 {acc}, v{s[1]+k}, {v(Q+4*t+k)}, 0"); first = False
                    else: A(f"v_dot2_f32_bf16 {acc}, v{s[1]+k}, {v(Q+4*t+k)}, {acc}")
                release("half", ("k", n, hB, t))
            if hB == 1:
                A(f"s_lshl_b64 vcc, {sLM}, {n & 7}")
                for st in (f"quad_perm:[1,0,3,2] {DPPF}", f"quad_perm:[2,3,0,1] {DPPF}", f"row_half_mirror {DPPF}"):
                    for hh in range(2): A(f"v_add_f32_dpp {v(T+hh)}, {v(T+hh)}, {v(T+hh)} {st}")
                for hh in range(2):
                    d = v(S + 2 * (n >> 3) + hh)
                    A(f"v_cndmask_b32 {d}, {d}, {v(T+hh)}, vcc")
        act([("k", n, hB, 2)], f); acts[-1]["cost"] = o["qkcost"]
    assert not nLu or o["rL"] >= 1
    def a_soft1():
        A.comment("softmax statistics")
        if not o["st0"]: stamp()
        A(f"v_mov_b32 {v(T+4)}, {hex(fbits(192 ** -0.5))}")
        for rnd in range(2):
            for k in range(2): A(f"v_cvt_pk_bf16_f32 {v(T+k)}, {v(S+2*k)}, {v(S+2*k+1)}")
            for k in range(2):
                A(f"v_lshlrev_b32 {v(S+2*k)}, 16, {v(T+k)}")
                A(f"v_and_b32 {v(S+2*k+1)}, 0xffff0000, {v(T+k)}")
            if rnd == 0:
                for k in range(4): A(f"v_mul_f32 {v(S+k)}, {v(S+k)}, {v(T+4)}")
        A(f"v_max3_f32 {v(T)}, {v(S)}, {v(S+1)}, {v(S+2)}")
        A(f"v_max_f32 {v(T)}, {v(T)}, {v(S+3)}")
        wave_reduce("v_max_f32", v(T), sA, fill=[f"v_mov_b32 {v(T+8)}, {hex(LOG2E)}", f"s_lshl_b32 {sC}, {sW}, 3", f"v_mov_b32 {v(T+9)}, {sC}", f"v_mov_b32 {v(T+10)}, 0"])
        for k in range(4): A(f"v_subrev_f32 {v(T+k)}, {sA}, {v(S+k)}")
        for k in range(4): A(f"v_mul_f32 {v(T+k)}, {v(T+k)}, {v(T+8)}")
        for k in range(4): A(f"v_exp_f32 {v(T+k)}, {v(T+k)}")
        A(f"v_mov_b32 {v(T+4)}, {sA}")
        A(f"v_pk_add_f32 {vr(T,2)}, {vr(T,2)}, {vr(T+2,2)}")
        A(f"v_add_f32 {v(T)}, {v(T)}, {v(T+1)}")
        wave_reduce("v_add_f32", v(T), sC)
        A(f"v_mov_b32 {v(T+5)}, {sC}")
        A(f"ds_write_b64 {v(T+9)}, {vr(T+4,2)} offset:{SM}")
    act([], a_soft1)
    def a_soft2():
        A("s_waitcnt lgkmcnt(0)")
        A("s_barrier")
        A(f"ds_read_b128 {vr(T,4)}, {v(T+10)} offset:{SM}")
        A(f"ds_read_b128 {vr(T+4,4)}, {v(T+10)} offset:{SM+16}")
        if not (o["burst"] and o["dsig"] is not None): signal("L_nosig")
        A("s_waitcnt lgkmcnt(0)")
        A(f"v_max3_f32 {v(T+9)}, {v(T)}, {v(T+2)}, {v(T+4)}")
        A(f"v_max_f32 {v(T+9)}, {v(T+9)}, {v(T+6)}")
        for k in range(4): A(f"v_sub_f32 {v(T+2*k)}, {v(T+2*k)}, {v(T+9)}")
        for k in range(4): A(f"v_sub_f32 {v(S+k)}, {v(S+k)}, {v(T+9)}")
        for k in range(4): A(f"v_mul_f32 {v(T+2*k)}, {v(T+2*k)}, {v(T+8)}")
        for k in range(4): A(f"v_mul_f32 {v(S+k)}, {v(S+k)}, {v(T+8)}")
        for k in range(4): A(f"v_exp_f32 {v(T+2*k)}, {v(T+2*k)}")
        for k in range(4): A(f"v_exp_f32 {v(S+k)}, {v(S+k)}")
        A(f"v_mul_f32 {v(T)}, {v(T)}, {v(T+1)}")
        for k in range(1, 4): A(f"v_fmac_f32 {v(T)}, {v(T+2*k)}, {v(T+2*k+1)}")
        A(f"v_rcp_f32 {v(T)}, {v(T)}")
        for k in range(4): A(f"v_mul_f32 {v(S+k)}, {v(S+k)}, {v(T)}")
        A(f"v_cvt_pk_bf16_f32 {v(S)}, {v(S)}, {v(S+1)}")
        A(f"v_cvt_pk_bf16_f32 {v(S+2)}, {v(S+2)}, {v(S+3)}")
        A(f"v_mov_b32_dpp {v(S+1)}, {v(S)} row_half_mirror {DPPF}")
        A(f"v_mov_b32_dpp {v(S+3)}, {v(S+2)} row_half_mirror {DPPF}")
        if not o["st0"]: stamp()
    act([], a_soft2)
    sRD = [f"s{sWQ+k}" for k in range(4)]
    sHL = [f"s{sK+k}" for k in range(4)]
    def a_tailprep():
        A.comment("addresses used by the tail")
        c, r8, i16, b4, b3, b5, tt, oob = [v(T + k) for k in range(8)]
        A(f"v_and_b32 {c}, 7, {vL}"); A(f"v_lshrrev_b32 {r8}, 3, {vL}"); A(f"v_and_b32 {i16}, 15, {vL}")
        A(f"v_bfe_u32 {b4}, {vL}, 4, 1"); A(f"v_bfe_u32 {b3}, {vL}, 3, 1"); A(f"v_lshrrev_b32 {b5}, 5, {vL}")
        A(f"v_mov_b32 {oob}, {OOB}")
        A(f"v_min_u32 {tt}, {1 if o['tsplit'] else 5}, {i16}"); A(f"v_lshlrev_b32 {tt}, 7, {tt}")
        A(f"v_lshrrev_b32 {tO_R}, 4, {vL}"); A(f"v_lshl_add_u32 {tO_R}, {tO_R}, 5, {tt}")
        A(f"s_mul_i32 {sA}, {sW}, {256 if o['tsplit'] else 768}"); A(f"v_add_u32 {tO_R}, {sA}, {tO_R}")
        A(f"v_lshlrev_b32 {tt}, 9, {b5}"); A(f"v_lshl_add_u32 {tt}, {i16}, 5, {tt}"); A(f"v_lshl_add_u32 {tt}, {b4}, 4, {tt}")
        A(f"s_mul_i32 {sA}, {sW}, 3072"); A(f"v_add_u32 {tR2W}, {sA}, {tt}")
        A(f"s_mul_i32 {sA}, {sW}, 5"); A(f"v_add_u32 {tt}, {sA}, {r8}")
        A(f"v_lshrrev_b32 {tR2R}, 1, {tt}"); A(f"v_lshlrev_b32 {tR2R}, 8, {tR2R}")
        A(f"v_and_b32 {tt}, 1, {tt}"); A(f"v_lshl_add_u32 {tR2R}, {tt}, 4, {tR2R}"); A(f"v_lshl_add_u32 {tR2R}, {c}, 5, {tR2R}")
        if o["p32"]: A(f"s_mov_b32 {sC}, {sH}")
        else: A(f"s_sub_u32 {sC}, {sH}, 20"); A(f"s_cselect_b32 {sC}, {sH}, {sC}")
        A(f"s_mul_i32 {sA}, {sB}, {32 * PS}"); A(f"s_lshl_b32 {sC}, {sC}, 7"); A(f"s_add_u32 {sA}, {sA}, {sC}")
        A(f"v_mul_u32_u24 {tt}, {PS}, {r8}"); A(f"v_lshl_add_u32 {tt}, {c}, 4, {tt}"); A(f"v_add_u32 {tRD}, {sA}, {tt}")
        A(f"s_mul_i32 {sA}, {sB}, 2560"); A(f"s_add_u32 {sA}, {sA}, {HB}")
        if o["hcopy"]:
            A(f"s_and_b32 {sC}, {sH}, 7"); A(f"s_lshl_b32 {sC}, {sC}, 15"); A(f"s_add_u32 {sA}, {sA}, {sC}")
        A(f"v_lshl_add_u32 {tHL0}, {vL}, 3, {sA}")
        A(f"s_lshl_b32 {sC}, {sW}, 1"); A(f"v_xor_b32 {tt}, {sC}, {vL}"); A(f"v_lshl_add_u32 {tHL4}, {tt}, 3, {sA}")
        for k in range(4):
            A(f"s_add_u32 {sHL[k]}, {sW}, {k}"); A(f"s_and_b32 {sHL[k]}, {sHL[k]}, 3"); A(f"s_lshl_b32 {sHL[k]}, {sHL[k]}, 9")
            A(f"s_mov_b32 {sRD[k]}, {P1 + k * 8 * PS}")
        A(f"v_and_b32 {tt}, 3, {c}"); A(f"v_min_u32 {tt}, 2, {tt}"); A(f"v_lshlrev_b32 {tt}, 8, {tt}"); A(f"v_lshl_add_u32 {tZR}, {r8}, 5, {tt}")
        A(f"s_mul_i32 {sA}, s2, {PS}"); A(f"s_add_u32 {sA}, {sA}, {P2}")
        A(f"v_lshlrev_b32 {tt}, 7, {b4}"); A(f"v_lshl_add_u32 {tt}, {c}, 4, {tt}"); A(f"v_add_u32 {tt}, {sA}, {tt}")
        A(f"s_lshl_b32 {sC}, {sW}, 9"); A(f"v_lshl_add_u32 {tP2ST}, {b5}, 8, {sC}")
        A(f"s_add_u32 {sC}, {sW}, 8"); A(f"s_lshl_b32 {sC}, {sC}, 8"); A(f"s_cmp_lt_u32 {sW}, 2"); A(f"s_cselect_b32 {sC}, {sC}, {OOB}")
        A(f"v_cmp_eq_u32 vcc, 1, {b5}"); A(f"v_mov_b32 {i16}, {sC}")
        A(f"v_cndmask_b32 {i16}, {oob}, {i16}, vcc")
        A(f"v_cmp_eq_u32 vcc, 1, {b3}")
        A(f"v_cndmask_b32 {tP2ST}, {tP2ST}, {i16}, vcc")
        A(f"v_add_u32 {tP2ST}, {tP2ST}, {tt}")
        A(f"s_lshr_b32 {sA}, {sH}, 1"); A(f"s_lshl_b32 {sA}, {sA}, 7"); A(f"s_and_b32 {sC}, {sH}, 1"); A(f"s_lshl_b32 {sC}, {sC}, 3"); A(f"s_add_u32 {sA}, {sA}, {sC}")
        A(f"v_and_b32 {r8}, 3, {r8}")
        A(f"v_lshl_add_u32 {tt}, {c}, 3, {r8}"); A(f"v_lshl_add_u32 {tXR}, {tt}, 1, {sA}")
        A(f"v_cmp_gt_u32 vcc, 32, {vL}")
        A(f"v_cndmask_b32 {tOUT}, {oob}, {tXR}, vcc")
    sTB = [f"s{sU+k}" for k in range(4)]; sTL, sTH = f"s{sU+4}", f"s{sU+5}"
    vMH, vTGH, vTG1, vTGC = vWO, vWQ, v(T + 10), v(T + 11)
    assert not offs or (o["tag1"] and o["tag"])
    def spin_guard():
        A(f"s_add_u32 {sSPIN}, {sSPIN}, 1"); A(f"s_cmp_gt_u32 {sSPIN}, {o['spin']}"); A("s_cbranch_scc1 L_end")
    def a_tagprep():
        A(f"s_mov_b32 {sSPIN}, 0")
        A(f"v_cmp_eq_u32 vcc, 0, {tCNT}")
        A("s_cbranch_vccnz L_cntwait")
        A.label("L_cntok")
        A(f"v_readfirstlane_b32 {sA}, {tCNT}")
        A(f"v_mov_b32 {vMH}, 0xffffff00")
        if o["tag1"]:
            A(f"v_and_b32 {vTG1}, 3, {vL}"); A(f"v_lshlrev_b32 {vTG1}, 3, {vTG1}"); A(f"v_bfe_u32 {vTG1}, {tCNT}, {vTG1}, 8")
            A(f"v_and_b32 {vTGC}, 1, {vL}"); A(f"v_cmp_eq_u32 vcc, 0, {vTGC}")
            A(f"v_lshlrev_b32 {vTGC}, 4, {vTGC}"); A(f"v_bfe_u32 {vTGC}, {tCNT}, {vTGC}, 16")
            A(f"v_bfe_u32 {vTGH}, {vL}, 1, 1")
        else:
            A(f"v_and_b32 {vTGH}, 1, {vL}")
            for k in range(4): A(f"s_bfe_u32 {sTB[k]}, {sA}, {hex(0x80000 | (8 * k))}")
            A(f"s_and_b32 {sTL}, {sA}, 0xffff"); A(f"s_lshr_b32 {sTH}, {sA}, 16")
        if o["hcopy"]:
            for k in range(1, 4): A(f"s_mov_b32 s{sU+5+k}, {k * 0x10000}")
        A(f"v_lshlrev_b32 {vTGH}, 4, {vTGH}")
        A(f"v_bfe_u32 {vTGH}, {tCNT}, {vTGH}, 16")
        if o["tag1"]: A(f"v_cndmask_b32 {vTGH}, 0, {vTGH}, vcc")
    tailprep_done = [False]
    for n in range(14 if o["tsplit"] else 16):
        for t in range(3):
            def f(n=n, t=t):
                if t == 0:
                    for ins in afrag_oct(AF[n & 1], S + 2 * (n >> 3), n & 7): A(ins)
                smf(D + 4 * t, AF[n & 1], slots[("v", n, t)]); release("pair", ("v", n, t))
            act([("v", n, t, 1)], f)
        if n == 4:
            def g(): a_tailprep(); tailprep_done[0] = True
            act([], g)
        if n == 10 and o["tag"]: act([("cnt",)], a_tagprep)

    arrived = -1
    ai = 0
    def wait_for(idx, issued):
        nonlocal arrived
        if idx > arrived:
            A(f"s_waitcnt vmcnt({issued - 1 - idx})"); arrived = idx
    def force_action(issued):
        nonlocal ai
        a = acts[ai]; m = max(a["needs"], default=-1)
        assert m < issued, "action needs a load that is not issued yet"
        wait_for(m, issued); a["fn"](); ai += 1
    forced = 0
    kvi = {it["tag"]: i for i, it in enumerate(LK + LV)}
    cur = [0]
    def force_now():
        nonlocal forced
        force_action(cur[0]); forced += 1
    for n, it in enumerate(seq):
        cur[0] = n
        if it["tag"] == setup_tag: late_setup()
        if it["tag"] == ("xr",): assert tailprep_done[0]
        kv = kvi.get(it["tag"])
        if o["batch"] > 1 and kv is not None:
            if kv % o["batch"] == 0:
                tgt = n + o["batch"] - 1 - Wn[n]
                if tgt > arrived: wait_for(tgt, n)
        elif n - Wn[n] > arrived: wait_for(n - Wn[n], n)
        for hk in hooks.get(it["tag"], []): hk()
        while it["need"] and not can_alloc(it["need"]):
            force_action(n); forced += 1
        it["emit"]()
        budget = 1.0
        if o["batch"] > 1 and kv is not None:
            budget = float(o["batch"]) if kv % o["batch"] == o["batch"] - 1 else 0.0
        while budget > 0.01 and ai < len(acts) and max(acts[ai]["needs"], default=-1) <= arrived:
            budget -= acts[ai].get("cost", 1); acts[ai]["fn"](); ai += 1
    issued = len(seq)
    A.label("L_tail")
    if not o["tag"]: A(f"s_mov_b32 {sSPIN}, 0")
    late = (Lw1 + Lw2) if o["w12late"] else []
    nlate = [0]
    def late_load(k=1, limit=None):
        nonlocal issued
        for _ in range(k):
            if late and (limit is None or nlate[0] < limit):
                late.pop(0)["emit"](); issued += 1; nlate[0] += 1
    late_load(o["n1"])
    if o["warmpos"] >= 192: issued += warm_lines()
    while ai < len(acts):
        force_action(issued); late_load(1, o["n2"])
    o["_forced"] = forced

    def af_row(dst, u, src=S): return [f"v_and_b32_dpp {v(dst+k)}, {v(src)}, {v(MK[k])} row_newbcast:{u} {DPPF}" for k in range(4)]
    if o["tsplit"]:
        assert not late and not halfV
        vs = {key: slots[key][1] for key in slots if key[0] == "v"}
        assert all(slots[key][0] == "v" for key in slots if key[0] == "v") and len(vs) == 6 and len(freeV) >= 1
        f0 = freeV[0][1]
        s0, s1, s2_, s3_, s4, s5 = [vs[("v", n, t)] for t in range(3) for n in (14, 15)]
        DO = [f0, f0 + 4, s0, s0 + 4, s1]
        AO = [s1 + 4, T + 4]
        G = [s2_, s2_ + 4, s3_, s3_ + 4]
        F = [s4, s4 + 2, s4 + 4, s4 + 6, s5]
        Wk = [f0, f0 + 2, f0 + 4, f0 + 6, s0]
        R0, R1 = s1, s1 + 4
        OP = [T + 8, T + 9]
        for ins in afrag_oct(AF[0], S + 2, 6): A(ins)
        for ins in afrag_oct(AF[1], S + 2, 7): A(ins)
        for k in range(8): A(f"v_mov_b32 {v(f0+k)}, 0")
        def oread(t):
            A(f"ds_read_b128 {vr(T,4)}, {tO_R} offset:{RED + 1024*t}")
            A(f"ds_read_b128 {vr(S,4)}, {tO_R} offset:{RED + 1024*t + 16}")
        def opack(t):
            A(f"v_pk_add_f32 {vr(T,2)}, {vr(T,2)}, {vr(T+2,2)}")
            A(f"v_pk_add_f32 {vr(S,2)}, {vr(S,2)}, {vr(S+2,2)}")
            A(f"v_add_f32 {v(T)}, {v(T)}, {v(T+1)}")
            A(f"v_add_f32 {v(S)}, {v(S)}, {v(S+1)}")
            A(f"v_cvt_pk_bf16_f32 {v(OP[t & 1])}, {v(T)}, {v(S)}")
        def oproj(t):
            for ins in af_row(AO[0], 0, OP[t & 1]): A(ins)
            nxt = af_row(AO[1], 1, OP[t & 1])
            A(nxt.pop(0)); A(nxt.pop(0))
            for uu in range(2):
                for blk in range(5):
                    smf(DO[blk], AO[uu], slots[("wo", 2 * t + uu, blk)])
                    if nxt: A(nxt.pop(0))
        wait_for(max(pos[it["tag"]] for it in Lwo), issued)
        for t in range(3):
            for n in (14, 15):
                wait_for(pos[("v", n, t, 1)], issued)
                smf(D + 4 * t, AF[n & 1], slots[("v", n, t)])
            if t == 2:
                A.comment("o: cross-wave reduction")
                stamp()
            if t == 0:
                for k in range(12): A(f"v_mov_b32 {v((s0 if k < 8 else s1 - 8) + k)}, 0")
            compact([D + 4 * t])
            A(f"ds_write_b32 {vREDW}, {v(D+4*t)} offset:{RED + 1024*t}")
            A("s_waitcnt lgkmcnt(0)")
            A("s_barrier")
            oread(t)
            A("s_waitcnt lgkmcnt(0)")
            opack(t)
            oproj(t)
    else:
        A.comment("o: cross-wave reduction")
        stamp()
        if o["notail"]:
            for k in range(nstamp[0], nstamp[0] + 4): A(f"s_memrealtime s[{4+2*k}:{5+2*k}]")
            A("s_branch L_prof")
        assert not halfV
        tv = sorted(s[1] for s in freeV)
        assert len(tv) >= 7, tv
        DO = [tv[0], tv[0] + 4, tv[1], tv[1] + 4, tv[2]]
        G = [tv[3], tv[3] + 4, tv[4], tv[4] + 4]
        F = [tv[5], tv[5] + 2, tv[5] + 4, tv[5] + 6, tv[6]]
        Wk = [tv[0], tv[0] + 2, tv[0] + 4, tv[0] + 6, tv[1]]
        R0, R1 = tv[2], tv[2] + 4
        for d in DO[:2]:
            for k in range(4): A(f"v_mov_b32 {v(d+k)}, 0")
        compact([D, D + 4, D + 8])
        for t in range(3): A(f"ds_write_b32 {vREDW}, {v(D+4*t)} offset:{RED + 1024*t}")
        late_load(1, o["n2"])
        for d in DO[2:4]:
            for k in range(4): A(f"v_mov_b32 {v(d+k)}, 0")
        A("s_waitcnt lgkmcnt(0)")
        A("s_barrier")
        A(f"ds_read_b128 {vr(T,4)}, {tO_R} offset:{RED}")
        A(f"ds_read_b128 {vr(T+4,4)}, {tO_R} offset:{RED+16}")
        late_load(1, o["n2"])
        for k in range(4): A(f"v_mov_b32 {v(DO[4]+k)}, 0")
        wait_for(max(pos[it["tag"]] for it in Lwo), issued)
        A("s_waitcnt lgkmcnt(0)")
        A(f"v_pk_add_f32 {vr(T,2)}, {vr(T,2)}, {vr(T+2,2)}")
        A(f"v_pk_add_f32 {vr(T+4,2)}, {vr(T+4,2)}, {vr(T+6,2)}")
        A(f"v_add_f32 {v(T)}, {v(T)}, {v(T+1)}")
        A(f"v_add_f32 {v(T+4)}, {v(T+4)}, {v(T+5)}")
        A(f"v_cvt_pk_bf16_f32 {v(S)}, {v(T)}, {v(T+4)}")
        for ins in af_row(AF[0], 0): A(ins)
        for u in range(6):
            nxt = af_row(AF[(u + 1) & 1], u + 1) if u < 5 else []
            for blk in range(5):
                smf(DO[blk], AF[u & 1], slots[("wo", u, blk)])
                if nxt: A(nxt.pop(0))
                if blk == 4: late_load(1, o["n2"])
    for k in range(4): A(f"v_mov_b32_dpp {v(DO[0]+k)}, {v(DO[1]+k)} quad_perm:[0,1,2,3] row_mask:0xc bank_mask:0xf")
    A(f"ds_write_b128 {tR2W}, {vr(DO[0],4)} offset:{RED2}")
    for k in range(4): A(f"v_mov_b32_dpp {v(DO[2]+k)}, {v(DO[3]+k)} quad_perm:[0,1,2,3] row_mask:0xc bank_mask:0xf")
    A(f"ds_write_b128 {tR2W}, {vr(DO[2],4)} offset:{RED2+1024}")
    A(f"ds_write_b128 {tR2W}, {vr(DO[4],4)} offset:{RED2+2048}")
    A("s_waitcnt lgkmcnt(0)")
    A("s_barrier")
    for k in range(4): A(f"ds_read_b128 {vr(G[k],4)}, {tR2R} offset:{RED2 + 3072*k}")
    for k in range(12): A(f"v_mov_b32 {v(D+k)}, 0")
    A("s_waitcnt lgkmcnt(0)")
    def sum4():
        for hh in (0, 2):
            A(f"v_pk_add_f32 {vr(R0+hh,2)}, {vr(G[0]+hh,2)}, {vr(G[1]+hh,2)}")
            A(f"v_pk_add_f32 {vr(R1+hh,2)}, {vr(G[2]+hh,2)}, {vr(G[3]+hh,2)}")
        for hh in (0, 2):
            A(f"v_pk_add_f32 {vr(R0+hh,2)}, {vr(R0+hh,2)}, {vr(R1+hh,2)}")
    sum4()
    def seal(r):
        if o["tag"] and o["tag1"]:
            A(f"v_and_or_b32 {v(r)}, {v(r)}, {vMH}, {vTG1}"); return
        for k in range(4):
            if o["tag"]: A(f"v_and_or_b32 {v(r+k)}, {v(r+k)}, {vMH}, {sTB[k]}")
            else: A(f"v_min_u32 {v(r+k)}, -2, {v(r+k)}")
    seal(R0)
    A(f"buffer_store_dwordx4 {vr(R0,4)}, {vP1ST}, {srd(sWS)}, 0 offen sc1")
    issued += 1
    stamp()
    if o["prof"]:
        stamp(); nstamp[0] -= 1
    if o["warm2"]: issued += warm_lines(o["warm2"])
    if not o["tag"]:
        wait_for(pos[("cnt",)], issued)
        A(f"v_cmp_gt_u32 vcc, 32, {tCNT}")
        if not o["nosig"]: A("s_cbranch_vccnz L_cntwait")
        A.label("L_cntok")
    last_soff[0] = None
    while late:
        A(f"s_waitcnt vmcnt({o['Wb'] - 2})"); late_load(2)
    A(f"s_cmp_lg_u32 {sW}, 0"); A("s_cbranch_scc1 L_hpoll0")
    if not o["hbar"]:
        A(f"s_cmp_ge_u32 {sH}, 20"); A("s_cbranch_scc1 L_hpoll0")
    def reduce_stage(lbl, dep):
        def loads():
            for k in range(4): A(f"buffer_load_dwordx4 {vr(G[k],4)}, {tRD}, {srd(sWS)}, {sRD[k]} offen sc1")
        for _ in range(dep - 1): loads()
        A.label(lbl)
        loads()
        spin_guard()
        A(f"s_waitcnt vmcnt({4 * (dep - 1)})")
        regs = [G[k] + j for k in range(4) for j in range(4)]
        if o["tag"] and o["tag1"]:
            assert dep == 1
            for k in range(4): A(f"v_xor_b32 {v(G[k])}, {vTG1}, {v(G[k])}")
            A(f"v_or3_b32 {v(T)}, {v(G[0])}, {v(G[1])}, {vMH}")
            A(f"v_or3_b32 {v(T)}, {v(G[2])}, {v(G[3])}, {v(T)}")
            A(f"v_cmp_ne_u32 vcc, {v(T)}, {vMH}")
        else:
            op3, op2 = ("v_or3_b32", "v_or_b32") if o["tag"] else ("v_max3_u32", "v_max_u32")
            if o["tag"]:
                assert dep == 1
                for i_, r_ in enumerate(regs): A(f"v_xor_b32 {v(r_)}, {sTB[i_ & 3]}, {v(r_)}")
            A(f"{op3} {v(T)}, {v(regs[0])}, {v(regs[1])}, {v(regs[2])}")
            A(f"{op3} {v(T+1)}, {v(regs[3])}, {v(regs[4])}, {v(regs[5])}")
            for k in range(6, 16, 2):
                d = v(T + ((k >> 1) & 1))
                A(f"{op3} {d}, {d}, {v(regs[k])}, {v(regs[k+1])}")
            if o["tag"]:
                A(f"v_or3_b32 {v(T)}, {v(T)}, {v(T+1)}, {vMH}")
                A(f"v_cmp_ne_u32 vcc, {v(T)}, {vMH}")
            else:
                A(f"v_max_u32 {v(T)}, {v(T)}, {v(T+1)}")
                A(f"v_cmp_eq_u32 vcc, -1, {v(T)}")
        A(f"s_cbranch_vccnz {lbl}")
        sum4()
        g = R0
        A(f"v_add_f32_dpp {v(T)}, {v(g)}, {v(g)} row_ror:8 row_mask:0xf bank_mask:0x3")
        A(f"v_add_f32_dpp {v(T+1)}, {v(g+2)}, {v(g+2)} row_ror:8 row_mask:0xf bank_mask:0x3")
        A(f"v_add_f32_dpp {v(T)}, {v(g+1)}, {v(g+1)} row_ror:8 row_mask:0xf bank_mask:0xc")
        A(f"v_add_f32_dpp {v(T+1)}, {v(g+3)}, {v(g+3)} row_ror:8 row_mask:0xf bank_mask:0xc")
        A(f"v_permlane16_swap_b32 {v(T)}, {v(T+1)}")
        A(f"v_add_f32 {v(T)}, {v(T)}, {v(T+1)}")
        A(f"v_mov_b32 {v(T+1)}, {v(T)}")
        A(f"v_permlane32_swap_b32 {v(T)}, {v(T+1)}")
        A(f"v_add_f32 {v(T)}, {v(T)}, {v(T+1)}")
        round_bf16(v(T))
    A(f"v_lshlrev_b32 {tXR}, 16, {tXR}")
    if o["ack1"]: A("s_waitcnt vmcnt(0)")
    reduce_stage("L_red1", o["dR"])
    A(f"v_add_f32 {tXR}, {tXR}, {v(T)}")
    if o["tag"]:
        A(f"v_cvt_pk_bf16_f32 {tXR}, {tXR}, {tXR}")
        A(f"v_lshl_or_b32 {v(T)}, {tXR}, 16, {vTGH}")
        A(f"buffer_store_dword {v(T)}, {vHST}, {srd(sWS)}, 0 offen sc1")
        if o["hcopy"]:
            for k in range(1, 4):
                A(f"buffer_store_dword {v(T)}, {vHST}, {srd(sWS)}, s{sU+5+k} offen sc1")
        A(f"v_lshlrev_b32 {tXR}, 16, {tXR}")
    else:
        round_bf16(tXR)
        A(f"buffer_store_dword {tXR}, {vHST}, {srd(sWS)}, 0 offen sc1")
    if o["prof"]:
        A("s_waitcnt lgkmcnt(0)"); stamp()
    if o["hbar"] and o["ack2"]: A("s_waitcnt vmcnt(0)")
    A.label("L_hpoll0")
    if o["hbar"]: A("s_barrier")
    def hloads():
        for k in range(4): A(f"buffer_load_dwordx2 {vr(F[k],2)}, {tHL0}, {srd(sWS)}, {sHL[k]} offen sc1")
        A(f"buffer_load_dwordx2 {vr(F[4],2)}, {tHL4}, {srd(sWS)}, 0 offen offset:2048 sc1")
    for _ in range(o["dH"] - 1): hloads()
    A.label("L_hpoll")
    hloads()
    spin_guard()
    A(f"s_waitcnt vmcnt({5 * (o['dH'] - 1)})")
    if o["tag"] and o["tag1"]:
        assert o["dH"] == 1
        for k in range(5): A(f"v_xor_b32 {v(F[k])}, {vTGC}, {v(F[k])}")
        A(f"v_or3_b32 {v(T)}, {v(F[0])}, {v(F[1])}, {v(F[2])}")
        A(f"v_or3_b32 {v(T)}, {v(F[3])}, {v(F[4])}, {v(T)}")
        A(f"v_cmp_ne_u16 vcc, 0, {v(T)}")
    else:
        op3 = "v_or3_b32" if o["tag"] else "v_max3_u32"
        if o["tag"]:
            assert o["dH"] == 1
            for k in range(5):
                A(f"v_xor_b32 {v(F[k])}, {sTL}, {v(F[k])}"); A(f"v_xor_b32 {v(F[k]+1)}, {sTH}, {v(F[k]+1)}")
        A(f"{op3} {v(T)}, {v(F[0])}, {v(F[0]+1)}, {v(F[1])}")
        A(f"{op3} {v(T+1)}, {v(F[1]+1)}, {v(F[2])}, {v(F[2]+1)}")
        A(f"{op3} {v(T)}, {v(T)}, {v(F[3])}, {v(F[3]+1)}")
        A(f"{op3} {v(T+1)}, {v(T+1)}, {v(F[4])}, {v(F[4]+1)}")
        if o["tag"]:
            A(f"v_or_b32 {v(T)}, {v(T)}, {v(T+1)}")
            A(f"v_cmp_ne_u16 vcc, 0, {v(T)}")
        else:
            A(f"v_max_u32 {v(T)}, {v(T)}, {v(T+1)}")
            A(f"v_cmp_eq_u32 vcc, -1, {v(T)}")
    if o["sleep"]:
        A("s_cbranch_vccz L_hok"); A(f"s_sleep {o['sleep']}"); A("s_branch L_hpoll"); A.label("L_hok")
    else:
        A("s_cbranch_vccnz L_hpoll")
    stamp()
    layernorm(F, Wk, T, S)
    for ins in afrag_oct(AF[0], S, 0): A(ins)
    for u in range(10):
        nxt = afrag_oct(AF[(u + 1) & 1], S + 2 * ((u + 1) >> 3), (u + 1) & 7) if u < 9 else []
        if nxt: A(nxt.pop(0)); A(nxt.pop(0))
        smf(D, AF[u & 1], slots[("w1", u)])
        for ins in nxt: A(ins)
    A(f"v_mov_b32 {v(T+8)}, {hex(LOG2E ^ 0x80000000)}")
    compact([D])
    A(f"ds_write_b32 {vREDW}, {v(D)} offset:{REDZ}")
    A("s_waitcnt lgkmcnt(0)")
    A("s_barrier")
    A(f"ds_read_b128 {vr(T,4)}, {tZR} offset:{REDZ}")
    A(f"ds_read_b128 {vr(T+4,4)}, {tZR} offset:{REDZ+16}")
    for k in range(4): A(f"v_mov_b32 {v(D+k)}, 0")
    for k in range(4): A(f"s_add_u32 {sRD[k]}, {sRD[k]}, {P2 - P1}")
    A("s_waitcnt lgkmcnt(0)")
    A(f"v_pk_add_f32 {vr(T,2)}, {vr(T,2)}, {vr(T+2,2)}")
    A(f"v_pk_add_f32 {vr(T+4,2)}, {vr(T+4,2)}, {vr(T+6,2)}")
    A(f"v_add_f32 {v(T)}, {v(T)}, {v(T+1)}")
    A(f"v_add_f32 {v(T+4)}, {v(T+4)}, {v(T+5)}")
    A(f"v_cvt_pk_bf16_f32 {v(T+1)}, {v(T)}, {v(T+4)}")
    A(f"v_lshlrev_b32 {v(T)}, 16, {v(T+1)}")
    A(f"v_and_b32 {v(T+1)}, 0xffff0000, {v(T+1)}")
    for k in range(2): A(f"v_mul_f32 {v(T+2+k)}, {v(T+k)}, {v(T+8)}")
    for k in range(2): A(f"v_exp_f32 {v(T+2+k)}, {v(T+2+k)}")
    for k in range(2): A(f"v_add_f32 {v(T+2+k)}, 1.0, {v(T+2+k)}")
    for k in range(2): A(f"v_rcp_f32 {v(T+2+k)}, {v(T+2+k)}")
    for k in range(2): A(f"v_mul_f32 {v(T+k)}, {v(T+k)}, {v(T+2+k)}")
    A(f"v_cvt_pk_bf16_f32 {v(S)}, {v(T)}, {v(T+1)}")
    def af_quad(dst, u): return [f"v_and_b32_dpp {v(dst+k)}, {v(S)}, {v(MK[k])} quad_perm:[{u},{u},{u},{u}] {DPPF}" for k in range(4)]
    for ins in af_quad(AF[0], 0): A(ins)
    for u in range(3):
        nxt = af_quad(AF[(u + 1) & 1], u + 1) if u < 2 else []
        if nxt: A(nxt.pop(0)); A(nxt.pop(0))
        for blk in range(3):
            smf(D + 4 * blk, AF[u & 1], slots[("w2", u, blk)])
            if nxt: A(nxt.pop(0))
    X, Y, Z = D, D + 4, D + 8
    for e in range(4): A(f"v_permlane32_swap_b32 {v(X+e)}, {v(Y+e)}")
    for e in range(4): A(f"v_add_f32_dpp {v(X+e)}, {v(Y+e)}, {v(X+e)} row_ror:8 row_mask:0xf bank_mask:0x3")
    for e in range(4): A(f"v_permlane32_swap_b32 {v(Y+e)}, {v(Z+e)}")
    for e in range(4): A(f"v_add_f32_dpp {v(X+e)}, {v(Y+e)}, {v(Z+e)} row_ror:8 row_mask:0xc bank_mask:0xc")
    seal(X)
    A(f"buffer_store_dwordx4 {vr(X,4)}, {tP2ST}, {srd(sWS)}, 0 offen sc1")
    stamp()
    fin = "L_prof" if o["prof"] else "L_end"
    A(f"s_cmp_lg_u32 {sW}, 0"); A(f"s_cbranch_scc1 {fin}")
    A(f"s_cmp_ge_u32 {sH}, 20"); A(f"s_cbranch_scc1 {fin}")
    if o["ack3"]: A("s_waitcnt vmcnt(0)")
    reduce_stage("L_red2", o.get("dR2", o["dR"]))
    A(f"v_add_f32 {v(T)}, {tXR}, {v(T)}")
    A(f"v_cvt_pk_bf16_f32 {v(T)}, {v(T)}, {v(T)}")
    A(f"buffer_store_short {v(T)}, {tOUT}, {srd(sOUT)}, 0 offen {o['polO']}")
    if o["prof"]:
        A.label("L_prof")
        stamp()
        A("s_getreg_b32 s25, hwreg(HW_REG_XCC_ID)")
        A("s_waitcnt lgkmcnt(0)")
        A(f"s_lshl_b32 {sA}, s2, 2"); A(f"s_add_u32 {sA}, {sA}, {sW}"); A(f"s_lshl_b32 {sA}, {sA}, 6"); A(f"s_add_u32 {sA}, {sA}, {PROF}")
        for k in range(nstamp[0]):
            A(f"v_mov_b32 {v(T)}, s{4+2*k}")
            A(f"buffer_store_dword {v(T)}, off, {srd(sWS)}, {sA} offset:{4*k}")
        A(f"v_mov_b32 {v(T)}, s25"); A(f"buffer_store_dword {v(T)}, off, {srd(sWS)}, {sA} offset:56")
        A(f"v_mov_b32 {v(T)}, {sSPIN}"); A(f"buffer_store_dword {v(T)}, off, {srd(sWS)}, {sA} offset:60")
    A.label("L_end")
    A("s_endpgm")
    A.label("L_cntwait")
    if o["tag"]: A(f"s_mov_b32 {sT2}, 0")
    else: A(f"s_lshl_b32 {sT2}, {sB}, 5")
    A(f"buffer_load_dword {tCNT}, off, {srd(sDBG)}, {sT2} sc1")
    spin_guard()
    A("s_waitcnt vmcnt(0)")
    if o["tag"]: A(f"v_cmp_eq_u32 vcc, 0, {tCNT}")
    else: A(f"v_cmp_gt_u32 vcc, 32, {tCNT}")
    A("s_cbranch_vccnz L_cntwait")
    A.label("L_last")
    A("s_branch L_cntok")
    if o["burst"] and o["dsig"]:
        A.label("L_signal"); signal_body(); A(f"s_setpc_b64 {sRA}")
    for nm, lst, snap in subs:
        A.label(f"L_burst_{nm}")
        slots.clear(); slots.update(snap); last_soff[0] = None
        for i, it in enumerate(lst):
            if nm in o["skip"]: break
            if i % 2 == 0: A(f"s_waitcnt vmcnt({o['Wb'] - 2})")
            it["emit"]()
        A(f"s_setpc_b64 {sRA}")
    A.label("L_codeend")
    A.raw('.section .rodata,"a"'); A.raw(".p2align 6"); A.raw(f".amdhsa_kernel {KNAME}")
    A.raw("  .amdhsa_next_free_vgpr 512"); A.raw("  .amdhsa_next_free_sgpr 102"); A.raw("  .amdhsa_accum_offset 256")
    A.raw("  .amdhsa_float_denorm_mode_32 3")
    A.raw("  .amdhsa_group_segment_fixed_size 0"); A.raw("  .amdhsa_kernarg_size 88"); A.raw("  .amdhsa_user_sgpr_count 2")
    A.raw("  .amdhsa_user_sgpr_kernarg_segment_ptr 1"); A.raw("  .amdhsa_system_sgpr_workgroup_id_x 1"); A.raw(".end_amdhsa_kernel")
    o["_nstamp"] = nstamp[0]
    return A.text(), o

if __name__ == "__main__":
    out = sys.argv[1]
    kw = eval("dict(" + (sys.argv[2] if len(sys.argv) > 2 else "") + ")")
    txt, o = gen(**kw)
    open(out, "w").write(txt)
    print("forced", o["_forced"], "lines", txt.count("\n"))
```

```python
import sys, os
sys.path.insert(0, os.path.dirname(os.path.abspath(__file__)))
from asmlib import Asm

NAME = "sequential_preLN__sliding_block_cached__dense_activation_silu__decode"
KNAME = NAME + "_kernel"

DEF = dict(
    WA=15, WB=12, WC=12,
    nKA=30,
    nWOB=30,
    rot=5,
    polKV="nt", polW="",
    prof=False,
    wlast=0,
    codepf=True,
    burst=True, W=12, Wb=12,
    grp="b",
    a0=7, da=8, b0=94, db=8, c0=162, dc=3, tlead=14, touch64=False, touch=True, polT="", polT2=None, skip=(), notail=False, sleep=0, dR=1, dH=1, ack3=True, hbar=True, ack2=True, Ws=None, perm=False, nosig=False, noclr=False, sig0=46, dsig=0, xorid=0, hcopy=True, p32=False, nlateW=18, w1bal=True, tlate=192, latepos="ack", align="L_tail", redw=3, nsplit=9, ackn=0, early=True, nfill=1, sleepR=0, flag=0, fstr=128, offs=(172, 172, 168), batch=1, vorder="t", umode="int", dw=(0, 0), rot2=0, tag1=True, tsplit=True, kfirst=True, polO="", ack1=False, warm=6, warm2=6, polWm="", warmpos=152, tag=True, nL=12, rL=4, tqs=None, tws=4, dtw=3, qkcost=0.5, pf0=True, st0=False, tB=None, tC=None, polC="sc1", clrpos=6, w12late=False, n1=6, n2=14,
    spin=200000,
)

RED, QB, SM, RED2, REDZ, LDS_BYTES = 0, 3072, 4608, 5120, 17408, 18432
P1, P2, HB, FLB, PROF = 0, 0x200000, 0x400000, 0x600000, 0x800000
OOB = 0x40000000
LOG2E = 0x3fb8aa3b
import struct
def fbits(x): return struct.unpack("<I", struct.pack("<f", x))[0]

def gen(**kw):
    o = dict(DEF); o.update(kw)
    A = Asm()
    hdr = open(os.path.join(os.path.dirname(os.path.abspath(__file__)), "..", "cdna_kernels", NAME + ".s.ref")).read().splitlines()
    for ln in hdr:
        if ln.startswith("; Override") : break
        A.raw(ln)
    KL = RED2
    PS = o.get("PS", 4096 if o["p32"] else 2560)
    assert o["tag"] or not o["p32"]
    lds_bytes = max(LDS_BYTES, KL + 4 * o["nL"] * 3072)
    assert lds_bytes <= 163840 and o["nL"] % 2 == 0
    A.raw(f"; @launch grid=(256,1,1) block=(256,1,1) lds={lds_bytes}")
    A.raw('.amdgcn_target "amdgcn-amd-amdhsa--gfx950"')
    A.raw(".text"); A.raw(f".globl {KNAME}"); A.raw(".p2align 8"); A.raw(f".type {KNAME},@function"); A.label(KNAME)

    sW, sB, sH = "s3", "s26", "s27"
    sX, sK, sV, sWQ, sWO, sW1, sW2, sOUT, sDBG, sWS = [28 + 4 * i for i in range(10)]
    srd = lambda n: f"s[{n}:{n+3}]"
    sU = 68
    sT = "s84"
    sQB0, sQB1, sF0, sF1, sZ = "s86", "s87", "s88", "s89", "s1"
    sLM = "s[92:93]"
    sA, sC, sD, sE = "s94", "s95", "s96", "s97"
    sSPIN = "s98"
    sPC = 100
    vL, vK, vV, vWQ, vWO, vW2, vW1, vIDX = [f"v{i}" for i in range(8)]
    MK = [8, 9, 10, 11]
    AF = [12, 16]
    D = 20
    Q = 32
    S = 44
    T = 48
    vHST, vP1ST, vREDW = "v61", "v62", "v63"
    tO_R, tR2W, tR2R, tCNT, tRD, tPF, tHL0, tHL4, tZR, tP2ST, tOUT, tXR = [f"v{Q+i}" for i in range(12)]
    v = lambda n: f"v{n}"
    vr = lambda n, k: f"v[{n}:{n+k-1}]"
    nstamp = [0]
    def stamp():
        if o["prof"]:
            k = nstamp[0]; nstamp[0] += 1
            assert k < 11
            A(f"s_memrealtime s[{4+2*k}:{5+2*k}]")

    if o["early"]:
        A("s_load_dwordx8 s[4:11], s[0:1], 0")
    else:
        A("s_load_dwordx16 s[4:19], s[0:1], 0")
        A("s_load_dwordx4 s[20:23], s[0:1], 64")
        A("s_load_dwordx2 s[24:25], s[0:1], 80")
    A("s_cmpk_ge_u32 s2, 256")
    A("s_cbranch_scc1 L_end")
    if o["xorid"]: A(f"s_xor_b32 s2, s2, {o['xorid']}")
    if o["perm"]:
        A("s_lshr_b32 s3, s2, 3"); A("s_add_u32 s3, s3, s2"); A("s_and_b32 s3, s3, 7"); A("s_and_b32 s2, s2, 0xf8"); A("s_or_b32 s2, s2, s3")
    if o["prof"]: A("s_memrealtime s[100:101]")
    A(f"v_readfirstlane_b32 {sW}, v0")
    A(f"v_and_b32 {vL}, 63, v0")
    A(f"s_lshr_b32 {sW}, {sW}, 6")
    A(f"s_lshr_b32 {sB}, s2, 5")
    A(f"s_and_b32 {sH}, s2, 31")
    vR8, vC, t0, t1, t2, t3 = v(T+7), v(T+8), v(T+9), v(T+10), v(T+11), v(T+12)
    def code_pf0():
        A("s_cmp_ge_u32 s2, 8"); A("s_cbranch_scc1 L_nopf0")
        A(f"s_getpc_b64 s[{sOUT}:{sOUT+1}]")
        A.label("L_pc0")
        A(f"s_lshl_b32 {sT}, {sW}, 13")
        A(f"v_lshl_add_u32 {v(Q+2)}, {vL}, 7, {sT}")
        A(f"v_min_u32 {v(Q+2)}, L_codeend-L_pc0-4, {v(Q+2)}")
        A(f"global_load_dword {v(Q+2)}, {v(Q+2)}, s[{sOUT}:{sOUT+1}]")
        A.label("L_nopf0")
    if o["early"]:
        assert o["burst"] and o["touch"] and not o["tqs"] and o["polT2"] is None
        if o["pf0"]: code_pf0()
        A(f"v_min_u32 {v(Q+1)}, 59, {vL}")
        A(f"v_mul_u32_u24 {v(Q)}, 21846, {v(Q+1)}"); A(f"v_lshrrev_b32 {v(Q)}, 16, {v(Q)}")
        A(f"v_mul_u32_u24 {v(Q)}, {12288 - 3*128}, {v(Q)}"); A(f"v_lshl_add_u32 {v(Q+1)}, {v(Q+1)}, 7, {v(Q)}")
        A(f"s_lshl2_add_u32 s99, {sB}, {sW}"); A(f"s_mul_i32 s99, s99, {20*12288}")
        A(f"s_mul_i32 {sD}, {sH}, 384")
        A(f"s_sub_u32 s{sWQ+2}, {640*12288}, {sD}"); A(f"s_mov_b32 s{sWQ+3}, 0x20000")
        early_bytes = [len(A.lines)]
        def first_request():
            A("s_waitcnt lgkmcnt(0)")
            if o["st0"]: A("s_memrealtime s[72:73]")
            A(f"s_add_u32 s{sWQ}, s10, {sD}"); A(f"s_addc_u32 s{sWQ+1}, s11, 0")
            A(f"buffer_load_dword {v(Q)}, {v(Q+1)}, {srd(sWQ)}, s99 offen {o['polT']}")
            A.label("L_first")
            A("s_load_dwordx8 s[12:19], s[0:1], 32")
            A("s_load_dwordx4 s[20:23], s[0:1], 64")
            A("s_load_dwordx2 s[24:25], s[0:1], 80")
        if o["nfill"] == 0: first_request()
    A(f"v_lshrrev_b32 {vR8}, 3, {vL}")
    A(f"v_and_b32 {vC}, 7, {vL}")
    A(f"v_lshlrev_b32 {v(T+5)}, 2, {vL}")
    A(f"s_lshl_b32 {sA}, {sW}, 3")
    A(f"v_xor_b32 {v(T+6)}, {sA}, {v(T+5)}")
    A(f"v_and_b32 {t0}, 32, {vL}")
    A(f"v_bfe_u32 {t1}, {vL}, 3, 1")
    A(f"v_bfe_u32 {t2}, {vL}, 4, 1")
    A(f"v_lshl_add_u32 {t3}, {t1}, 4, {t0}")
    A(f"v_add_u32 {t3}, {t3}, {t2}")
    A(f"v_mul_u32_u24 {t3}, 12288, {t3}")
    A(f"v_lshl_add_u32 {vWQ}, {vC}, 4, {t3}")
    if o["early"] and o["nfill"] == 1: first_request()
    if o["offs"]:
        A(f"v_lshrrev_b32 {t3}, 4, {vL}")
    else:
        A(f"v_lshrrev_b32 {t3}, 2, {t0}")
        A(f"v_lshl_add_u32 {t3}, {t2}, 2, {t3}")
        A(f"v_add_u32 {t3}, {t3}, {t1}")
    A(f"v_mul_u32_u24 {t3}, 384, {t3}")
    A(f"v_lshl_add_u32 {vK}, {vC}, 4, {t3}")
    if o["early"] and o["nfill"] == 2: first_request()
    A(f"s_mul_i32 {sA}, s2, 1572864")
    A(f"s_add_u32 {sA}, {sA}, 1179648")
    A(f"s_mul_i32 {sC}, {sB}, 1280")
    if not o["early"]: A(f"s_mul_i32 {sD}, {sH}, 384")
    A(f"s_mul_i32 {sQB0}, {sW}, {128*12288}")
    sE2 = "s0"
    A(f"s_mul_i32 {sE}, s2, {o['rot']}")
    if o["rot2"]:
        A(f"s_lshr_b32 s{sU}, s2, {o['rot2'][0]}"); A(f"s_mul_i32 s{sU}, s{sU}, {o['rot2'][1]}"); A(f"s_add_u32 {sE}, {sE}, s{sU}")
    if o["umode"] == "int":
        A(f"s_add_u32 {sE}, {sE}, {sW}")
    elif o["umode"] == "blk":
        A(f"s_mul_i32 s{sU}, {sW}, {o['dw'][0]}"); A(f"s_lshr_b32 s{sU}, s{sU}, {o['dw'][1]}"); A(f"s_add_u32 {sE}, {sE}, s{sU}")
    else:
        A(f"s_and_b32 s{sU}, {sW}, 1"); A(f"s_add_u32 {sE}, {sE}, s{sU}")
        A(f"s_lshr_b32 s{sU}, {sW}, 1"); A(f"s_mul_i32 s{sU}, s{sU}, {o['dw'][0]}"); A(f"s_add_u32 {sE}, {sE}, s{sU}")
    def unit_off(n):
        d = f"s{sU+n}"
        if o["umode"] == "int":
            A(f"s_add_u32 {d}, {sE}, {4*n}"); A(f"s_and_b32 {d}, {d}, 63")
        elif o["umode"] == "blk":
            A(f"s_add_u32 {d}, {sE}, {n}"); A(f"s_and_b32 {d}, {d}, 15")
            A(f"s_lshl4_add_u32 {d}, {sW}, {d}")
        else:
            A(f"s_add_u32 {d}, {sE}, {2*(n & 7)}"); A(f"s_and_b32 {d}, {d}, 15")
            A(f"s_lshr_b32 {sT}, {sW}, 1"); A(f"s_lshl4_add_u32 {d}, {sT}, {d}"); A(f"s_add_u32 {d}, {d}, {32*(n >> 3)}")
        A(f"s_mulk_i32 {d}, 6144")
    offs = o["offs"]
    sSO, sCO, sCD = [f"s{sU+10}", f"s{sU+11}"], [f"s{sU+12}", f"s{sU+13}"], [f"s{sU+14}", f"s{sU+15}"]
    sP0, sP1, sP2, sP3 = f"s{sU}", f"s{sU+1}", f"s{sU+2}", f"s{sU+3}"
    if offs:
        assert sum(offs) == 512 and all(x % 4 == 0 for x in offs) and o["umode"] == "int"
        jst = [sum(offs[:k]) // 4 for k in range(len(offs))]
        for k in range(1, len(offs)): assert jst[k] % 2 == 0 or offs[k] == offs[k - 1]
        for r_ in sCO + sCD: A(f"s_mov_b32 {r_}, 0")
        unit_off = lambda n: None
    def half_params(n, hB, dB, dO):
        A(f"s_add_u32 {sP3}, {sE}, {4*n}"); A(f"s_and_b32 {sP3}, {sP3}, 63")
        A(f"s_lshl1_add_u32 {sP3}, {sP3}, {hB}")
        A(f"s_mul_i32 {dB}, {sP3}, 1536")
        if dO: A(f"s_mov_b32 {dO}, {offs[0] * 384}")
        for k in range(1, len(offs)):
            A(f"s_cmp_ge_u32 {sP3}, {jst[k]}")
            if dO and offs[k] != offs[k - 1]: A(f"s_cselect_b32 {dO}, {offs[k] * 384}, {dO}")
            A(f"s_cselect_b32 {sP2}, {offs[k - 1] * 384}, 0")
            A(f"s_add_u32 {dB}, {dB}, {sP2}")
    def lane_add(reg, mask, cur, new):
        A(f"s_sub_u32 {sP2}, {new}, {cur}"); A(f"s_mov_b32 {cur}, {new}")
        A(f"s_mov_b32 exec_lo, {hex(mask)}"); A(f"s_mov_b32 exec_hi, {hex(mask)}")
        A(f"v_add_u32 {reg}, {sP2}, {reg}")
        A("s_mov_b64 exec, -1")
    def k_addr(n, hB):
        half_params(n, hB, sSO[0], sP0); lane_add(vK, 0xff00ff00, sCO[1], sP0)
    def v_addr(n):
        p_ = n & 1; reg = (vV, vK)[p_]
        if n == 1:
            A(f"v_mov_b32 {vK}, {vV}"); A(f"s_mov_b32 {sCO[1]}, {sCO[0]}"); A(f"s_mov_b32 {sCD[1]}, {sCD[0]}")
        half_params(n, 0, sSO[p_], sP0); half_params(n, 1, sP1, None)
        A(f"s_sub_u32 {sP1}, {sP1}, {sSO[p_]}")
        lane_add(reg, 0xff00ff00, sCO[p_], sP0); lane_add(reg, 0xffff0000, sCD[p_], sP1)
    unit_off(0)
    sKL = "s90"
    if o["nL"]:
        A(f"s_mul_i32 {sKL}, {sW}, {o['nL'] * 3072}"); A(f"s_add_u32 {sKL}, {sKL}, {KL}")
    sG, sRA, sT2, sGT, sSG = "s85", "s[76:77]", "s91", "s99", "s98"
    vT1, vT2 = v(Q), v(Q + 1)
    if o["burst"]:
        sRA = f"s[{sPC}:{sPC+1}]"
        sQT = sGT
        if not o["early"]:
            A(f"v_mul_u32_u24 {vT1}, 21846, {vL}"); A(f"v_lshrrev_b32 {vT1}, 16, {vT1}")
            A(f"v_mul_u32_u24 {vT2}, {12288 - 3*128}, {vT1}"); A(f"v_lshl_add_u32 {vT2}, {vL}, 7, {vT2}")
            A(f"s_lshl_b32 {sQT}, {sB}, 2"); A(f"s_add_u32 {sQT}, {sQT}, {sW}"); A(f"s_mul_i32 {sQT}, {sQT}, {20*12288}")
        if o["grp"] == "h":
            A(f"s_lshr_b32 {sG}, {sH}, 3"); A(f"s_mov_b32 {sGT}, {sG}")
        elif o["grp"] == "hb":
            A(f"s_lshr_b32 {sGT}, {sH}, 3"); A(f"s_lshl_b32 {sGT}, {sGT}, 1"); A(f"s_and_b32 {sG}, {sB}, 1"); A(f"s_add_u32 {sG}, {sG}, {sGT}")
        else:
            A(f"s_mov_b32 {sG}, {sB}")
    if offs: k_addr(0, 0)
    A(f"s_mov_b32 s{sX+2}, 1280"); A(f"s_mov_b32 s{sX+3}, 0x20000")
    A(f"s_mov_b32 s{sK+2}, 393216"); A(f"s_mov_b32 s{sK+3}, 0x20000")
    if not o["early"]:
        A(f"s_sub_u32 s{sWQ+2}, {640*12288}, {sD}"); A(f"s_mov_b32 s{sWQ+3}, 0x20000")
        if o["pf0"]: code_pf0()
        A("s_waitcnt lgkmcnt(0)")
        if o["st0"]: A("s_memrealtime s[72:73]")
    A(f"s_add_u32 s{sX}, s4, {sC}"); A(f"s_addc_u32 s{sX+1}, s5, 0")
    A(f"s_add_u32 s{sK}, s6, {sA}"); A(f"s_addc_u32 s{sK+1}, s7, 0")
    if not o["early"]:
        A(f"s_add_u32 s{sWQ}, s10, {sD}"); A(f"s_addc_u32 s{sWQ+1}, s11, 0")

    def late_setup():
        if o["early"]: A("s_waitcnt lgkmcnt(0)")
        A(f"s_add_u32 s{sV}, s8, {sA}"); A(f"s_addc_u32 s{sV+1}, s9, 0")
        A(f"s_mov_b32 s{sV+2}, 393216"); A(f"s_mov_b32 s{sV+3}, 0x20000")
        A(f"s_add_u32 s{sOUT}, s20, {sC}"); A(f"s_addc_u32 s{sOUT+1}, s21, 0")
        A(f"s_mov_b32 s{sOUT+2}, 1280"); A(f"s_mov_b32 s{sOUT+3}, 0x20000")
        A(f"s_mul_i32 {sD}, {sH}, 245760")
        A(f"s_add_u32 s{sWO}, s12, {sD}"); A(f"s_addc_u32 s{sWO+1}, s13, 0")
        A(f"s_mov_b32 s{sWO+2}, 245760"); A(f"s_mov_b32 s{sWO+3}, 0x20000")
        A(f"s_and_b32 {sA}, {sH}, 7"); A(f"s_lshl_b32 {sA}, {sA}, 2"); A(f"s_lshr_b32 {sC}, {sH}, 3"); A(f"s_add_u32 {sA}, {sA}, {sC}")
        if o["w1bal"]:
            A(f"s_and_b32 {sD}, {sH}, 7"); A(f"s_mul_i32 {sD}, {sD}, 384")
        else: A(f"s_mul_i32 {sD}, {sA}, 96")
        A(f"s_add_u32 s{sW1}, s16, {sD}"); A(f"s_addc_u32 s{sW1+1}, s17, 0")
        A(f"s_sub_u32 s{sW1+2}, {640*3072}, {sD}"); A(f"s_mov_b32 s{sW1+3}, 0x20000")
        A(f"s_mul_i32 {sD}, {sA}, 61440")
        A(f"s_add_u32 s{sW2}, s18, {sD}"); A(f"s_addc_u32 s{sW2+1}, s19, 0")
        A(f"s_mov_b32 s{sW2+2}, 61440"); A(f"s_mov_b32 s{sW2+3}, 0x20000")
        A(f"s_mov_b32 s{sDBG}, s22"); A(f"s_mov_b32 s{sDBG+1}, s23"); A(f"s_mov_b32 s{sDBG+2}, 256"); A(f"s_mov_b32 s{sDBG+3}, 0x20000")
        A(f"s_mov_b32 s{sWS}, s24"); A(f"s_mov_b32 s{sWS+1}, s25"); A(f"s_mov_b32 s{sWS+2}, 0x1000000"); A(f"s_mov_b32 s{sWS+3}, 0x20000")
        if o["prof"]:
            A("s_mov_b32 s4, s100"); nstamp[0] = 1
            if o["st0"]:
                A("s_waitcnt lgkmcnt(0)"); A("s_mov_b32 s6, s72"); A("s_memrealtime s[8:9]"); nstamp[0] = 3
        for n in range(1, 16): unit_off(n)
        A(f"s_lshl_b32 {sA}, {sW}, 2"); A(f"s_add_u32 {sA}, {sA}, 512"); A(f"s_mul_i32 {sQB1}, {sA}, 12288")
        A(f"s_mul_i32 {sF0}, {sW}, {128*3072}")
        A(f"s_and_b32 {sA}, {sW}, 1"); A(f"s_lshl_b32 {sA}, {sA}, 5"); A(f"s_lshr_b32 {sC}, {sW}, 1"); A(f"s_add_u32 {sA}, {sA}, {sC}")
        A(f"s_add_u32 {sA}, {sA}, 512"); A(f"s_mul_i32 {sF1}, {sA}, 3072")
        A(f"s_sub_u32 {sA}, 8, {sW}"); A(f"s_lshl_b32 {sA}, {sA}, 7"); A(f"s_cmp_lt_u32 {sW}, 2"); A(f"s_cselect_b32 {sZ}, {sA}, 0x100000")
        A("s_mov_b32 s92, 0x01010101"); A("s_mov_b32 s93, 0x01010101")
        A(f"s_lshr_b32 {sSG}, s2, 3"); A(f"s_cmp_eq_u32 {sW}, 0"); A(f"s_cselect_b32 {sSG}, {sSG}, 64")
        if o["offs"]: A(f"v_mul_u32_u24 {t3}, 12, {t0}")
        else: A(f"v_mul_u32_u24 {t3}, 384, {vR8}")
        A(f"v_lshl_add_u32 {vV}, {vC}, 4, {t3}")
        A(f"v_lshrrev_b32 {t3}, 4, {vL}"); A(f"s_mul_i32 {sA}, {sW}, {16 if o['tsplit'] else 48}"); A(f"v_add_u32 {t3}, {sA}, {t3}")
        A(f"v_mul_u32_u24 {t3}, 1280, {t3}"); A(f"v_and_b32 {vWO}, 15, {vL}"); A(f"v_lshl_add_u32 {vWO}, {vWO}, 4, {t3}")
        A(f"v_lshrrev_b32 {t3}, 3, {t0}")
        A(f"v_lshl_add_u32 {t3}, {t1}, 1, {t3}")
        A(f"v_lshl_add_u32 {vW1}, {t2}, 3, {t3}")
        A(f"v_mul_u32_u24 {vW1}, 3072, {vW1}")
        A(f"v_min_u32 {vW2}, 5, {vC}")
        A(f"v_lshl_add_u32 {vW1}, {vW2}, 4, {vW1}")
        if o["w1bal"]:
            A(f"s_lshr_b32 {sA}, {sH}, 3"); A(f"s_mul_i32 {sA}, {sA}, 96"); A(f"v_add_u32 {vW1}, {sA}, {vW1}")
        A(f"v_add_u32 {t3}, {t3}, {t2}")
        A(f"v_mul_u32_u24 {t3}, 1280, {t3}")
        A(f"v_lshl_add_u32 {t3}, {vC}, 4, {t3}")
        A(f"s_lshl_b32 {sA}, {sW}, 8")
        A(f"v_add_u32 {vW2}, {sA}, {t3}")
        A(f"v_cmp_gt_u32 vcc, 4, {vC}")
        A(f"v_mov_b32 {t3}, 0xffff")
        A(f"v_and_b32 {vIDX}, 3, {vC}")
        A(f"v_cndmask_b32 {v(MK[0])}, 0, {t3}, vcc")
        A(f"v_mul_u32_u24 {vIDX}, 0x5555, {vIDX}")
        A(f"v_xor_b32 {v(MK[1])}, {t3}, {v(MK[0])}")
        A(f"v_lshlrev_b32 {v(MK[2])}, 16, {v(MK[0])}")
        A(f"v_lshlrev_b32 {v(MK[3])}, 16, {v(MK[1])}")
        A(f"v_lshrrev_b32 {t3}, 5, {vL}")
        A(f"v_lshl_add_u32 {t3}, {t1}, 1, {t3}")
        A(f"v_lshl_add_u32 {t3}, {t2}, 2, {t3}")
        A(f"v_lshl_add_u32 {t3}, {vC}, 3, {t3}")
        A(f"s_lshl_b32 {sA}, {sW}, 2")
        A(f"v_lshl_add_u32 {vREDW}, {t3}, 4, {sA}")
        A(f"s_mul_i32 {sA}, s2, {PS}"); A(f"s_mul_i32 {sC}, {sW}, 640"); A(f"s_add_u32 {sC}, {sA}, {sC}")
        A(f"v_lshl_add_u32 {vP1ST}, {vL}, 4, {sC}")
        if o["p32"]:
            A(f"s_mul_i32 {sC}, {sW}, 384"); A(f"s_add_u32 {sC}, {sA}, {sC}"); A(f"s_add_u32 {sC}, {sC}, {2560 - 640}")
            A(f"v_lshl_add_u32 {vHST}, {vL}, 4, {sC}")
        A(f"v_mov_b32 {t3}, {OOB}")
        A(f"v_cmp_gt_u32 vcc, 40, {vL}")
        A(f"s_mul_i32 {sA}, {sB}, 2560"); A(f"s_lshl_b32 {sC}, {sH}, 7"); A(f"s_add_u32 {sA}, {sA}, {sC}"); A(f"s_add_u32 {sA}, {sA}, {HB}")
        A(f"v_cndmask_b32 {vP1ST}, {vHST if o['p32'] else t3}, {vP1ST}, vcc")
        if o["hbar"]:
            A(f"s_lshl_b32 {sC}, s2, 7"); A(f"s_add_u32 {sC}, {sC}, {HB + 0x80000}")
            A(f"s_cmp_lt_u32 {sH}, 20"); A(f"s_cselect_b32 {sA}, {sA}, {sC}")
            A(f"s_cmp_eq_u32 {sW}, {o['redw']}"); A(f"s_cselect_b32 {sC}, 32, 0")
        else:
            A(f"s_cmp_lt_u32 {sH}, 20"); A(f"s_cselect_b32 {sC}, 32, 0"); A(f"s_cmp_eq_u32 {sW}, 0"); A(f"s_cselect_b32 {sC}, {sC}, 0")
        if o["hcopy"]:
            A(f"v_and_b32 {vHST}, 31, {vL}"); A(f"v_lshl_add_u32 {vHST}, {vHST}, 2, {sA}")
            A(f"v_lshl_add_u32 {vHST}, {t0}, 10, {vHST}"); A(f"s_lshl_b32 {sC}, {sC}, 1")
        else:
            A(f"v_lshl_add_u32 {vHST}, {vL}, 2, {sA}")
        A(f"v_cmp_gt_u32 vcc, {sC}, {vL}")
        if not o["tag"]:
            for k in range(4): A(f"v_mov_b32 {v(AF[1]+k)}, -1")
        A(f"v_cndmask_b32 {vHST}, {t3}, {vHST}, vcc")
        if o["tag"]:
            A(f"s_or_b32 {sA}, s2, {sW}"); A("s_cbranch_scc1 L_nononce")
            A(f"s_memrealtime s[{sPC}:{sPC+1}]"); A("s_waitcnt lgkmcnt(0)")
            A(f"s_mul_i32 {sA}, s{sPC}, 0x9e3779b1"); A(f"s_max_u32 {sA}, {sA}, 1")
            A("s_mov_b64 exec, 1")
            A(f"v_mov_b32 {t3}, {sA}")
            A(f"buffer_store_dword {t3}, off, {srd(sDBG)}, 0 sc1")
            A("s_mov_b64 exec, -1")
            A.label("L_nononce")

    DPPF = "row_mask:0xf bank_mask:0xf"
    def wave_reduce(op, reg, sdst, fill=()):
        fill = list(fill)
        steps = [f"quad_perm:[1,0,3,2] {DPPF}", f"quad_perm:[2,3,0,1] {DPPF}", f"row_half_mirror {DPPF}", f"row_mirror {DPPF}",
                 "row_bcast:15 row_mask:0xa bank_mask:0xf", "row_bcast:31 row_mask:0xc bank_mask:0xf"]
        for st in steps:
            for _ in range(2):
                if fill: A(fill.pop(0))
            A(f"{op}_dpp {reg}, {reg}, {reg} {st}")
        if fill: A(fill.pop(0))
        A(f"v_readlane_b32 {sdst}, {reg}, 63")
        for f in fill: A(f)
    def round_bf16(reg):
        A(f"v_cvt_pk_bf16_f32 {reg}, {reg}, {reg}")
        A(f"v_lshlrev_b32 {reg}, 16, {reg}")
    def layernorm(F, Wk, tp, out):
        p = lambda r: vr(r, 2)
        A(f"v_pk_add_f32 {p(tp)}, {p(F[0])}, {p(F[1])}")
        A(f"v_pk_add_f32 {p(tp+2)}, {p(F[2])}, {p(F[3])}")
        A(f"v_pk_add_f32 {p(tp)}, {p(tp)}, {p(F[4])}")
        A(f"v_pk_add_f32 {p(tp)}, {p(tp)}, {p(tp+2)}")
        A(f"v_add_f32 {v(tp)}, {v(tp)}, {v(tp+1)}")
        wave_reduce("v_add_f32", v(tp), sA, fill=[f"v_mov_b32 {v(tp+2)}, {hex(fbits(-1.0/640))}"])
        A(f"v_mul_f32 {v(tp)}, {sA}, {v(tp+2)}")
        A(f"v_mul_f32 {v(tp+1)}, {sA}, {v(tp+2)}")
        A(f"v_pk_add_f32 {p(tp+2)}, {p(F[0])}, {p(tp)}")
        A(f"v_pk_add_f32 {p(Wk[1])}, {p(F[1])}, {p(tp)}")
        A(f"v_pk_mul_f32 {p(tp+2)}, {p(tp+2)}, {p(tp+2)}")
        A(f"v_pk_add_f32 {p(Wk[2])}, {p(F[2])}, {p(tp)}")
        A(f"v_pk_fma_f32 {p(tp+2)}, {p(Wk[1])}, {p(Wk[1])}, {p(tp+2)}")
        A(f"v_pk_add_f32 {p(Wk[3])}, {p(F[3])}, {p(tp)}")
        A(f"v_pk_fma_f32 {p(tp+2)}, {p(Wk[2])}, {p(Wk[2])}, {p(tp+2)}")
        A(f"v_pk_add_f32 {p(Wk[1])}, {p(F[4])}, {p(tp)}")
        A(f"v_pk_fma_f32 {p(tp+2)}, {p(Wk[3])}, {p(Wk[3])}, {p(tp+2)}")
        A(f"v_pk_fma_f32 {p(tp+2)}, {p(Wk[1])}, {p(Wk[1])}, {p(tp+2)}")
        A(f"v_add_f32 {v(tp+2)}, {v(tp+2)}, {v(tp+3)}")
        a, b, c = Wk[0], Wk[4], Wk[1]
        fill = [f"v_cvt_pk_bf16_f32 {v(tp)}, {v(tp)}, {v(tp)}",
                f"v_lshlrev_b32 {v(tp+1)}, 16, {v(tp)}",
                f"v_lshlrev_b32 {v(tp)}, 16, {v(tp)}",
                f"v_pk_add_f32 {p(a)}, {p(F[0])}, {p(tp)}",
                f"v_pk_add_f32 {p(b)}, {p(F[4])}, {p(tp)}",
                f"v_cvt_pk_bf16_f32 {v(c)}, {v(a)}, {v(a+1)}",
                f"v_cvt_pk_bf16_f32 {v(c+1)}, {v(b)}, {v(b+1)}",
                f"v_lshlrev_b32 {v(a)}, 16, {v(c)}",
                f"v_and_b32 {v(a+1)}, 0xffff0000, {v(c)}",
                f"v_lshlrev_b32 {v(b)}, 16, {v(c+1)}",
                f"v_and_b32 {v(b+1)}, 0xffff0000, {v(c+1)}",
                f"v_mov_b32 {v(tp+4)}, {hex(fbits(1.0/640))}"]
        wave_reduce("v_add_f32", v(tp+2), sA, fill=fill)
        A(f"v_mul_f32 {v(tp)}, {sA}, {v(tp+4)}")
        round_bf16(v(tp))
        A(f"v_add_f32 {v(tp)}, {hex(fbits(1e-5))}, {v(tp)}")
        round_bf16(v(tp))
        A(f"v_sqrt_f32 {v(tp)}, {v(tp)}")
        round_bf16(v(tp))
        A(f"v_rcp_f32 {v(tp)}, {v(tp)}")
        A(f"v_mul_f32 {v(a)}, {v(a)}, {v(tp)}")
        A(f"v_mul_f32 {v(a+1)}, {v(a+1)}, {v(tp)}")
        A(f"v_cvt_pk_bf16_f32 {v(out)}, {v(a)}, {v(a+1)}")
        A(f"v_mul_f32 {v(b)}, {v(b)}, {v(tp)}")
        A(f"v_mul_f32 {v(b+1)}, {v(b+1)}, {v(tp)}")
        A(f"v_mov_b32_dpp {v(out+1)}, {v(out)} row_half_mirror {DPPF}")
        A(f"v_cvt_pk_bf16_f32 {v(out+2)}, {v(b)}, {v(b+1)}")
        A(f"v_mov_b32_dpp {v(out+3)}, {v(out+2)} row_half_mirror {DPPF}")
    def afrag_oct(dst, P, c0):
        lo, hi = ((P, c0), (P + 1, 3 - c0)) if c0 < 4 else ((P + 1, 7 - c0), (P, c0 - 4))
        out = []
        for k in range(4):
            src, x = lo if k % 2 == 0 else hi
            out.append(f"v_and_b32_dpp {v(dst+k)}, {v(src)}, {v(MK[k])} quad_perm:[{x},{x},{x},{x}] {DPPF}")
        return out
    def smf(d, a, slot):
        A(f"v_smfmac_f32_16x16x64_bf16 {vr(d,4)}, {vr(a,4)}, {slot[0]}[{slot[1]}:{slot[1]+7}], {vIDX}")
    def compact(blocks):
        for d in blocks:
            A(f"v_permlane32_swap_b32 {v(d)}, {v(d+1)}")
            A(f"v_permlane32_swap_b32 {v(d+2)}, {v(d+3)}")
        for d in blocks:
            A(f"v_add_f32_dpp {v(d)}, {v(d+1)}, {v(d)} row_ror:8 row_mask:0xf bank_mask:0x3")
        for d in blocks:
            A(f"v_add_f32_dpp {v(d)}, {v(d+2)}, {v(d+3)} row_ror:8 row_mask:0xf bank_mask:0xc")

    def signal(lbl, k=None):
        if k is None: A(f"s_cmp_lg_u32 {sW}, 0")
        else: A(f"s_cmp_lg_u32 {sSG}, {k}")
        A(f"s_cbranch_scc1 {lbl}")
        if k is None: signal_body()
        else: A(f"s_call_b64 {sRA}, L_signal")
        A.label(lbl)
    def signal_body():
        A(f"s_lshl_b32 {sT2}, {sB}, 5")
        A("s_mov_b64 exec, 1")
        A(f"v_mov_b32 {vWQ}, 1")
        if not o["nosig"]: A(f"buffer_atomic_add {vWQ}, off, {srd(sDBG)}, {sT2} sc1")
        A("s_mov_b64 exec, -1")

    freeA = [("a", 8 * i) for i in range(32)]
    freeV = [("v", 64 + 8 * i) for i in range(24)]
    halfV = []
    slots = {}
    def can_alloc(kind):
        if kind == "pair": return bool(freeA or freeV)
        if kind == "half": return bool(halfV or freeV)
        return True
    def alloc(kind, key, preferV=False):
        if kind == "pair":
            s = (freeV if (preferV and freeV) or not freeA else freeA).pop(0)
        else:
            if not halfV:
                s = freeV.pop(0); halfV.extend([s, (s[0], s[1] + 4)])
            s = halfV.pop(0)
        slots[key] = s
        return s
    def release(kind, key):
        s = slots.pop(key)
        if kind == "pair":
            (freeA if s[0] == "a" else freeV).append(s)
        else:
            mate = (s[0], s[1] ^ 4)
            if mate in halfV:
                halfV.remove(mate); freeV.append((s[0], s[1] & ~7))
            else: halfV.append(s)

    def tile_load(reg, vaddr, sr, soff, imm, pol):
        A(f"buffer_load_dwordx4 {reg[0]}[{reg[1]}:{reg[1]+3}], {vaddr}, {srd(sr)}, {soff} offen offset:{imm} {pol}".rstrip())
    def mk_pair(key, Tt, vaddr, sr, soff_fn, imm, pol, preferV=False):
        def emit():
            s = alloc("pair", key, preferV) if key not in slots else slots[key]
            tile_load((s[0], s[1] + 4 * Tt), vaddr, sr, soff_fn(), imm, pol)
        return dict(tag=key + (Tt,), need="pair" if Tt == 0 else None, emit=emit)
    last_soff = [None]
    def soff_add(base, const):
        def f():
            if last_soff[0] != (base, const):
                if base is None: A(f"s_mov_b32 {sT}, {const}")
                else: A(f"s_add_u32 {sT}, {base}, {const}")
                last_soff[0] = (base, const)
            return sT
        return f
    Lx = []
    for s_ in range(4):
        def emit(s_=s_):
            A(f"s_add_u32 {sT}, {sW}, {s_}"); A(f"s_and_b32 {sT}, {sT}, 3"); A(f"s_lshl_b32 {sT}, {sT}, 8")
            A(f"buffer_load_dword {v(T+s_)}, {v(T+5)}, {srd(sX)}, {sT} offen")
        Lx.append(dict(tag=("x", s_), need=None, emit=emit))
    Lx.append(dict(tag=("x", 4), need=None, emit=lambda: A(f"buffer_load_dword {v(T+4)}, {v(T+6)}, {srd(sX)}, 0 offen offset:1024")))
    Lwq = []
    for u in range(10):
        for t in range(3):
            for Tt in range(2):
                base, rows = (sQB0, 64 * Tt + 2 * u) if u < 8 else (sQB1, 64 * Tt + 2 * (u - 8))
                Lwq.append(mk_pair(("wq", u, t), Tt, vWQ, sWQ, soff_add(base, rows * 12288), 128 * t, o["polW"]))
    def next_addr(n, hB):
        j = 2 * n + hB + 1
        if j < 32: k_addr(j >> 1, j & 1)
        else: v_addr(0); v_addr(1)
    LK = []
    for n in range(16):
        for hB in range(2):
            for t in range(3):
                def emit(n=n, hB=hB, t=t):
                    s = alloc("half", ("k", n, hB, t))
                    if offs: tile_load(s, vK, sK, sSO[0], t * 128, o["polKV"])
                    else: tile_load(s, vK, sK, f"s{sU+n}", hB * 768 + t * 128, o["polKV"])
                    if offs and t == 2: next_addr(n, hB)
                def emitL(n=n, hB=hB, t=t):
                    imm = t * 128 if offs else hB * 768 + t * 128
                    A(f"s_add_u32 m0, {sKL}, {((2 * n + hB) * 3 + t) * 1024 - imm}")
                    A("s_nop 0")
                    A(f"buffer_load_dwordx4 {vK}, {srd(sK)}, {sSO[0] if offs else 's%d' % (sU+n)} offen offset:{imm} {o['polKV']} lds")
                    if offs and t == 2: next_addr(n, hB)
                if 2 * n + hB < o["nL"]: LK.append(dict(tag=("k", n, hB, t), need=None, emit=emitL))
                else: LK.append(dict(tag=("k", n, hB, t), need="half", emit=emit))
    LV = []
    for n in range(16):
        for t in range(3):
            for Tt in range(2):
                if offs:
                    it = mk_pair(("v", n, t), Tt, (vV, vK)[n & 1], sV, (lambda n=n: sSO[n & 1]), Tt * 768 + t * 128, o["polKV"], preferV=True)
                    if t == 2 and Tt == 1 and n + 2 < 16:
                        it["emit"] = (lambda e=it["emit"], n=n: (e(), v_addr(n + 2)))
                    LV.append(it)
                else:
                    LV.append(mk_pair(("v", n, t), Tt, vV, sV, (lambda n=n: f"s{sU+n}"), Tt * 3072 + t * 128, o["polKV"], preferV=True))
    if o["vorder"] == "T":
        nT = 14 if o["tsplit"] else 16
        LV = [it for n in range(nT) for Tt in range(2) for it in LV[6*n:6*n+6] if it["tag"][3] == Tt] + LV[6*nT:]
    if o["tsplit"]:
        LV = LV[:84] + [it for t in range(3) for n in (14, 15) for it in LV[84:] if it["tag"][1:3] == (n, t)]
    Lwo = []
    for u in range(6):
        for blk in range(5):
            for Tt in range(2):
                row0 = (64 * (u >> 1) + 8 * (u & 1) if o["tsplit"] else 8 * u) + 4 * Tt
                Lwo.append(mk_pair(("wo", u, blk), Tt, vWO, sWO, soff_add(None, row0 * 1280), blk * 256, o["polW"]))
    Lw1 = []
    for u in range(10):
        for Tt in range(2):
            base, rows = (sF0, 64 * Tt + 16 * (u & 3) + (u >> 2)) if u < 8 else (sF1, 64 * Tt + 16 * (u - 8))
            Lw1.append(mk_pair(("w1", u), Tt, vW1, sW1, soff_add(base, rows * 3072), 0, o["polW"]))
    Lw2 = []
    for u in range(3):
        for blk in range(3):
            for Tt in range(2):
                rows = 16 * u + 8 * Tt
                if blk < 2: Lw2.append(mk_pair(("w2", u, blk), Tt, vW2, sW2, soff_add(None, rows * 1280), blk * 128, o["polW"]))
                else: Lw2.append(mk_pair(("w2", u, blk), Tt, vW2, sW2, soff_add(sZ, rows * 1280), 0, o["polW"]))
    def misc(tag, fn): return dict(tag=tag, need=None, emit=fn)
    def mix(*lists):
        lists = [l for l in lists if l]
        items = []
        for li, l in enumerate(lists):
            for i, it in enumerate(l): items.append(((i + 0.5) / len(l), li, it))
        items.sort(key=lambda z: (z[0], z[1]))
        return [z[2] for z in items]
    def clr1():
        if o["noclr"]: A(f"buffer_load_dword {v(AF[1])}, off, {srd(sX)}, 0"); return
        A(f"buffer_store_dwordx4 {vr(AF[1],4)}, {vP1ST}, {srd(sWS)}, 0 offen {o['polC']}")
    def clr2():
        if o["noclr"]: A(f"buffer_load_dword {v(AF[1])}, off, {srd(sX)}, 0"); return
        A(f"s_mov_b32 {sT}, {P2}"); last_soff[0] = None
        A(f"buffer_store_dwordx4 {vr(AF[1],4)}, {vP1ST}, {srd(sWS)}, {sT} offen {o['polC']}")
    def clr3():
        if o["noclr"]: A(f"buffer_load_dword {v(AF[1])}, off, {srd(sX)}, 0"); return
        A(f"buffer_store_dword {v(AF[1])}, {vHST}, {srd(sWS)}, 0 offen {o['polC']}")
    def code_pf(label, reg, areg):
        def f():
            A(f"s_getpc_b64 s[{sPC}:{sPC+1}]")
            here = f"L_pc_{label}"
            A.label(here)
            A(f"s_add_u32 s{sPC}, s{sPC}, {label}-{here}"); A(f"s_addc_u32 s{sPC+1}, s{sPC+1}, 0")
            A(f"v_lshlrev_b32 {areg}, 7, {vL}")
            A(f"v_min_u32 {areg}, L_last-{label}, {areg}")
            A(f"global_load_dword {reg}, {areg}, s[{sPC}:{sPC+1}]")
        return f
    def cntload():
        if o["tag"]:
            A(f"buffer_load_dword {tCNT}, off, {srd(sDBG)}, 0 sc1"); return
        A(f"s_lshl_b32 {sT}, {sB}, 5"); last_soff[0] = None
        A(f"buffer_load_dword {tCNT}, off, {srd(sX if o['nosig'] else sDBG)}, {sT} sc1")
    extra = [misc(("xr",), lambda: A(f"buffer_load_ushort {tXR}, {tXR}, {srd(sX)}, 0 offen"))]
    if o["codepf"]: extra.append(misc(("pf",), code_pf("L_tail", tPF, tPF)))
    clrs = [misc(("clr", 0), clr1), misc(("clr", 1), clr2), misc(("clr", 2), clr3)]
    if o["tag"]: clrs = []
    qbar_done = [False]
    def warm_lines(msk=None):
        n_ = 0
        wm = o["warm"] & ~o["warm2"] if msk is None else msk
        o_ = dict(o); o_["warm"] = wm
        return warm_lines_(o_)
    def warm_lines_(o):
        n_ = 0
        if o["warm"] & 1:
            A(f"buffer_load_dword {v(T+12)}, {vP1ST}, {srd(sWS)}, 0 offen {o['polWm']}"); n_ += 1
        if o["warm"] & 2:
            for k in range(4 if o["hcopy"] else 1):
                A(f"s_mov_b32 {sT2}, {k * 0x10000}")
                A(f"buffer_load_dword {v(T+12)}, {vHST}, {srd(sWS)}, {sT2} offen {o['polWm']}"); n_ += 1
        if o["warm"] & 4:
            A(f"buffer_load_dword {v(T+12)}, {tP2ST}, {srd(sWS)}, 0 offen {o['polWm']}"); n_ += 1
        return n_
    hooks = {}
    subs = []
    if not o["burst"]:
        phA = mix(Lwq, LK[:o["nKA"]])
        phB = mix(LK[o["nKA"]:], Lwo[:o["nWOB"]])
        rest = Lwo[o["nWOB"]:] + Lw1 + Lw2
        nlast = o["wlast"]
        phC = mix(LV, rest[:len(rest) - nlast]) + rest[len(rest) - nlast:]
        nfirst = o["WA"] - len(Lx)
        phA = phA[:nfirst] + clrs + phA[nfirst:]
        k = len(phC) * 2 // 3
        phC = phC[:k] + extra + phC[k:]
        k = len(phC) - nlast - o["WC"]
        phC = phC[:k] + [misc(("cnt",), cntload)] + phC[k:]
        seq = Lx + phA + phB + phC
        Wn = [o["WA"]] * (len(Lx) + len(phA)) + [o["WB"]] * len(phB) + [o["WC"]] * len(phC)
    else:
        NG = 4 if o["grp"] == "h" else 8
        KV = LK + LV
        pol = o["polT"]
        vDUM = v(T + 12)
        vTA = v(T + 11)
        def touch(areg, sr, soff, dst=vDUM, lanes=None):
            if lanes is not None:
                m = ((1 << lanes[1]) - 1) ^ ((1 << lanes[0]) - 1)
                A(f"s_mov_b32 exec_lo, {hex(m & 0xffffffff)}"); A(f"s_mov_b32 exec_hi, {hex(m >> 32)}")
                touch(areg, sr, soff, dst); A("s_mov_b64 exec, -1")
                return
            A(f"buffer_load_dword {dst}, {areg}, {srd(sr)}, {soff} offen {pol}")
            if o["touch64"]: A(f"buffer_load_dword {dst}, {areg}, {srd(sr)}, {soff} offen offset:64 {pol}")
            if o["polT2"] is not None: A(f"buffer_load_dword {dst}, {areg}, {srd(sr)}, {soff} offen {o['polT2']}")
        ncond = [0]
        def cond(sreg, k, fn):
            def f():
                lbl = f"L_skip{ncond[0]}"; ncond[0] += 1
                A(f"s_cmp_lg_u32 {sreg}, {k}"); A(f"s_cbranch_scc1 {lbl}")
                fn(); A.label(lbl); last_soff[0] = None
            return f
        def reserve(lst):
            def f():
                if lst[0]["tag"][0] == "wo": assert len(freeA) >= 30, "wo reserved before the q projection finished"
                for it in lst:
                    if it["need"]:
                        while not can_alloc("pair"): force_now()
                        freeV.sort(key=lambda z: -z[1])
                        alloc("pair", it["tag"][:-1])
                if not (lst[0]["tag"][0] == "w1" and o["w12late"]): subs.append((lst[0]["tag"][0], lst, dict(slots)))
            return f
        def piece(nl, p_, np_): return (nl * p_ // np_, nl * (p_ + 1) // np_)
        def touch_wo(p_=0, np_=1):
            a = vTA
            A(f"s_lshl_b32 {sT2}, {sB}, 2"); A(f"s_add_u32 {sT2}, {sT2}, {sW}"); A(f"s_mul_i32 {sT2}, {sT2}, {60*128}")
            A(f"v_lshlrev_b32 {a}, 7, {vL}"); touch(a, sWO, sT2, lanes=piece(60, p_, np_))
        def touch_w2(p_=0, np_=1, a=None):
            a = a or v(T + 9)
            A(f"s_lshl_b32 {sT2}, {sB}, 2"); A(f"s_add_u32 {sT2}, {sT2}, {sW}"); A(f"s_mul_i32 {sT2}, {sT2}, {15*128}")
            A(f"v_lshlrev_b32 {a}, 7, {vL}"); touch(a, sW2, sT2, lanes=piece(15, p_, np_))
        def touch_w12(p_=0, np_=1):
            a = vTA
            if o["w1bal"]:
                A(f"s_lshr_b32 {sT2}, s2, 3"); A(f"s_lshl_b32 {sT2}, {sT2}, 2"); A(f"s_add_u32 {sT2}, {sT2}, {sW}"); A(f"s_mul_i32 {sT2}, {sT2}, {5*3072}")
                A(f"v_mul_u32_u24 {a}, 21846, {vL}"); A(f"v_lshrrev_b32 {a}, 16, {a}")
                A(f"v_mul_u32_u24 {a}, {3072 - 384}, {a}"); A(f"v_lshl_add_u32 {a}, {vL}, 7, {a}")
                touch(a, sW1, sT2, lanes=piece(15, p_, np_))
            else:
                A(f"s_lshl_b32 {sT2}, {sB}, 2"); A(f"s_add_u32 {sT2}, {sT2}, {sW}"); A(f"s_mul_i32 {sT2}, {sT2}, {20*3072}")
                A(f"v_and_b32 {a}, 1, {vL}"); A(f"v_mul_u32_u24 {a}, {1536 - 92}, {a}")
                A(f"v_mul_u32_u24 {vWQ}, 1536, {vL}"); A(f"v_sub_u32 {a}, {vWQ}, {a}")
                touch(a, sW1, sT2, lanes=piece(40, p_, np_))
            if o["nlateW"] < 18: touch_w2(p_, np_, a)
        tb_ = o["b0"] - o["tlead"] if o["tB"] is None else o["tB"]
        tc_ = o["c0"] - o["tlead"] if o["tC"] is None else o["tC"]
        assert o["grp"] == "b" and tb_ >= 6 and tc_ > tb_ + o["W"]
        def hook(i, fn): hooks.setdefault(KV[i]["tag"], []).append(fn)
        Lw12 = Lw1 + Lw2
        Llate = Lw12[len(Lw12) - o["nlateW"]:]; Lw12 = Lw12[:len(Lw12) - o["nlateW"]]
        if o["nlateW"] >= 18 and o["tlate"] < 192: hook(o["tlate"], lambda: touch_w2())
        for base, step, lst, tfn in ((o["a0"], o["da"], Lwq, None), (o["b0"], o["db"], Lwo, touch_wo), (o["c0"], o["dc"], Lw12, touch_w12)):
            nm = lst[0]["tag"][0]
            hook(base, reserve(lst))
            for k in range(NG):
                if tfn and o["touch"] and (o["grp"] == "h" or (o["grp"] == "hb" and k % 2 == 0) or k == 0):
                    tp = o["tB"] if nm == "wo" else o["tC"]
                    tp = base - o["tlead"] if tp is None else tp
                    for p_ in range(o["tws"]):
                        hook(tp - (o["tws"] - 1 - p_) * o["dtw"], lambda p_=p_, tfn=tfn: tfn(p_, o["tws"]))
                if not (nm == "w1" and o["w12late"]):
                    hook(base + k * step, cond(sG, k, lambda nm=nm: A(f"s_call_b64 {sRA}, L_burst_{nm}")))
        if o["dsig"]:
            for k in range(32):
                def f(k=k):
                    assert qbar_done[0]
                    signal(f"L_sig{k}", k)
                hook(o["sig0"] + k * o["dsig"], f)
        if o["warmpos"] < 192: hook(o["warmpos"], warm_lines)
        lastA = KV[o["a0"] + (NG - 1) * o["da"]]["tag"]
        lastB = KV[o["b0"] + (NG - 1) * o["db"]]["tag"]
        lastC = KV[o["c0"] + (NG - 1) * o["dc"]]["tag"]
        t0l = [misc(("tq",), lambda: touch(vT2, sWQ, sQT, vT1, lanes=(0, 60)))] if o["touch"] else []
        if o["early"]: t0l = []
        if o["tqs"] and o["touch"]:
            t0l = []
            for p_, at in enumerate(o["tqs"]):
                hook(at, lambda p_=p_: touch(vT2, sWQ, sQT, vT1, lanes=piece(60, p_, len(o["tqs"]))))
            assert max(o["tqs"]) < o["a0"]
        k1 = 150; k2 = 151 if o["tag"] else 192 - o["W"]
        head = (KV[:3] + t0l + Lx + KV[3:6]) if o["kfirst"] else (Lx + t0l + KV[:6])
        seq = head + clrs + KV[6:k1] + extra + KV[k1:k2] + [misc(("cnt",), cntload)] + KV[k2:]
        nhead = len(Lx) + len(t0l) + 6 + len(clrs)
        Wn = [nhead + 2] * (nhead + 2) + [o["W"]] * (len(seq) - nhead - 2)
        if o["Ws"]:
            kvpos = {it["tag"]: i for i, it in enumerate(KV)}
            cw, acc = o["W"], 0.0
            for i, it in enumerate(seq):
                for p_, w_ in o["Ws"]:
                    if kvpos.get(it["tag"]) == p_: cw = w_
                if i >= nhead + 2:
                    acc += cw - int(cw)
                    Wn[i] = int(cw) + (1 if acc >= 0.999 else 0)
                    if acc >= 0.999: acc -= 1
    pos = {it["tag"]: i for i, it in enumerate(seq)}

    acts = []
    def act(needs, fn, before=None): acts.append(dict(needs=[pos[t] for t in needs], fn=fn))
    def a_lnx():
        A.comment("LayerNorm(x)")
        if o["st0"]: stamp()
        F = D
        for s_ in range(5):
            A(f"v_lshlrev_b32 {v(F+2*s_)}, 16, {v(T+s_)}")
            A(f"v_and_b32 {v(F+2*s_+1)}, 0xffff0000, {v(T+s_)}")
        layernorm([F + 2 * k for k in range(5)], [F + 2 * k for k in range(5)], T, S)
        for k in range(12): A(f"v_mov_b32 {v(D+k)}, 0")
    act([("x", s_) for s_ in range(5)], a_lnx)
    setup_tag = ("k", 1, 0, 0) if o["tag"] else ("clr", 0)
    assert pos[("k", 1, 0, 0)] >= pos[setup_tag]
    if o["burst"]:
        for it in Lwq: pos[it["tag"]] = pos[lastA]
        for it in Lwo: pos[it["tag"]] = pos[lastB]
        assert o["a0"] >= 6
    else:
        assert pos[("wq", 8, 0, 0)] > pos[("clr", 0)]
        assert pos[("x", 4)] + o["WA"] > pos[("clr", 2)]
    for u in range(10):
        for t in range(3):
            def f(u=u, t=t):
                if t == 0:
                    for ins in afrag_oct(AF[u & 1], S + 2 * (u >> 3), u & 7): A(ins)
                smf(D + 4 * t, AF[u & 1], slots[("wq", u, t)]); release("pair", ("wq", u, t))
            act([("wq", u, t, 1)], f); acts[-1]["cost"] = 0.2 if o["burst"] else 1
    def a_qred1():
        A.comment("q: cross-wave reduction")
        compact([D, D + 4, D + 8])
        for t in range(3): A(f"ds_write_b32 {vREDW}, {v(D+4*t)} offset:{RED + 1024*t}")
        A(f"v_lshlrev_b32 {v(T)}, 4, {vL}")
        A(f"s_mul_i32 {sA}, {sW}, 384")
        A(f"v_lshl_add_u32 {v(T+1)}, {vL}, 1, {sA}")
        A(f"v_and_b32 {v(T+2)}, 7, {vL}")
        A(f"v_lshl_add_u32 {v(T+2)}, {v(T+2)}, 4, {sA}")
        A("s_waitcnt lgkmcnt(0)")
        A("s_barrier")
        for t in range(3): A(f"ds_read_b128 {vr(D+4*t,4)}, {v(T)} offset:{RED + 1024*t}")
        if o["burst"] and o["dsig"] == 0 and not o["tag"]: signal("L_nosig")
        qbar_done[0] = True
    act([] if o["tag"] else [("clr", 2)], a_qred1)
    def a_qred2():
        A("s_waitcnt lgkmcnt(0)")
        for t in range(3):
            d = D + 4 * t
            A(f"v_pk_add_f32 {vr(d,2)}, {vr(d,2)}, {vr(d+2,2)}")
        for t in range(3):
            d = D + 4 * t
            A(f"v_add_f32 {v(d)}, {v(d)}, {v(d+1)}")
        for t in range(3):
            d = D + 4 * t
            A(f"v_cvt_pk_bf16_f32 {v(d)}, {v(d)}, {v(d)}")
        for t in range(3): A(f"ds_write_b16 {v(T+1)}, {v(D+4*t)} offset:{QB + 128*t}")
        A("s_waitcnt lgkmcnt(0)")
        for t in range(3): A(f"ds_read_b128 {vr(Q+4*t,4)}, {v(T+2)} offset:{QB + 128*t}")
        for k in range(12): A(f"v_mov_b32 {v(D+k)}, 0")
        A("s_waitcnt lgkmcnt(0)")
        if not o["st0"]: stamp()
    act([], a_qred2)
    nLu = o["nL"] // 2
    order = list(range(nLu, nLu + o["rL"])) + list(range(nLu)) + list(range(nLu + o["rL"], 16)) if nLu else list(range(16))
    vKL = v(T + 3)
    def lds_reads(n, hB):
        for t in range(3):
            while not can_alloc("half"): raise AssertionError("no register for LDS K tile")
            s = alloc("half", ("k", n, hB, t))
            A(f"ds_read_b128 v[{s[1]}:{s[1]+3}], {vKL} offset:{((2 * n + hB) * 3 + t) * 1024}")
    halves = [(n, hB) for n in order for hB in range(2)]
    for i, (n, hB) in enumerate(halves):
        def f(i=i, n=n, hB=hB):
            if i == 0 and nLu: A(f"v_lshl_add_u32 {vKL}, {vL}, 4, {sKL}")
            if n < nLu: A("s_waitcnt lgkmcnt(0)")
            if i + 1 < 32 and halves[i + 1][0] < nLu: lds_reads(*halves[i + 1])
            acc = v(T + hB)
            first = True
            for t in range(3):
                s = slots[("k", n, hB, t)]
                for k in range(4):
                    if first: A(f"v_dot2_f32_bf16 {acc}, v{s[1]+k}, {v(Q+4*t+k)}, 0"); first = False
                    else: A(f"v_dot2_f32_bf16 {acc}, v{s[1]+k}, {v(Q+4*t+k)}, {acc}")
                release("half", ("k", n, hB, t))
            if hB == 1:
                A(f"s_lshl_b64 vcc, {sLM}, {n & 7}")
                for st in (f"quad_perm:[1,0,3,2] {DPPF}", f"quad_perm:[2,3,0,1] {DPPF}", f"row_half_mirror {DPPF}"):
                    for hh in range(2): A(f"v_add_f32_dpp {v(T+hh)}, {v(T+hh)}, {v(T+hh)} {st}")
                for hh in range(2):
                    d = v(S + 2 * (n >> 3) + hh)
                    A(f"v_cndmask_b32 {d}, {d}, {v(T+hh)}, vcc")
        act([("k", n, hB, 2)], f); acts[-1]["cost"] = o["qkcost"]
    assert not nLu or o["rL"] >= 1
    def a_soft1():
        A.comment("softmax statistics")
        if not o["st0"]: stamp()
        A(f"v_mov_b32 {v(T+4)}, {hex(fbits(192 ** -0.5))}")
        for rnd in range(2):
            for k in range(2): A(f"v_cvt_pk_bf16_f32 {v(T+k)}, {v(S+2*k)}, {v(S+2*k+1)}")
            for k in range(2):
                A(f"v_lshlrev_b32 {v(S+2*k)}, 16, {v(T+k)}")
                A(f"v_and_b32 {v(S+2*k+1)}, 0xffff0000, {v(T+k)}")
            if rnd == 0:
                for k in range(4): A(f"v_mul_f32 {v(S+k)}, {v(S+k)}, {v(T+4)}")
        A(f"v_max3_f32 {v(T)}, {v(S)}, {v(S+1)}, {v(S+2)}")
        A(f"v_max_f32 {v(T)}, {v(T)}, {v(S+3)}")
        wave_reduce("v_max_f32", v(T), sA, fill=[f"v_mov_b32 {v(T+8)}, {hex(LOG2E)}", f"s_lshl_b32 {sC}, {sW}, 3", f"v_mov_b32 {v(T+9)}, {sC}", f"v_mov_b32 {v(T+10)}, 0"])
        for k in range(4): A(f"v_subrev_f32 {v(T+k)}, {sA}, {v(S+k)}")
        for k in range(4): A(f"v_mul_f32 {v(T+k)}, {v(T+k)}, {v(T+8)}")
        for k in range(4): A(f"v_exp_f32 {v(T+k)}, {v(T+k)}")
        A(f"v_mov_b32 {v(T+4)}, {sA}")
        A(f"v_pk_add_f32 {vr(T,2)}, {vr(T,2)}, {vr(T+2,2)}")
        A(f"v_add_f32 {v(T)}, {v(T)}, {v(T+1)}")
        wave_reduce("v_add_f32", v(T), sC)
        A(f"v_mov_b32 {v(T+5)}, {sC}")
        A(f"ds_write_b64 {v(T+9)}, {vr(T+4,2)} offset:{SM}")
    act([], a_soft1)
    def a_soft2():
        A("s_waitcnt lgkmcnt(0)")
        A("s_barrier")
        A(f"ds_read_b128 {vr(T,4)}, {v(T+10)} offset:{SM}")
        A(f"ds_read_b128 {vr(T+4,4)}, {v(T+10)} offset:{SM+16}")
        if not (o["burst"] and o["dsig"] is not None): signal("L_nosig")
        A("s_waitcnt lgkmcnt(0)")
        A(f"v_max3_f32 {v(T+9)}, {v(T)}, {v(T+2)}, {v(T+4)}")
        A(f"v_max_f32 {v(T+9)}, {v(T+9)}, {v(T+6)}")
        for k in range(4): A(f"v_sub_f32 {v(T+2*k)}, {v(T+2*k)}, {v(T+9)}")
        for k in range(4): A(f"v_sub_f32 {v(S+k)}, {v(S+k)}, {v(T+9)}")
        for k in range(4): A(f"v_mul_f32 {v(T+2*k)}, {v(T+2*k)}, {v(T+8)}")
        for k in range(4): A(f"v_mul_f32 {v(S+k)}, {v(S+k)}, {v(T+8)}")
        for k in range(4): A(f"v_exp_f32 {v(T+2*k)}, {v(T+2*k)}")
        for k in range(4): A(f"v_exp_f32 {v(S+k)}, {v(S+k)}")
        A(f"v_mul_f32 {v(T)}, {v(T)}, {v(T+1)}")
        for k in range(1, 4): A(f"v_fmac_f32 {v(T)}, {v(T+2*k)}, {v(T+2*k+1)}")
        A(f"v_rcp_f32 {v(T)}, {v(T)}")
        for k in range(4): A(f"v_mul_f32 {v(S+k)}, {v(S+k)}, {v(T)}")
        A(f"v_cvt_pk_bf16_f32 {v(S)}, {v(S)}, {v(S+1)}")
        A(f"v_cvt_pk_bf16_f32 {v(S+2)}, {v(S+2)}, {v(S+3)}")
        A(f"v_mov_b32_dpp {v(S+1)}, {v(S)} row_half_mirror {DPPF}")
        A(f"v_mov_b32_dpp {v(S+3)}, {v(S+2)} row_half_mirror {DPPF}")
        if not o["st0"]: stamp()
    act([], a_soft2)
    sRD = [f"s{sWQ+k}" for k in range(4)]
    sHL = [f"s{sK+k}" for k in range(4)]
    def a_tailprep():
        A.comment("addresses used by the tail")
        c, r8, i16, b4, b3, b5, tt, oob = [v(T + k) for k in range(8)]
        A(f"v_and_b32 {c}, 7, {vL}"); A(f"v_lshrrev_b32 {r8}, 3, {vL}"); A(f"v_and_b32 {i16}, 15, {vL}")
        A(f"v_bfe_u32 {b4}, {vL}, 4, 1"); A(f"v_bfe_u32 {b3}, {vL}, 3, 1"); A(f"v_lshrrev_b32 {b5}, 5, {vL}")
        A(f"v_mov_b32 {oob}, {OOB}")
        A(f"v_min_u32 {tt}, {1 if o['tsplit'] else 5}, {i16}"); A(f"v_lshlrev_b32 {tt}, 7, {tt}")
        A(f"v_lshrrev_b32 {tO_R}, 4, {vL}"); A(f"v_lshl_add_u32 {tO_R}, {tO_R}, 5, {tt}")
        A(f"s_mul_i32 {sA}, {sW}, {256 if o['tsplit'] else 768}"); A(f"v_add_u32 {tO_R}, {sA}, {tO_R}")
        A(f"v_lshlrev_b32 {tt}, 9, {b5}"); A(f"v_lshl_add_u32 {tt}, {i16}, 5, {tt}"); A(f"v_lshl_add_u32 {tt}, {b4}, 4, {tt}")
        A(f"s_mul_i32 {sA}, {sW}, 3072"); A(f"v_add_u32 {tR2W}, {sA}, {tt}")
        A(f"s_mul_i32 {sA}, {sW}, 5"); A(f"v_add_u32 {tt}, {sA}, {r8}")
        A(f"v_lshrrev_b32 {tR2R}, 1, {tt}"); A(f"v_lshlrev_b32 {tR2R}, 8, {tR2R}")
        A(f"v_and_b32 {tt}, 1, {tt}"); A(f"v_lshl_add_u32 {tR2R}, {tt}, 4, {tR2R}"); A(f"v_lshl_add_u32 {tR2R}, {c}, 5, {tR2R}")
        if o["p32"]: A(f"s_mov_b32 {sC}, {sH}")
        else: A(f"s_sub_u32 {sC}, {sH}, 20"); A(f"s_cselect_b32 {sC}, {sH}, {sC}")
        A(f"s_mul_i32 {sA}, {sB}, {32 * PS}"); A(f"s_lshl_b32 {sC}, {sC}, 7"); A(f"s_add_u32 {sA}, {sA}, {sC}")
        A(f"v_mul_u32_u24 {tt}, {PS}, {r8}"); A(f"v_lshl_add_u32 {tt}, {c}, 4, {tt}"); A(f"v_add_u32 {tRD}, {sA}, {tt}")
        A(f"s_mul_i32 {sA}, {sB}, 2560"); A(f"s_add_u32 {sA}, {sA}, {HB}")
        if o["hcopy"]:
            A(f"s_and_b32 {sC}, {sH}, 7"); A(f"s_lshl_b32 {sC}, {sC}, 15"); A(f"s_add_u32 {sA}, {sA}, {sC}")
        A(f"v_lshl_add_u32 {tHL0}, {vL}, 3, {sA}")
        A(f"s_lshl_b32 {sC}, {sW}, 1"); A(f"v_xor_b32 {tt}, {sC}, {vL}"); A(f"v_lshl_add_u32 {tHL4}, {tt}, 3, {sA}")
        for k in range(4):
            A(f"s_add_u32 {sHL[k]}, {sW}, {k}"); A(f"s_and_b32 {sHL[k]}, {sHL[k]}, 3"); A(f"s_lshl_b32 {sHL[k]}, {sHL[k]}, 9")
            A(f"s_mov_b32 {sRD[k]}, {P1 + k * 8 * PS}")
        A(f"v_and_b32 {tt}, 3, {c}"); A(f"v_min_u32 {tt}, 2, {tt}"); A(f"v_lshlrev_b32 {tt}, 8, {tt}"); A(f"v_lshl_add_u32 {tZR}, {r8}, 5, {tt}")
        A(f"s_mul_i32 {sA}, s2, {PS}"); A(f"s_add_u32 {sA}, {sA}, {P2}")
        A(f"v_lshlrev_b32 {tt}, 7, {b4}"); A(f"v_lshl_add_u32 {tt}, {c}, 4, {tt}"); A(f"v_add_u32 {tt}, {sA}, {tt}")
        A(f"s_lshl_b32 {sC}, {sW}, 9"); A(f"v_lshl_add_u32 {tP2ST}, {b5}, 8, {sC}")
        A(f"s_add_u32 {sC}, {sW}, 8"); A(f"s_lshl_b32 {sC}, {sC}, 8"); A(f"s_cmp_lt_u32 {sW}, 2"); A(f"s_cselect_b32 {sC}, {sC}, {OOB}")
        A(f"v_cmp_eq_u32 vcc, 1, {b5}"); A(f"v_mov_b32 {i16}, {sC}")
        A(f"v_cndmask_b32 {i16}, {oob}, {i16}, vcc")
        A(f"v_cmp_eq_u32 vcc, 1, {b3}")
        A(f"v_cndmask_b32 {tP2ST}, {tP2ST}, {i16}, vcc")
        A(f"v_add_u32 {tP2ST}, {tP2ST}, {tt}")
        A(f"s_lshr_b32 {sA}, {sH}, 1"); A(f"s_lshl_b32 {sA}, {sA}, 7"); A(f"s_and_b32 {sC}, {sH}, 1"); A(f"s_lshl_b32 {sC}, {sC}, 3"); A(f"s_add_u32 {sA}, {sA}, {sC}")
        A(f"v_and_b32 {r8}, 3, {r8}")
        A(f"v_lshl_add_u32 {tt}, {c}, 3, {r8}"); A(f"v_lshl_add_u32 {tXR}, {tt}, 1, {sA}")
        A(f"v_cmp_gt_u32 vcc, 32, {vL}")
        A(f"v_cndmask_b32 {tOUT}, {oob}, {tXR}, vcc")
    sTB = [f"s{sU+k}" for k in range(4)]; sTL, sTH = f"s{sU+4}", f"s{sU+5}"
    vMH, vTGH, vTG1, vTGC = vWO, vWQ, v(T + 10), v(T + 11)
    assert not offs or (o["tag1"] and o["tag"])
    vFS, vFL = vV, vK
    def spin_guard():
        A(f"s_add_u32 {sSPIN}, {sSPIN}, 1"); A(f"s_cmp_gt_u32 {sSPIN}, {o['spin']}"); A("s_cbranch_scc1 L_end")
    def a_tagprep():
        A(f"s_mov_b32 {sSPIN}, 0")
        A(f"v_cmp_eq_u32 vcc, 0, {tCNT}")
        A("s_cbranch_vccnz L_cntwait")
        A.label("L_cntok")
        A(f"v_readfirstlane_b32 {sA}, {tCNT}")
        A(f"v_mov_b32 {vMH}, 0xffffff00")
        if o["tag1"]:
            A(f"v_and_b32 {vTG1}, 3, {vL}"); A(f"v_lshlrev_b32 {vTG1}, 3, {vTG1}"); A(f"v_bfe_u32 {vTG1}, {tCNT}, {vTG1}, 8")
            A(f"v_and_b32 {vTGC}, 1, {vL}"); A(f"v_cmp_eq_u32 vcc, 0, {vTGC}")
            A(f"v_lshlrev_b32 {vTGC}, 4, {vTGC}"); A(f"v_bfe_u32 {vTGC}, {tCNT}, {vTGC}, 16")
            A(f"v_bfe_u32 {vTGH}, {vL}, 1, 1")
        else:
            A(f"v_and_b32 {vTGH}, 1, {vL}")
            for k in range(4): A(f"s_bfe_u32 {sTB[k]}, {sA}, {hex(0x80000 | (8 * k))}")
            A(f"s_and_b32 {sTL}, {sA}, 0xffff"); A(f"s_lshr_b32 {sTH}, {sA}, 16")
        if o["hcopy"]:
            for k in range(1, 4): A(f"s_mov_b32 s{sU+5+k}, {k * 0x10000}")
        A(f"v_lshlrev_b32 {vTGH}, 4, {vTGH}")
        A(f"v_bfe_u32 {vTGH}, {tCNT}, {vTGH}, 16")
        if o["tag1"]: A(f"v_cndmask_b32 {vTGH}, 0, {vTGH}, vcc")
    tailprep_done = [False]
    for n in range(14 if o["tsplit"] else 16):
        for t in range(3):
            def f(n=n, t=t):
                if t == 0:
                    for ins in afrag_oct(AF[n & 1], S + 2 * (n >> 3), n & 7): A(ins)
                smf(D + 4 * t, AF[n & 1], slots[("v", n, t)]); release("pair", ("v", n, t))
            act([("v", n, t, 1)], f)
        if n == 4:
            def g(): a_tailprep(); tailprep_done[0] = True
            act([], g)
        if n == 10 and o["tag"]: act([("cnt",)], a_tagprep)

    arrived = -1
    ai = 0
    def wait_for(idx, issued):
        nonlocal arrived
        if idx > arrived:
            A(f"s_waitcnt vmcnt({issued - 1 - idx})"); arrived = idx
    def force_action(issued):
        nonlocal ai
        a = acts[ai]; m = max(a["needs"], default=-1)
        assert m < issued, "action needs a load that is not issued yet"
        wait_for(m, issued); a["fn"](); ai += 1
    forced = 0
    kvi = {it["tag"]: i for i, it in enumerate(LK + LV)}
    cur = [0]
    def force_now():
        nonlocal forced
        force_action(cur[0]); forced += 1
    for n, it in enumerate(seq):
        cur[0] = n
        if it["tag"] == setup_tag: late_setup()
        if it["tag"] == ("xr",): assert tailprep_done[0]
        kv = kvi.get(it["tag"])
        if o["batch"] > 1 and kv is not None:
            if kv % o["batch"] == 0:
                tgt = n + o["batch"] - 1 - Wn[n]
                if tgt > arrived: wait_for(tgt, n)
        elif n - Wn[n] > arrived: wait_for(n - Wn[n], n)
        for hk in hooks.get(it["tag"], []): hk()
        while it["need"] and not can_alloc(it["need"]):
            force_action(n); forced += 1
        it["emit"]()
        budget = 1.0
        if o["batch"] > 1 and kv is not None:
            budget = float(o["batch"]) if kv % o["batch"] == o["batch"] - 1 else 0.0
        while budget > 0.01 and ai < len(acts) and max(acts[ai]["needs"], default=-1) <= arrived:
            budget -= acts[ai].get("cost", 1); acts[ai]["fn"](); ai += 1
    issued = len(seq)
    A.label("L_tail")
    if not o["tag"]: A(f"s_mov_b32 {sSPIN}, 0")
    late = (Lw1 + Lw2) if o["w12late"] else []
    nlate = [0]
    def late_load(k=1, limit=None):
        nonlocal issued
        for _ in range(k):
            if late and (limit is None or nlate[0] < limit):
                late.pop(0)["emit"](); issued += 1; nlate[0] += 1
    late_load(o["n1"])
    if o["warmpos"] >= 192: issued += warm_lines()
    if o["flag"]:
        fs = o["fstr"]
        A(f"s_mul_i32 {sC}, s2, {fs}"); A(f"s_add_u32 {sC}, {sC}, {FLB}")
        A(f"s_mul_i32 {sA}, {sW}, {512 * fs}"); A(f"s_add_u32 {sC}, {sC}, {sA}")
        A(f"v_mul_u32_u24 {vFS}, {256 * fs}, {vL}"); A(f"v_add_u32 {vFS}, {sC}, {vFS}")
        A(f"v_cmp_gt_u32 vcc, 2, {vL}"); A(f"v_mov_b32 {vFL}, {OOB}"); A(f"v_cndmask_b32 {vFS}, {vFL}, {vFS}, vcc")
        A(f"s_and_b32 {sC}, {sH}, 7"); A(f"s_lshl_b32 {sC}, {sC}, 3"); A(f"s_add_u32 {sC}, {sC}, {sB}")
        A(f"s_mul_i32 {sC}, {sC}, {32 * fs}"); A(f"s_add_u32 {sC}, {sC}, {FLB}")
        A(f"v_and_b32 {vFL}, 31, {vL}"); A(f"v_mul_u32_u24 {vFL}, {fs}, {vFL}"); A(f"v_add_u32 {vFL}, {sC}, {vFL}")
    if o["burst"] and o["nlateW"] >= 18 and o["tlate"] >= 192:
        touch_w2(); issued += 1 + (o["polT2"] is not None)
    while ai < len(acts):
        force_action(issued); late_load(1, o["n2"])
    o["_forced"] = forced

    def af_row(dst, u, src=S): return [f"v_and_b32_dpp {v(dst+k)}, {v(src)}, {v(MK[k])} row_newbcast:{u} {DPPF}" for k in range(4)]
    if o["tsplit"]:
        assert not late and not halfV
        vs = {key: slots[key][1] for key in slots if key[0] == "v"}
        assert all(slots[key][0] == "v" for key in slots if key[0] == "v") and len(vs) == 6 and len(freeV) >= 1
        f0 = freeV[0][1]
        s0, s1, s2_, s3_, s4, s5 = [vs[("v", n, t)] for t in range(3) for n in (14, 15)]
        DO = [f0, f0 + 4, s0, s0 + 4, s1]
        AO = [s1 + 4, T + 4]
        G = [s2_, s2_ + 4, s3_, s3_ + 4]
        F = [s4, s4 + 2, s4 + 4, s4 + 6, s5]
        Wk = [f0, f0 + 2, f0 + 4, f0 + 6, s0]
        R0, R1 = s1, s1 + 4
        OP = [T + 8, T + 9]
        for ins in afrag_oct(AF[0], S + 2, 6): A(ins)
        for ins in afrag_oct(AF[1], S + 2, 7): A(ins)
        for k in range(8): A(f"v_mov_b32 {v(f0+k)}, 0")
        def oread(t):
            A(f"ds_read_b128 {vr(T,4)}, {tO_R} offset:{RED + 1024*t}")
            A(f"ds_read_b128 {vr(S,4)}, {tO_R} offset:{RED + 1024*t + 16}")
        def opack(t):
            A(f"v_pk_add_f32 {vr(T,2)}, {vr(T,2)}, {vr(T+2,2)}")
            A(f"v_pk_add_f32 {vr(S,2)}, {vr(S,2)}, {vr(S+2,2)}")
            A(f"v_add_f32 {v(T)}, {v(T)}, {v(T+1)}")
            A(f"v_add_f32 {v(S)}, {v(S)}, {v(S+1)}")
            A(f"v_cvt_pk_bf16_f32 {v(OP[t & 1])}, {v(T)}, {v(S)}")
        def oproj(t):
            for ins in af_row(AO[0], 0, OP[t & 1]): A(ins)
            nxt = af_row(AO[1], 1, OP[t & 1])
            A(nxt.pop(0)); A(nxt.pop(0))
            for uu in range(2):
                for blk in range(5):
                    smf(DO[blk], AO[uu], slots[("wo", 2 * t + uu, blk)])
                    if nxt: A(nxt.pop(0))
        wait_for(max(pos[it["tag"]] for it in Lwo), issued)
        for t in range(3):
            for n in (14, 15):
                wait_for(pos[("v", n, t, 1)], issued)
                smf(D + 4 * t, AF[n & 1], slots[("v", n, t)])
            if t == 2:
                A.comment("o: cross-wave reduction")
                stamp()
            if t == 0:
                for k in range(12): A(f"v_mov_b32 {v((s0 if k < 8 else s1 - 8) + k)}, 0")
            compact([D + 4 * t])
            A(f"ds_write_b32 {vREDW}, {v(D+4*t)} offset:{RED + 1024*t}")
            A("s_waitcnt lgkmcnt(0)")
            A("s_barrier")
            oread(t)
            if o["flag"] == t + 1:
                A(f"buffer_store_dword {tCNT}, {vFS}, {srd(sWS)}, 0 offen sc1"); issued += 1
            A("s_waitcnt lgkmcnt(0)")
            opack(t)
            oproj(t)
            if o["latepos"] == "oproj" and Llate and t < 2:
                if t == 0:
                    for u in range(2):
                        for blk in range(5): release("pair", ("wo", u, blk))
                    for it in Llate:
                        if it["need"]: alloc("pair", it["tag"][:-1])
                    assert all(slots[it["tag"][:-1]][0] == "a" for it in Llate)
                last_soff[0] = None
                for it in (Llate[:o["nsplit"]] if t == 0 else Llate[o["nsplit"]:]):
                    it["emit"](); issued += 1
    else:
        A.comment("o: cross-wave reduction")
        stamp()
        if o["notail"]:
            for k in range(nstamp[0], nstamp[0] + 4): A(f"s_memrealtime s[{4+2*k}:{5+2*k}]")
            A("s_branch L_prof")
        assert not halfV
        tv = sorted(s[1] for s in freeV)
        assert len(tv) >= 7, tv
        DO = [tv[0], tv[0] + 4, tv[1], tv[1] + 4, tv[2]]
        G = [tv[3], tv[3] + 4, tv[4], tv[4] + 4]
        F = [tv[5], tv[5] + 2, tv[5] + 4, tv[5] + 6, tv[6]]
        Wk = [tv[0], tv[0] + 2, tv[0] + 4, tv[0] + 6, tv[1]]
        R0, R1 = tv[2], tv[2] + 4
        for d in DO[:2]:
            for k in range(4): A(f"v_mov_b32 {v(d+k)}, 0")
        compact([D, D + 4, D + 8])
        for t in range(3): A(f"ds_write_b32 {vREDW}, {v(D+4*t)} offset:{RED + 1024*t}")
        late_load(1, o["n2"])
        for d in DO[2:4]:
            for k in range(4): A(f"v_mov_b32 {v(d+k)}, 0")
        A("s_waitcnt lgkmcnt(0)")
        A("s_barrier")
        A(f"ds_read_b128 {vr(T,4)}, {tO_R} offset:{RED}")
        A(f"ds_read_b128 {vr(T+4,4)}, {tO_R} offset:{RED+16}")
        late_load(1, o["n2"])
        for k in range(4): A(f"v_mov_b32 {v(DO[4]+k)}, 0")
        wait_for(max(pos[it["tag"]] for it in Lwo), issued)
        A("s_waitcnt lgkmcnt(0)")
        A(f"v_pk_add_f32 {vr(T,2)}, {vr(T,2)}, {vr(T+2,2)}")
        A(f"v_pk_add_f32 {vr(T+4,2)}, {vr(T+4,2)}, {vr(T+6,2)}")
        A(f"v_add_f32 {v(T)}, {v(T)}, {v(T+1)}")
        A(f"v_add_f32 {v(T+4)}, {v(T+4)}, {v(T+5)}")
        A(f"v_cvt_pk_bf16_f32 {v(S)}, {v(T)}, {v(T+4)}")
        for ins in af_row(AF[0], 0): A(ins)
        for u in range(6):
            nxt = af_row(AF[(u + 1) & 1], u + 1) if u < 5 else []
            for blk in range(5):
                smf(DO[blk], AF[u & 1], slots[("wo", u, blk)])
                if nxt: A(nxt.pop(0))
                if blk == 4: late_load(1, o["n2"])
    for k in range(4): A(f"v_mov_b32_dpp {v(DO[0]+k)}, {v(DO[1]+k)} quad_perm:[0,1,2,3] row_mask:0xc bank_mask:0xf")
    A(f"ds_write_b128 {tR2W}, {vr(DO[0],4)} offset:{RED2}")
    for k in range(4): A(f"v_mov_b32_dpp {v(DO[2]+k)}, {v(DO[3]+k)} quad_perm:[0,1,2,3] row_mask:0xc bank_mask:0xf")
    A(f"ds_write_b128 {tR2W}, {vr(DO[2],4)} offset:{RED2+1024}")
    A(f"ds_write_b128 {tR2W}, {vr(DO[4],4)} offset:{RED2+2048}")
    A("s_waitcnt lgkmcnt(0)")
    A("s_barrier")
    for k in range(4): A(f"ds_read_b128 {vr(G[k],4)}, {tR2R} offset:{RED2 + 3072*k}")
    for k in range(12): A(f"v_mov_b32 {v(D+k)}, 0")
    A("s_waitcnt lgkmcnt(0)")
    def sum4():
        for hh in (0, 2):
            A(f"v_pk_add_f32 {vr(R0+hh,2)}, {vr(G[0]+hh,2)}, {vr(G[1]+hh,2)}")
            A(f"v_pk_add_f32 {vr(R1+hh,2)}, {vr(G[2]+hh,2)}, {vr(G[3]+hh,2)}")
        for hh in (0, 2):
            A(f"v_pk_add_f32 {vr(R0+hh,2)}, {vr(R0+hh,2)}, {vr(R1+hh,2)}")
    sum4()
    def seal(r):
        if o["tag"] and o["tag1"]:
            A(f"v_and_or_b32 {v(r)}, {v(r)}, {vMH}, {vTG1}"); return
        for k in range(4):
            if o["tag"]: A(f"v_and_or_b32 {v(r+k)}, {v(r+k)}, {vMH}, {sTB[k]}")
            else: A(f"v_min_u32 {v(r+k)}, -2, {v(r+k)}")
    seal(R0)
    A(f"buffer_store_dwordx4 {vr(R0,4)}, {vP1ST}, {srd(sWS)}, 0 offen sc1")
    issued += 1
    stamp()
    if o["prof"]:
        stamp(); nstamp[0] -= 1
    if o["warm2"]: issued += warm_lines(o["warm2"])
    if o["burst"] and Llate and o["latepos"] != "oproj":
        for u in range(6):
            for blk in range(5): release("pair", ("wo", u, blk))
        for it in Llate:
            if it["need"]: alloc("pair", it["tag"][:-1])
        def late_w():
            last_soff[0] = None
            for it in Llate: it["emit"]()
    if not o["tag"]:
        wait_for(pos[("cnt",)], issued)
        A(f"v_cmp_gt_u32 vcc, 32, {tCNT}")
        if not o["nosig"]: A("s_cbranch_vccnz L_cntwait")
        A.label("L_cntok")
    last_soff[0] = None
    while late:
        A(f"s_waitcnt vmcnt({o['Wb'] - 2})"); late_load(2)
    haslate = o["burst"] and bool(Llate) and o["latepos"] != "oproj"
    if haslate and o["latepos"] == "pre": late_w()
    A(f"s_cmp_lg_u32 {sW}, {o['redw']}"); A("s_cbranch_scc1 " + ("L_latew" if haslate and o["latepos"] in ("ack", "post0") else "L_hpoll0"))
    if not o["hbar"]:
        A(f"s_cmp_ge_u32 {sH}, 20"); A("s_cbranch_scc1 L_hpoll0")
    def reduce_stage(lbl, dep):
        def loads():
            for k in range(4): A(f"buffer_load_dwordx4 {vr(G[k],4)}, {tRD}, {srd(sWS)}, {sRD[k]} offen sc1")
        for _ in range(dep - 1): loads()
        A.label(lbl)
        loads()
        spin_guard()
        A(f"s_waitcnt vmcnt({4 * (dep - 1)})")
        regs = [G[k] + j for k in range(4) for j in range(4)]
        if o["tag"] and o["tag1"] and dep > 1:
            A(f"v_bitop3_b32 {v(T)}, {v(G[0])}, {vTG1}, {vMH} bitop3:0xbe")
            for k in range(1, 4): A(f"v_bitop3_b32 {v(T)}, {v(G[k])}, {vTG1}, {v(T)} bitop3:0xbe")
            A(f"v_cmp_ne_u32 vcc, {v(T)}, {vMH}")
        elif o["tag"] and o["tag1"]:
            for k in range(4): A(f"v_xor_b32 {v(G[k])}, {vTG1}, {v(G[k])}")
            A(f"v_or3_b32 {v(T)}, {v(G[0])}, {v(G[1])}, {vMH}")
            A(f"v_or3_b32 {v(T)}, {v(G[2])}, {v(G[3])}, {v(T)}")
            A(f"v_cmp_ne_u32 vcc, {v(T)}, {vMH}")
        else:
            op3, op2 = ("v_or3_b32", "v_or_b32") if o["tag"] else ("v_max3_u32", "v_max_u32")
            if o["tag"]:
                assert dep == 1
                for i_, r_ in enumerate(regs): A(f"v_xor_b32 {v(r_)}, {sTB[i_ & 3]}, {v(r_)}")
            A(f"{op3} {v(T)}, {v(regs[0])}, {v(regs[1])}, {v(regs[2])}")
            A(f"{op3} {v(T+1)}, {v(regs[3])}, {v(regs[4])}, {v(regs[5])}")
            for k in range(6, 16, 2):
                d = v(T + ((k >> 1) & 1))
                A(f"{op3} {d}, {d}, {v(regs[k])}, {v(regs[k+1])}")
            if o["tag"]:
                A(f"v_or3_b32 {v(T)}, {v(T)}, {v(T+1)}, {vMH}")
                A(f"v_cmp_ne_u32 vcc, {v(T)}, {vMH}")
            else:
                A(f"v_max_u32 {v(T)}, {v(T)}, {v(T+1)}")
                A(f"v_cmp_eq_u32 vcc, -1, {v(T)}")
        if o["sleepR"]:
            A(f"s_cbranch_vccz {lbl}_ok"); A(f"s_sleep {o['sleepR']}"); A(f"s_branch {lbl}"); A.label(f"{lbl}_ok")
        else: A(f"s_cbranch_vccnz {lbl}")
        if o["tag"] and o["tag1"] and dep > 1:
            A("s_waitcnt vmcnt(0)")
            for k in range(4): A(f"v_and_b32 {v(G[k])}, {vMH}, {v(G[k])}")
        sum4()
        g = R0
        A(f"v_add_f32_dpp {v(T)}, {v(g)}, {v(g)} row_ror:8 row_mask:0xf bank_mask:0x3")
        A(f"v_add_f32_dpp {v(T+1)}, {v(g+2)}, {v(g+2)} row_ror:8 row_mask:0xf bank_mask:0x3")
        A(f"v_add_f32_dpp {v(T)}, {v(g+1)}, {v(g+1)} row_ror:8 row_mask:0xf bank_mask:0xc")
        A(f"v_add_f32_dpp {v(T+1)}, {v(g+3)}, {v(g+3)} row_ror:8 row_mask:0xf bank_mask:0xc")
        A(f"v_permlane16_swap_b32 {v(T)}, {v(T+1)}")
        A(f"v_add_f32 {v(T)}, {v(T)}, {v(T+1)}")
        A(f"v_mov_b32 {v(T+1)}, {v(T)}")
        A(f"v_permlane32_swap_b32 {v(T)}, {v(T+1)}")
        A(f"v_add_f32 {v(T)}, {v(T)}, {v(T+1)}")
        round_bf16(v(T))
    A(f"v_lshlrev_b32 {tXR}, 16, {tXR}")
    if o["ack1"]: A("s_waitcnt vmcnt(0)")
    if o["flag"]:
        A.label("L_fpoll")
        A(f"buffer_load_dword {v(T)}, {vFL}, {srd(sWS)}, 0 offen sc1")
        spin_guard()
        A("s_waitcnt vmcnt(0)")
        A(f"v_cmp_ne_u32 vcc, {v(T)}, {tCNT}")
        A("s_cbranch_vccnz L_fpoll")
    reduce_stage("L_red1", o["dR"])
    A(f"v_add_f32 {tXR}, {tXR}, {v(T)}")
    if o["tag"]:
        A(f"v_cvt_pk_bf16_f32 {tXR}, {tXR}, {tXR}")
        A(f"v_lshl_or_b32 {v(T)}, {tXR}, 16, {vTGH}")
        A(f"buffer_store_dword {v(T)}, {vHST}, {srd(sWS)}, 0 offen sc1")
        if o["hcopy"]:
            for k in range(1, 4):
                A(f"buffer_store_dword {v(T)}, {vHST}, {srd(sWS)}, s{sU+5+k} offen sc1")
        A(f"v_lshlrev_b32 {tXR}, 16, {tXR}")
    else:
        round_bf16(tXR)
        A(f"buffer_store_dword {tXR}, {vHST}, {srd(sWS)}, 0 offen sc1")
    if o["prof"]:
        A("s_waitcnt lgkmcnt(0)"); stamp()
    def hloads():
        for k in range(4): A(f"buffer_load_dwordx2 {vr(F[k],2)}, {tHL0}, {srd(sWS)}, {sHL[k]} offen sc1")
        A(f"buffer_load_dwordx2 {vr(F[4],2)}, {tHL4}, {srd(sWS)}, 0 offen offset:2048 sc1")
    if haslate and o["latepos"] == "ack":
        assert o["hbar"] and o["ack2"]
        A.label("L_latew")
        if o["redw"] >= 2:
            assert o["nlateW"] == 18
            last_soff[0] = None
            for it in Llate:
                if it["tag"][2] < 2: it["emit"]()
            if o["ackn"] < 4: A(f"s_waitcnt vmcnt({12 + o['ackn']})")
            A(f"s_cmp_ge_u32 {sW}, 2"); A("s_cbranch_scc1 L_hpoll0")
            for it in Llate:
                if it["tag"][2] == 2: it["emit"]()
        else:
            late_w()
            A(f"s_waitcnt vmcnt({len(Llate)})")
    elif haslate and o["latepos"] == "post0":
        A("s_waitcnt vmcnt(0)")
        A("s_barrier")
        hloads(); late_w()
        A(f"s_waitcnt vmcnt({len(Llate)})")
        A("s_branch L_hcheck")
        A.label("L_latew")
        late_w()
    elif o["hbar"] and o["ack2"]: A("s_waitcnt vmcnt(0)")
    A.label("L_hpoll0")
    if o["hbar"]: A("s_barrier")
    if haslate and o["latepos"] == "post":
        hloads(); late_w()
        A(f"s_waitcnt vmcnt({len(Llate)})")
        A("s_branch L_hcheck")
    for _ in range(o["dH"] - 1): hloads()
    A.label("L_hpoll")
    hloads()
    spin_guard()
    A(f"s_waitcnt vmcnt({5 * (o['dH'] - 1)})")
    A.label("L_hcheck")
    if o["tag"] and o["tag1"]:
        assert o["dH"] == 1
        for k in range(5): A(f"v_xor_b32 {v(F[k])}, {vTGC}, {v(F[k])}")
        A(f"v_or3_b32 {v(T)}, {v(F[0])}, {v(F[1])}, {v(F[2])}")
        A(f"v_or3_b32 {v(T)}, {v(F[3])}, {v(F[4])}, {v(T)}")
        A(f"v_cmp_ne_u16 vcc, 0, {v(T)}")
    else:
        op3 = "v_or3_b32" if o["tag"] else "v_max3_u32"
        if o["tag"]:
            assert o["dH"] == 1
            for k in range(5):
                A(f"v_xor_b32 {v(F[k])}, {sTL}, {v(F[k])}"); A(f"v_xor_b32 {v(F[k]+1)}, {sTH}, {v(F[k]+1)}")
        A(f"{op3} {v(T)}, {v(F[0])}, {v(F[0]+1)}, {v(F[1])}")
        A(f"{op3} {v(T+1)}, {v(F[1]+1)}, {v(F[2])}, {v(F[2]+1)}")
        A(f"{op3} {v(T)}, {v(T)}, {v(F[3])}, {v(F[3]+1)}")
        A(f"{op3} {v(T+1)}, {v(T+1)}, {v(F[4])}, {v(F[4]+1)}")
        if o["tag"]:
            A(f"v_or_b32 {v(T)}, {v(T)}, {v(T+1)}")
            A(f"v_cmp_ne_u16 vcc, 0, {v(T)}")
        else:
            A(f"v_max_u32 {v(T)}, {v(T)}, {v(T+1)}")
            A(f"v_cmp_eq_u32 vcc, -1, {v(T)}")
    if o["sleep"]:
        A("s_cbranch_vccz L_hok"); A(f"s_sleep {o['sleep']}"); A("s_branch L_hpoll"); A.label("L_hok")
    else:
        A("s_cbranch_vccnz L_hpoll")
    stamp()
    layernorm(F, Wk, T, S)
    for ins in afrag_oct(AF[0], S, 0): A(ins)
    for u in range(10):
        nxt = afrag_oct(AF[(u + 1) & 1], S + 2 * ((u + 1) >> 3), (u + 1) & 7) if u < 9 else []
        if nxt: A(nxt.pop(0)); A(nxt.pop(0))
        smf(D, AF[u & 1], slots[("w1", u)])
        for ins in nxt: A(ins)
    A(f"v_mov_b32 {v(T+8)}, {hex(LOG2E ^ 0x80000000)}")
    compact([D])
    A(f"ds_write_b32 {vREDW}, {v(D)} offset:{REDZ}")
    A("s_waitcnt lgkmcnt(0)")
    A("s_barrier")
    A(f"ds_read_b128 {vr(T,4)}, {tZR} offset:{REDZ}")
    A(f"ds_read_b128 {vr(T+4,4)}, {tZR} offset:{REDZ+16}")
    for k in range(4): A(f"v_mov_b32 {v(D+k)}, 0")
    for k in range(4): A(f"s_add_u32 {sRD[k]}, {sRD[k]}, {P2 - P1}")
    A("s_waitcnt lgkmcnt(0)")
    A(f"v_pk_add_f32 {vr(T,2)}, {vr(T,2)}, {vr(T+2,2)}")
    A(f"v_pk_add_f32 {vr(T+4,2)}, {vr(T+4,2)}, {vr(T+6,2)}")
    A(f"v_add_f32 {v(T)}, {v(T)}, {v(T+1)}")
    A(f"v_add_f32 {v(T+4)}, {v(T+4)}, {v(T+5)}")
    A(f"v_cvt_pk_bf16_f32 {v(T+1)}, {v(T)}, {v(T+4)}")
    A(f"v_lshlrev_b32 {v(T)}, 16, {v(T+1)}")
    A(f"v_and_b32 {v(T+1)}, 0xffff0000, {v(T+1)}")
    for k in range(2): A(f"v_mul_f32 {v(T+2+k)}, {v(T+k)}, {v(T+8)}")
    for k in range(2): A(f"v_exp_f32 {v(T+2+k)}, {v(T+2+k)}")
    for k in range(2): A(f"v_add_f32 {v(T+2+k)}, 1.0, {v(T+2+k)}")
    for k in range(2): A(f"v_rcp_f32 {v(T+2+k)}, {v(T+2+k)}")
    for k in range(2): A(f"v_mul_f32 {v(T+k)}, {v(T+k)}, {v(T+2+k)}")
    A(f"v_cvt_pk_bf16_f32 {v(S)}, {v(T)}, {v(T+1)}")
    if haslate and o["latepos"] in ("post", "post0"):
        assert o["nlateW"] <= 18
        A("s_waitcnt vmcnt(0)")
    def af_quad(dst, u): return [f"v_and_b32_dpp {v(dst+k)}, {v(S)}, {v(MK[k])} quad_perm:[{u},{u},{u},{u}] {DPPF}" for k in range(4)]
    for ins in af_quad(AF[0], 0): A(ins)
    for u in range(3):
        nxt = af_quad(AF[(u + 1) & 1], u + 1) if u < 2 else []
        if nxt: A(nxt.pop(0)); A(nxt.pop(0))
        for blk in range(3):
            smf(D + 4 * blk, AF[u & 1], slots[("w2", u, blk)])
            if nxt: A(nxt.pop(0))
    X, Y, Z = D, D + 4, D + 8
    for e in range(4): A(f"v_permlane32_swap_b32 {v(X+e)}, {v(Y+e)}")
    for e in range(4): A(f"v_add_f32_dpp {v(X+e)}, {v(Y+e)}, {v(X+e)} row_ror:8 row_mask:0xf bank_mask:0x3")
    for e in range(4): A(f"v_permlane32_swap_b32 {v(Y+e)}, {v(Z+e)}")
    for e in range(4): A(f"v_add_f32_dpp {v(X+e)}, {v(Y+e)}, {v(Z+e)} row_ror:8 row_mask:0xc bank_mask:0xc")
    seal(X)
    A(f"buffer_store_dwordx4 {vr(X,4)}, {tP2ST}, {srd(sWS)}, 0 offen sc1")
    stamp()
    fin = "L_prof" if o["prof"] else "L_end"
    A(f"s_cmp_lg_u32 {sW}, {o['redw']}"); A(f"s_cbranch_scc1 {fin}")
    A(f"s_cmp_ge_u32 {sH}, 20"); A(f"s_cbranch_scc1 {fin}")
    if o["ack3"]: A("s_waitcnt vmcnt(0)")
    reduce_stage("L_red2", o.get("dR2", 1))
    A(f"v_add_f32 {v(T)}, {tXR}, {v(T)}")
    A(f"v_cvt_pk_bf16_f32 {v(T)}, {v(T)}, {v(T)}")
    A(f"buffer_store_short {v(T)}, {tOUT}, {srd(sOUT)}, 0 offen {o['polO']}")
    if o["prof"]:
        A.label("L_prof")
        stamp()
        A("s_getreg_b32 s25, hwreg(HW_REG_XCC_ID)")
        A("s_waitcnt lgkmcnt(0)")
        A(f"s_lshl_b32 {sA}, s2, 2"); A(f"s_add_u32 {sA}, {sA}, {sW}"); A(f"s_lshl_b32 {sA}, {sA}, 6"); A(f"s_add_u32 {sA}, {sA}, {PROF}")
        for k in range(nstamp[0]):
            A(f"v_mov_b32 {v(T)}, s{4+2*k}")
            A(f"buffer_store_dword {v(T)}, off, {srd(sWS)}, {sA} offset:{4*k}")
        A(f"v_mov_b32 {v(T)}, s25"); A(f"buffer_store_dword {v(T)}, off, {srd(sWS)}, {sA} offset:56")
        A(f"v_mov_b32 {v(T)}, {sSPIN}"); A(f"buffer_store_dword {v(T)}, off, {srd(sWS)}, {sA} offset:60")
    A.label("L_end")
    A("s_endpgm")
    A.label("L_cntwait")
    if o["tag"]: A(f"s_mov_b32 {sT2}, 0")
    else: A(f"s_lshl_b32 {sT2}, {sB}, 5")
    A(f"buffer_load_dword {tCNT}, off, {srd(sDBG)}, {sT2} sc1")
    spin_guard()
    A("s_waitcnt vmcnt(0)")
    if o["tag"]: A(f"v_cmp_eq_u32 vcc, 0, {tCNT}")
    else: A(f"v_cmp_gt_u32 vcc, 32, {tCNT}")
    A("s_cbranch_vccnz L_cntwait")
    A.label("L_last")
    A("s_branch L_cntok")
    if o["burst"] and o["dsig"]:
        A.label("L_signal"); signal_body(); A(f"s_setpc_b64 {sRA}")
    for nm, lst, snap in subs:
        A.label(f"L_burst_{nm}")
        slots.clear(); slots.update(snap); last_soff[0] = None
        for i, it in enumerate(lst):
            if nm in o["skip"]: break
            if i % 2 == 0: A(f"s_waitcnt vmcnt({o['Wb'] - 2})")
            it["emit"]()
        A(f"s_setpc_b64 {sRA}")
    A.label("L_codeend")
    A.raw('.section .rodata,"a"'); A.raw(".p2align 6"); A.raw(f".amdhsa_kernel {KNAME}")
    A.raw("  .amdhsa_next_free_vgpr 512"); A.raw("  .amdhsa_next_free_sgpr 102"); A.raw("  .amdhsa_accum_offset 256")
    A.raw("  .amdhsa_float_denorm_mode_32 3")
    A.raw("  .amdhsa_group_segment_fixed_size 0"); A.raw("  .amdhsa_kernarg_size 88"); A.raw("  .amdhsa_user_sgpr_count 2")
    A.raw("  .amdhsa_user_sgpr_kernarg_segment_ptr 1"); A.raw("  .amdhsa_system_sgpr_workgroup_id_x 1"); A.raw(".end_amdhsa_kernel")
    o["_nstamp"] = nstamp[0]
    txt = A.text()
    if o["align"]:
        from align import align
        txt, o["_prom"], o["_nops"] = align(txt, o["align"])
    return txt, o

if __name__ == "__main__":
    out = sys.argv[1]
    kw = eval("dict(" + (sys.argv[2] if len(sys.argv) > 2 else "") + ")")
    txt, o = gen(**kw)
    open(out, "w").write(txt)
    print("forced", o["_forced"], "lines", txt.count("\n"))
```

```python
import sys, os
sys.path.insert(0, os.path.dirname(os.path.abspath(__file__)))
from asmlib import Asm

NAME = "sequential_preLN__sliding_block_cached__dense_activation_silu__decode"
KNAME = NAME + "_kernel"

DEF = dict(
    WA=15, WB=12, WC=12,
    nKA=30,
    nWOB=30,
    rot=5,
    polKV="nt", polW="",
    prof=False,
    wlast=0,
    codepf=True,
    burst=True, W=12, Wb=12,
    grp="b",
    a0=7, da=8, b0=94, db=8, c0=162, dc=3, tlead=14, touch64=False, touch=True, polT="", polT2=None, skip=(), notail=False, sleep=0, dR=1, dH=1, ack3=True, hbar=True, ack2=True, Ws=None, perm=False, nosig=False, noclr=False, sig0=46, dsig=0, xorid=0, hcopy=True, p32=False, nlateW=18, w1bal=True, tlate=192, latepos="ack", align="L_tail", redw=3, nsplit=9, ackn=0, par=None, dup16=False, ordx=(0, 0, 0), early=True, nfill=1, sleepR=0, flag=0, fstr=128, offs=(172, 172, 168), batch=1, vorder="t", umode="int", dw=(0, 0), rot2=0, tag1=True, tsplit=True, kfirst=True, polO="", ack1=False, warm=6, warm2=6, polWm="", warmpos=152, tag=True, nL=12, rL=4, tqs=None, tws=4, dtw=3, qkcost=0.5, pf0=True, st0=False, tB=None, tC=None, polC="sc1", clrpos=6, w12late=False, n1=6, n2=14,
    spin=200000,
)

RED, QB, SM, RED2, REDZ, LDS_BYTES = 0, 3072, 4608, 5120, 17408, 18432
P1, P2, HB, FLB, PROF = 0, 0x200000, 0x400000, 0x600000, 0x800000
OOB = 0x40000000
LOG2E = 0x3fb8aa3b
import struct
def fbits(x): return struct.unpack("<I", struct.pack("<f", x))[0]

def gen(**kw):
    o = dict(DEF); o.update(kw)
    A = Asm()
    hdr = open(os.path.join(os.path.dirname(os.path.abspath(__file__)), "..", "cdna_kernels", NAME + ".s.ref")).read().splitlines()
    for ln in hdr:
        if ln.startswith("; Override") : break
        A.raw(ln)
    KL = RED2
    numa = o["par"] is not None
    P2 = 0x100000 if numa else globals()["P2"]
    HS = 8192 if numa else 0x10000
    PS = o.get("PS", 4096 if o["p32"] else 2560)
    assert o["tag"] or not o["p32"]
    lds_bytes = max(LDS_BYTES, KL + 4 * o["nL"] * 3072)
    assert lds_bytes <= 163840 and o["nL"] % 2 == 0
    A.raw(f"; @launch grid=(256,1,1) block=(256,1,1) lds={lds_bytes}")
    A.raw('.amdgcn_target "amdgcn-amd-amdhsa--gfx950"')
    A.raw(".text"); A.raw(f".globl {KNAME}"); A.raw(".p2align 8"); A.raw(f".type {KNAME},@function"); A.label(KNAME)

    sW, sB, sH = "s3", "s26", "s27"
    sX, sK, sV, sWQ, sWO, sW1, sW2, sOUT, sDBG, sWS = [28 + 4 * i for i in range(10)]
    srd = lambda n: f"s[{n}:{n+3}]"
    sU = 68
    sT = "s84"
    sQB0, sQB1, sF0, sF1, sZ = "s86", "s87", "s88", "s89", "s1"
    sLM = "s[92:93]"
    sA, sC, sD, sE = "s94", "s95", "s96", "s97"
    sSPIN = "s98"
    sPC = 100
    vL, vK, vV, vWQ, vWO, vW2, vW1, vIDX = [f"v{i}" for i in range(8)]
    MK = [8, 9, 10, 11]
    AF = [12, 16]
    D = 20
    Q = 32
    S = 44
    T = 48
    vHST, vP1ST, vREDW = "v61", "v62", "v63"
    tO_R, tR2W, tR2R, tCNT, tRD, tPF, tHL0, tHL4, tZR, tP2ST, tOUT, tXR = [f"v{Q+i}" for i in range(12)]
    v = lambda n: f"v{n}"
    vr = lambda n, k: f"v[{n}:{n+k-1}]"
    nstamp = [0]
    def stamp():
        if o["prof"]:
            k = nstamp[0]; nstamp[0] += 1
            assert k < 11
            A(f"s_memrealtime s[{4+2*k}:{5+2*k}]")

    if o["early"]:
        A("s_load_dwordx8 s[4:11], s[0:1], 0")
    else:
        A("s_load_dwordx16 s[4:19], s[0:1], 0")
        A("s_load_dwordx4 s[20:23], s[0:1], 64")
        A("s_load_dwordx2 s[24:25], s[0:1], 80")
    A("s_cmpk_ge_u32 s2, 256")
    A("s_cbranch_scc1 L_end")
    if o["xorid"]: A(f"s_xor_b32 s2, s2, {o['xorid']}")
    if o["perm"]:
        A("s_lshr_b32 s3, s2, 3"); A("s_add_u32 s3, s3, s2"); A("s_and_b32 s3, s3, 7"); A("s_and_b32 s2, s2, 0xf8"); A("s_or_b32 s2, s2, s3")
    if o["prof"]: A("s_memrealtime s[100:101]")
    A(f"v_readfirstlane_b32 {sW}, v0")
    A(f"v_and_b32 {vL}, 63, v0")
    A(f"s_lshr_b32 {sW}, {sW}, 6")
    A(f"s_lshr_b32 {sB}, s2, 5")
    A(f"s_and_b32 {sH}, s2, 31")
    vR8, vC, t0, t1, t2, t3 = v(T+7), v(T+8), v(T+9), v(T+10), v(T+11), v(T+12)
    def code_pf0():
        A("s_cmp_ge_u32 s2, 8"); A("s_cbranch_scc1 L_nopf0")
        A(f"s_getpc_b64 s[{sOUT}:{sOUT+1}]")
        A.label("L_pc0")
        A(f"s_lshl_b32 {sT}, {sW}, 13")
        A(f"v_lshl_add_u32 {v(Q+2)}, {vL}, 7, {sT}")
        A(f"v_min_u32 {v(Q+2)}, L_codeend-L_pc0-4, {v(Q+2)}")
        A(f"global_load_dword {v(Q+2)}, {v(Q+2)}, s[{sOUT}:{sOUT+1}]")
        A.label("L_nopf0")
    if o["early"]:
        assert o["burst"] and o["touch"] and not o["tqs"] and o["polT2"] is None
        if o["pf0"]: code_pf0()
        A(f"v_min_u32 {v(Q+1)}, 59, {vL}")
        A(f"v_mul_u32_u24 {v(Q)}, 21846, {v(Q+1)}"); A(f"v_lshrrev_b32 {v(Q)}, 16, {v(Q)}")
        A(f"v_mul_u32_u24 {v(Q)}, {12288 - 3*128}, {v(Q)}"); A(f"v_lshl_add_u32 {v(Q+1)}, {v(Q+1)}, 7, {v(Q)}")
        A(f"s_lshl2_add_u32 s99, {sB}, {sW}"); A(f"s_mul_i32 s99, s99, {20*12288}")
        A(f"s_mul_i32 {sD}, {sH}, 384")
        A(f"s_sub_u32 s{sWQ+2}, {640*12288}, {sD}"); A(f"s_mov_b32 s{sWQ+3}, 0x20000")
        early_bytes = [len(A.lines)]
        def first_request():
            A("s_waitcnt lgkmcnt(0)")
            if o["st0"]: A("s_memrealtime s[72:73]")
            A(f"s_add_u32 s{sWQ}, s10, {sD}"); A(f"s_addc_u32 s{sWQ+1}, s11, 0")
            A(f"buffer_load_dword {v(Q)}, {v(Q+1)}, {srd(sWQ)}, s99 offen {o['polT']}")
            A.label("L_first")
            A("s_load_dwordx8 s[12:19], s[0:1], 32")
            A("s_load_dwordx4 s[20:23], s[0:1], 64")
            A("s_load_dwordx2 s[24:25], s[0:1], 80")
        if o["nfill"] == 0: first_request()
    A(f"v_lshrrev_b32 {vR8}, 3, {vL}")
    A(f"v_and_b32 {vC}, 7, {vL}")
    A(f"v_lshlrev_b32 {v(T+5)}, 2, {vL}")
    A(f"s_lshl_b32 {sA}, {sW}, 3")
    A(f"v_xor_b32 {v(T+6)}, {sA}, {v(T+5)}")
    A(f"v_and_b32 {t0}, 32, {vL}")
    A(f"v_bfe_u32 {t1}, {vL}, 3, 1")
    A(f"v_bfe_u32 {t2}, {vL}, 4, 1")
    A(f"v_lshl_add_u32 {t3}, {t1}, 4, {t0}")
    A(f"v_add_u32 {t3}, {t3}, {t2}")
    A(f"v_mul_u32_u24 {t3}, 12288, {t3}")
    A(f"v_lshl_add_u32 {vWQ}, {vC}, 4, {t3}")
    if o["early"] and o["nfill"] == 1: first_request()
    if o["offs"]:
        A(f"v_lshrrev_b32 {t3}, 4, {vL}")
    else:
        A(f"v_lshrrev_b32 {t3}, 2, {t0}")
        A(f"v_lshl_add_u32 {t3}, {t2}, 2, {t3}")
        A(f"v_add_u32 {t3}, {t3}, {t1}")
    A(f"v_mul_u32_u24 {t3}, 384, {t3}")
    A(f"v_lshl_add_u32 {vK}, {vC}, 4, {t3}")
    if o["early"] and o["nfill"] == 2: first_request()
    A(f"s_mul_i32 {sA}, s2, 1572864")
    A(f"s_add_u32 {sA}, {sA}, 1179648")
    A(f"s_mul_i32 {sC}, {sB}, 1280")
    if not o["early"]: A(f"s_mul_i32 {sD}, {sH}, 384")
    A(f"s_mul_i32 {sQB0}, {sW}, {128*12288}")
    sE2 = "s0"
    A(f"s_mul_i32 {sE}, s2, {o['rot']}")
    if o["rot2"]:
        A(f"s_lshr_b32 s{sU}, s2, {o['rot2'][0]}"); A(f"s_mul_i32 s{sU}, s{sU}, {o['rot2'][1]}"); A(f"s_add_u32 {sE}, {sE}, s{sU}")
    if o["umode"] == "int":
        A(f"s_add_u32 {sE}, {sE}, {sW}")
    elif o["umode"] == "blk":
        A(f"s_mul_i32 s{sU}, {sW}, {o['dw'][0]}"); A(f"s_lshr_b32 s{sU}, s{sU}, {o['dw'][1]}"); A(f"s_add_u32 {sE}, {sE}, s{sU}")
    else:
        A(f"s_and_b32 s{sU}, {sW}, 1"); A(f"s_add_u32 {sE}, {sE}, s{sU}")
        A(f"s_lshr_b32 s{sU}, {sW}, 1"); A(f"s_mul_i32 s{sU}, s{sU}, {o['dw'][0]}"); A(f"s_add_u32 {sE}, {sE}, s{sU}")
    def unit_off(n):
        d = f"s{sU+n}"
        if o["umode"] == "int":
            A(f"s_add_u32 {d}, {sE}, {4*n}"); A(f"s_and_b32 {d}, {d}, 63")
        elif o["umode"] == "blk":
            A(f"s_add_u32 {d}, {sE}, {n}"); A(f"s_and_b32 {d}, {d}, 15")
            A(f"s_lshl4_add_u32 {d}, {sW}, {d}")
        else:
            A(f"s_add_u32 {d}, {sE}, {2*(n & 7)}"); A(f"s_and_b32 {d}, {d}, 15")
            A(f"s_lshr_b32 {sT}, {sW}, 1"); A(f"s_lshl4_add_u32 {d}, {sT}, {d}"); A(f"s_add_u32 {d}, {d}, {32*(n >> 3)}")
        A(f"s_mulk_i32 {d}, 6144")
    offs = o["offs"]
    sSO, sCO, sCD = [f"s{sU+10}", f"s{sU+11}"], [f"s{sU+12}", f"s{sU+13}"], [f"s{sU+14}", f"s{sU+15}"]
    sP0, sP1, sP2, sP3 = f"s{sU}", f"s{sU+1}", f"s{sU+2}", f"s{sU+3}"
    if offs:
        assert sum(offs) == 512 and all(x % 4 == 0 for x in offs) and o["umode"] == "int"
        jst = [sum(offs[:k]) // 4 for k in range(len(offs))]
        for k in range(1, len(offs)): assert jst[k] % 2 == 0 or offs[k] == offs[k - 1]
        for r_ in sCO + sCD: A(f"s_mov_b32 {r_}, 0")
        unit_off = lambda n: None
    def half_params(n, hB, dB, dO):
        A(f"s_add_u32 {sP3}, {sE}, {4*n}"); A(f"s_and_b32 {sP3}, {sP3}, 63")
        A(f"s_lshl1_add_u32 {sP3}, {sP3}, {hB}")
        A(f"s_mul_i32 {dB}, {sP3}, 1536")
        if dO: A(f"s_mov_b32 {dO}, {offs[0] * 384}")
        for k in range(1, len(offs)):
            A(f"s_cmp_ge_u32 {sP3}, {jst[k]}")
            if dO and offs[k] != offs[k - 1]: A(f"s_cselect_b32 {dO}, {offs[k] * 384}, {dO}")
            A(f"s_cselect_b32 {sP2}, {offs[k - 1] * 384}, 0")
            A(f"s_add_u32 {dB}, {dB}, {sP2}")
    def lane_add(reg, mask, cur, new):
        A(f"s_sub_u32 {sP2}, {new}, {cur}"); A(f"s_mov_b32 {cur}, {new}")
        A(f"s_mov_b32 exec_lo, {hex(mask)}"); A(f"s_mov_b32 exec_hi, {hex(mask)}")
        A(f"v_add_u32 {reg}, {sP2}, {reg}")
        A("s_mov_b64 exec, -1")
    def k_addr(n, hB):
        half_params(n, hB, sSO[0], sP0); lane_add(vK, 0xff00ff00, sCO[1], sP0)
    def v_addr(n):
        p_ = n & 1; reg = (vV, vK)[p_]
        if n == 1:
            A(f"v_mov_b32 {vK}, {vV}"); A(f"s_mov_b32 {sCO[1]}, {sCO[0]}"); A(f"s_mov_b32 {sCD[1]}, {sCD[0]}")
        half_params(n, 0, sSO[p_], sP0); half_params(n, 1, sP1, None)
        A(f"s_sub_u32 {sP1}, {sP1}, {sSO[p_]}")
        lane_add(reg, 0xff00ff00, sCO[p_], sP0); lane_add(reg, 0xffff0000, sCD[p_], sP1)
    unit_off(0)
    sKL = "s90"
    if o["nL"]:
        A(f"s_mul_i32 {sKL}, {sW}, {o['nL'] * 3072}"); A(f"s_add_u32 {sKL}, {sKL}, {KL}")
    sG, sRA, sT2, sGT, sSG = "s85", "s[76:77]", "s91", "s99", "s98"
    vT1, vT2 = v(Q), v(Q + 1)
    if o["burst"]:
        sRA = f"s[{sPC}:{sPC+1}]"
        sQT = sGT
        if not o["early"]:
            A(f"v_mul_u32_u24 {vT1}, 21846, {vL}"); A(f"v_lshrrev_b32 {vT1}, 16, {vT1}")
            A(f"v_mul_u32_u24 {vT2}, {12288 - 3*128}, {vT1}"); A(f"v_lshl_add_u32 {vT2}, {vL}, 7, {vT2}")
            A(f"s_lshl_b32 {sQT}, {sB}, 2"); A(f"s_add_u32 {sQT}, {sQT}, {sW}"); A(f"s_mul_i32 {sQT}, {sQT}, {20*12288}")
        if o["grp"] == "h":
            A(f"s_lshr_b32 {sG}, {sH}, 3"); A(f"s_mov_b32 {sGT}, {sG}")
        elif o["grp"] == "hb":
            A(f"s_lshr_b32 {sGT}, {sH}, 3"); A(f"s_lshl_b32 {sGT}, {sGT}, 1"); A(f"s_and_b32 {sG}, {sB}, 1"); A(f"s_add_u32 {sG}, {sG}, {sGT}")
        else:
            A(f"s_mov_b32 {sG}, {sB}")
    if offs: k_addr(0, 0)
    A(f"s_mov_b32 s{sX+2}, 1280"); A(f"s_mov_b32 s{sX+3}, 0x20000")
    A(f"s_mov_b32 s{sK+2}, 393216"); A(f"s_mov_b32 s{sK+3}, 0x20000")
    if not o["early"]:
        A(f"s_sub_u32 s{sWQ+2}, {640*12288}, {sD}"); A(f"s_mov_b32 s{sWQ+3}, 0x20000")
        if o["pf0"]: code_pf0()
        A("s_waitcnt lgkmcnt(0)")
        if o["st0"]: A("s_memrealtime s[72:73]")
    A(f"s_add_u32 s{sX}, s4, {sC}"); A(f"s_addc_u32 s{sX+1}, s5, 0")
    A(f"s_add_u32 s{sK}, s6, {sA}"); A(f"s_addc_u32 s{sK+1}, s7, 0")
    if not o["early"]:
        A(f"s_add_u32 s{sWQ}, s10, {sD}"); A(f"s_addc_u32 s{sWQ+1}, s11, 0")

    def v_page(reg, tmp, sbase):
        A(f"v_bfe_u32 {tmp}, {reg}, 1, 2"); A(f"v_mul_u32_u24 {tmp}, 5, {tmp}"); A(f"v_and_b32 {tmp}, 6, {tmp}")
        A(f"v_and_b32 {reg}, 0x39, {reg}"); A(f"v_or_b32 {reg}, {reg}, {tmp}")
        if o["par"]: A(f"v_xor_b32 {reg}, 2, {reg}")
        A(f"v_lshl_add_u32 {reg}, {reg}, 12, {sbase}")
    def s_page(reg, tmp):
        A(f"s_bfe_u32 {tmp}, {reg}, 0x20001"); A(f"s_mul_i32 {tmp}, {tmp}, 5"); A(f"s_and_b32 {tmp}, {tmp}, 6")
        A(f"s_and_b32 {reg}, {reg}, 0x39"); A(f"s_or_b32 {reg}, {reg}, {tmp}")
        if o["par"]: A(f"s_xor_b32 {reg}, {reg}, 2")
        A(f"s_lshl_b32 {reg}, {reg}, 12")
    def late_setup():
        if o["early"]: A("s_waitcnt lgkmcnt(0)")
        A(f"s_add_u32 s{sV}, s8, {sA}"); A(f"s_addc_u32 s{sV+1}, s9, 0")
        A(f"s_mov_b32 s{sV+2}, 393216"); A(f"s_mov_b32 s{sV+3}, 0x20000")
        A(f"s_add_u32 s{sOUT}, s20, {sC}"); A(f"s_addc_u32 s{sOUT+1}, s21, 0")
        A(f"s_mov_b32 s{sOUT+2}, 1280"); A(f"s_mov_b32 s{sOUT+3}, 0x20000")
        A(f"s_mul_i32 {sD}, {sH}, 245760")
        A(f"s_add_u32 s{sWO}, s12, {sD}"); A(f"s_addc_u32 s{sWO+1}, s13, 0")
        A(f"s_mov_b32 s{sWO+2}, 245760"); A(f"s_mov_b32 s{sWO+3}, 0x20000")
        A(f"s_and_b32 {sA}, {sH}, 7"); A(f"s_lshl_b32 {sA}, {sA}, 2"); A(f"s_lshr_b32 {sC}, {sH}, 3"); A(f"s_add_u32 {sA}, {sA}, {sC}")
        if o["w1bal"]:
            A(f"s_and_b32 {sD}, {sH}, 7"); A(f"s_mul_i32 {sD}, {sD}, 384")
        else: A(f"s_mul_i32 {sD}, {sA}, 96")
        A(f"s_add_u32 s{sW1}, s16, {sD}"); A(f"s_addc_u32 s{sW1+1}, s17, 0")
        A(f"s_sub_u32 s{sW1+2}, {640*3072}, {sD}"); A(f"s_mov_b32 s{sW1+3}, 0x20000")
        A(f"s_mul_i32 {sD}, {sA}, 61440")
        A(f"s_add_u32 s{sW2}, s18, {sD}"); A(f"s_addc_u32 s{sW2+1}, s19, 0")
        A(f"s_mov_b32 s{sW2+2}, 61440"); A(f"s_mov_b32 s{sW2+3}, 0x20000")
        A(f"s_mov_b32 s{sDBG}, s22"); A(f"s_mov_b32 s{sDBG+1}, s23"); A(f"s_mov_b32 s{sDBG+2}, 256"); A(f"s_mov_b32 s{sDBG+3}, 0x20000")
        A(f"s_mov_b32 s{sWS}, s24"); A(f"s_mov_b32 s{sWS+1}, s25"); A(f"s_mov_b32 s{sWS+2}, 0x1000000"); A(f"s_mov_b32 s{sWS+3}, 0x20000")
        if o["prof"]:
            A("s_mov_b32 s4, s100"); nstamp[0] = 1
            if o["st0"]:
                A("s_waitcnt lgkmcnt(0)"); A("s_mov_b32 s6, s72"); A("s_memrealtime s[8:9]"); nstamp[0] = 3
        for n in range(1, 16): unit_off(n)
        A(f"s_lshl_b32 {sA}, {sW}, 2"); A(f"s_add_u32 {sA}, {sA}, 512"); A(f"s_mul_i32 {sQB1}, {sA}, 12288")
        A(f"s_mul_i32 {sF0}, {sW}, {128*3072}")
        A(f"s_and_b32 {sA}, {sW}, 1"); A(f"s_lshl_b32 {sA}, {sA}, 5"); A(f"s_lshr_b32 {sC}, {sW}, 1"); A(f"s_add_u32 {sA}, {sA}, {sC}")
        A(f"s_add_u32 {sA}, {sA}, 512"); A(f"s_mul_i32 {sF1}, {sA}, 3072")
        A(f"s_sub_u32 {sA}, 8, {sW}"); A(f"s_lshl_b32 {sA}, {sA}, 7"); A(f"s_cmp_lt_u32 {sW}, 2"); A(f"s_cselect_b32 {sZ}, {sA}, 0x100000")
        A("s_mov_b32 s92, 0x01010101"); A("s_mov_b32 s93, 0x01010101")
        A(f"s_lshr_b32 {sSG}, s2, 3"); A(f"s_cmp_eq_u32 {sW}, 0"); A(f"s_cselect_b32 {sSG}, {sSG}, 64")
        if o["offs"]: A(f"v_mul_u32_u24 {t3}, 12, {t0}")
        else: A(f"v_mul_u32_u24 {t3}, 384, {vR8}")
        A(f"v_lshl_add_u32 {vV}, {vC}, 4, {t3}")
        A(f"v_lshrrev_b32 {t3}, 4, {vL}"); A(f"s_mul_i32 {sA}, {sW}, {16 if o['tsplit'] else 48}"); A(f"v_add_u32 {t3}, {sA}, {t3}")
        A(f"v_mul_u32_u24 {t3}, 1280, {t3}"); A(f"v_and_b32 {vWO}, 15, {vL}"); A(f"v_lshl_add_u32 {vWO}, {vWO}, 4, {t3}")
        A(f"v_lshrrev_b32 {t3}, 3, {t0}")
        A(f"v_lshl_add_u32 {t3}, {t1}, 1, {t3}")
        A(f"v_lshl_add_u32 {vW1}, {t2}, 3, {t3}")
        A(f"v_mul_u32_u24 {vW1}, 3072, {vW1}")
        A(f"v_min_u32 {vW2}, 5, {vC}")
        A(f"v_lshl_add_u32 {vW1}, {vW2}, 4, {vW1}")
        if o["w1bal"]:
            A(f"s_lshr_b32 {sA}, {sH}, 3"); A(f"s_mul_i32 {sA}, {sA}, 96"); A(f"v_add_u32 {vW1}, {sA}, {vW1}")
        A(f"v_add_u32 {t3}, {t3}, {t2}")
        A(f"v_mul_u32_u24 {t3}, 1280, {t3}")
        A(f"v_lshl_add_u32 {t3}, {vC}, 4, {t3}")
        A(f"s_lshl_b32 {sA}, {sW}, 8")
        A(f"v_add_u32 {vW2}, {sA}, {t3}")
        A(f"v_cmp_gt_u32 vcc, 4, {vC}")
        A(f"v_mov_b32 {t3}, 0xffff")
        A(f"v_and_b32 {vIDX}, 3, {vC}")
        A(f"v_cndmask_b32 {v(MK[0])}, 0, {t3}, vcc")
        A(f"v_mul_u32_u24 {vIDX}, 0x5555, {vIDX}")
        A(f"v_xor_b32 {v(MK[1])}, {t3}, {v(MK[0])}")
        A(f"v_lshlrev_b32 {v(MK[2])}, 16, {v(MK[0])}")
        A(f"v_lshlrev_b32 {v(MK[3])}, 16, {v(MK[1])}")
        A(f"v_lshrrev_b32 {t3}, 5, {vL}")
        A(f"v_lshl_add_u32 {t3}, {t1}, 1, {t3}")
        A(f"v_lshl_add_u32 {t3}, {t2}, 2, {t3}")
        A(f"v_lshl_add_u32 {t3}, {vC}, 3, {t3}")
        A(f"s_lshl_b32 {sA}, {sW}, 2")
        A(f"v_lshl_add_u32 {vREDW}, {t3}, 4, {sA}")
        if numa:
            A(f"s_lshl_b32 {sA}, {sB}, 17"); A(f"s_lshl_b32 {sC}, {sH}, 7"); A(f"s_add_u32 {sA}, {sA}, {sC}")
            A(f"s_mul_i32 {sC}, {sW}, 5"); A(f"v_add_u32 {vP1ST}, {sC}, {vR8}")
            v_page(vP1ST, t3, sA)
            A(f"v_lshl_add_u32 {vP1ST}, {vC}, 4, {vP1ST}")
            A(f"v_mov_b32 {t3}, {OOB}")
            A(f"v_cmp_gt_u32 vcc, 40, {vL}")
            A(f"s_lshl_b32 {sA}, {sB}, 15"); A(f"s_lshl_b32 {sC}, {sH}, 7"); A(f"s_add_u32 {sA}, {sA}, {sC}"); A(f"s_add_u32 {sA}, {sA}, {HB}")
            A(f"v_cndmask_b32 {vP1ST}, {t3}, {vP1ST}, vcc")
            A(f"s_cmp_eq_u32 {sW}, {o['redw']}"); A(f"s_cselect_b32 {sC}, 64, 0")
            A(f"v_and_b32 {vHST}, 31, {vL}"); A(f"v_lshl_add_u32 {vHST}, {vHST}, 2, {sA}")
            A(f"v_lshl_add_u32 {vHST}, {t0}, 7, {vHST}")
            A(f"v_cmp_gt_u32 vcc, {sC}, {vL}")
        else:
            A(f"s_mul_i32 {sA}, s2, {PS}"); A(f"s_mul_i32 {sC}, {sW}, 640"); A(f"s_add_u32 {sC}, {sA}, {sC}")
            A(f"v_lshl_add_u32 {vP1ST}, {vL}, 4, {sC}")
            if o["p32"]:
                A(f"s_mul_i32 {sC}, {sW}, 384"); A(f"s_add_u32 {sC}, {sA}, {sC}"); A(f"s_add_u32 {sC}, {sC}, {2560 - 640}")
                A(f"v_lshl_add_u32 {vHST}, {vL}, 4, {sC}")
            A(f"v_mov_b32 {t3}, {OOB}")
            A(f"v_cmp_gt_u32 vcc, 40, {vL}")
            A(f"s_mul_i32 {sA}, {sB}, 2560"); A(f"s_lshl_b32 {sC}, {sH}, 7"); A(f"s_add_u32 {sA}, {sA}, {sC}"); A(f"s_add_u32 {sA}, {sA}, {HB}")
            A(f"v_cndmask_b32 {vP1ST}, {vHST if o['p32'] else t3}, {vP1ST}, vcc")
            if o["hbar"]:
                A(f"s_lshl_b32 {sC}, s2, 7"); A(f"s_add_u32 {sC}, {sC}, {HB + 0x80000}")
                A(f"s_cmp_lt_u32 {sH}, 20"); A(f"s_cselect_b32 {sA}, {sA}, {sC}")
                A(f"s_cmp_eq_u32 {sW}, {o['redw']}"); A(f"s_cselect_b32 {sC}, 32, 0")
            else:
                A(f"s_cmp_lt_u32 {sH}, 20"); A(f"s_cselect_b32 {sC}, 32, 0"); A(f"s_cmp_eq_u32 {sW}, 0"); A(f"s_cselect_b32 {sC}, {sC}, 0")
            if o["hcopy"]:
                A(f"v_and_b32 {vHST}, 31, {vL}"); A(f"v_lshl_add_u32 {vHST}, {vHST}, 2, {sA}")
                A(f"v_lshl_add_u32 {vHST}, {t0}, 10, {vHST}"); A(f"s_lshl_b32 {sC}, {sC}, 1")
            else:
                A(f"v_lshl_add_u32 {vHST}, {vL}, 2, {sA}")
            A(f"v_cmp_gt_u32 vcc, {sC}, {vL}")
        if not o["tag"]:
            for k in range(4): A(f"v_mov_b32 {v(AF[1]+k)}, -1")
        A(f"v_cndmask_b32 {vHST}, {t3}, {vHST}, vcc")
        if o["tag"]:
            A(f"s_or_b32 {sA}, s2, {sW}"); A("s_cbranch_scc1 L_nononce")
            A(f"s_memrealtime s[{sPC}:{sPC+1}]"); A("s_waitcnt lgkmcnt(0)")
            A(f"s_mul_i32 {sA}, s{sPC}, 0x9e3779b1"); A(f"s_max_u32 {sA}, {sA}, 1")
            A("s_mov_b64 exec, 1")
            A(f"v_mov_b32 {t3}, {sA}")
            A(f"buffer_store_dword {t3}, off, {srd(sDBG)}, 0 sc1")
            A("s_mov_b64 exec, -1")
            A.label("L_nononce")

    DPPF = "row_mask:0xf bank_mask:0xf"
    def wave_reduce(op, reg, sdst, fill=()):
        fill = list(fill)
        steps = [f"quad_perm:[1,0,3,2] {DPPF}", f"quad_perm:[2,3,0,1] {DPPF}", f"row_half_mirror {DPPF}", f"row_mirror {DPPF}",
                 "row_bcast:15 row_mask:0xa bank_mask:0xf", "row_bcast:31 row_mask:0xc bank_mask:0xf"]
        for st in steps:
            for _ in range(2):
                if fill: A(fill.pop(0))
            A(f"{op}_dpp {reg}, {reg}, {reg} {st}")
        if fill: A(fill.pop(0))
        A(f"v_readlane_b32 {sdst}, {reg}, 63")
        for f in fill: A(f)
    def round_bf16(reg):
        A(f"v_cvt_pk_bf16_f32 {reg}, {reg}, {reg}")
        A(f"v_lshlrev_b32 {reg}, 16, {reg}")
    def layernorm(F, Wk, tp, out):
        p = lambda r: vr(r, 2)
        A(f"v_pk_add_f32 {p(tp)}, {p(F[0])}, {p(F[1])}")
        A(f"v_pk_add_f32 {p(tp+2)}, {p(F[2])}, {p(F[3])}")
        A(f"v_pk_add_f32 {p(tp)}, {p(tp)}, {p(F[4])}")
        A(f"v_pk_add_f32 {p(tp)}, {p(tp)}, {p(tp+2)}")
        A(f"v_add_f32 {v(tp)}, {v(tp)}, {v(tp+1)}")
        wave_reduce("v_add_f32", v(tp), sA, fill=[f"v_mov_b32 {v(tp+2)}, {hex(fbits(-1.0/640))}"])
        A(f"v_mul_f32 {v(tp)}, {sA}, {v(tp+2)}")
        A(f"v_mul_f32 {v(tp+1)}, {sA}, {v(tp+2)}")
        A(f"v_pk_add_f32 {p(tp+2)}, {p(F[0])}, {p(tp)}")
        A(f"v_pk_add_f32 {p(Wk[1])}, {p(F[1])}, {p(tp)}")
        A(f"v_pk_mul_f32 {p(tp+2)}, {p(tp+2)}, {p(tp+2)}")
        A(f"v_pk_add_f32 {p(Wk[2])}, {p(F[2])}, {p(tp)}")
        A(f"v_pk_fma_f32 {p(tp+2)}, {p(Wk[1])}, {p(Wk[1])}, {p(tp+2)}")
        A(f"v_pk_add_f32 {p(Wk[3])}, {p(F[3])}, {p(tp)}")
        A(f"v_pk_fma_f32 {p(tp+2)}, {p(Wk[2])}, {p(Wk[2])}, {p(tp+2)}")
        A(f"v_pk_add_f32 {p(Wk[1])}, {p(F[4])}, {p(tp)}")
        A(f"v_pk_fma_f32 {p(tp+2)}, {p(Wk[3])}, {p(Wk[3])}, {p(tp+2)}")
        A(f"v_pk_fma_f32 {p(tp+2)}, {p(Wk[1])}, {p(Wk[1])}, {p(tp+2)}")
        A(f"v_add_f32 {v(tp+2)}, {v(tp+2)}, {v(tp+3)}")
        a, b, c = Wk[0], Wk[4], Wk[1]
        fill = [f"v_cvt_pk_bf16_f32 {v(tp)}, {v(tp)}, {v(tp)}",
                f"v_lshlrev_b32 {v(tp+1)}, 16, {v(tp)}",
                f"v_lshlrev_b32 {v(tp)}, 16, {v(tp)}",
                f"v_pk_add_f32 {p(a)}, {p(F[0])}, {p(tp)}",
                f"v_pk_add_f32 {p(b)}, {p(F[4])}, {p(tp)}",
                f"v_cvt_pk_bf16_f32 {v(c)}, {v(a)}, {v(a+1)}",
                f"v_cvt_pk_bf16_f32 {v(c+1)}, {v(b)}, {v(b+1)}",
                f"v_lshlrev_b32 {v(a)}, 16, {v(c)}",
                f"v_and_b32 {v(a+1)}, 0xffff0000, {v(c)}",
                f"v_lshlrev_b32 {v(b)}, 16, {v(c+1)}",
                f"v_and_b32 {v(b+1)}, 0xffff0000, {v(c+1)}",
                f"v_mov_b32 {v(tp+4)}, {hex(fbits(1.0/640))}"]
        wave_reduce("v_add_f32", v(tp+2), sA, fill=fill)
        A(f"v_mul_f32 {v(tp)}, {sA}, {v(tp+4)}")
        round_bf16(v(tp))
        A(f"v_add_f32 {v(tp)}, {hex(fbits(1e-5))}, {v(tp)}")
        round_bf16(v(tp))
        A(f"v_sqrt_f32 {v(tp)}, {v(tp)}")
        round_bf16(v(tp))
        A(f"v_rcp_f32 {v(tp)}, {v(tp)}")
        A(f"v_mul_f32 {v(a)}, {v(a)}, {v(tp)}")
        A(f"v_mul_f32 {v(a+1)}, {v(a+1)}, {v(tp)}")
        A(f"v_cvt_pk_bf16_f32 {v(out)}, {v(a)}, {v(a+1)}")
        A(f"v_mul_f32 {v(b)}, {v(b)}, {v(tp)}")
        A(f"v_mul_f32 {v(b+1)}, {v(b+1)}, {v(tp)}")
        A(f"v_mov_b32_dpp {v(out+1)}, {v(out)} row_half_mirror {DPPF}")
        A(f"v_cvt_pk_bf16_f32 {v(out+2)}, {v(b)}, {v(b+1)}")
        A(f"v_mov_b32_dpp {v(out+3)}, {v(out+2)} row_half_mirror {DPPF}")
    def afrag_oct(dst, P, c0):
        lo, hi = ((P, c0), (P + 1, 3 - c0)) if c0 < 4 else ((P + 1, 7 - c0), (P, c0 - 4))
        out = []
        for k in range(4):
            src, x = lo if k % 2 == 0 else hi
            out.append(f"v_and_b32_dpp {v(dst+k)}, {v(src)}, {v(MK[k])} quad_perm:[{x},{x},{x},{x}] {DPPF}")
        return out
    def smf(d, a, slot):
        A(f"v_smfmac_f32_16x16x64_bf16 {vr(d,4)}, {vr(a,4)}, {slot[0]}[{slot[1]}:{slot[1]+7}], {vIDX}")
    def compact(blocks):
        for d in blocks:
            A(f"v_permlane32_swap_b32 {v(d)}, {v(d+1)}")
            A(f"v_permlane32_swap_b32 {v(d+2)}, {v(d+3)}")
        for d in blocks:
            A(f"v_add_f32_dpp {v(d)}, {v(d+1)}, {v(d)} row_ror:8 row_mask:0xf bank_mask:0x3")
        for d in blocks:
            A(f"v_add_f32_dpp {v(d)}, {v(d+2)}, {v(d+3)} row_ror:8 row_mask:0xf bank_mask:0xc")

    def signal(lbl, k=None):
        if k is None: A(f"s_cmp_lg_u32 {sW}, 0")
        else: A(f"s_cmp_lg_u32 {sSG}, {k}")
        A(f"s_cbranch_scc1 {lbl}")
        if k is None: signal_body()
        else: A(f"s_call_b64 {sRA}, L_signal")
        A.label(lbl)
    def signal_body():
        A(f"s_lshl_b32 {sT2}, {sB}, 5")
        A("s_mov_b64 exec, 1")
        A(f"v_mov_b32 {vWQ}, 1")
        if not o["nosig"]: A(f"buffer_atomic_add {vWQ}, off, {srd(sDBG)}, {sT2} sc1")
        A("s_mov_b64 exec, -1")

    freeA = [("a", 8 * i) for i in range(32)]
    freeV = [("v", 64 + 8 * i) for i in range(24)]
    halfV = []
    slots = {}
    def can_alloc(kind):
        if kind == "pair": return bool(freeA or freeV)
        if kind == "half": return bool(halfV or freeV)
        return True
    def alloc(kind, key, preferV=False):
        if kind == "pair":
            s = (freeV if (preferV and freeV) or not freeA else freeA).pop(0)
        else:
            if not halfV:
                s = freeV.pop(0); halfV.extend([s, (s[0], s[1] + 4)])
            s = halfV.pop(0)
        slots[key] = s
        return s
    def release(kind, key):
        s = slots.pop(key)
        if kind == "pair":
            (freeA if s[0] == "a" else freeV).append(s)
        else:
            mate = (s[0], s[1] ^ 4)
            if mate in halfV:
                halfV.remove(mate); freeV.append((s[0], s[1] & ~7))
            else: halfV.append(s)

    def tile_load(reg, vaddr, sr, soff, imm, pol):
        A(f"buffer_load_dwordx4 {reg[0]}[{reg[1]}:{reg[1]+3}], {vaddr}, {srd(sr)}, {soff} offen offset:{imm} {pol}".rstrip())
    def mk_pair(key, Tt, vaddr, sr, soff_fn, imm, pol, preferV=False):
        def emit():
            s = alloc("pair", key, preferV) if key not in slots else slots[key]
            tile_load((s[0], s[1] + 4 * Tt), vaddr, sr, soff_fn(), imm, pol)
        return dict(tag=key + (Tt,), need="pair" if Tt == 0 else None, emit=emit)
    last_soff = [None]
    def soff_add(base, const):
        def f():
            if last_soff[0] != (base, const):
                if base is None: A(f"s_mov_b32 {sT}, {const}")
                else: A(f"s_add_u32 {sT}, {base}, {const}")
                last_soff[0] = (base, const)
            return sT
        return f
    Lx = []
    for s_ in range(4):
        def emit(s_=s_):
            A(f"s_add_u32 {sT}, {sW}, {s_}"); A(f"s_and_b32 {sT}, {sT}, 3"); A(f"s_lshl_b32 {sT}, {sT}, 8")
            A(f"buffer_load_dword {v(T+s_)}, {v(T+5)}, {srd(sX)}, {sT} offen")
        Lx.append(dict(tag=("x", s_), need=None, emit=emit))
    Lx.append(dict(tag=("x", 4), need=None, emit=lambda: A(f"buffer_load_dword {v(T+4)}, {v(T+6)}, {srd(sX)}, 0 offen offset:1024")))
    Lwq = []
    for u in range(10):
        for t in range(3):
            for Tt in range(2):
                base, rows = (sQB0, 64 * Tt + 2 * u) if u < 8 else (sQB1, 64 * Tt + 2 * (u - 8))
                Lwq.append(mk_pair(("wq", u, t), Tt, vWQ, sWQ, soff_add(base, rows * 12288), 128 * t, o["polW"]))
    def next_addr(n, hB):
        j = 2 * n + hB + 1
        if j < 32: k_addr(j >> 1, j & 1)
        else: v_addr(0); v_addr(1)
    LK = []
    for n in range(16):
        for hB in range(2):
            for t in range(3):
                def emit(n=n, hB=hB, t=t):
                    s = alloc("half", ("k", n, hB, t))
                    if offs: tile_load(s, vK, sK, sSO[0], t * 128, o["polKV"])
                    else: tile_load(s, vK, sK, f"s{sU+n}", hB * 768 + t * 128, o["polKV"])
                    if offs and t == 2: next_addr(n, hB)
                def emitL(n=n, hB=hB, t=t):
                    imm = t * 128 if offs else hB * 768 + t * 128
                    A(f"s_add_u32 m0, {sKL}, {((2 * n + hB) * 3 + t) * 1024 - imm}")
                    A("s_nop 0")
                    A(f"buffer_load_dwordx4 {vK}, {srd(sK)}, {sSO[0] if offs else 's%d' % (sU+n)} offen offset:{imm} {o['polKV']} lds")
                    if offs and t == 2: next_addr(n, hB)
                if 2 * n + hB < o["nL"]: LK.append(dict(tag=("k", n, hB, t), need=None, emit=emitL))
                else: LK.append(dict(tag=("k", n, hB, t), need="half", emit=emit))
    LV = []
    for n in range(16):
        for t in range(3):
            for Tt in range(2):
                if offs:
                    it = mk_pair(("v", n, t), Tt, (vV, vK)[n & 1], sV, (lambda n=n: sSO[n & 1]), Tt * 768 + t * 128, o["polKV"], preferV=True)
                    if t == 2 and Tt == 1 and n + 2 < 16:
                        it["emit"] = (lambda e=it["emit"], n=n: (e(), v_addr(n + 2)))
                    LV.append(it)
                else:
                    LV.append(mk_pair(("v", n, t), Tt, vV, sV, (lambda n=n: f"s{sU+n}"), Tt * 3072 + t * 128, o["polKV"], preferV=True))
    if o["vorder"] == "T":
        nT = 14 if o["tsplit"] else 16
        LV = [it for n in range(nT) for Tt in range(2) for it in LV[6*n:6*n+6] if it["tag"][3] == Tt] + LV[6*nT:]
    if o["tsplit"]:
        LV = LV[:84] + [it for t in range(3) for n in (14, 15) for it in LV[84:] if it["tag"][1:3] == (n, t)]
    Lwo = []
    for u in range(6):
        for blk in range(5):
            for Tt in range(2):
                row0 = (64 * (u >> 1) + 8 * (u & 1) if o["tsplit"] else 8 * u) + 4 * Tt
                Lwo.append(mk_pair(("wo", u, blk), Tt, vWO, sWO, soff_add(None, row0 * 1280), blk * 256, o["polW"]))
    Lw1 = []
    for u in range(10):
        for Tt in range(2):
            base, rows = (sF0, 64 * Tt + 16 * (u & 3) + (u >> 2)) if u < 8 else (sF1, 64 * Tt + 16 * (u - 8))
            Lw1.append(mk_pair(("w1", u), Tt, vW1, sW1, soff_add(base, rows * 3072), 0, o["polW"]))
    Lw2 = []
    for u in range(3):
        for blk in range(3):
            for Tt in range(2):
                rows = 16 * u + 8 * Tt
                if blk < 2: Lw2.append(mk_pair(("w2", u, blk), Tt, vW2, sW2, soff_add(None, rows * 1280), blk * 128, o["polW"]))
                else: Lw2.append(mk_pair(("w2", u, blk), Tt, vW2, sW2, soff_add(sZ, rows * 1280), 0, o["polW"]))
    def misc(tag, fn): return dict(tag=tag, need=None, emit=fn)
    def mix(*lists):
        lists = [l for l in lists if l]
        items = []
        for li, l in enumerate(lists):
            for i, it in enumerate(l): items.append(((i + 0.5) / len(l), li, it))
        items.sort(key=lambda z: (z[0], z[1]))
        return [z[2] for z in items]
    def clr1():
        if o["noclr"]: A(f"buffer_load_dword {v(AF[1])}, off, {srd(sX)}, 0"); return
        A(f"buffer_store_dwordx4 {vr(AF[1],4)}, {vP1ST}, {srd(sWS)}, 0 offen {o['polC']}")
    def clr2():
        if o["noclr"]: A(f"buffer_load_dword {v(AF[1])}, off, {srd(sX)}, 0"); return
        A(f"s_mov_b32 {sT}, {P2}"); last_soff[0] = None
        A(f"buffer_store_dwordx4 {vr(AF[1],4)}, {vP1ST}, {srd(sWS)}, {sT} offen {o['polC']}")
    def clr3():
        if o["noclr"]: A(f"buffer_load_dword {v(AF[1])}, off, {srd(sX)}, 0"); return
        A(f"buffer_store_dword {v(AF[1])}, {vHST}, {srd(sWS)}, 0 offen {o['polC']}")
    def code_pf(label, reg, areg):
        def f():
            A(f"s_getpc_b64 s[{sPC}:{sPC+1}]")
            here = f"L_pc_{label}"
            A.label(here)
            A(f"s_add_u32 s{sPC}, s{sPC}, {label}-{here}"); A(f"s_addc_u32 s{sPC+1}, s{sPC+1}, 0")
            A(f"v_lshlrev_b32 {areg}, 7, {vL}")
            A(f"v_min_u32 {areg}, L_last-{label}, {areg}")
            A(f"global_load_dword {reg}, {areg}, s[{sPC}:{sPC+1}]")
        return f
    def cntload():
        if o["tag"]:
            A(f"buffer_load_dword {tCNT}, off, {srd(sDBG)}, 0 sc1"); return
        A(f"s_lshl_b32 {sT}, {sB}, 5"); last_soff[0] = None
        A(f"buffer_load_dword {tCNT}, off, {srd(sX if o['nosig'] else sDBG)}, {sT} sc1")
    extra = [misc(("xr",), lambda: A(f"buffer_load_ushort {tXR}, {tXR}, {srd(sX)}, 0 offen"))]
    if o["codepf"]: extra.append(misc(("pf",), code_pf("L_tail", tPF, tPF)))
    clrs = [misc(("clr", 0), clr1), misc(("clr", 1), clr2), misc(("clr", 2), clr3)]
    if o["tag"]: clrs = []
    qbar_done = [False]
    def warm_lines(msk=None):
        n_ = 0
        wm = o["warm"] & ~o["warm2"] if msk is None else msk
        o_ = dict(o); o_["warm"] = wm
        return warm_lines_(o_)
    def warm_lines_(o):
        n_ = 0
        if o["warm"] & 1:
            A(f"buffer_load_dword {v(T+12)}, {vP1ST}, {srd(sWS)}, 0 offen {o['polWm']}"); n_ += 1
        if o["warm"] & 2:
            for k in range(4 if o["hcopy"] else 1):
                A(f"s_mov_b32 {sT2}, {k * HS}")
                A(f"buffer_load_dword {v(T+12)}, {vHST}, {srd(sWS)}, {sT2} offen {o['polWm']}"); n_ += 1
        if o["warm"] & 4:
            A(f"buffer_load_dword {v(T+12)}, {tP2ST}, {srd(sWS)}, 0 offen {o['polWm']}"); n_ += 1
        return n_
    hooks = {}
    subs = []
    if not o["burst"]:
        phA = mix(Lwq, LK[:o["nKA"]])
        phB = mix(LK[o["nKA"]:], Lwo[:o["nWOB"]])
        rest = Lwo[o["nWOB"]:] + Lw1 + Lw2
        nlast = o["wlast"]
        phC = mix(LV, rest[:len(rest) - nlast]) + rest[len(rest) - nlast:]
        nfirst = o["WA"] - len(Lx)
        phA = phA[:nfirst] + clrs + phA[nfirst:]
        k = len(phC) * 2 // 3
        phC = phC[:k] + extra + phC[k:]
        k = len(phC) - nlast - o["WC"]
        phC = phC[:k] + [misc(("cnt",), cntload)] + phC[k:]
        seq = Lx + phA + phB + phC
        Wn = [o["WA"]] * (len(Lx) + len(phA)) + [o["WB"]] * len(phB) + [o["WC"]] * len(phC)
    else:
        NG = 4 if o["grp"] == "h" else 8
        KV = LK + LV
        pol = o["polT"]
        vDUM = v(T + 12)
        vTA = v(T + 11)
        def touch(areg, sr, soff, dst=vDUM, lanes=None):
            if lanes is not None:
                m = ((1 << lanes[1]) - 1) ^ ((1 << lanes[0]) - 1)
                A(f"s_mov_b32 exec_lo, {hex(m & 0xffffffff)}"); A(f"s_mov_b32 exec_hi, {hex(m >> 32)}")
                touch(areg, sr, soff, dst); A("s_mov_b64 exec, -1")
                return
            A(f"buffer_load_dword {dst}, {areg}, {srd(sr)}, {soff} offen {pol}")
            if o["touch64"]: A(f"buffer_load_dword {dst}, {areg}, {srd(sr)}, {soff} offen offset:64 {pol}")
            if o["polT2"] is not None: A(f"buffer_load_dword {dst}, {areg}, {srd(sr)}, {soff} offen {o['polT2']}")
        ncond = [0]
        def cond(sreg, k, fn):
            def f():
                lbl = f"L_skip{ncond[0]}"; ncond[0] += 1
                A(f"s_cmp_lg_u32 {sreg}, {k}"); A(f"s_cbranch_scc1 {lbl}")
                fn(); A.label(lbl); last_soff[0] = None
            return f
        def reserve(lst):
            def f():
                if lst[0]["tag"][0] == "wo": assert len(freeA) >= 30, "wo reserved before the q projection finished"
                for it in lst:
                    if it["need"]:
                        while not can_alloc("pair"): force_now()
                        freeV.sort(key=lambda z: -z[1])
                        alloc("pair", it["tag"][:-1])
                if not (lst[0]["tag"][0] == "w1" and o["w12late"]): subs.append((lst[0]["tag"][0], lst, dict(slots)))
            return f
        def piece(nl, p_, np_): return (nl * p_ // np_, nl * (p_ + 1) // np_)
        def touch_wo(p_=0, np_=1):
            a = vTA
            A(f"s_lshl_b32 {sT2}, {sB}, 2"); A(f"s_add_u32 {sT2}, {sT2}, {sW}"); A(f"s_mul_i32 {sT2}, {sT2}, {60*128}")
            A(f"v_lshlrev_b32 {a}, 7, {vL}"); touch(a, sWO, sT2, lanes=piece(60, p_, np_))
        def touch_w2(p_=0, np_=1, a=None):
            a = a or v(T + 9)
            A(f"s_lshl_b32 {sT2}, {sB}, 2"); A(f"s_add_u32 {sT2}, {sT2}, {sW}"); A(f"s_mul_i32 {sT2}, {sT2}, {15*128}")
            A(f"v_lshlrev_b32 {a}, 7, {vL}"); touch(a, sW2, sT2, lanes=piece(15, p_, np_))
        def touch_w12(p_=0, np_=1):
            a = vTA
            if o["w1bal"]:
                A(f"s_lshr_b32 {sT2}, s2, 3"); A(f"s_lshl_b32 {sT2}, {sT2}, 2"); A(f"s_add_u32 {sT2}, {sT2}, {sW}"); A(f"s_mul_i32 {sT2}, {sT2}, {5*3072}")
                A(f"v_mul_u32_u24 {a}, 21846, {vL}"); A(f"v_lshrrev_b32 {a}, 16, {a}")
                A(f"v_mul_u32_u24 {a}, {3072 - 384}, {a}"); A(f"v_lshl_add_u32 {a}, {vL}, 7, {a}")
                touch(a, sW1, sT2, lanes=piece(15, p_, np_))
            else:
                A(f"s_lshl_b32 {sT2}, {sB}, 2"); A(f"s_add_u32 {sT2}, {sT2}, {sW}"); A(f"s_mul_i32 {sT2}, {sT2}, {20*3072}")
                A(f"v_and_b32 {a}, 1, {vL}"); A(f"v_mul_u32_u24 {a}, {1536 - 92}, {a}")
                A(f"v_mul_u32_u24 {vWQ}, 1536, {vL}"); A(f"v_sub_u32 {a}, {vWQ}, {a}")
                touch(a, sW1, sT2, lanes=piece(40, p_, np_))
            if o["nlateW"] < 18: touch_w2(p_, np_, a)
        tb_ = o["b0"] - o["tlead"] if o["tB"] is None else o["tB"]
        tc_ = o["c0"] - o["tlead"] if o["tC"] is None else o["tC"]
        assert o["grp"] == "b" and tb_ >= 6 and tc_ > tb_ + o["W"]
        def hook(i, fn): hooks.setdefault(KV[i]["tag"], []).append(fn)
        Lw12 = Lw1 + Lw2
        Llate = Lw12[len(Lw12) - o["nlateW"]:]; Lw12 = Lw12[:len(Lw12) - o["nlateW"]]
        if o["nlateW"] >= 18 and o["tlate"] < 192: hook(o["tlate"], lambda: touch_w2())
        for base, step, lst, tfn in ((o["a0"], o["da"], Lwq, None), (o["b0"], o["db"], Lwo, touch_wo), (o["c0"], o["dc"], Lw12, touch_w12)):
            nm = lst[0]["tag"][0]
            hook(base, reserve(lst))
            for k in range(NG):
                if tfn and o["touch"] and (o["grp"] == "h" or (o["grp"] == "hb" and k % 2 == 0) or k == 0):
                    tp = o["tB"] if nm == "wo" else o["tC"]
                    tp = base - o["tlead"] if tp is None else tp
                    for p_ in range(o["tws"]):
                        hook(tp - (o["tws"] - 1 - p_) * o["dtw"], lambda p_=p_, tfn=tfn: tfn(p_, o["tws"]))
                if not (nm == "w1" and o["w12late"]):
                    kx = k ^ o["ordx"][("wq", "wo", "w1").index(nm)]
                    hook(base + k * step, cond(sG, kx, lambda nm=nm: A(f"s_call_b64 {sRA}, L_burst_{nm}")))
        if o["dsig"]:
            for k in range(32):
                def f(k=k):
                    assert qbar_done[0]
                    signal(f"L_sig{k}", k)
                hook(o["sig0"] + k * o["dsig"], f)
        if o["warmpos"] < 192: hook(o["warmpos"], warm_lines)
        lastA = KV[o["a0"] + (NG - 1) * o["da"]]["tag"]
        lastB = KV[o["b0"] + (NG - 1) * o["db"]]["tag"]
        lastC = KV[o["c0"] + (NG - 1) * o["dc"]]["tag"]
        t0l = [misc(("tq",), lambda: touch(vT2, sWQ, sQT, vT1, lanes=(0, 60)))] if o["touch"] else []
        if o["early"]: t0l = []
        if o["tqs"] and o["touch"]:
            t0l = []
            for p_, at in enumerate(o["tqs"]):
                hook(at, lambda p_=p_: touch(vT2, sWQ, sQT, vT1, lanes=piece(60, p_, len(o["tqs"]))))
            assert max(o["tqs"]) < o["a0"]
        k1 = 150; k2 = 151 if o["tag"] else 192 - o["W"]
        head = (KV[:3] + t0l + Lx + KV[3:6]) if o["kfirst"] else (Lx + t0l + KV[:6])
        seq = head + clrs + KV[6:k1] + extra + KV[k1:k2] + [misc(("cnt",), cntload)] + KV[k2:]
        nhead = len(Lx) + len(t0l) + 6 + len(clrs)
        Wn = [nhead + 2] * (nhead + 2) + [o["W"]] * (len(seq) - nhead - 2)
        if o["Ws"]:
            kvpos = {it["tag"]: i for i, it in enumerate(KV)}
            cw, acc = o["W"], 0.0
            for i, it in enumerate(seq):
                for p_, w_ in o["Ws"]:
                    if kvpos.get(it["tag"]) == p_: cw = w_
                if i >= nhead + 2:
                    acc += cw - int(cw)
                    Wn[i] = int(cw) + (1 if acc >= 0.999 else 0)
                    if acc >= 0.999: acc -= 1
    pos = {it["tag"]: i for i, it in enumerate(seq)}

    acts = []
    def act(needs, fn, before=None): acts.append(dict(needs=[pos[t] for t in needs], fn=fn))
    def a_lnx():
        A.comment("LayerNorm(x)")
        if o["st0"]: stamp()
        F = D
        for s_ in range(5):
            A(f"v_lshlrev_b32 {v(F+2*s_)}, 16, {v(T+s_)}")
            A(f"v_and_b32 {v(F+2*s_+1)}, 0xffff0000, {v(T+s_)}")
        layernorm([F + 2 * k for k in range(5)], [F + 2 * k for k in range(5)], T, S)
        for k in range(12): A(f"v_mov_b32 {v(D+k)}, 0")
    act([("x", s_) for s_ in range(5)], a_lnx)
    setup_tag = ("k", 1, 0, 0) if o["tag"] else ("clr", 0)
    assert pos[("k", 1, 0, 0)] >= pos[setup_tag]
    if o["burst"]:
        for it in Lwq: pos[it["tag"]] = pos[lastA]
        for it in Lwo: pos[it["tag"]] = pos[lastB]
        assert o["a0"] >= 6
    else:
        assert pos[("wq", 8, 0, 0)] > pos[("clr", 0)]
        assert pos[("x", 4)] + o["WA"] > pos[("clr", 2)]
    for u in range(10):
        for t in range(3):
            def f(u=u, t=t):
                if t == 0:
                    for ins in afrag_oct(AF[u & 1], S + 2 * (u >> 3), u & 7): A(ins)
                smf(D + 4 * t, AF[u & 1], slots[("wq", u, t)]); release("pair", ("wq", u, t))
            act([("wq", u, t, 1)], f); acts[-1]["cost"] = 0.2 if o["burst"] else 1
    def a_qred1():
        A.comment("q: cross-wave reduction")
        compact([D, D + 4, D + 8])
        for t in range(3): A(f"ds_write_b32 {vREDW}, {v(D+4*t)} offset:{RED + 1024*t}")
        A(f"v_lshlrev_b32 {v(T)}, 4, {vL}")
        A(f"s_mul_i32 {sA}, {sW}, 384")
        A(f"v_lshl_add_u32 {v(T+1)}, {vL}, 1, {sA}")
        A(f"v_and_b32 {v(T+2)}, 7, {vL}")
        A(f"v_lshl_add_u32 {v(T+2)}, {v(T+2)}, 4, {sA}")
        A("s_waitcnt lgkmcnt(0)")
        A("s_barrier")
        for t in range(3): A(f"ds_read_b128 {vr(D+4*t,4)}, {v(T)} offset:{RED + 1024*t}")
        if o["burst"] and o["dsig"] == 0 and not o["tag"]: signal("L_nosig")
        qbar_done[0] = True
    act([] if o["tag"] else [("clr", 2)], a_qred1)
    def a_qred2():
        A("s_waitcnt lgkmcnt(0)")
        for t in range(3):
            d = D + 4 * t
            A(f"v_pk_add_f32 {vr(d,2)}, {vr(d,2)}, {vr(d+2,2)}")
        for t in range(3):
            d = D + 4 * t
            A(f"v_add_f32 {v(d)}, {v(d)}, {v(d+1)}")
        for t in range(3):
            d = D + 4 * t
            A(f"v_cvt_pk_bf16_f32 {v(d)}, {v(d)}, {v(d)}")
        for t in range(3): A(f"ds_write_b16 {v(T+1)}, {v(D+4*t)} offset:{QB + 128*t}")
        A("s_waitcnt lgkmcnt(0)")
        for t in range(3): A(f"ds_read_b128 {vr(Q+4*t,4)}, {v(T+2)} offset:{QB + 128*t}")
        for k in range(12): A(f"v_mov_b32 {v(D+k)}, 0")
        A("s_waitcnt lgkmcnt(0)")
        if not o["st0"]: stamp()
    act([], a_qred2)
    nLu = o["nL"] // 2
    order = list(range(nLu, nLu + o["rL"])) + list(range(nLu)) + list(range(nLu + o["rL"], 16)) if nLu else list(range(16))
    vKL = v(T + 3)
    def lds_reads(n, hB):
        for t in range(3):
            while not can_alloc("half"): raise AssertionError("no register for LDS K tile")
            s = alloc("half", ("k", n, hB, t))
            A(f"ds_read_b128 v[{s[1]}:{s[1]+3}], {vKL} offset:{((2 * n + hB) * 3 + t) * 1024}")
    halves = [(n, hB) for n in order for hB in range(2)]
    for i, (n, hB) in enumerate(halves):
        def f(i=i, n=n, hB=hB):
            if i == 0 and nLu: A(f"v_lshl_add_u32 {vKL}, {vL}, 4, {sKL}")
            if n < nLu: A("s_waitcnt lgkmcnt(0)")
            if i + 1 < 32 and halves[i + 1][0] < nLu: lds_reads(*halves[i + 1])
            acc = v(T + hB)
            first = True
            for t in range(3):
                s = slots[("k", n, hB, t)]
                for k in range(4):
                    if first: A(f"v_dot2_f32_bf16 {acc}, v{s[1]+k}, {v(Q+4*t+k)}, 0"); first = False
                    else: A(f"v_dot2_f32_bf16 {acc}, v{s[1]+k}, {v(Q+4*t+k)}, {acc}")
                release("half", ("k", n, hB, t))
            if hB == 1:
                A(f"s_lshl_b64 vcc, {sLM}, {n & 7}")
                for st in (f"quad_perm:[1,0,3,2] {DPPF}", f"quad_perm:[2,3,0,1] {DPPF}", f"row_half_mirror {DPPF}"):
                    for hh in range(2): A(f"v_add_f32_dpp {v(T+hh)}, {v(T+hh)}, {v(T+hh)} {st}")
                for hh in range(2):
                    d = v(S + 2 * (n >> 3) + hh)
                    A(f"v_cndmask_b32 {d}, {d}, {v(T+hh)}, vcc")
        act([("k", n, hB, 2)], f); acts[-1]["cost"] = o["qkcost"]
    assert not nLu or o["rL"] >= 1
    def a_soft1():
        A.comment("softmax statistics")
        if not o["st0"]: stamp()
        A(f"v_mov_b32 {v(T+4)}, {hex(fbits(192 ** -0.5))}")
        for rnd in range(2):
            for k in range(2): A(f"v_cvt_pk_bf16_f32 {v(T+k)}, {v(S+2*k)}, {v(S+2*k+1)}")
            for k in range(2):
                A(f"v_lshlrev_b32 {v(S+2*k)}, 16, {v(T+k)}")
                A(f"v_and_b32 {v(S+2*k+1)}, 0xffff0000, {v(T+k)}")
            if rnd == 0:
                for k in range(4): A(f"v_mul_f32 {v(S+k)}, {v(S+k)}, {v(T+4)}")
        A(f"v_max3_f32 {v(T)}, {v(S)}, {v(S+1)}, {v(S+2)}")
        A(f"v_max_f32 {v(T)}, {v(T)}, {v(S+3)}")
        wave_reduce("v_max_f32", v(T), sA, fill=[f"v_mov_b32 {v(T+8)}, {hex(LOG2E)}", f"s_lshl_b32 {sC}, {sW}, 3", f"v_mov_b32 {v(T+9)}, {sC}", f"v_mov_b32 {v(T+10)}, 0"])
        for k in range(4): A(f"v_subrev_f32 {v(T+k)}, {sA}, {v(S+k)}")
        for k in range(4): A(f"v_mul_f32 {v(T+k)}, {v(T+k)}, {v(T+8)}")
        for k in range(4): A(f"v_exp_f32 {v(T+k)}, {v(T+k)}")
        A(f"v_mov_b32 {v(T+4)}, {sA}")
        A(f"v_pk_add_f32 {vr(T,2)}, {vr(T,2)}, {vr(T+2,2)}")
        A(f"v_add_f32 {v(T)}, {v(T)}, {v(T+1)}")
        wave_reduce("v_add_f32", v(T), sC)
        A(f"v_mov_b32 {v(T+5)}, {sC}")
        A(f"ds_write_b64 {v(T+9)}, {vr(T+4,2)} offset:{SM}")
    act([], a_soft1)
    def a_soft2():
        A("s_waitcnt lgkmcnt(0)")
        A("s_barrier")
        A(f"ds_read_b128 {vr(T,4)}, {v(T+10)} offset:{SM}")
        A(f"ds_read_b128 {vr(T+4,4)}, {v(T+10)} offset:{SM+16}")
        if not (o["burst"] and o["dsig"] is not None): signal("L_nosig")
        A("s_waitcnt lgkmcnt(0)")
        A(f"v_max3_f32 {v(T+9)}, {v(T)}, {v(T+2)}, {v(T+4)}")
        A(f"v_max_f32 {v(T+9)}, {v(T+9)}, {v(T+6)}")
        for k in range(4): A(f"v_sub_f32 {v(T+2*k)}, {v(T+2*k)}, {v(T+9)}")
        for k in range(4): A(f"v_sub_f32 {v(S+k)}, {v(S+k)}, {v(T+9)}")
        for k in range(4): A(f"v_mul_f32 {v(T+2*k)}, {v(T+2*k)}, {v(T+8)}")
        for k in range(4): A(f"v_mul_f32 {v(S+k)}, {v(S+k)}, {v(T+8)}")
        for k in range(4): A(f"v_exp_f32 {v(T+2*k)}, {v(T+2*k)}")
        for k in range(4): A(f"v_exp_f32 {v(S+k)}, {v(S+k)}")
        A(f"v_mul_f32 {v(T)}, {v(T)}, {v(T+1)}")
        for k in range(1, 4): A(f"v_fmac_f32 {v(T)}, {v(T+2*k)}, {v(T+2*k+1)}")
        A(f"v_rcp_f32 {v(T)}, {v(T)}")
        for k in range(4): A(f"v_mul_f32 {v(S+k)}, {v(S+k)}, {v(T)}")
        A(f"v_cvt_pk_bf16_f32 {v(S)}, {v(S)}, {v(S+1)}")
        A(f"v_cvt_pk_bf16_f32 {v(S+2)}, {v(S+2)}, {v(S+3)}")
        A(f"v_mov_b32_dpp {v(S+1)}, {v(S)} row_half_mirror {DPPF}")
        A(f"v_mov_b32_dpp {v(S+3)}, {v(S+2)} row_half_mirror {DPPF}")
        if not o["st0"]: stamp()
    act([], a_soft2)
    sRD = [f"s{sWQ+k}" for k in range(4)]
    sHL = [f"s{sK+k}" for k in range(4)]
    def a_tailprep():
        A.comment("addresses used by the tail")
        c, r8, i16, b4, b3, b5, tt, oob = [v(T + k) for k in range(8)]
        A(f"v_and_b32 {c}, 7, {vL}"); A(f"v_lshrrev_b32 {r8}, 3, {vL}"); A(f"v_and_b32 {i16}, 15, {vL}")
        A(f"v_bfe_u32 {b4}, {vL}, 4, 1"); A(f"v_bfe_u32 {b3}, {vL}, 3, 1"); A(f"v_lshrrev_b32 {b5}, 5, {vL}")
        A(f"v_mov_b32 {oob}, {OOB}")
        A(f"v_min_u32 {tt}, {1 if o['tsplit'] else 5}, {i16}"); A(f"v_lshlrev_b32 {tt}, 7, {tt}")
        A(f"v_lshrrev_b32 {tO_R}, 4, {vL}"); A(f"v_lshl_add_u32 {tO_R}, {tO_R}, 5, {tt}")
        A(f"s_mul_i32 {sA}, {sW}, {256 if o['tsplit'] else 768}"); A(f"v_add_u32 {tO_R}, {sA}, {tO_R}")
        A(f"v_lshlrev_b32 {tt}, 9, {b5}"); A(f"v_lshl_add_u32 {tt}, {i16}, 5, {tt}"); A(f"v_lshl_add_u32 {tt}, {b4}, 4, {tt}")
        A(f"s_mul_i32 {sA}, {sW}, 3072"); A(f"v_add_u32 {tR2W}, {sA}, {tt}")
        A(f"s_mul_i32 {sA}, {sW}, 5"); A(f"v_add_u32 {tt}, {sA}, {r8}")
        A(f"v_lshrrev_b32 {tR2R}, 1, {tt}"); A(f"v_lshlrev_b32 {tR2R}, 8, {tR2R}")
        A(f"v_and_b32 {tt}, 1, {tt}"); A(f"v_lshl_add_u32 {tR2R}, {tt}, 4, {tR2R}"); A(f"v_lshl_add_u32 {tR2R}, {c}, 5, {tR2R}")
        if numa:
            A(f"s_sub_u32 {sC}, {sH}, 16"); A(f"s_cmp_lt_u32 {sH}, 20"); A(f"s_cselect_b32 {sC}, {sH}, {sC}")
            s_page(sC, sA)
            A(f"s_lshl_b32 {sA}, {sB}, 17"); A(f"s_add_u32 {sA}, {sA}, {sC}")
            A(f"v_lshl_add_u32 {tRD}, {vL}, 4, {sA}")
            A(f"s_and_b32 {sC}, {sH}, 7"); s_page(sC, sA)
            A(f"s_lshl_b32 {sA}, {sB}, 15"); A(f"s_add_u32 {sA}, {sA}, {sC}"); A(f"s_add_u32 {sA}, {sA}, {HB}")
        else:
            if o["p32"]: A(f"s_mov_b32 {sC}, {sH}")
            elif o["dup16"]: A(f"s_sub_u32 {sC}, {sH}, 16"); A(f"s_cmp_lt_u32 {sH}, 20"); A(f"s_cselect_b32 {sC}, {sH}, {sC}")
            else: A(f"s_sub_u32 {sC}, {sH}, 20"); A(f"s_cselect_b32 {sC}, {sH}, {sC}")
            A(f"s_mul_i32 {sA}, {sB}, {32 * PS}"); A(f"s_lshl_b32 {sC}, {sC}, 7"); A(f"s_add_u32 {sA}, {sA}, {sC}")
            A(f"v_mul_u32_u24 {tt}, {PS}, {r8}"); A(f"v_lshl_add_u32 {tt}, {c}, 4, {tt}"); A(f"v_add_u32 {tRD}, {sA}, {tt}")
            A(f"s_mul_i32 {sA}, {sB}, 2560"); A(f"s_add_u32 {sA}, {sA}, {HB}")
            if o["hcopy"]:
                A(f"s_and_b32 {sC}, {sH}, 7"); A(f"s_lshl_b32 {sC}, {sC}, 15"); A(f"s_add_u32 {sA}, {sA}, {sC}")
        A(f"v_lshl_add_u32 {tHL0}, {vL}, 3, {sA}")
        A(f"s_lshl_b32 {sC}, {sW}, 1"); A(f"v_xor_b32 {tt}, {sC}, {vL}"); A(f"v_lshl_add_u32 {tHL4}, {tt}, 3, {sA}")
        for k in range(4):
            A(f"s_add_u32 {sHL[k]}, {sW}, {k}"); A(f"s_and_b32 {sHL[k]}, {sHL[k]}, 3"); A(f"s_lshl_b32 {sHL[k]}, {sHL[k]}, 9")
            A(f"s_mov_b32 {sRD[k]}, {P1 + k * (1024 if numa else 8 * PS)}")
        A(f"v_and_b32 {tt}, 3, {c}"); A(f"v_min_u32 {tt}, 2, {tt}"); A(f"v_lshlrev_b32 {tt}, 8, {tt}"); A(f"v_lshl_add_u32 {tZR}, {r8}, 5, {tt}")
        if numa:
            A(f"s_lshl_b32 {sA}, {sB}, 17"); A(f"s_lshl_b32 {sC}, {sH}, 7"); A(f"s_add_u32 {sA}, {sA}, {sC}"); A(f"s_add_u32 {sA}, {sA}, {P2}")
            A(f"s_lshl_b32 {sC}, {sW}, 1"); A(f"v_add_u32 {tP2ST}, {sC}, {b5}")
            A(f"s_add_u32 {sC}, {sW}, 8"); A(f"v_mov_b32 {i16}, {sC}")
            A(f"v_cmp_eq_u32 vcc, 1, {b3}")
            A(f"v_cndmask_b32 {tP2ST}, {tP2ST}, {i16}, vcc")
            A(f"v_lshl_add_u32 {tP2ST}, {tP2ST}, 1, {b4}")
            v_page(tP2ST, tt, sA)
            A(f"v_lshl_add_u32 {tP2ST}, {c}, 4, {tP2ST}")
            A(f"s_cmp_lt_u32 {sW}, 2"); A(f"s_cselect_b32 vcc_hi, -1, 0x00ff00ff"); A(f"s_mov_b32 vcc_lo, 0x00ff00ff")
            A(f"v_cndmask_b32 {tP2ST}, {oob}, {tP2ST}, vcc")
        else:
            A(f"s_mul_i32 {sA}, s2, {PS}"); A(f"s_add_u32 {sA}, {sA}, {P2}")
            A(f"v_lshlrev_b32 {tt}, 7, {b4}"); A(f"v_lshl_add_u32 {tt}, {c}, 4, {tt}"); A(f"v_add_u32 {tt}, {sA}, {tt}")
            A(f"s_lshl_b32 {sC}, {sW}, 9"); A(f"v_lshl_add_u32 {tP2ST}, {b5}, 8, {sC}")
            A(f"s_add_u32 {sC}, {sW}, 8"); A(f"s_lshl_b32 {sC}, {sC}, 8"); A(f"s_cmp_lt_u32 {sW}, 2"); A(f"s_cselect_b32 {sC}, {sC}, {OOB}")
            A(f"v_cmp_eq_u32 vcc, 1, {b5}"); A(f"v_mov_b32 {i16}, {sC}")
            A(f"v_cndmask_b32 {i16}, {oob}, {i16}, vcc")
            A(f"v_cmp_eq_u32 vcc, 1, {b3}")
            A(f"v_cndmask_b32 {tP2ST}, {tP2ST}, {i16}, vcc")
            A(f"v_add_u32 {tP2ST}, {tP2ST}, {tt}")
        A(f"s_lshr_b32 {sA}, {sH}, 1"); A(f"s_lshl_b32 {sA}, {sA}, 7"); A(f"s_and_b32 {sC}, {sH}, 1"); A(f"s_lshl_b32 {sC}, {sC}, 3"); A(f"s_add_u32 {sA}, {sA}, {sC}")
        A(f"v_and_b32 {r8}, 3, {r8}")
        A(f"v_lshl_add_u32 {tt}, {c}, 3, {r8}"); A(f"v_lshl_add_u32 {tXR}, {tt}, 1, {sA}")
        A(f"v_cmp_gt_u32 vcc, 32, {vL}")
        A(f"v_cndmask_b32 {tOUT}, {oob}, {tXR}, vcc")
    sTB = [f"s{sU+k}" for k in range(4)]; sTL, sTH = f"s{sU+4}", f"s{sU+5}"
    vMH, vTGH, vTG1, vTGC = vWO, vWQ, v(T + 10), v(T + 11)
    assert not offs or (o["tag1"] and o["tag"])
    vFS, vFL = vV, vK
    def spin_guard():
        A(f"s_add_u32 {sSPIN}, {sSPIN}, 1"); A(f"s_cmp_gt_u32 {sSPIN}, {o['spin']}"); A("s_cbranch_scc1 L_end")
    def a_tagprep():
        A(f"s_mov_b32 {sSPIN}, 0")
        A(f"v_cmp_eq_u32 vcc, 0, {tCNT}")
        A("s_cbranch_vccnz L_cntwait")
        A.label("L_cntok")
        A(f"v_readfirstlane_b32 {sA}, {tCNT}")
        A(f"v_mov_b32 {vMH}, 0xffffff00")
        if o["tag1"]:
            A(f"v_and_b32 {vTG1}, 3, {vL}"); A(f"v_lshlrev_b32 {vTG1}, 3, {vTG1}"); A(f"v_bfe_u32 {vTG1}, {tCNT}, {vTG1}, 8")
            A(f"v_and_b32 {vTGC}, 1, {vL}"); A(f"v_cmp_eq_u32 vcc, 0, {vTGC}")
            A(f"v_lshlrev_b32 {vTGC}, 4, {vTGC}"); A(f"v_bfe_u32 {vTGC}, {tCNT}, {vTGC}, 16")
            A(f"v_bfe_u32 {vTGH}, {vL}, 1, 1")
        else:
            A(f"v_and_b32 {vTGH}, 1, {vL}")
            for k in range(4): A(f"s_bfe_u32 {sTB[k]}, {sA}, {hex(0x80000 | (8 * k))}")
            A(f"s_and_b32 {sTL}, {sA}, 0xffff"); A(f"s_lshr_b32 {sTH}, {sA}, 16")
        if o["hcopy"]:
            for k in range(1, 4): A(f"s_mov_b32 s{sU+5+k}, {k * HS}")
        A(f"v_lshlrev_b32 {vTGH}, 4, {vTGH}")
        A(f"v_bfe_u32 {vTGH}, {tCNT}, {vTGH}, 16")
        if o["tag1"]: A(f"v_cndmask_b32 {vTGH}, 0, {vTGH}, vcc")
    tailprep_done = [False]
    for n in range(14 if o["tsplit"] else 16):
        for t in range(3):
            def f(n=n, t=t):
                if t == 0:
                    for ins in afrag_oct(AF[n & 1], S + 2 * (n >> 3), n & 7): A(ins)
                smf(D + 4 * t, AF[n & 1], slots[("v", n, t)]); release("pair", ("v", n, t))
            act([("v", n, t, 1)], f)
        if n == 4:
            def g(): a_tailprep(); tailprep_done[0] = True
            act([], g)
        if n == 10 and o["tag"]: act([("cnt",)], a_tagprep)

    arrived = -1
    ai = 0
    def wait_for(idx, issued):
        nonlocal arrived
        if idx > arrived:
            A(f"s_waitcnt vmcnt({issued - 1 - idx})"); arrived = idx
    def force_action(issued):
        nonlocal ai
        a = acts[ai]; m = max(a["needs"], default=-1)
        assert m < issued, "action needs a load that is not issued yet"
        wait_for(m, issued); a["fn"](); ai += 1
    forced = 0
    kvi = {it["tag"]: i for i, it in enumerate(LK + LV)}
    cur = [0]
    def force_now():
        nonlocal forced
        force_action(cur[0]); forced += 1
    for n, it in enumerate(seq):
        cur[0] = n
        if it["tag"] == setup_tag: late_setup()
        if it["tag"] == ("xr",): assert tailprep_done[0]
        kv = kvi.get(it["tag"])
        if o["batch"] > 1 and kv is not None:
            if kv % o["batch"] == 0:
                tgt = n + o["batch"] - 1 - Wn[n]
                if tgt > arrived: wait_for(tgt, n)
        elif n - Wn[n] > arrived: wait_for(n - Wn[n], n)
        for hk in hooks.get(it["tag"], []): hk()
        while it["need"] and not can_alloc(it["need"]):
            force_action(n); forced += 1
        it["emit"]()
        budget = 1.0
        if o["batch"] > 1 and kv is not None:
            budget = float(o["batch"]) if kv % o["batch"] == o["batch"] - 1 else 0.0
        while budget > 0.01 and ai < len(acts) and max(acts[ai]["needs"], default=-1) <= arrived:
            budget -= acts[ai].get("cost", 1); acts[ai]["fn"](); ai += 1
    issued = len(seq)
    A.label("L_tail")
    if not o["tag"]: A(f"s_mov_b32 {sSPIN}, 0")
    late = (Lw1 + Lw2) if o["w12late"] else []
    nlate = [0]
    def late_load(k=1, limit=None):
        nonlocal issued
        for _ in range(k):
            if late and (limit is None or nlate[0] < limit):
                late.pop(0)["emit"](); issued += 1; nlate[0] += 1
    late_load(o["n1"])
    if o["warmpos"] >= 192: issued += warm_lines()
    if o["flag"]:
        fs = o["fstr"]
        A(f"s_mul_i32 {sC}, s2, {fs}"); A(f"s_add_u32 {sC}, {sC}, {FLB}")
        A(f"s_mul_i32 {sA}, {sW}, {512 * fs}"); A(f"s_add_u32 {sC}, {sC}, {sA}")
        A(f"v_mul_u32_u24 {vFS}, {256 * fs}, {vL}"); A(f"v_add_u32 {vFS}, {sC}, {vFS}")
        A(f"v_cmp_gt_u32 vcc, 2, {vL}"); A(f"v_mov_b32 {vFL}, {OOB}"); A(f"v_cndmask_b32 {vFS}, {vFL}, {vFS}, vcc")
        A(f"s_and_b32 {sC}, {sH}, 7"); A(f"s_lshl_b32 {sC}, {sC}, 3"); A(f"s_add_u32 {sC}, {sC}, {sB}")
        A(f"s_mul_i32 {sC}, {sC}, {32 * fs}"); A(f"s_add_u32 {sC}, {sC}, {FLB}")
        A(f"v_and_b32 {vFL}, 31, {vL}"); A(f"v_mul_u32_u24 {vFL}, {fs}, {vFL}"); A(f"v_add_u32 {vFL}, {sC}, {vFL}")
    if o["burst"] and o["nlateW"] >= 18 and o["tlate"] >= 192:
        touch_w2(); issued += 1 + (o["polT2"] is not None)
    while ai < len(acts):
        force_action(issued); late_load(1, o["n2"])
    o["_forced"] = forced

    def af_row(dst, u, src=S): return [f"v_and_b32_dpp {v(dst+k)}, {v(src)}, {v(MK[k])} row_newbcast:{u} {DPPF}" for k in range(4)]
    if o["tsplit"]:
        assert not late and not halfV
        vs = {key: slots[key][1] for key in slots if key[0] == "v"}
        assert all(slots[key][0] == "v" for key in slots if key[0] == "v") and len(vs) == 6 and len(freeV) >= 1
        f0 = freeV[0][1]
        s0, s1, s2_, s3_, s4, s5 = [vs[("v", n, t)] for t in range(3) for n in (14, 15)]
        DO = [f0, f0 + 4, s0, s0 + 4, s1]
        AO = [s1 + 4, T + 4]
        G = [s2_, s2_ + 4, s3_, s3_ + 4]
        F = [s4, s4 + 2, s4 + 4, s4 + 6, s5]
        Wk = [f0, f0 + 2, f0 + 4, f0 + 6, s0]
        R0, R1 = s1, s1 + 4
        OP = [T + 8, T + 9]
        for ins in afrag_oct(AF[0], S + 2, 6): A(ins)
        for ins in afrag_oct(AF[1], S + 2, 7): A(ins)
        for k in range(8): A(f"v_mov_b32 {v(f0+k)}, 0")
        def oread(t):
            A(f"ds_read_b128 {vr(T,4)}, {tO_R} offset:{RED + 1024*t}")
            A(f"ds_read_b128 {vr(S,4)}, {tO_R} offset:{RED + 1024*t + 16}")
        def opack(t):
            A(f"v_pk_add_f32 {vr(T,2)}, {vr(T,2)}, {vr(T+2,2)}")
            A(f"v_pk_add_f32 {vr(S,2)}, {vr(S,2)}, {vr(S+2,2)}")
            A(f"v_add_f32 {v(T)}, {v(T)}, {v(T+1)}")
            A(f"v_add_f32 {v(S)}, {v(S)}, {v(S+1)}")
            A(f"v_cvt_pk_bf16_f32 {v(OP[t & 1])}, {v(T)}, {v(S)}")
        def oproj(t):
            for ins in af_row(AO[0], 0, OP[t & 1]): A(ins)
            nxt = af_row(AO[1], 1, OP[t & 1])
            A(nxt.pop(0)); A(nxt.pop(0))
            for uu in range(2):
                for blk in range(5):
                    smf(DO[blk], AO[uu], slots[("wo", 2 * t + uu, blk)])
                    if nxt: A(nxt.pop(0))
        wait_for(max(pos[it["tag"]] for it in Lwo), issued)
        for t in range(3):
            for n in (14, 15):
                wait_for(pos[("v", n, t, 1)], issued)
                smf(D + 4 * t, AF[n & 1], slots[("v", n, t)])
            if t == 2:
                A.comment("o: cross-wave reduction")
                stamp()
            if t == 0:
                for k in range(12): A(f"v_mov_b32 {v((s0 if k < 8 else s1 - 8) + k)}, 0")
            compact([D + 4 * t])
            A(f"ds_write_b32 {vREDW}, {v(D+4*t)} offset:{RED + 1024*t}")
            A("s_waitcnt lgkmcnt(0)")
            A("s_barrier")
            oread(t)
            if o["flag"] == t + 1:
                A(f"buffer_store_dword {tCNT}, {vFS}, {srd(sWS)}, 0 offen sc1"); issued += 1
            A("s_waitcnt lgkmcnt(0)")
            opack(t)
            oproj(t)
            if o["latepos"] == "oproj" and Llate and t < 2:
                if t == 0:
                    for u in range(2):
                        for blk in range(5): release("pair", ("wo", u, blk))
                    for it in Llate:
                        if it["need"]: alloc("pair", it["tag"][:-1])
                    assert all(slots[it["tag"][:-1]][0] == "a" for it in Llate)
                last_soff[0] = None
                for it in (Llate[:o["nsplit"]] if t == 0 else Llate[o["nsplit"]:]):
                    it["emit"](); issued += 1
    else:
        A.comment("o: cross-wave reduction")
        stamp()
        if o["notail"]:
            for k in range(nstamp[0], nstamp[0] + 4): A(f"s_memrealtime s[{4+2*k}:{5+2*k}]")
            A("s_branch L_prof")
        assert not halfV
        tv = sorted(s[1] for s in freeV)
        assert len(tv) >= 7, tv
        DO = [tv[0], tv[0] + 4, tv[1], tv[1] + 4, tv[2]]
        G = [tv[3], tv[3] + 4, tv[4], tv[4] + 4]
        F = [tv[5], tv[5] + 2, tv[5] + 4, tv[5] + 6, tv[6]]
        Wk = [tv[0], tv[0] + 2, tv[0] + 4, tv[0] + 6, tv[1]]
        R0, R1 = tv[2], tv[2] + 4
        for d in DO[:2]:
            for k in range(4): A(f"v_mov_b32 {v(d+k)}, 0")
        compact([D, D + 4, D + 8])
        for t in range(3): A(f"ds_write_b32 {vREDW}, {v(D+4*t)} offset:{RED + 1024*t}")
        late_load(1, o["n2"])
        for d in DO[2:4]:
            for k in range(4): A(f"v_mov_b32 {v(d+k)}, 0")
        A("s_waitcnt lgkmcnt(0)")
        A("s_barrier")
        A(f"ds_read_b128 {vr(T,4)}, {tO_R} offset:{RED}")
        A(f"ds_read_b128 {vr(T+4,4)}, {tO_R} offset:{RED+16}")
        late_load(1, o["n2"])
        for k in range(4): A(f"v_mov_b32 {v(DO[4]+k)}, 0")
        wait_for(max(pos[it["tag"]] for it in Lwo), issued)
        A("s_waitcnt lgkmcnt(0)")
        A(f"v_pk_add_f32 {vr(T,2)}, {vr(T,2)}, {vr(T+2,2)}")
        A(f"v_pk_add_f32 {vr(T+4,2)}, {vr(T+4,2)}, {vr(T+6,2)}")
        A(f"v_add_f32 {v(T)}, {v(T)}, {v(T+1)}")
        A(f"v_add_f32 {v(T+4)}, {v(T+4)}, {v(T+5)}")
        A(f"v_cvt_pk_bf16_f32 {v(S)}, {v(T)}, {v(T+4)}")
        for ins in af_row(AF[0], 0): A(ins)
        for u in range(6):
            nxt = af_row(AF[(u + 1) & 1], u + 1) if u < 5 else []
            for blk in range(5):
                smf(DO[blk], AF[u & 1], slots[("wo", u, blk)])
                if nxt: A(nxt.pop(0))
                if blk == 4: late_load(1, o["n2"])
    for k in range(4): A(f"v_mov_b32_dpp {v(DO[0]+k)}, {v(DO[1]+k)} quad_perm:[0,1,2,3] row_mask:0xc bank_mask:0xf")
    A(f"ds_write_b128 {tR2W}, {vr(DO[0],4)} offset:{RED2}")
    for k in range(4): A(f"v_mov_b32_dpp {v(DO[2]+k)}, {v(DO[3]+k)} quad_perm:[0,1,2,3] row_mask:0xc bank_mask:0xf")
    A(f"ds_write_b128 {tR2W}, {vr(DO[2],4)} offset:{RED2+1024}")
    A(f"ds_write_b128 {tR2W}, {vr(DO[4],4)} offset:{RED2+2048}")
    A("s_waitcnt lgkmcnt(0)")
    A("s_barrier")
    for k in range(4): A(f"ds_read_b128 {vr(G[k],4)}, {tR2R} offset:{RED2 + 3072*k}")
    for k in range(12): A(f"v_mov_b32 {v(D+k)}, 0")
    A("s_waitcnt lgkmcnt(0)")
    def sum4():
        for hh in (0, 2):
            A(f"v_pk_add_f32 {vr(R0+hh,2)}, {vr(G[0]+hh,2)}, {vr(G[1]+hh,2)}")
            A(f"v_pk_add_f32 {vr(R1+hh,2)}, {vr(G[2]+hh,2)}, {vr(G[3]+hh,2)}")
        for hh in (0, 2):
            A(f"v_pk_add_f32 {vr(R0+hh,2)}, {vr(R0+hh,2)}, {vr(R1+hh,2)}")
    sum4()
    def seal(r):
        if o["tag"] and o["tag1"]:
            A(f"v_and_or_b32 {v(r)}, {v(r)}, {vMH}, {vTG1}"); return
        for k in range(4):
            if o["tag"]: A(f"v_and_or_b32 {v(r+k)}, {v(r+k)}, {vMH}, {sTB[k]}")
            else: A(f"v_min_u32 {v(r+k)}, -2, {v(r+k)}")
    seal(R0)
    A(f"buffer_store_dwordx4 {vr(R0,4)}, {vP1ST}, {srd(sWS)}, 0 offen sc1")
    issued += 1
    stamp()
    if o["prof"]:
        stamp(); nstamp[0] -= 1
    if o["warm2"]: issued += warm_lines(o["warm2"])
    if o["burst"] and Llate and o["latepos"] != "oproj":
        for u in range(6):
            for blk in range(5): release("pair", ("wo", u, blk))
        for it in Llate:
            if it["need"]: alloc("pair", it["tag"][:-1])
        def late_w():
            last_soff[0] = None
            for it in Llate: it["emit"]()
    if not o["tag"]:
        wait_for(pos[("cnt",)], issued)
        A(f"v_cmp_gt_u32 vcc, 32, {tCNT}")
        if not o["nosig"]: A("s_cbranch_vccnz L_cntwait")
        A.label("L_cntok")
    last_soff[0] = None
    while late:
        A(f"s_waitcnt vmcnt({o['Wb'] - 2})"); late_load(2)
    haslate = o["burst"] and bool(Llate) and o["latepos"] != "oproj"
    if haslate and o["latepos"] == "pre": late_w()
    A(f"s_cmp_lg_u32 {sW}, {o['redw']}"); A("s_cbranch_scc1 " + ("L_latew" if haslate and o["latepos"] in ("ack", "post0") else "L_hpoll0"))
    if not o["hbar"]:
        A(f"s_cmp_ge_u32 {sH}, 20"); A("s_cbranch_scc1 L_hpoll0")
    def reduce_stage(lbl, dep):
        def loads():
            for k in range(4): A(f"buffer_load_dwordx4 {vr(G[k],4)}, {tRD}, {srd(sWS)}, {sRD[k]} offen sc1")
        for _ in range(dep - 1): loads()
        A.label(lbl)
        loads()
        spin_guard()
        A(f"s_waitcnt vmcnt({4 * (dep - 1)})")
        regs = [G[k] + j for k in range(4) for j in range(4)]
        if o["tag"] and o["tag1"] and dep > 1:
            A(f"v_bitop3_b32 {v(T)}, {v(G[0])}, {vTG1}, {vMH} bitop3:0xbe")
            for k in range(1, 4): A(f"v_bitop3_b32 {v(T)}, {v(G[k])}, {vTG1}, {v(T)} bitop3:0xbe")
            A(f"v_cmp_ne_u32 vcc, {v(T)}, {vMH}")
        elif o["tag"] and o["tag1"]:
            for k in range(4): A(f"v_xor_b32 {v(G[k])}, {vTG1}, {v(G[k])}")
            A(f"v_or3_b32 {v(T)}, {v(G[0])}, {v(G[1])}, {vMH}")
            A(f"v_or3_b32 {v(T)}, {v(G[2])}, {v(G[3])}, {v(T)}")
            A(f"v_cmp_ne_u32 vcc, {v(T)}, {vMH}")
        else:
            op3, op2 = ("v_or3_b32", "v_or_b32") if o["tag"] else ("v_max3_u32", "v_max_u32")
            if o["tag"]:
                assert dep == 1
                for i_, r_ in enumerate(regs): A(f"v_xor_b32 {v(r_)}, {sTB[i_ & 3]}, {v(r_)}")
            A(f"{op3} {v(T)}, {v(regs[0])}, {v(regs[1])}, {v(regs[2])}")
            A(f"{op3} {v(T+1)}, {v(regs[3])}, {v(regs[4])}, {v(regs[5])}")
            for k in range(6, 16, 2):
                d = v(T + ((k >> 1) & 1))
                A(f"{op3} {d}, {d}, {v(regs[k])}, {v(regs[k+1])}")
            if o["tag"]:
                A(f"v_or3_b32 {v(T)}, {v(T)}, {v(T+1)}, {vMH}")
                A(f"v_cmp_ne_u32 vcc, {v(T)}, {vMH}")
            else:
                A(f"v_max_u32 {v(T)}, {v(T)}, {v(T+1)}")
                A(f"v_cmp_eq_u32 vcc, -1, {v(T)}")
        if o["sleepR"]:
            A(f"s_cbranch_vccz {lbl}_ok"); A(f"s_sleep {o['sleepR']}"); A(f"s_branch {lbl}"); A.label(f"{lbl}_ok")
        else: A(f"s_cbranch_vccnz {lbl}")
        if o["tag"] and o["tag1"] and dep > 1:
            A("s_waitcnt vmcnt(0)")
            for k in range(4): A(f"v_and_b32 {v(G[k])}, {vMH}, {v(G[k])}")
        sum4()
        g = R0
        A(f"v_add_f32_dpp {v(T)}, {v(g)}, {v(g)} row_ror:8 row_mask:0xf bank_mask:0x3")
        A(f"v_add_f32_dpp {v(T+1)}, {v(g+2)}, {v(g+2)} row_ror:8 row_mask:0xf bank_mask:0x3")
        A(f"v_add_f32_dpp {v(T)}, {v(g+1)}, {v(g+1)} row_ror:8 row_mask:0xf bank_mask:0xc")
        A(f"v_add_f32_dpp {v(T+1)}, {v(g+3)}, {v(g+3)} row_ror:8 row_mask:0xf bank_mask:0xc")
        A(f"v_permlane16_swap_b32 {v(T)}, {v(T+1)}")
        A(f"v_add_f32 {v(T)}, {v(T)}, {v(T+1)}")
        A(f"v_mov_b32 {v(T+1)}, {v(T)}")
        A(f"v_permlane32_swap_b32 {v(T)}, {v(T+1)}")
        A(f"v_add_f32 {v(T)}, {v(T)}, {v(T+1)}")
        round_bf16(v(T))
    A(f"v_lshlrev_b32 {tXR}, 16, {tXR}")
    if o["ack1"]: A("s_waitcnt vmcnt(0)")
    if o["flag"]:
        A.label("L_fpoll")
        A(f"buffer_load_dword {v(T)}, {vFL}, {srd(sWS)}, 0 offen sc1")
        spin_guard()
        A("s_waitcnt vmcnt(0)")
        A(f"v_cmp_ne_u32 vcc, {v(T)}, {tCNT}")
        A("s_cbranch_vccnz L_fpoll")
    reduce_stage("L_red1", o["dR"])
    A(f"v_add_f32 {tXR}, {tXR}, {v(T)}")
    if o["tag"]:
        A(f"v_cvt_pk_bf16_f32 {tXR}, {tXR}, {tXR}")
        A(f"v_lshl_or_b32 {v(T)}, {tXR}, 16, {vTGH}")
        A(f"buffer_store_dword {v(T)}, {vHST}, {srd(sWS)}, 0 offen sc1")
        if o["hcopy"]:
            for k in range(1, 4):
                A(f"buffer_store_dword {v(T)}, {vHST}, {srd(sWS)}, s{sU+5+k} offen sc1")
        A(f"v_lshlrev_b32 {tXR}, 16, {tXR}")
    else:
        round_bf16(tXR)
        A(f"buffer_store_dword {tXR}, {vHST}, {srd(sWS)}, 0 offen sc1")
    if o["prof"]:
        A("s_waitcnt lgkmcnt(0)"); stamp()
    def hloads():
        for k in range(4): A(f"buffer_load_dwordx2 {vr(F[k],2)}, {tHL0}, {srd(sWS)}, {sHL[k]} offen sc1")
        A(f"buffer_load_dwordx2 {vr(F[4],2)}, {tHL4}, {srd(sWS)}, 0 offen offset:2048 sc1")
    if haslate and o["latepos"] == "ack":
        assert o["hbar"] and o["ack2"]
        A.label("L_latew")
        if o["redw"] >= 2:
            assert o["nlateW"] == 18
            last_soff[0] = None
            for it in Llate:
                if it["tag"][2] < 2: it["emit"]()
            if o["ackn"] < 4: A(f"s_waitcnt vmcnt({12 + o['ackn']})")
            A(f"s_cmp_ge_u32 {sW}, 2"); A("s_cbranch_scc1 L_hpoll0")
            for it in Llate:
                if it["tag"][2] == 2: it["emit"]()
        else:
            late_w()
            A(f"s_waitcnt vmcnt({len(Llate)})")
    elif haslate and o["latepos"] == "post0":
        A("s_waitcnt vmcnt(0)")
        A("s_barrier")
        hloads(); late_w()
        A(f"s_waitcnt vmcnt({len(Llate)})")
        A("s_branch L_hcheck")
        A.label("L_latew")
        late_w()
    elif o["hbar"] and o["ack2"]: A("s_waitcnt vmcnt(0)")
    A.label("L_hpoll0")
    if o["hbar"]: A("s_barrier")
    if haslate and o["latepos"] == "post":
        hloads(); late_w()
        A(f"s_waitcnt vmcnt({len(Llate)})")
        A("s_branch L_hcheck")
    for _ in range(o["dH"] - 1): hloads()
    A.label("L_hpoll")
    hloads()
    spin_guard()
    A(f"s_waitcnt vmcnt({5 * (o['dH'] - 1)})")
    A.label("L_hcheck")
    if o["tag"] and o["tag1"]:
        assert o["dH"] == 1
        for k in range(5): A(f"v_xor_b32 {v(F[k])}, {vTGC}, {v(F[k])}")
        A(f"v_or3_b32 {v(T)}, {v(F[0])}, {v(F[1])}, {v(F[2])}")
        A(f"v_or3_b32 {v(T)}, {v(F[3])}, {v(F[4])}, {v(T)}")
        A(f"v_cmp_ne_u16 vcc, 0, {v(T)}")
    else:
        op3 = "v_or3_b32" if o["tag"] else "v_max3_u32"
        if o["tag"]:
            assert o["dH"] == 1
            for k in range(5):
                A(f"v_xor_b32 {v(F[k])}, {sTL}, {v(F[k])}"); A(f"v_xor_b32 {v(F[k]+1)}, {sTH}, {v(F[k]+1)}")
        A(f"{op3} {v(T)}, {v(F[0])}, {v(F[0]+1)}, {v(F[1])}")
        A(f"{op3} {v(T+1)}, {v(F[1]+1)}, {v(F[2])}, {v(F[2]+1)}")
        A(f"{op3} {v(T)}, {v(T)}, {v(F[3])}, {v(F[3]+1)}")
        A(f"{op3} {v(T+1)}, {v(T+1)}, {v(F[4])}, {v(F[4]+1)}")
        if o["tag"]:
            A(f"v_or_b32 {v(T)}, {v(T)}, {v(T+1)}")
            A(f"v_cmp_ne_u16 vcc, 0, {v(T)}")
        else:
            A(f"v_max_u32 {v(T)}, {v(T)}, {v(T+1)}")
            A(f"v_cmp_eq_u32 vcc, -1, {v(T)}")
    if o["sleep"]:
        A("s_cbranch_vccz L_hok"); A(f"s_sleep {o['sleep']}"); A("s_branch L_hpoll"); A.label("L_hok")
    else:
        A("s_cbranch_vccnz L_hpoll")
    stamp()
    layernorm(F, Wk, T, S)
    for ins in afrag_oct(AF[0], S, 0): A(ins)
    for u in range(10):
        nxt = afrag_oct(AF[(u + 1) & 1], S + 2 * ((u + 1) >> 3), (u + 1) & 7) if u < 9 else []
        if nxt: A(nxt.pop(0)); A(nxt.pop(0))
        smf(D, AF[u & 1], slots[("w1", u)])
        for ins in nxt: A(ins)
    A(f"v_mov_b32 {v(T+8)}, {hex(LOG2E ^ 0x80000000)}")
    compact([D])
    A(f"ds_write_b32 {vREDW}, {v(D)} offset:{REDZ}")
    A("s_waitcnt lgkmcnt(0)")
    A("s_barrier")
    A(f"ds_read_b128 {vr(T,4)}, {tZR} offset:{REDZ}")
    A(f"ds_read_b128 {vr(T+4,4)}, {tZR} offset:{REDZ+16}")
    for k in range(4): A(f"v_mov_b32 {v(D+k)}, 0")
    for k in range(4): A(f"s_add_u32 {sRD[k]}, {sRD[k]}, {P2 - P1}")
    A("s_waitcnt lgkmcnt(0)")
    A(f"v_pk_add_f32 {vr(T,2)}, {vr(T,2)}, {vr(T+2,2)}")
    A(f"v_pk_add_f32 {vr(T+4,2)}, {vr(T+4,2)}, {vr(T+6,2)}")
    A(f"v_add_f32 {v(T)}, {v(T)}, {v(T+1)}")
    A(f"v_add_f32 {v(T+4)}, {v(T+4)}, {v(T+5)}")
    A(f"v_cvt_pk_bf16_f32 {v(T+1)}, {v(T)}, {v(T+4)}")
    A(f"v_lshlrev_b32 {v(T)}, 16, {v(T+1)}")
    A(f"v_and_b32 {v(T+1)}, 0xffff0000, {v(T+1)}")
    for k in range(2): A(f"v_mul_f32 {v(T+2+k)}, {v(T+k)}, {v(T+8)}")
    for k in range(2): A(f"v_exp_f32 {v(T+2+k)}, {v(T+2+k)}")
    for k in range(2): A(f"v_add_f32 {v(T+2+k)}, 1.0, {v(T+2+k)}")
    for k in range(2): A(f"v_rcp_f32 {v(T+2+k)}, {v(T+2+k)}")
    for k in range(2): A(f"v_mul_f32 {v(T+k)}, {v(T+k)}, {v(T+2+k)}")
    A(f"v_cvt_pk_bf16_f32 {v(S)}, {v(T)}, {v(T+1)}")
    if haslate and o["latepos"] in ("post", "post0"):
        assert o["nlateW"] <= 18
        A("s_waitcnt vmcnt(0)")
    def af_quad(dst, u): return [f"v_and_b32_dpp {v(dst+k)}, {v(S)}, {v(MK[k])} quad_perm:[{u},{u},{u},{u}] {DPPF}" for k in range(4)]
    for ins in af_quad(AF[0], 0): A(ins)
    for u in range(3):
        nxt = af_quad(AF[(u + 1) & 1], u + 1) if u < 2 else []
        if nxt: A(nxt.pop(0)); A(nxt.pop(0))
        for blk in range(3):
            smf(D + 4 * blk, AF[u & 1], slots[("w2", u, blk)])
            if nxt: A(nxt.pop(0))
    X, Y, Z = D, D + 4, D + 8
    for e in range(4): A(f"v_permlane32_swap_b32 {v(X+e)}, {v(Y+e)}")
    for e in range(4): A(f"v_add_f32_dpp {v(X+e)}, {v(Y+e)}, {v(X+e)} row_ror:8 row_mask:0xf bank_mask:0x3")
    for e in range(4): A(f"v_permlane32_swap_b32 {v(Y+e)}, {v(Z+e)}")
    for e in range(4): A(f"v_add_f32_dpp {v(X+e)}, {v(Y+e)}, {v(Z+e)} row_ror:8 row_mask:0xc bank_mask:0xc")
    seal(X)
    A(f"buffer_store_dwordx4 {vr(X,4)}, {tP2ST}, {srd(sWS)}, 0 offen sc1")
    stamp()
    fin = "L_prof" if o["prof"] else "L_end"
    A(f"s_cmp_lg_u32 {sW}, {o['redw']}"); A(f"s_cbranch_scc1 {fin}")
    A(f"s_cmp_ge_u32 {sH}, 20"); A(f"s_cbranch_scc1 {fin}")
    if o["ack3"]: A("s_waitcnt vmcnt(0)")
    reduce_stage("L_red2", o.get("dR2", 1))
    A(f"v_add_f32 {v(T)}, {tXR}, {v(T)}")
    A(f"v_cvt_pk_bf16_f32 {v(T)}, {v(T)}, {v(T)}")
    A(f"buffer_store_short {v(T)}, {tOUT}, {srd(sOUT)}, 0 offen {o['polO']}")
    if o["prof"]:
        A.label("L_prof")
        stamp()
        A("s_getreg_b32 s25, hwreg(HW_REG_XCC_ID)")
        A("s_waitcnt lgkmcnt(0)")
        A(f"s_lshl_b32 {sA}, s2, 2"); A(f"s_add_u32 {sA}, {sA}, {sW}"); A(f"s_lshl_b32 {sA}, {sA}, 6"); A(f"s_add_u32 {sA}, {sA}, {PROF}")
        for k in range(nstamp[0]):
            A(f"v_mov_b32 {v(T)}, s{4+2*k}")
            A(f"buffer_store_dword {v(T)}, off, {srd(sWS)}, {sA} offset:{4*k}")
        A(f"v_mov_b32 {v(T)}, s25"); A(f"buffer_store_dword {v(T)}, off, {srd(sWS)}, {sA} offset:56")
        A(f"v_mov_b32 {v(T)}, {sSPIN}"); A(f"buffer_store_dword {v(T)}, off, {srd(sWS)}, {sA} offset:60")
    A.label("L_end")
    A("s_endpgm")
    A.label("L_cntwait")
    if o["tag"]: A(f"s_mov_b32 {sT2}, 0")
    else: A(f"s_lshl_b32 {sT2}, {sB}, 5")
    A(f"buffer_load_dword {tCNT}, off, {srd(sDBG)}, {sT2} sc1")
    spin_guard()
    A("s_waitcnt vmcnt(0)")
    if o["tag"]: A(f"v_cmp_eq_u32 vcc, 0, {tCNT}")
    else: A(f"v_cmp_gt_u32 vcc, 32, {tCNT}")
    A("s_cbranch_vccnz L_cntwait")
    A.label("L_last")
    A("s_branch L_cntok")
    if o["burst"] and o["dsig"]:
        A.label("L_signal"); signal_body(); A(f"s_setpc_b64 {sRA}")
    for nm, lst, snap in subs:
        A.label(f"L_burst_{nm}")
        slots.clear(); slots.update(snap); last_soff[0] = None
        for i, it in enumerate(lst):
            if nm in o["skip"]: break
            if i % 2 == 0: A(f"s_waitcnt vmcnt({o['Wb'] - 2})")
            it["emit"]()
        A(f"s_setpc_b64 {sRA}")
    A.label("L_codeend")
    A.raw('.section .rodata,"a"'); A.raw(".p2align 6"); A.raw(f".amdhsa_kernel {KNAME}")
    A.raw("  .amdhsa_next_free_vgpr 512"); A.raw("  .amdhsa_next_free_sgpr 102"); A.raw("  .amdhsa_accum_offset 256")
    A.raw("  .amdhsa_float_denorm_mode_32 3")
    A.raw("  .amdhsa_group_segment_fixed_size 0"); A.raw("  .amdhsa_kernarg_size 88"); A.raw("  .amdhsa_user_sgpr_count 2")
    A.raw("  .amdhsa_user_sgpr_kernarg_segment_ptr 1"); A.raw("  .amdhsa_system_sgpr_workgroup_id_x 1"); A.raw(".end_amdhsa_kernel")
    o["_nstamp"] = nstamp[0]
    txt = A.text()
    if o["align"]:
        from align import align
        txt, o["_prom"], o["_nops"] = align(txt, o["align"])
    return txt, o

if __name__ == "__main__":
    out = sys.argv[1]
    kw = eval("dict(" + (sys.argv[2] if len(sys.argv) > 2 else "") + ")")
    txt, o = gen(**kw)
    open(out, "w").write(txt)
    print("forced", o["_forced"], "lines", txt.count("\n"))
```

```python
import sys, os
sys.path.insert(0, os.path.dirname(os.path.abspath(__file__)))
from asmlib import Asm

NAME = "sequential_preLN__sliding_block_cached__dense_activation_silu__decode"
KNAME = NAME + "_kernel"

DEF = dict(
    WA=15, WB=12, WC=12,
    nKA=30,
    nWOB=30,
    rot=5,
    polKV="nt", polW="",
    prof=False,
    wlast=0,
    codepf=True,
    burst=True, W=12, Wb=12,
    grp="b",
    a0=7, da=8, b0=94, db=8, c0=162, dc=3, tlead=14, touch64=False, touch=True, polT="", polT2=None, skip=(), notail=False, sleep=0, dR=1, dH=1, ack3=True, hbar=True, ack2=True, Ws=None, perm=False, nosig=False, noclr=False, sig0=46, dsig=0, xorid=0, hcopy=True, p32=False, nlateW=18, w1bal=True, tlate=192, latepos="ack", align="L_tail", redw=3, nsplit=9, ackn=0, par=None, dup16=False, probe=None, dyn=(24, 34, 44, 54), ordx=(0, 0, 0), early=True, nfill=1, sleepR=0, flag=0, fstr=128, offs=(172, 172, 168), batch=1, vorder="t", umode="int", dw=(0, 0), rot2=0, tag1=True, tsplit=True, kfirst=True, polO="", ack1=False, warm=6, warm2=0, warm3=4, pf8=True, polWm="", warmpos=192, tag=True, nL=12, rL=4, tqs=None, tws=4, dtw=3, qkcost=0.5, pf0=True, st0=False, tB=None, tC=None, polC="sc1", clrpos=6, w12late=False, n1=6, n2=14,
    spin=200000,
)

RED, QB, SM, RED2, REDZ, LDS_BYTES = 0, 3072, 4608, 5120, 17408, 18432
P1, P2, HB, FLB, PROF, PRB = 0, 0x200000, 0x400000, 0x600000, 0x800000, 0x480000
OOB = 0x40000000
LOG2E = 0x3fb8aa3b
import struct
def fbits(x): return struct.unpack("<I", struct.pack("<f", x))[0]

def gen(**kw):
    o = dict(DEF); o.update(kw)
    A = Asm()
    hdr = open(os.path.join(os.path.dirname(os.path.abspath(__file__)), "..", "cdna_kernels", NAME + ".s.ref")).read().splitlines()
    for ln in hdr:
        if ln.startswith("; Override") : break
        A.raw(ln)
    KL = RED2
    if o["dyn"]: o["par"] = 0
    numa = o["par"] is not None
    P2 = 0x100000 if numa else globals()["P2"]
    HS = 8192 if numa else 0x10000
    PS = o.get("PS", 4096 if o["p32"] else 2560)
    assert o["tag"] or not o["p32"]
    lds_bytes = max(LDS_BYTES, KL + 4 * o["nL"] * 3072)
    assert lds_bytes <= 163840 and o["nL"] % 2 == 0
    A.raw(f"; @launch grid=(256,1,1) block=(256,1,1) lds={lds_bytes}")
    A.raw('.amdgcn_target "amdgcn-amd-amdhsa--gfx950"')
    A.raw(".text"); A.raw(f".globl {KNAME}"); A.raw(".p2align 8"); A.raw(f".type {KNAME},@function"); A.label(KNAME)

    sW, sB, sH = "s3", "s26", "s27"
    sX, sK, sV, sWQ, sWO, sW1, sW2, sOUT, sDBG, sWS = [28 + 4 * i for i in range(10)]
    srd = lambda n: f"s[{n}:{n+3}]"
    sU = 68
    sT = "s84"
    sQB0, sQB1, sF0, sF1, sZ = "s86", "s87", "s88", "s89", "s1"
    sLM = "s[92:93]"
    sA, sC, sD, sE = "s94", "s95", "s96", "s97"
    sSPIN = "s98"
    sPC = 100
    vL, vK, vV, vWQ, vWO, vW2, vW1, vIDX = [f"v{i}" for i in range(8)]
    MK = [8, 9, 10, 11]
    AF = [12, 16]
    D = 20
    Q = 32
    S = 44
    T = 48
    vHST, vP1ST, vREDW = "v61", "v62", "v63"
    tO_R, tR2W, tR2R, tCNT, tRD, tPF, tHL0, tHL4, tZR, tP2ST, tOUT, tXR = [f"v{Q+i}" for i in range(12)]
    v = lambda n: f"v{n}"
    vr = lambda n, k: f"v[{n}:{n+k-1}]"
    nstamp = [0]
    def stamp():
        if o["prof"]:
            k = nstamp[0]; nstamp[0] += 1
            assert k < 11
            A(f"s_memrealtime s[{4+2*k}:{5+2*k}]")

    if o["early"]:
        A("s_load_dwordx8 s[4:11], s[0:1], 0")
    else:
        A("s_load_dwordx16 s[4:19], s[0:1], 0")
        A("s_load_dwordx4 s[20:23], s[0:1], 64")
        A("s_load_dwordx2 s[24:25], s[0:1], 80")
    A("s_cmpk_ge_u32 s2, 256")
    A("s_cbranch_scc1 L_end")
    if o["xorid"]: A(f"s_xor_b32 s2, s2, {o['xorid']}")
    if o["perm"]:
        A("s_lshr_b32 s3, s2, 3"); A("s_add_u32 s3, s3, s2"); A("s_and_b32 s3, s3, 7"); A("s_and_b32 s2, s2, 0xf8"); A("s_or_b32 s2, s2, s3")
    if o["prof"]: A("s_memrealtime s[100:101]")
    A(f"v_readfirstlane_b32 {sW}, v0")
    A(f"v_and_b32 {vL}, 63, v0")
    A(f"s_lshr_b32 {sW}, {sW}, 6")
    A(f"s_lshr_b32 {sB}, s2, 5")
    A(f"s_and_b32 {sH}, s2, 31")
    vR8, vC, t0, t1, t2, t3 = v(T+7), v(T+8), v(T+9), v(T+10), v(T+11), v(T+12)
    def code_pf0():
        A("s_cmp_ge_u32 s2, 8"); A("s_cbranch_scc1 L_nopf0")
        A(f"s_getpc_b64 s[{sOUT}:{sOUT+1}]")
        A.label("L_pc0")
        A(f"s_lshl_b32 {sT}, {sW}, 13")
        A(f"v_lshl_add_u32 {v(Q+2)}, {vL}, 7, {sT}")
        A(f"v_min_u32 {v(Q+2)}, L_codeend-L_pc0-4, {v(Q+2)}")
        A(f"global_load_dword {v(Q+2)}, {v(Q+2)}, s[{sOUT}:{sOUT+1}]")
        A.label("L_nopf0")
    if o["early"]:
        assert o["burst"] and o["touch"] and not o["tqs"] and o["polT2"] is None
        if o["pf0"]: code_pf0()
        A(f"v_min_u32 {v(Q+1)}, 59, {vL}")
        A(f"v_mul_u32_u24 {v(Q)}, 21846, {v(Q+1)}"); A(f"v_lshrrev_b32 {v(Q)}, 16, {v(Q)}")
        A(f"v_mul_u32_u24 {v(Q)}, {12288 - 3*128}, {v(Q)}"); A(f"v_lshl_add_u32 {v(Q+1)}, {v(Q+1)}, 7, {v(Q)}")
        A(f"s_lshl2_add_u32 s99, {sB}, {sW}"); A(f"s_mul_i32 s99, s99, {20*12288}")
        A(f"s_mul_i32 {sD}, {sH}, 384")
        A(f"s_sub_u32 s{sWQ+2}, {640*12288}, {sD}"); A(f"s_mov_b32 s{sWQ+3}, 0x20000")
        early_bytes = [len(A.lines)]
        def first_request():
            A("s_waitcnt lgkmcnt(0)")
            if o["st0"]: A("s_memrealtime s[72:73]")
            A(f"s_add_u32 s{sWQ}, s10, {sD}"); A(f"s_addc_u32 s{sWQ+1}, s11, 0")
            A(f"buffer_load_dword {v(Q)}, {v(Q+1)}, {srd(sWQ)}, s99 offen {o['polT']}")
            A.label("L_first")
            A("s_load_dwordx8 s[12:19], s[0:1], 32")
            A("s_load_dwordx4 s[20:23], s[0:1], 64")
            A("s_load_dwordx2 s[24:25], s[0:1], 80")
        if o["nfill"] == 0: first_request()
    A(f"v_lshrrev_b32 {vR8}, 3, {vL}")
    A(f"v_and_b32 {vC}, 7, {vL}")
    A(f"v_lshlrev_b32 {v(T+5)}, 2, {vL}")
    A(f"s_lshl_b32 {sA}, {sW}, 3")
    A(f"v_xor_b32 {v(T+6)}, {sA}, {v(T+5)}")
    A(f"v_and_b32 {t0}, 32, {vL}")
    A(f"v_bfe_u32 {t1}, {vL}, 3, 1")
    A(f"v_bfe_u32 {t2}, {vL}, 4, 1")
    A(f"v_lshl_add_u32 {t3}, {t1}, 4, {t0}")
    A(f"v_add_u32 {t3}, {t3}, {t2}")
    A(f"v_mul_u32_u24 {t3}, 12288, {t3}")
    A(f"v_lshl_add_u32 {vWQ}, {vC}, 4, {t3}")
    if o["early"] and o["nfill"] == 1: first_request()
    if o["offs"]:
        A(f"v_lshrrev_b32 {t3}, 4, {vL}")
    else:
        A(f"v_lshrrev_b32 {t3}, 2, {t0}")
        A(f"v_lshl_add_u32 {t3}, {t2}, 2, {t3}")
        A(f"v_add_u32 {t3}, {t3}, {t1}")
    A(f"v_mul_u32_u24 {t3}, 384, {t3}")
    A(f"v_lshl_add_u32 {vK}, {vC}, 4, {t3}")
    if o["early"] and o["nfill"] == 2: first_request()
    A(f"s_mul_i32 {sA}, s2, 1572864")
    A(f"s_add_u32 {sA}, {sA}, 1179648")
    A(f"s_mul_i32 {sC}, {sB}, 1280")
    if not o["early"]: A(f"s_mul_i32 {sD}, {sH}, 384")
    A(f"s_mul_i32 {sQB0}, {sW}, {128*12288}")
    sE2 = "s0"
    A(f"s_mul_i32 {sE}, s2, {o['rot']}")
    if o["rot2"]:
        A(f"s_lshr_b32 s{sU}, s2, {o['rot2'][0]}"); A(f"s_mul_i32 s{sU}, s{sU}, {o['rot2'][1]}"); A(f"s_add_u32 {sE}, {sE}, s{sU}")
    if o["umode"] == "int":
        A(f"s_add_u32 {sE}, {sE}, {sW}")
    elif o["umode"] == "blk":
        A(f"s_mul_i32 s{sU}, {sW}, {o['dw'][0]}"); A(f"s_lshr_b32 s{sU}, s{sU}, {o['dw'][1]}"); A(f"s_add_u32 {sE}, {sE}, s{sU}")
    else:
        A(f"s_and_b32 s{sU}, {sW}, 1"); A(f"s_add_u32 {sE}, {sE}, s{sU}")
        A(f"s_lshr_b32 s{sU}, {sW}, 1"); A(f"s_mul_i32 s{sU}, s{sU}, {o['dw'][0]}"); A(f"s_add_u32 {sE}, {sE}, s{sU}")
    def unit_off(n):
        d = f"s{sU+n}"
        if o["umode"] == "int":
            A(f"s_add_u32 {d}, {sE}, {4*n}"); A(f"s_and_b32 {d}, {d}, 63")
        elif o["umode"] == "blk":
            A(f"s_add_u32 {d}, {sE}, {n}"); A(f"s_and_b32 {d}, {d}, 15")
            A(f"s_lshl4_add_u32 {d}, {sW}, {d}")
        else:
            A(f"s_add_u32 {d}, {sE}, {2*(n & 7)}"); A(f"s_and_b32 {d}, {d}, 15")
            A(f"s_lshr_b32 {sT}, {sW}, 1"); A(f"s_lshl4_add_u32 {d}, {sT}, {d}"); A(f"s_add_u32 {d}, {d}, {32*(n >> 3)}")
        A(f"s_mulk_i32 {d}, 6144")
    offs = o["offs"]
    sSO, sCO, sCD = [f"s{sU+10}", f"s{sU+11}"], [f"s{sU+12}", f"s{sU+13}"], [f"s{sU+14}", f"s{sU+15}"]
    sP0, sP1, sP2, sP3 = f"s{sU}", f"s{sU+1}", f"s{sU+2}", f"s{sU+3}"
    if offs:
        assert sum(offs) == 512 and all(x % 4 == 0 for x in offs) and o["umode"] == "int"
        jst = [sum(offs[:k]) // 4 for k in range(len(offs))]
        for k in range(1, len(offs)): assert jst[k] % 2 == 0 or offs[k] == offs[k - 1]
        for r_ in sCO + sCD: A(f"s_mov_b32 {r_}, 0")
        unit_off = lambda n: None
    def half_params(n, hB, dB, dO):
        A(f"s_add_u32 {sP3}, {sE}, {4*n}"); A(f"s_and_b32 {sP3}, {sP3}, 63")
        A(f"s_lshl1_add_u32 {sP3}, {sP3}, {hB}")
        A(f"s_mul_i32 {dB}, {sP3}, 1536")
        if dO: A(f"s_mov_b32 {dO}, {offs[0] * 384}")
        for k in range(1, len(offs)):
            A(f"s_cmp_ge_u32 {sP3}, {jst[k]}")
            if dO and offs[k] != offs[k - 1]: A(f"s_cselect_b32 {dO}, {offs[k] * 384}, {dO}")
            A(f"s_cselect_b32 {sP2}, {offs[k - 1] * 384}, 0")
            A(f"s_add_u32 {dB}, {dB}, {sP2}")
    def lane_add(reg, mask, cur, new):
        A(f"s_sub_u32 {sP2}, {new}, {cur}"); A(f"s_mov_b32 {cur}, {new}")
        A(f"s_mov_b32 exec_lo, {hex(mask)}"); A(f"s_mov_b32 exec_hi, {hex(mask)}")
        A(f"v_add_u32 {reg}, {sP2}, {reg}")
        A("s_mov_b64 exec, -1")
    def k_addr(n, hB):
        half_params(n, hB, sSO[0], sP0); lane_add(vK, 0xff00ff00, sCO[1], sP0)
    def v_addr(n):
        p_ = n & 1; reg = (vV, vK)[p_]
        if n == 1:
            A(f"v_mov_b32 {vK}, {vV}"); A(f"s_mov_b32 {sCO[1]}, {sCO[0]}"); A(f"s_mov_b32 {sCD[1]}, {sCD[0]}")
        half_params(n, 0, sSO[p_], sP0); half_params(n, 1, sP1, None)
        A(f"s_sub_u32 {sP1}, {sP1}, {sSO[p_]}")
        lane_add(reg, 0xff00ff00, sCO[p_], sP0); lane_add(reg, 0xffff0000, sCD[p_], sP1)
    unit_off(0)
    sKL = "s90"
    if o["nL"]:
        A(f"s_mul_i32 {sKL}, {sW}, {o['nL'] * 3072}"); A(f"s_add_u32 {sKL}, {sKL}, {KL}")
    sG, sRA, sT2, sGT, sSG = "s85", "s[76:77]", "s91", "s99", "s98"
    vT1, vT2 = v(Q), v(Q + 1)
    if o["burst"]:
        sRA = f"s[{sPC}:{sPC+1}]"
        sQT = sGT
        if not o["early"]:
            A(f"v_mul_u32_u24 {vT1}, 21846, {vL}"); A(f"v_lshrrev_b32 {vT1}, 16, {vT1}")
            A(f"v_mul_u32_u24 {vT2}, {12288 - 3*128}, {vT1}"); A(f"v_lshl_add_u32 {vT2}, {vL}, 7, {vT2}")
            A(f"s_lshl_b32 {sQT}, {sB}, 2"); A(f"s_add_u32 {sQT}, {sQT}, {sW}"); A(f"s_mul_i32 {sQT}, {sQT}, {20*12288}")
        if o["grp"] == "h":
            A(f"s_lshr_b32 {sG}, {sH}, 3"); A(f"s_mov_b32 {sGT}, {sG}")
        elif o["grp"] == "hb":
            A(f"s_lshr_b32 {sGT}, {sH}, 3"); A(f"s_lshl_b32 {sGT}, {sGT}, 1"); A(f"s_and_b32 {sG}, {sB}, 1"); A(f"s_add_u32 {sG}, {sG}, {sGT}")
        else:
            A(f"s_mov_b32 {sG}, {sB}")
    if offs: k_addr(0, 0)
    A(f"s_mov_b32 s{sX+2}, 1280"); A(f"s_mov_b32 s{sX+3}, 0x20000")
    A(f"s_mov_b32 s{sK+2}, 393216"); A(f"s_mov_b32 s{sK+3}, 0x20000")
    if not o["early"]:
        A(f"s_sub_u32 s{sWQ+2}, {640*12288}, {sD}"); A(f"s_mov_b32 s{sWQ+3}, 0x20000")
        if o["pf0"]: code_pf0()
        A("s_waitcnt lgkmcnt(0)")
        if o["st0"]: A("s_memrealtime s[72:73]")
    A(f"s_add_u32 s{sX}, s4, {sC}"); A(f"s_addc_u32 s{sX+1}, s5, 0")
    A(f"s_add_u32 s{sK}, s6, {sA}"); A(f"s_addc_u32 s{sK+1}, s7, 0")
    if not o["early"]:
        A(f"s_add_u32 s{sWQ}, s10, {sD}"); A(f"s_addc_u32 s{sWQ+1}, s11, 0")

    def v_page(reg, tmp, sbase):
        A(f"v_bfe_u32 {tmp}, {reg}, 1, 2"); A(f"v_mul_u32_u24 {tmp}, 5, {tmp}"); A(f"v_and_b32 {tmp}, 6, {tmp}")
        A(f"v_and_b32 {reg}, 0x39, {reg}"); A(f"v_or_b32 {reg}, {reg}, {tmp}")
        if o["par"]: A(f"v_xor_b32 {reg}, 2, {reg}")
        A(f"v_lshl_add_u32 {reg}, {reg}, 12, {sbase}")
    def s_page(reg, tmp):
        A(f"s_bfe_u32 {tmp}, {reg}, 0x20001"); A(f"s_mul_i32 {tmp}, {tmp}, 5"); A(f"s_and_b32 {tmp}, {tmp}, 6")
        A(f"s_and_b32 {reg}, {reg}, 0x39"); A(f"s_or_b32 {reg}, {reg}, {tmp}")
        if o["par"]: A(f"s_xor_b32 {reg}, {reg}, 2")
        A(f"s_lshl_b32 {reg}, {reg}, 12")
    def late_setup():
        if o["early"]: A("s_waitcnt lgkmcnt(0)")
        A(f"s_add_u32 s{sV}, s8, {sA}"); A(f"s_addc_u32 s{sV+1}, s9, 0")
        A(f"s_mov_b32 s{sV+2}, 393216"); A(f"s_mov_b32 s{sV+3}, 0x20000")
        A(f"s_add_u32 s{sOUT}, s20, {sC}"); A(f"s_addc_u32 s{sOUT+1}, s21, 0")
        A(f"s_mov_b32 s{sOUT+2}, 1280"); A(f"s_mov_b32 s{sOUT+3}, 0x20000")
        A(f"s_mul_i32 {sD}, {sH}, 245760")
        A(f"s_add_u32 s{sWO}, s12, {sD}"); A(f"s_addc_u32 s{sWO+1}, s13, 0")
        A(f"s_mov_b32 s{sWO+2}, 245760"); A(f"s_mov_b32 s{sWO+3}, 0x20000")
        A(f"s_and_b32 {sA}, {sH}, 7"); A(f"s_lshl_b32 {sA}, {sA}, 2"); A(f"s_lshr_b32 {sC}, {sH}, 3"); A(f"s_add_u32 {sA}, {sA}, {sC}")
        if o["w1bal"]:
            A(f"s_and_b32 {sD}, {sH}, 7"); A(f"s_mul_i32 {sD}, {sD}, 384")
        else: A(f"s_mul_i32 {sD}, {sA}, 96")
        A(f"s_add_u32 s{sW1}, s16, {sD}"); A(f"s_addc_u32 s{sW1+1}, s17, 0")
        A(f"s_sub_u32 s{sW1+2}, {640*3072}, {sD}"); A(f"s_mov_b32 s{sW1+3}, 0x20000")
        A(f"s_mul_i32 {sD}, {sA}, 61440")
        A(f"s_add_u32 s{sW2}, s18, {sD}"); A(f"s_addc_u32 s{sW2+1}, s19, 0")
        A(f"s_mov_b32 s{sW2+2}, 61440"); A(f"s_mov_b32 s{sW2+3}, 0x20000")
        A(f"s_mov_b32 s{sDBG}, s22"); A(f"s_mov_b32 s{sDBG+1}, s23"); A(f"s_mov_b32 s{sDBG+2}, 256"); A(f"s_mov_b32 s{sDBG+3}, 0x20000")
        A(f"s_mov_b32 s{sWS}, s24"); A(f"s_mov_b32 s{sWS+1}, s25"); A(f"s_mov_b32 s{sWS+2}, 0x1000000"); A(f"s_mov_b32 s{sWS+3}, 0x20000")
        if o["prof"]:
            A("s_mov_b32 s4, s100"); nstamp[0] = 1
            if o["st0"]:
                A("s_waitcnt lgkmcnt(0)"); A("s_mov_b32 s6, s72"); A("s_memrealtime s[8:9]"); nstamp[0] = 3
        for n in range(1, 16): unit_off(n)
        A(f"s_lshl_b32 {sA}, {sW}, 2"); A(f"s_add_u32 {sA}, {sA}, 512"); A(f"s_mul_i32 {sQB1}, {sA}, 12288")
        A(f"s_mul_i32 {sF0}, {sW}, {128*3072}")
        A(f"s_and_b32 {sA}, {sW}, 1"); A(f"s_lshl_b32 {sA}, {sA}, 5"); A(f"s_lshr_b32 {sC}, {sW}, 1"); A(f"s_add_u32 {sA}, {sA}, {sC}")
        A(f"s_add_u32 {sA}, {sA}, 512"); A(f"s_mul_i32 {sF1}, {sA}, 3072")
        A(f"s_sub_u32 {sA}, 8, {sW}"); A(f"s_lshl_b32 {sA}, {sA}, 7"); A(f"s_cmp_lt_u32 {sW}, 2"); A(f"s_cselect_b32 {sZ}, {sA}, 0x100000")
        A("s_mov_b32 s92, 0x01010101"); A("s_mov_b32 s93, 0x01010101")
        A(f"s_lshr_b32 {sSG}, s2, 3"); A(f"s_cmp_eq_u32 {sW}, 0"); A(f"s_cselect_b32 {sSG}, {sSG}, 64")
        if o["offs"]: A(f"v_mul_u32_u24 {t3}, 12, {t0}")
        else: A(f"v_mul_u32_u24 {t3}, 384, {vR8}")
        A(f"v_lshl_add_u32 {vV}, {vC}, 4, {t3}")
        A(f"v_lshrrev_b32 {t3}, 4, {vL}"); A(f"s_mul_i32 {sA}, {sW}, {16 if o['tsplit'] else 48}"); A(f"v_add_u32 {t3}, {sA}, {t3}")
        A(f"v_mul_u32_u24 {t3}, 1280, {t3}"); A(f"v_and_b32 {vWO}, 15, {vL}"); A(f"v_lshl_add_u32 {vWO}, {vWO}, 4, {t3}")
        A(f"v_lshrrev_b32 {t3}, 3, {t0}")
        A(f"v_lshl_add_u32 {t3}, {t1}, 1, {t3}")
        A(f"v_lshl_add_u32 {vW1}, {t2}, 3, {t3}")
        A(f"v_mul_u32_u24 {vW1}, 3072, {vW1}")
        A(f"v_min_u32 {vW2}, 5, {vC}")
        A(f"v_lshl_add_u32 {vW1}, {vW2}, 4, {vW1}")
        if o["w1bal"]:
            A(f"s_lshr_b32 {sA}, {sH}, 3"); A(f"s_mul_i32 {sA}, {sA}, 96"); A(f"v_add_u32 {vW1}, {sA}, {vW1}")
        A(f"v_add_u32 {t3}, {t3}, {t2}")
        A(f"v_mul_u32_u24 {t3}, 1280, {t3}")
        A(f"v_lshl_add_u32 {t3}, {vC}, 4, {t3}")
        A(f"s_lshl_b32 {sA}, {sW}, 8")
        A(f"v_add_u32 {vW2}, {sA}, {t3}")
        A(f"v_cmp_gt_u32 vcc, 4, {vC}")
        A(f"v_mov_b32 {t3}, 0xffff")
        A(f"v_and_b32 {vIDX}, 3, {vC}")
        A(f"v_cndmask_b32 {v(MK[0])}, 0, {t3}, vcc")
        A(f"v_mul_u32_u24 {vIDX}, 0x5555, {vIDX}")
        A(f"v_xor_b32 {v(MK[1])}, {t3}, {v(MK[0])}")
        A(f"v_lshlrev_b32 {v(MK[2])}, 16, {v(MK[0])}")
        A(f"v_lshlrev_b32 {v(MK[3])}, 16, {v(MK[1])}")
        A(f"v_lshrrev_b32 {t3}, 5, {vL}")
        A(f"v_lshl_add_u32 {t3}, {t1}, 1, {t3}")
        A(f"v_lshl_add_u32 {t3}, {t2}, 2, {t3}")
        A(f"v_lshl_add_u32 {t3}, {vC}, 3, {t3}")
        A(f"s_lshl_b32 {sA}, {sW}, 2")
        A(f"v_lshl_add_u32 {vREDW}, {t3}, 4, {sA}")
        if numa:
            A(f"s_lshl_b32 {sA}, {sB}, 17"); A(f"s_lshl_b32 {sC}, {sH}, 7"); A(f"s_add_u32 {sA}, {sA}, {sC}")
            A(f"s_mul_i32 {sC}, {sW}, 5"); A(f"v_add_u32 {vP1ST}, {sC}, {vR8}")
            v_page(vP1ST, t3, sA)
            A(f"v_lshl_add_u32 {vP1ST}, {vC}, 4, {vP1ST}")
            A(f"v_mov_b32 {t3}, {OOB}")
            A(f"v_cmp_gt_u32 vcc, 40, {vL}")
            A(f"s_lshl_b32 {sA}, {sB}, 15"); A(f"s_lshl_b32 {sC}, {sH}, 7"); A(f"s_add_u32 {sA}, {sA}, {sC}"); A(f"s_add_u32 {sA}, {sA}, {HB}")
            A(f"v_cndmask_b32 {vP1ST}, {t3}, {vP1ST}, vcc")
            A(f"s_cmp_eq_u32 {sW}, {o['redw']}"); A(f"s_cselect_b32 {sC}, 64, 0")
            A(f"v_and_b32 {vHST}, 31, {vL}"); A(f"v_lshl_add_u32 {vHST}, {vHST}, 2, {sA}")
            A(f"v_lshl_add_u32 {vHST}, {t0}, 7, {vHST}")
            A(f"v_cmp_gt_u32 vcc, {sC}, {vL}")
        else:
            A(f"s_mul_i32 {sA}, s2, {PS}"); A(f"s_mul_i32 {sC}, {sW}, 640"); A(f"s_add_u32 {sC}, {sA}, {sC}")
            A(f"v_lshl_add_u32 {vP1ST}, {vL}, 4, {sC}")
            if o["p32"]:
                A(f"s_mul_i32 {sC}, {sW}, 384"); A(f"s_add_u32 {sC}, {sA}, {sC}"); A(f"s_add_u32 {sC}, {sC}, {2560 - 640}")
                A(f"v_lshl_add_u32 {vHST}, {vL}, 4, {sC}")
            A(f"v_mov_b32 {t3}, {OOB}")
            A(f"v_cmp_gt_u32 vcc, 40, {vL}")
            A(f"s_mul_i32 {sA}, {sB}, 2560"); A(f"s_lshl_b32 {sC}, {sH}, 7"); A(f"s_add_u32 {sA}, {sA}, {sC}"); A(f"s_add_u32 {sA}, {sA}, {HB}")
            A(f"v_cndmask_b32 {vP1ST}, {vHST if o['p32'] else t3}, {vP1ST}, vcc")
            if o["hbar"]:
                A(f"s_lshl_b32 {sC}, s2, 7"); A(f"s_add_u32 {sC}, {sC}, {HB + 0x80000}")
                A(f"s_cmp_lt_u32 {sH}, 20"); A(f"s_cselect_b32 {sA}, {sA}, {sC}")
                A(f"s_cmp_eq_u32 {sW}, {o['redw']}"); A(f"s_cselect_b32 {sC}, 32, 0")
            else:
                A(f"s_cmp_lt_u32 {sH}, 20"); A(f"s_cselect_b32 {sC}, 32, 0"); A(f"s_cmp_eq_u32 {sW}, 0"); A(f"s_cselect_b32 {sC}, {sC}, 0")
            if o["hcopy"]:
                A(f"v_and_b32 {vHST}, 31, {vL}"); A(f"v_lshl_add_u32 {vHST}, {vHST}, 2, {sA}")
                A(f"v_lshl_add_u32 {vHST}, {t0}, 10, {vHST}"); A(f"s_lshl_b32 {sC}, {sC}, 1")
            else:
                A(f"v_lshl_add_u32 {vHST}, {vL}, 2, {sA}")
            A(f"v_cmp_gt_u32 vcc, {sC}, {vL}")
        if not o["tag"]:
            for k in range(4): A(f"v_mov_b32 {v(AF[1]+k)}, -1")
        A(f"v_cndmask_b32 {vHST}, {t3}, {vHST}, vcc")
        if o["dyn"]: A("s_mov_b32 s0, 0")
        if o["tag"] and not o["dyn"]:
            A(f"s_or_b32 {sA}, s2, {sW}"); A("s_cbranch_scc1 L_nononce")
            A(f"s_memrealtime s[{sPC}:{sPC+1}]"); A("s_waitcnt lgkmcnt(0)")
            A(f"s_mul_i32 {sA}, s{sPC}, 0x9e3779b1"); A(f"s_max_u32 {sA}, {sA}, 1")
            A("s_mov_b64 exec, 1")
            A(f"v_mov_b32 {t3}, {sA}")
            A(f"buffer_store_dword {t3}, off, {srd(sDBG)}, 0 sc1")
            A("s_mov_b64 exec, -1")
            A.label("L_nononce")

    DPPF = "row_mask:0xf bank_mask:0xf"
    def wave_reduce(op, reg, sdst, fill=()):
        fill = list(fill)
        steps = [f"quad_perm:[1,0,3,2] {DPPF}", f"quad_perm:[2,3,0,1] {DPPF}", f"row_half_mirror {DPPF}", f"row_mirror {DPPF}",
                 "row_bcast:15 row_mask:0xa bank_mask:0xf", "row_bcast:31 row_mask:0xc bank_mask:0xf"]
        for st in steps:
            for _ in range(2):
                if fill: A(fill.pop(0))
            A(f"{op}_dpp {reg}, {reg}, {reg} {st}")
        if fill: A(fill.pop(0))
        A(f"v_readlane_b32 {sdst}, {reg}, 63")
        for f in fill: A(f)
    def round_bf16(reg):
        A(f"v_cvt_pk_bf16_f32 {reg}, {reg}, {reg}")
        A(f"v_lshlrev_b32 {reg}, 16, {reg}")
    def layernorm(F, Wk, tp, out):
        p = lambda r: vr(r, 2)
        A(f"v_pk_add_f32 {p(tp)}, {p(F[0])}, {p(F[1])}")
        A(f"v_pk_add_f32 {p(tp+2)}, {p(F[2])}, {p(F[3])}")
        A(f"v_pk_add_f32 {p(tp)}, {p(tp)}, {p(F[4])}")
        A(f"v_pk_add_f32 {p(tp)}, {p(tp)}, {p(tp+2)}")
        A(f"v_add_f32 {v(tp)}, {v(tp)}, {v(tp+1)}")
        wave_reduce("v_add_f32", v(tp), sA, fill=[f"v_mov_b32 {v(tp+2)}, {hex(fbits(-1.0/640))}"])
        A(f"v_mul_f32 {v(tp)}, {sA}, {v(tp+2)}")
        A(f"v_mul_f32 {v(tp+1)}, {sA}, {v(tp+2)}")
        A(f"v_pk_add_f32 {p(tp+2)}, {p(F[0])}, {p(tp)}")
        A(f"v_pk_add_f32 {p(Wk[1])}, {p(F[1])}, {p(tp)}")
        A(f"v_pk_mul_f32 {p(tp+2)}, {p(tp+2)}, {p(tp+2)}")
        A(f"v_pk_add_f32 {p(Wk[2])}, {p(F[2])}, {p(tp)}")
        A(f"v_pk_fma_f32 {p(tp+2)}, {p(Wk[1])}, {p(Wk[1])}, {p(tp+2)}")
        A(f"v_pk_add_f32 {p(Wk[3])}, {p(F[3])}, {p(tp)}")
        A(f"v_pk_fma_f32 {p(tp+2)}, {p(Wk[2])}, {p(Wk[2])}, {p(tp+2)}")
        A(f"v_pk_add_f32 {p(Wk[1])}, {p(F[4])}, {p(tp)}")
        A(f"v_pk_fma_f32 {p(tp+2)}, {p(Wk[3])}, {p(Wk[3])}, {p(tp+2)}")
        A(f"v_pk_fma_f32 {p(tp+2)}, {p(Wk[1])}, {p(Wk[1])}, {p(tp+2)}")
        A(f"v_add_f32 {v(tp+2)}, {v(tp+2)}, {v(tp+3)}")
        a, b, c = Wk[0], Wk[4], Wk[1]
        fill = [f"v_cvt_pk_bf16_f32 {v(tp)}, {v(tp)}, {v(tp)}",
                f"v_lshlrev_b32 {v(tp+1)}, 16, {v(tp)}",
                f"v_lshlrev_b32 {v(tp)}, 16, {v(tp)}",
                f"v_pk_add_f32 {p(a)}, {p(F[0])}, {p(tp)}",
                f"v_pk_add_f32 {p(b)}, {p(F[4])}, {p(tp)}",
                f"v_cvt_pk_bf16_f32 {v(c)}, {v(a)}, {v(a+1)}",
                f"v_cvt_pk_bf16_f32 {v(c+1)}, {v(b)}, {v(b+1)}",
                f"v_lshlrev_b32 {v(a)}, 16, {v(c)}",
                f"v_and_b32 {v(a+1)}, 0xffff0000, {v(c)}",
                f"v_lshlrev_b32 {v(b)}, 16, {v(c+1)}",
                f"v_and_b32 {v(b+1)}, 0xffff0000, {v(c+1)}",
                f"v_mov_b32 {v(tp+4)}, {hex(fbits(1.0/640))}"]
        wave_reduce("v_add_f32", v(tp+2), sA, fill=fill)
        A(f"v_mul_f32 {v(tp)}, {sA}, {v(tp+4)}")
        round_bf16(v(tp))
        A(f"v_add_f32 {v(tp)}, {hex(fbits(1e-5))}, {v(tp)}")
        round_bf16(v(tp))
        A(f"v_sqrt_f32 {v(tp)}, {v(tp)}")
        round_bf16(v(tp))
        A(f"v_rcp_f32 {v(tp)}, {v(tp)}")
        A(f"v_mul_f32 {v(a)}, {v(a)}, {v(tp)}")
        A(f"v_mul_f32 {v(a+1)}, {v(a+1)}, {v(tp)}")
        A(f"v_cvt_pk_bf16_f32 {v(out)}, {v(a)}, {v(a+1)}")
        A(f"v_mul_f32 {v(b)}, {v(b)}, {v(tp)}")
        A(f"v_mul_f32 {v(b+1)}, {v(b+1)}, {v(tp)}")
        A(f"v_mov_b32_dpp {v(out+1)}, {v(out)} row_half_mirror {DPPF}")
        A(f"v_cvt_pk_bf16_f32 {v(out+2)}, {v(b)}, {v(b+1)}")
        A(f"v_mov_b32_dpp {v(out+3)}, {v(out+2)} row_half_mirror {DPPF}")
    def afrag_oct(dst, P, c0):
        lo, hi = ((P, c0), (P + 1, 3 - c0)) if c0 < 4 else ((P + 1, 7 - c0), (P, c0 - 4))
        out = []
        for k in range(4):
            src, x = lo if k % 2 == 0 else hi
            out.append(f"v_and_b32_dpp {v(dst+k)}, {v(src)}, {v(MK[k])} quad_perm:[{x},{x},{x},{x}] {DPPF}")
        return out
    def smf(d, a, slot):
        A(f"v_smfmac_f32_16x16x64_bf16 {vr(d,4)}, {vr(a,4)}, {slot[0]}[{slot[1]}:{slot[1]+7}], {vIDX}")
    def compact(blocks):
        for d in blocks:
            A(f"v_permlane32_swap_b32 {v(d)}, {v(d+1)}")
            A(f"v_permlane32_swap_b32 {v(d+2)}, {v(d+3)}")
        for d in blocks:
            A(f"v_add_f32_dpp {v(d)}, {v(d+1)}, {v(d)} row_ror:8 row_mask:0xf bank_mask:0x3")
        for d in blocks:
            A(f"v_add_f32_dpp {v(d)}, {v(d+2)}, {v(d+3)} row_ror:8 row_mask:0xf bank_mask:0xc")

    def signal(lbl, k=None):
        if k is None: A(f"s_cmp_lg_u32 {sW}, 0")
        else: A(f"s_cmp_lg_u32 {sSG}, {k}")
        A(f"s_cbranch_scc1 {lbl}")
        if k is None: signal_body()
        else: A(f"s_call_b64 {sRA}, L_signal")
        A.label(lbl)
    def signal_body():
        A(f"s_lshl_b32 {sT2}, {sB}, 5")
        A("s_mov_b64 exec, 1")
        A(f"v_mov_b32 {vWQ}, 1")
        if not o["nosig"]: A(f"buffer_atomic_add {vWQ}, off, {srd(sDBG)}, {sT2} sc1")
        A("s_mov_b64 exec, -1")

    freeA = [("a", 8 * i) for i in range(32)]
    freeV = [("v", 64 + 8 * i) for i in range(24)]
    halfV = []
    slots = {}
    def can_alloc(kind):
        if kind == "pair": return bool(freeA or freeV)
        if kind == "half": return bool(halfV or freeV)
        return True
    def alloc(kind, key, preferV=False):
        if kind == "pair":
            s = (freeV if (preferV and freeV) or not freeA else freeA).pop(0)
        else:
            if not halfV:
                s = freeV.pop(0); halfV.extend([s, (s[0], s[1] + 4)])
            s = halfV.pop(0)
        slots[key] = s
        return s
    def release(kind, key):
        s = slots.pop(key)
        if kind == "pair":
            (freeA if s[0] == "a" else freeV).append(s)
        else:
            mate = (s[0], s[1] ^ 4)
            if mate in halfV:
                halfV.remove(mate); freeV.append((s[0], s[1] & ~7))
            else: halfV.append(s)

    def tile_load(reg, vaddr, sr, soff, imm, pol):
        A(f"buffer_load_dwordx4 {reg[0]}[{reg[1]}:{reg[1]+3}], {vaddr}, {srd(sr)}, {soff} offen offset:{imm} {pol}".rstrip())
    def mk_pair(key, Tt, vaddr, sr, soff_fn, imm, pol, preferV=False):
        def emit():
            s = alloc("pair", key, preferV) if key not in slots else slots[key]
            tile_load((s[0], s[1] + 4 * Tt), vaddr, sr, soff_fn(), imm, pol)
        return dict(tag=key + (Tt,), need="pair" if Tt == 0 else None, emit=emit)
    last_soff = [None]
    def soff_add(base, const):
        def f():
            if last_soff[0] != (base, const):
                if base is None: A(f"s_mov_b32 {sT}, {const}")
                else: A(f"s_add_u32 {sT}, {base}, {const}")
                last_soff[0] = (base, const)
            return sT
        return f
    Lx = []
    for s_ in range(4):
        def emit(s_=s_):
            A(f"s_add_u32 {sT}, {sW}, {s_}"); A(f"s_and_b32 {sT}, {sT}, 3"); A(f"s_lshl_b32 {sT}, {sT}, 8")
            A(f"buffer_load_dword {v(T+s_)}, {v(T+5)}, {srd(sX)}, {sT} offen")
        Lx.append(dict(tag=("x", s_), need=None, emit=emit))
    Lx.append(dict(tag=("x", 4), need=None, emit=lambda: A(f"buffer_load_dword {v(T+4)}, {v(T+6)}, {srd(sX)}, 0 offen offset:1024")))
    Lwq = []
    for u in range(10):
        for t in range(3):
            for Tt in range(2):
                base, rows = (sQB0, 64 * Tt + 2 * u) if u < 8 else (sQB1, 64 * Tt + 2 * (u - 8))
                Lwq.append(mk_pair(("wq", u, t), Tt, vWQ, sWQ, soff_add(base, rows * 12288), 128 * t, o["polW"]))
    def next_addr(n, hB):
        j = 2 * n + hB + 1
        if j < 32: k_addr(j >> 1, j & 1)
        else: v_addr(0); v_addr(1)
    LK = []
    for n in range(16):
        for hB in range(2):
            for t in range(3):
                def emit(n=n, hB=hB, t=t):
                    s = alloc("half", ("k", n, hB, t))
                    if offs: tile_load(s, vK, sK, sSO[0], t * 128, o["polKV"])
                    else: tile_load(s, vK, sK, f"s{sU+n}", hB * 768 + t * 128, o["polKV"])
                    if offs and t == 2: next_addr(n, hB)
                def emitL(n=n, hB=hB, t=t):
                    imm = t * 128 if offs else hB * 768 + t * 128
                    A(f"s_add_u32 m0, {sKL}, {((2 * n + hB) * 3 + t) * 1024 - imm}")
                    A("s_nop 0")
                    A(f"buffer_load_dwordx4 {vK}, {srd(sK)}, {sSO[0] if offs else 's%d' % (sU+n)} offen offset:{imm} {o['polKV']} lds")
                    if offs and t == 2: next_addr(n, hB)
                if 2 * n + hB < o["nL"]: LK.append(dict(tag=("k", n, hB, t), need=None, emit=emitL))
                else: LK.append(dict(tag=("k", n, hB, t), need="half", emit=emit))
    LV = []
    for n in range(16):
        for t in range(3):
            for Tt in range(2):
                if offs:
                    it = mk_pair(("v", n, t), Tt, (vV, vK)[n & 1], sV, (lambda n=n: sSO[n & 1]), Tt * 768 + t * 128, o["polKV"], preferV=True)
                    if t == 2 and Tt == 1 and n + 2 < 16:
                        it["emit"] = (lambda e=it["emit"], n=n: (e(), v_addr(n + 2)))
                    LV.append(it)
                else:
                    LV.append(mk_pair(("v", n, t), Tt, vV, sV, (lambda n=n: f"s{sU+n}"), Tt * 3072 + t * 128, o["polKV"], preferV=True))
    if o["vorder"] == "T":
        nT = 14 if o["tsplit"] else 16
        LV = [it for n in range(nT) for Tt in range(2) for it in LV[6*n:6*n+6] if it["tag"][3] == Tt] + LV[6*nT:]
    if o["tsplit"]:
        LV = LV[:84] + [it for t in range(3) for n in (14, 15) for it in LV[84:] if it["tag"][1:3] == (n, t)]
    Lwo = []
    for u in range(6):
        for blk in range(5):
            for Tt in range(2):
                row0 = (64 * (u >> 1) + 8 * (u & 1) if o["tsplit"] else 8 * u) + 4 * Tt
                Lwo.append(mk_pair(("wo", u, blk), Tt, vWO, sWO, soff_add(None, row0 * 1280), blk * 256, o["polW"]))
    Lw1 = []
    for u in range(10):
        for Tt in range(2):
            base, rows = (sF0, 64 * Tt + 16 * (u & 3) + (u >> 2)) if u < 8 else (sF1, 64 * Tt + 16 * (u - 8))
            Lw1.append(mk_pair(("w1", u), Tt, vW1, sW1, soff_add(base, rows * 3072), 0, o["polW"]))
    Lw2 = []
    for u in range(3):
        for blk in range(3):
            for Tt in range(2):
                rows = 16 * u + 8 * Tt
                if blk < 2: Lw2.append(mk_pair(("w2", u, blk), Tt, vW2, sW2, soff_add(None, rows * 1280), blk * 128, o["polW"]))
                else: Lw2.append(mk_pair(("w2", u, blk), Tt, vW2, sW2, soff_add(sZ, rows * 1280), 0, o["polW"]))
    def misc(tag, fn): return dict(tag=tag, need=None, emit=fn)
    def mix(*lists):
        lists = [l for l in lists if l]
        items = []
        for li, l in enumerate(lists):
            for i, it in enumerate(l): items.append(((i + 0.5) / len(l), li, it))
        items.sort(key=lambda z: (z[0], z[1]))
        return [z[2] for z in items]
    def clr1():
        if o["noclr"]: A(f"buffer_load_dword {v(AF[1])}, off, {srd(sX)}, 0"); return
        A(f"buffer_store_dwordx4 {vr(AF[1],4)}, {vP1ST}, {srd(sWS)}, 0 offen {o['polC']}")
    def clr2():
        if o["noclr"]: A(f"buffer_load_dword {v(AF[1])}, off, {srd(sX)}, 0"); return
        A(f"s_mov_b32 {sT}, {P2}"); last_soff[0] = None
        A(f"buffer_store_dwordx4 {vr(AF[1],4)}, {vP1ST}, {srd(sWS)}, {sT} offen {o['polC']}")
    def clr3():
        if o["noclr"]: A(f"buffer_load_dword {v(AF[1])}, off, {srd(sX)}, 0"); return
        A(f"buffer_store_dword {v(AF[1])}, {vHST}, {srd(sWS)}, 0 offen {o['polC']}")
    def code_pf(label, reg, areg):
        def f():
            A(f"s_getpc_b64 s[{sPC}:{sPC+1}]")
            here = f"L_pc_{label}"
            A.label(here)
            A(f"s_add_u32 s{sPC}, s{sPC}, {label}-{here}"); A(f"s_addc_u32 s{sPC+1}, s{sPC+1}, 0")
            A(f"v_lshlrev_b32 {areg}, 7, {vL}")
            A(f"v_min_u32 {areg}, L_last-{label}, {areg}")
            A(f"global_load_dword {reg}, {areg}, s[{sPC}:{sPC+1}]")
        return f
    def cntload():
        if o["dyn"]:
            A(f"buffer_load_dwordx2 {vr(T+8,2)}, off, {srd(sDBG)}, 0 sc1"); return
        if o["tag"]:
            A(f"buffer_load_dword {tCNT}, off, {srd(sDBG)}, 0 sc1"); return
        A(f"s_lshl_b32 {sT}, {sB}, 5"); last_soff[0] = None
        A(f"buffer_load_dword {tCNT}, off, {srd(sX if o['nosig'] else sDBG)}, {sT} sc1")
    extra = [misc(("xr",), lambda: A(f"buffer_load_ushort {tXR}, {tXR}, {srd(sX)}, 0 offen"))]
    if o["codepf"] and not o["pf8"]: extra.append(misc(("pf",), code_pf("L_tail", tPF, tPF)))
    clrs = [misc(("clr", 0), clr1), misc(("clr", 1), clr2), misc(("clr", 2), clr3)]
    if o["tag"]: clrs = []
    qbar_done = [False]
    def warm_lines(msk=None):
        n_ = 0
        wm = o["warm"] & ~o["warm2"] & ~o["warm3"] if msk is None else msk
        o_ = dict(o); o_["warm"] = wm
        return warm_lines_(o_)
    def warm_lines_(o):
        n_ = 0
        if o["warm"] & 1:
            A(f"buffer_load_dword {v(T+12)}, {vP1ST}, {srd(sWS)}, 0 offen {o['polWm']}"); n_ += 1
        if o["warm"] & 2:
            for k in range(4 if o["hcopy"] else 1):
                A(f"s_mov_b32 {sT2}, {k * HS}")
                A(f"buffer_load_dword {v(T+12)}, {vHST}, {srd(sWS)}, {sT2} offen {o['polWm']}"); n_ += 1
        if o["warm"] & 4:
            A(f"buffer_load_dword {v(T+12)}, {tP2ST}, {srd(sWS)}, 0 offen {o['polWm']}"); n_ += 1
        return n_
    hooks = {}
    subs = []
    if not o["burst"]:
        phA = mix(Lwq, LK[:o["nKA"]])
        phB = mix(LK[o["nKA"]:], Lwo[:o["nWOB"]])
        rest = Lwo[o["nWOB"]:] + Lw1 + Lw2
        nlast = o["wlast"]
        phC = mix(LV, rest[:len(rest) - nlast]) + rest[len(rest) - nlast:]
        nfirst = o["WA"] - len(Lx)
        phA = phA[:nfirst] + clrs + phA[nfirst:]
        k = len(phC) * 2 // 3
        phC = phC[:k] + extra + phC[k:]
        k = len(phC) - nlast - o["WC"]
        phC = phC[:k] + [misc(("cnt",), cntload)] + phC[k:]
        seq = Lx + phA + phB + phC
        Wn = [o["WA"]] * (len(Lx) + len(phA)) + [o["WB"]] * len(phB) + [o["WC"]] * len(phC)
    else:
        NG = 4 if o["grp"] == "h" else 8
        KV = LK + LV
        pol = o["polT"]
        vDUM = v(T + 12)
        vTA = v(T + 11)
        def touch(areg, sr, soff, dst=vDUM, lanes=None):
            if lanes is not None:
                m = ((1 << lanes[1]) - 1) ^ ((1 << lanes[0]) - 1)
                A(f"s_mov_b32 exec_lo, {hex(m & 0xffffffff)}"); A(f"s_mov_b32 exec_hi, {hex(m >> 32)}")
                touch(areg, sr, soff, dst); A("s_mov_b64 exec, -1")
                return
            A(f"buffer_load_dword {dst}, {areg}, {srd(sr)}, {soff} offen {pol}")
            if o["touch64"]: A(f"buffer_load_dword {dst}, {areg}, {srd(sr)}, {soff} offen offset:64 {pol}")
            if o["polT2"] is not None: A(f"buffer_load_dword {dst}, {areg}, {srd(sr)}, {soff} offen {o['polT2']}")
        ncond = [0]
        def cond(sreg, k, fn):
            def f():
                lbl = f"L_skip{ncond[0]}"; ncond[0] += 1
                A(f"s_cmp_lg_u32 {sreg}, {k}"); A(f"s_cbranch_scc1 {lbl}")
                fn(); A.label(lbl); last_soff[0] = None
            return f
        def reserve(lst):
            def f():
                if lst[0]["tag"][0] == "wo": assert len(freeA) >= 30, "wo reserved before the q projection finished"
                for it in lst:
                    if it["need"]:
                        while not can_alloc("pair"): force_now()
                        freeV.sort(key=lambda z: -z[1])
                        alloc("pair", it["tag"][:-1])
                if not (lst[0]["tag"][0] == "w1" and o["w12late"]): subs.append((lst[0]["tag"][0], lst, dict(slots)))
            return f
        def piece(nl, p_, np_): return (nl * p_ // np_, nl * (p_ + 1) // np_)
        def touch_wo(p_=0, np_=1):
            a = vTA
            A(f"s_lshl_b32 {sT2}, {sB}, 2"); A(f"s_add_u32 {sT2}, {sT2}, {sW}"); A(f"s_mul_i32 {sT2}, {sT2}, {60*128}")
            A(f"v_lshlrev_b32 {a}, 7, {vL}"); touch(a, sWO, sT2, lanes=piece(60, p_, np_))
        def touch_w2(p_=0, np_=1, a=None):
            a = a or v(T + 9)
            A(f"s_lshl_b32 {sT2}, {sB}, 2"); A(f"s_add_u32 {sT2}, {sT2}, {sW}"); A(f"s_mul_i32 {sT2}, {sT2}, {15*128}")
            A(f"v_lshlrev_b32 {a}, 7, {vL}"); touch(a, sW2, sT2, lanes=piece(15, p_, np_))
        def touch_w12(p_=0, np_=1):
            a = vTA
            if o["w1bal"]:
                A(f"s_lshr_b32 {sT2}, s2, 3"); A(f"s_lshl_b32 {sT2}, {sT2}, 2"); A(f"s_add_u32 {sT2}, {sT2}, {sW}"); A(f"s_mul_i32 {sT2}, {sT2}, {5*3072}")
                A(f"v_mul_u32_u24 {a}, 21846, {vL}"); A(f"v_lshrrev_b32 {a}, 16, {a}")
                A(f"v_mul_u32_u24 {a}, {3072 - 384}, {a}"); A(f"v_lshl_add_u32 {a}, {vL}, 7, {a}")
                touch(a, sW1, sT2, lanes=piece(15, p_, np_))
            else:
                A(f"s_lshl_b32 {sT2}, {sB}, 2"); A(f"s_add_u32 {sT2}, {sT2}, {sW}"); A(f"s_mul_i32 {sT2}, {sT2}, {20*3072}")
                A(f"v_and_b32 {a}, 1, {vL}"); A(f"v_mul_u32_u24 {a}, {1536 - 92}, {a}")
                A(f"v_mul_u32_u24 {vWQ}, 1536, {vL}"); A(f"v_sub_u32 {a}, {vWQ}, {a}")
                touch(a, sW1, sT2, lanes=piece(40, p_, np_))
            if o["nlateW"] < 18: touch_w2(p_, np_, a)
        tb_ = o["b0"] - o["tlead"] if o["tB"] is None else o["tB"]
        tc_ = o["c0"] - o["tlead"] if o["tC"] is None else o["tC"]
        assert o["grp"] == "b" and tb_ >= 6 and tc_ > tb_ + o["W"]
        def hook(i, fn): hooks.setdefault(KV[i]["tag"], []).append(fn)
        Lw12 = Lw1 + Lw2
        Llate = Lw12[len(Lw12) - o["nlateW"]:]; Lw12 = Lw12[:len(Lw12) - o["nlateW"]]
        if o["nlateW"] >= 18 and o["tlate"] < 192: hook(o["tlate"], lambda: touch_w2())
        for base, step, lst, tfn in ((o["a0"], o["da"], Lwq, None), (o["b0"], o["db"], Lwo, touch_wo), (o["c0"], o["dc"], Lw12, touch_w12)):
            nm = lst[0]["tag"][0]
            hook(base, reserve(lst))
            for k in range(NG):
                if tfn and o["touch"] and (o["grp"] == "h" or (o["grp"] == "hb" and k % 2 == 0) or k == 0):
                    tp = o["tB"] if nm == "wo" else o["tC"]
                    tp = base - o["tlead"] if tp is None else tp
                    for p_ in range(o["tws"]):
                        hook(tp - (o["tws"] - 1 - p_) * o["dtw"], lambda p_=p_, tfn=tfn: tfn(p_, o["tws"]))
                if not (nm == "w1" and o["w12late"]):
                    kx = k ^ o["ordx"][("wq", "wo", "w1").index(nm)]
                    hook(base + k * step, cond(sG, kx, lambda nm=nm: A(f"s_call_b64 {sRA}, L_burst_{nm}")))
        if o["dsig"]:
            for k in range(32):
                def f(k=k):
                    assert qbar_done[0]
                    signal(f"L_sig{k}", k)
                hook(o["sig0"] + k * o["dsig"], f)
        if o["warmpos"] < 192: hook(o["warmpos"], warm_lines)
        if o["probe"]:
            def probe(i):
                def f():
                    A(f"s_lshl2_add_u32 s76, s2, {sW}"); A(f"s_and_b32 s77, s76, 31"); A("s_lshr_b32 s76, s76, 5")
                    A("s_lshl_b32 s76, s76, 15"); A("s_lshl_b32 s77, s77, 7"); A("s_add_u32 s76, s76, s77")
                    A(f"s_add_u32 s76, s76, {0x1000000 + (i >> 1) * 0x400000 + (i & 1) * 4096}")
                    A(f"s_add_u32 s76, s{sWS}, s76"); A(f"s_addc_u32 s77, s{sWS+1}, 0")
                    A("s_waitcnt lgkmcnt(0)")
                    if i & 1:
                        A("s_load_dwordx2 s[72:73], s[76:77], 0x2000"); A("s_load_dword s74, s[76:77], 0")
                    else:
                        A("s_load_dword s74, s[76:77], 0"); A("s_load_dwordx2 s[72:73], s[76:77], 0x2000")
                    A("s_waitcnt lgkmcnt(2)")
                    A("s_getreg_b32 s75, hwreg(HW_REG_IB_STS, 8, 4)")
                    A(f"s_lshl_b32 s0, s0, 2"); A("s_or_b32 s0, s0, s75")
                return f
            hook(6, lambda: A("s_mov_b32 s0, 0"))
            for i, at in enumerate(o["probe"]): hook(at, probe(i))
        if o["dyn"]:
            def probe(i):
                def f():
                    A.comment("workgroup 0: which of two pages of d_ws (address bit 13 = 0 / 1) is served by the nearer memory die?")
                    A("s_cmp_lg_u32 s2, 0"); A(f"s_cbranch_scc1 L_noprobe{i}")
                    A(f"s_lshl_b32 s76, {sW}, 8"); A(f"s_add_u32 s76, s76, {PRB + i * 1024}")
                    A(f"s_add_u32 s76, s{sWS}, s76"); A(f"s_addc_u32 s77, s{sWS+1}, 0")
                    A("s_waitcnt lgkmcnt(0)")
                    A(f"s_load_dword s74, s[76:77], {hex(0x2000 * (i & 1))}"); A(f"s_load_dword s75, s[76:77], {hex(0x2000 * (1 - (i & 1)))}")
                    A("s_waitcnt lgkmcnt(1)")
                    A("s_getreg_b32 s73, hwreg(HW_REG_IB_STS, 8, 4)")
                    A(f"{'s_add_u32' if i & 1 else 's_sub_u32'} s0, s0, s73")
                    A.label(f"L_noprobe{i}")
                return f
            for i, at in enumerate(o["dyn"]): hook(at, probe(i))
        if o["codepf"] and o["pf8"]:
            def pf_tail():
                A(f"s_lshr_b32 {sT2}, s2, 3"); A(f"s_or_b32 {sT2}, {sT2}, {sW}"); A("s_cbranch_scc1 L_nopf1")
                code_pf("L_tail", tPF, tPF)(); A.label("L_nopf1")
            hook(166, pf_tail)
        lastA = KV[o["a0"] + (NG - 1) * o["da"]]["tag"]
        lastB = KV[o["b0"] + (NG - 1) * o["db"]]["tag"]
        lastC = KV[o["c0"] + (NG - 1) * o["dc"]]["tag"]
        t0l = [misc(("tq",), lambda: touch(vT2, sWQ, sQT, vT1, lanes=(0, 60)))] if o["touch"] else []
        if o["early"]: t0l = []
        if o["tqs"] and o["touch"]:
            t0l = []
            for p_, at in enumerate(o["tqs"]):
                hook(at, lambda p_=p_: touch(vT2, sWQ, sQT, vT1, lanes=piece(60, p_, len(o["tqs"]))))
            assert max(o["tqs"]) < o["a0"]
        k1 = 150; k2 = 151 if o["tag"] else 192 - o["W"]
        head = (KV[:3] + t0l + Lx + KV[3:6]) if o["kfirst"] else (Lx + t0l + KV[:6])
        seq = head + clrs + KV[6:k1] + extra + KV[k1:k2] + [misc(("cnt",), cntload)] + KV[k2:]
        nhead = len(Lx) + len(t0l) + 6 + len(clrs)
        Wn = [nhead + 2] * (nhead + 2) + [o["W"]] * (len(seq) - nhead - 2)
        if o["Ws"]:
            kvpos = {it["tag"]: i for i, it in enumerate(KV)}
            cw, acc = o["W"], 0.0
            for i, it in enumerate(seq):
                for p_, w_ in o["Ws"]:
                    if kvpos.get(it["tag"]) == p_: cw = w_
                if i >= nhead + 2:
                    acc += cw - int(cw)
                    Wn[i] = int(cw) + (1 if acc >= 0.999 else 0)
                    if acc >= 0.999: acc -= 1
    pos = {it["tag"]: i for i, it in enumerate(seq)}

    acts = []
    def act(needs, fn, before=None): acts.append(dict(needs=[pos[t] for t in needs], fn=fn))
    def a_lnx():
        A.comment("LayerNorm(x)")
        if o["st0"]: stamp()
        F = D
        for s_ in range(5):
            A(f"v_lshlrev_b32 {v(F+2*s_)}, 16, {v(T+s_)}")
            A(f"v_and_b32 {v(F+2*s_+1)}, 0xffff0000, {v(T+s_)}")
        layernorm([F + 2 * k for k in range(5)], [F + 2 * k for k in range(5)], T, S)
        for k in range(12): A(f"v_mov_b32 {v(D+k)}, 0")
    act([("x", s_) for s_ in range(5)], a_lnx)
    setup_tag = ("k", 1, 0, 0) if o["tag"] else ("clr", 0)
    assert pos[("k", 1, 0, 0)] >= pos[setup_tag]
    if o["burst"]:
        for it in Lwq: pos[it["tag"]] = pos[lastA]
        for it in Lwo: pos[it["tag"]] = pos[lastB]
        assert o["a0"] >= 6
    else:
        assert pos[("wq", 8, 0, 0)] > pos[("clr", 0)]
        assert pos[("x", 4)] + o["WA"] > pos[("clr", 2)]
    for u in range(10):
        for t in range(3):
            def f(u=u, t=t):
                if t == 0:
                    for ins in afrag_oct(AF[u & 1], S + 2 * (u >> 3), u & 7): A(ins)
                smf(D + 4 * t, AF[u & 1], slots[("wq", u, t)]); release("pair", ("wq", u, t))
            act([("wq", u, t, 1)], f); acts[-1]["cost"] = 0.2 if o["burst"] else 1
    def a_qred1():
        A.comment("q: cross-wave reduction")
        compact([D, D + 4, D + 8])
        for t in range(3): A(f"ds_write_b32 {vREDW}, {v(D+4*t)} offset:{RED + 1024*t}")
        A(f"v_lshlrev_b32 {v(T)}, 4, {vL}")
        A(f"s_mul_i32 {sA}, {sW}, 384")
        A(f"v_lshl_add_u32 {v(T+1)}, {vL}, 1, {sA}")
        A(f"v_and_b32 {v(T+2)}, 7, {vL}")
        A(f"v_lshl_add_u32 {v(T+2)}, {v(T+2)}, 4, {sA}")
        if o["dyn"]:
            A(f"s_lshl_b32 {sA}, {sW}, 2"); A(f"v_mov_b32 {v(T+4)}, {sA}"); A(f"v_mov_b32 {v(T+5)}, s0")
            A(f"ds_write_b32 {v(T+4)}, {v(T+5)} offset:{SM + 32}")
        A("s_waitcnt lgkmcnt(0)")
        A("s_barrier")
        if o["dyn"]:
            A.comment("workgroup 0 publishes this launch's hand-off tag (a value no earlier launch used) and the page choice")
            A(f"s_or_b32 {sA}, s2, {sW}"); A("s_cbranch_scc1 L_nononce")
            A(f"ds_read_b128 {vr(AF[0],4)}, {v(T+4)} offset:{SM + 32}")
            A("s_memrealtime s[76:77]"); A("s_waitcnt lgkmcnt(0)")
            A(f"s_mul_i32 {sA}, s76, 0x9e3779b1"); A(f"s_max_u32 {sA}, {sA}, 1")
            A(f"v_add3_u32 {v(AF[0])}, {v(AF[0])}, {v(AF[0]+1)}, {v(AF[0]+2)}")
            A(f"v_add_u32 {v(AF[0])}, {v(AF[0])}, {v(AF[0]+3)}")
            A(f"v_cmp_lt_i32 vcc, 0, {v(AF[0])}")
            A(f"v_mov_b32 {v(AF[0])}, {sA}"); A(f"v_mov_b32 {v(AF[0]+2)}, 0x2000")
            A(f"v_cndmask_b32 {v(AF[0]+1)}, 0, {v(AF[0]+2)}, vcc")
            A("s_mov_b64 exec, 1")
            A(f"buffer_store_dwordx2 {vr(AF[0],2)}, off, {srd(sDBG)}, 0 sc1")
            A("s_mov_b64 exec, -1")
            A.label("L_nononce")
        for t in range(3): A(f"ds_read_b128 {vr(D+4*t,4)}, {v(T)} offset:{RED + 1024*t}")
        if o["burst"] and o["dsig"] == 0 and not o["tag"]: signal("L_nosig")
        qbar_done[0] = True
    act([] if o["tag"] else [("clr", 2)], a_qred1)
    def a_qred2():
        A("s_waitcnt lgkmcnt(0)")
        for t in range(3):
            d = D + 4 * t
            A(f"v_pk_add_f32 {vr(d,2)}, {vr(d,2)}, {vr(d+2,2)}")
        for t in range(3):
            d = D + 4 * t
            A(f"v_add_f32 {v(d)}, {v(d)}, {v(d+1)}")
        for t in range(3):
            d = D + 4 * t
            A(f"v_cvt_pk_bf16_f32 {v(d)}, {v(d)}, {v(d)}")
        for t in range(3): A(f"ds_write_b16 {v(T+1)}, {v(D+4*t)} offset:{QB + 128*t}")
        A("s_waitcnt lgkmcnt(0)")
        for t in range(3): A(f"ds_read_b128 {vr(Q+4*t,4)}, {v(T+2)} offset:{QB + 128*t}")
        for k in range(12): A(f"v_mov_b32 {v(D+k)}, 0")
        A("s_waitcnt lgkmcnt(0)")
        if not o["st0"]: stamp()
    act([], a_qred2)
    nLu = o["nL"] // 2
    order = list(range(nLu, nLu + o["rL"])) + list(range(nLu)) + list(range(nLu + o["rL"], 16)) if nLu else list(range(16))
    vKL = v(T + 3)
    def lds_reads(n, hB):
        for t in range(3):
            while not can_alloc("half"): raise AssertionError("no register for LDS K tile")
            s = alloc("half", ("k", n, hB, t))
            A(f"ds_read_b128 v[{s[1]}:{s[1]+3}], {vKL} offset:{((2 * n + hB) * 3 + t) * 1024}")
    halves = [(n, hB) for n in order for hB in range(2)]
    for i, (n, hB) in enumerate(halves):
        def f(i=i, n=n, hB=hB):
            if i == 0 and nLu: A(f"v_lshl_add_u32 {vKL}, {vL}, 4, {sKL}")
            if n < nLu: A("s_waitcnt lgkmcnt(0)")
            if i + 1 < 32 and halves[i + 1][0] < nLu: lds_reads(*halves[i + 1])
            acc = v(T + hB)
            first = True
            for t in range(3):
                s = slots[("k", n, hB, t)]
                for k in range(4):
                    if first: A(f"v_dot2_f32_bf16 {acc}, v{s[1]+k}, {v(Q+4*t+k)}, 0"); first = False
                    else: A(f"v_dot2_f32_bf16 {acc}, v{s[1]+k}, {v(Q+4*t+k)}, {acc}")
                release("half", ("k", n, hB, t))
            if hB == 1:
                A(f"s_lshl_b64 vcc, {sLM}, {n & 7}")
                for st in (f"quad_perm:[1,0,3,2] {DPPF}", f"quad_perm:[2,3,0,1] {DPPF}", f"row_half_mirror {DPPF}"):
                    for hh in range(2): A(f"v_add_f32_dpp {v(T+hh)}, {v(T+hh)}, {v(T+hh)} {st}")
                for hh in range(2):
                    d = v(S + 2 * (n >> 3) + hh)
                    A(f"v_cndmask_b32 {d}, {d}, {v(T+hh)}, vcc")
        act([("k", n, hB, 2)], f); acts[-1]["cost"] = o["qkcost"]
    assert not nLu or o["rL"] >= 1
    def a_soft1():
        A.comment("softmax statistics")
        if not o["st0"]: stamp()
        A(f"v_mov_b32 {v(T+4)}, {hex(fbits(192 ** -0.5))}")
        for rnd in range(2):
            for k in range(2): A(f"v_cvt_pk_bf16_f32 {v(T+k)}, {v(S+2*k)}, {v(S+2*k+1)}")
            for k in range(2):
                A(f"v_lshlrev_b32 {v(S+2*k)}, 16, {v(T+k)}")
                A(f"v_and_b32 {v(S+2*k+1)}, 0xffff0000, {v(T+k)}")
            if rnd == 0:
                for k in range(4): A(f"v_mul_f32 {v(S+k)}, {v(S+k)}, {v(T+4)}")
        A(f"v_max3_f32 {v(T)}, {v(S)}, {v(S+1)}, {v(S+2)}")
        A(f"v_max_f32 {v(T)}, {v(T)}, {v(S+3)}")
        wave_reduce("v_max_f32", v(T), sA, fill=[f"v_mov_b32 {v(T+8)}, {hex(LOG2E)}", f"s_lshl_b32 {sC}, {sW}, 3", f"v_mov_b32 {v(T+9)}, {sC}", f"v_mov_b32 {v(T+10)}, 0"])
        for k in range(4): A(f"v_subrev_f32 {v(T+k)}, {sA}, {v(S+k)}")
        for k in range(4): A(f"v_mul_f32 {v(T+k)}, {v(T+k)}, {v(T+8)}")
        for k in range(4): A(f"v_exp_f32 {v(T+k)}, {v(T+k)}")
        A(f"v_mov_b32 {v(T+4)}, {sA}")
        A(f"v_pk_add_f32 {vr(T,2)}, {vr(T,2)}, {vr(T+2,2)}")
        A(f"v_add_f32 {v(T)}, {v(T)}, {v(T+1)}")
        wave_reduce("v_add_f32", v(T), sC)
        A(f"v_mov_b32 {v(T+5)}, {sC}")
        A(f"ds_write_b64 {v(T+9)}, {vr(T+4,2)} offset:{SM}")
    act([], a_soft1)
    def a_soft2():
        A("s_waitcnt lgkmcnt(0)")
        A("s_barrier")
        A(f"ds_read_b128 {vr(T,4)}, {v(T+10)} offset:{SM}")
        A(f"ds_read_b128 {vr(T+4,4)}, {v(T+10)} offset:{SM+16}")
        if not (o["burst"] and o["dsig"] is not None): signal("L_nosig")
        A("s_waitcnt lgkmcnt(0)")
        A(f"v_max3_f32 {v(T+9)}, {v(T)}, {v(T+2)}, {v(T+4)}")
        A(f"v_max_f32 {v(T+9)}, {v(T+9)}, {v(T+6)}")
        for k in range(4): A(f"v_sub_f32 {v(T+2*k)}, {v(T+2*k)}, {v(T+9)}")
        for k in range(4): A(f"v_sub_f32 {v(S+k)}, {v(S+k)}, {v(T+9)}")
        for k in range(4): A(f"v_mul_f32 {v(T+2*k)}, {v(T+2*k)}, {v(T+8)}")
        for k in range(4): A(f"v_mul_f32 {v(S+k)}, {v(S+k)}, {v(T+8)}")
        for k in range(4): A(f"v_exp_f32 {v(T+2*k)}, {v(T+2*k)}")
        for k in range(4): A(f"v_exp_f32 {v(S+k)}, {v(S+k)}")
        A(f"v_mul_f32 {v(T)}, {v(T)}, {v(T+1)}")
        for k in range(1, 4): A(f"v_fmac_f32 {v(T)}, {v(T+2*k)}, {v(T+2*k+1)}")
        A(f"v_rcp_f32 {v(T)}, {v(T)}")
        for k in range(4): A(f"v_mul_f32 {v(S+k)}, {v(S+k)}, {v(T)}")
        A(f"v_cvt_pk_bf16_f32 {v(S)}, {v(S)}, {v(S+1)}")
        A(f"v_cvt_pk_bf16_f32 {v(S+2)}, {v(S+2)}, {v(S+3)}")
        A(f"v_mov_b32_dpp {v(S+1)}, {v(S)} row_half_mirror {DPPF}")
        A(f"v_mov_b32_dpp {v(S+3)}, {v(S+2)} row_half_mirror {DPPF}")
        if not o["st0"]: stamp()
    act([], a_soft2)
    sRD = [f"s{sWQ+k}" for k in range(4)]
    sHL = [f"s{sK+k}" for k in range(4)]
    def a_tailprep():
        A.comment("addresses used by the tail")
        c, r8, i16, b4, b3, b5, tt, oob = [v(T + k) for k in range(8)]
        A(f"v_and_b32 {c}, 7, {vL}"); A(f"v_lshrrev_b32 {r8}, 3, {vL}"); A(f"v_and_b32 {i16}, 15, {vL}")
        A(f"v_bfe_u32 {b4}, {vL}, 4, 1"); A(f"v_bfe_u32 {b3}, {vL}, 3, 1"); A(f"v_lshrrev_b32 {b5}, 5, {vL}")
        A(f"v_mov_b32 {oob}, {OOB}")
        A(f"v_min_u32 {tt}, {1 if o['tsplit'] else 5}, {i16}"); A(f"v_lshlrev_b32 {tt}, 7, {tt}")
        A(f"v_lshrrev_b32 {tO_R}, 4, {vL}"); A(f"v_lshl_add_u32 {tO_R}, {tO_R}, 5, {tt}")
        A(f"s_mul_i32 {sA}, {sW}, {256 if o['tsplit'] else 768}"); A(f"v_add_u32 {tO_R}, {sA}, {tO_R}")
        A(f"v_lshlrev_b32 {tt}, 9, {b5}"); A(f"v_lshl_add_u32 {tt}, {i16}, 5, {tt}"); A(f"v_lshl_add_u32 {tt}, {b4}, 4, {tt}")
        A(f"s_mul_i32 {sA}, {sW}, 3072"); A(f"v_add_u32 {tR2W}, {sA}, {tt}")
        A(f"s_mul_i32 {sA}, {sW}, 5"); A(f"v_add_u32 {tt}, {sA}, {r8}")
        A(f"v_lshrrev_b32 {tR2R}, 1, {tt}"); A(f"v_lshlrev_b32 {tR2R}, 8, {tR2R}")
        A(f"v_and_b32 {tt}, 1, {tt}"); A(f"v_lshl_add_u32 {tR2R}, {tt}, 4, {tR2R}"); A(f"v_lshl_add_u32 {tR2R}, {c}, 5, {tR2R}")
        if numa:
            A(f"s_sub_u32 {sC}, {sH}, 16"); A(f"s_cmp_lt_u32 {sH}, 20"); A(f"s_cselect_b32 {sC}, {sH}, {sC}")
            s_page(sC, sA)
            A(f"s_lshl_b32 {sA}, {sB}, 17"); A(f"s_add_u32 {sA}, {sA}, {sC}")
            A(f"v_lshl_add_u32 {tRD}, {vL}, 4, {sA}")
            A(f"s_and_b32 {sC}, {sH}, 7"); s_page(sC, sA)
            A(f"s_lshl_b32 {sA}, {sB}, 15"); A(f"s_add_u32 {sA}, {sA}, {sC}"); A(f"s_add_u32 {sA}, {sA}, {HB}")
        else:
            if o["p32"]: A(f"s_mov_b32 {sC}, {sH}")
            elif o["dup16"]: A(f"s_sub_u32 {sC}, {sH}, 16"); A(f"s_cmp_lt_u32 {sH}, 20"); A(f"s_cselect_b32 {sC}, {sH}, {sC}")
            else: A(f"s_sub_u32 {sC}, {sH}, 20"); A(f"s_cselect_b32 {sC}, {sH}, {sC}")
            A(f"s_mul_i32 {sA}, {sB}, {32 * PS}"); A(f"s_lshl_b32 {sC}, {sC}, 7"); A(f"s_add_u32 {sA}, {sA}, {sC}")
            A(f"v_mul_u32_u24 {tt}, {PS}, {r8}"); A(f"v_lshl_add_u32 {tt}, {c}, 4, {tt}"); A(f"v_add_u32 {tRD}, {sA}, {tt}")
            A(f"s_mul_i32 {sA}, {sB}, 2560"); A(f"s_add_u32 {sA}, {sA}, {HB}")
            if o["hcopy"]:
                A(f"s_and_b32 {sC}, {sH}, 7"); A(f"s_lshl_b32 {sC}, {sC}, 15"); A(f"s_add_u32 {sA}, {sA}, {sC}")
        A(f"v_lshl_add_u32 {tHL0}, {vL}, 3, {sA}")
        A(f"s_lshl_b32 {sC}, {sW}, 1"); A(f"v_xor_b32 {tt}, {sC}, {vL}"); A(f"v_lshl_add_u32 {tHL4}, {tt}, 3, {sA}")
        for k in range(4):
            A(f"s_add_u32 {sHL[k]}, {sW}, {k}"); A(f"s_and_b32 {sHL[k]}, {sHL[k]}, 3"); A(f"s_lshl_b32 {sHL[k]}, {sHL[k]}, 9")
            A(f"s_mov_b32 {sRD[k]}, {P1 + k * (1024 if numa else 8 * PS)}")
        A(f"v_and_b32 {tt}, 3, {c}"); A(f"v_min_u32 {tt}, 2, {tt}"); A(f"v_lshlrev_b32 {tt}, 8, {tt}"); A(f"v_lshl_add_u32 {tZR}, {r8}, 5, {tt}")
        if numa:
            A(f"s_lshl_b32 {sA}, {sB}, 17"); A(f"s_lshl_b32 {sC}, {sH}, 7"); A(f"s_add_u32 {sA}, {sA}, {sC}"); A(f"s_add_u32 {sA}, {sA}, {P2}")
            A(f"s_lshl_b32 {sC}, {sW}, 1"); A(f"v_add_u32 {tP2ST}, {sC}, {b5}")
            A(f"s_add_u32 {sC}, {sW}, 8"); A(f"v_mov_b32 {i16}, {sC}")
            A(f"v_cmp_eq_u32 vcc, 1, {b3}")
            A(f"v_cndmask_b32 {tP2ST}, {tP2ST}, {i16}, vcc")
            A(f"v_lshl_add_u32 {tP2ST}, {tP2ST}, 1, {b4}")
            v_page(tP2ST, tt, sA)
            A(f"v_lshl_add_u32 {tP2ST}, {c}, 4, {tP2ST}")
            A(f"s_cmp_lt_u32 {sW}, 2"); A(f"s_cselect_b32 vcc_hi, -1, 0x00ff00ff"); A(f"s_mov_b32 vcc_lo, 0x00ff00ff")
            A(f"v_cndmask_b32 {tP2ST}, {oob}, {tP2ST}, vcc")
        else:
            A(f"s_mul_i32 {sA}, s2, {PS}"); A(f"s_add_u32 {sA}, {sA}, {P2}")
            A(f"v_lshlrev_b32 {tt}, 7, {b4}"); A(f"v_lshl_add_u32 {tt}, {c}, 4, {tt}"); A(f"v_add_u32 {tt}, {sA}, {tt}")
            A(f"s_lshl_b32 {sC}, {sW}, 9"); A(f"v_lshl_add_u32 {tP2ST}, {b5}, 8, {sC}")
            A(f"s_add_u32 {sC}, {sW}, 8"); A(f"s_lshl_b32 {sC}, {sC}, 8"); A(f"s_cmp_lt_u32 {sW}, 2"); A(f"s_cselect_b32 {sC}, {sC}, {OOB}")
            A(f"v_cmp_eq_u32 vcc, 1, {b5}"); A(f"v_mov_b32 {i16}, {sC}")
            A(f"v_cndmask_b32 {i16}, {oob}, {i16}, vcc")
            A(f"v_cmp_eq_u32 vcc, 1, {b3}")
            A(f"v_cndmask_b32 {tP2ST}, {tP2ST}, {i16}, vcc")
            A(f"v_add_u32 {tP2ST}, {tP2ST}, {tt}")
        A(f"s_lshr_b32 {sA}, {sH}, 1"); A(f"s_lshl_b32 {sA}, {sA}, 7"); A(f"s_and_b32 {sC}, {sH}, 1"); A(f"s_lshl_b32 {sC}, {sC}, 3"); A(f"s_add_u32 {sA}, {sA}, {sC}")
        A(f"v_and_b32 {r8}, 3, {r8}")
        A(f"v_lshl_add_u32 {tt}, {c}, 3, {r8}"); A(f"v_lshl_add_u32 {tXR}, {tt}, 1, {sA}")
        A(f"v_cmp_gt_u32 vcc, 32, {vL}")
        A(f"v_cndmask_b32 {tOUT}, {oob}, {tXR}, vcc")
    sTB = [f"s{sU+k}" for k in range(4)]; sTL, sTH = f"s{sU+4}", f"s{sU+5}"
    vMH, vTGH, vTG1, vTGC = vWO, vWQ, v(T + 10), v(T + 11)
    assert not offs or (o["tag1"] and o["tag"])
    vFS, vFL = vV, vK
    def spin_guard():
        A(f"s_add_u32 {sSPIN}, {sSPIN}, 1"); A(f"s_cmp_gt_u32 {sSPIN}, {o['spin']}"); A("s_cbranch_scc1 L_end")
    def a_tagprep():
        A(f"s_mov_b32 {sSPIN}, 0")
        A(f"v_cmp_eq_u32 vcc, 0, {v(T+8) if o['dyn'] else tCNT}")
        A("s_cbranch_vccnz L_cntwait")
        A.label("L_cntok")
        if o["dyn"]:
            A(f"v_mov_b32 {tCNT}, {v(T+8)}")
            for r_ in (vP1ST, tP2ST, tRD, tHL0, tHL4): A(f"v_xor_b32 {r_}, {v(T+9)}, {r_}")
        A(f"v_readfirstlane_b32 {sA}, {tCNT}")
        A(f"v_mov_b32 {vMH}, 0xffffff00")
        if o["tag1"]:
            A(f"v_and_b32 {vTG1}, 3, {vL}"); A(f"v_lshlrev_b32 {vTG1}, 3, {vTG1}"); A(f"v_bfe_u32 {vTG1}, {tCNT}, {vTG1}, 8")
            A(f"v_and_b32 {vTGC}, 1, {vL}"); A(f"v_cmp_eq_u32 vcc, 0, {vTGC}")
            A(f"v_lshlrev_b32 {vTGC}, 4, {vTGC}"); A(f"v_bfe_u32 {vTGC}, {tCNT}, {vTGC}, 16")
            A(f"v_bfe_u32 {vTGH}, {vL}, 1, 1")
        else:
            A(f"v_and_b32 {vTGH}, 1, {vL}")
            for k in range(4): A(f"s_bfe_u32 {sTB[k]}, {sA}, {hex(0x80000 | (8 * k))}")
            A(f"s_and_b32 {sTL}, {sA}, 0xffff"); A(f"s_lshr_b32 {sTH}, {sA}, 16")
        if o["hcopy"]:
            for k in range(1, 4): A(f"s_mov_b32 s{sU+5+k}, {k * HS}")
        A(f"v_lshlrev_b32 {vTGH}, 4, {vTGH}")
        A(f"v_bfe_u32 {vTGH}, {tCNT}, {vTGH}, 16")
        if o["tag1"]: A(f"v_cndmask_b32 {vTGH}, 0, {vTGH}, vcc")
    tailprep_done = [False]
    for n in range(14 if o["tsplit"] else 16):
        for t in range(3):
            def f(n=n, t=t):
                if t == 0:
                    for ins in afrag_oct(AF[n & 1], S + 2 * (n >> 3), n & 7): A(ins)
                smf(D + 4 * t, AF[n & 1], slots[("v", n, t)]); release("pair", ("v", n, t))
            act([("v", n, t, 1)], f)
        if n == 4:
            def g(): a_tailprep(); tailprep_done[0] = True
            act([], g)
        if n == 10 and o["tag"]: act([("cnt",)], a_tagprep)

    arrived = -1
    ai = 0
    def wait_for(idx, issued):
        nonlocal arrived
        if idx > arrived:
            A(f"s_waitcnt vmcnt({issued - 1 - idx})"); arrived = idx
    def force_action(issued):
        nonlocal ai
        a = acts[ai]; m = max(a["needs"], default=-1)
        assert m < issued, "action needs a load that is not issued yet"
        wait_for(m, issued); a["fn"](); ai += 1
    forced = 0
    kvi = {it["tag"]: i for i, it in enumerate(LK + LV)}
    cur = [0]
    def force_now():
        nonlocal forced
        force_action(cur[0]); forced += 1
    for n, it in enumerate(seq):
        cur[0] = n
        if it["tag"] == setup_tag: late_setup()
        if it["tag"] == ("xr",): assert tailprep_done[0]
        kv = kvi.get(it["tag"])
        if o["batch"] > 1 and kv is not None:
            if kv % o["batch"] == 0:
                tgt = n + o["batch"] - 1 - Wn[n]
                if tgt > arrived: wait_for(tgt, n)
        elif n - Wn[n] > arrived: wait_for(n - Wn[n], n)
        for hk in hooks.get(it["tag"], []): hk()
        while it["need"] and not can_alloc(it["need"]):
            force_action(n); forced += 1
        it["emit"]()
        budget = 1.0
        if o["batch"] > 1 and kv is not None:
            budget = float(o["batch"]) if kv % o["batch"] == o["batch"] - 1 else 0.0
        while budget > 0.01 and ai < len(acts) and max(acts[ai]["needs"], default=-1) <= arrived:
            budget -= acts[ai].get("cost", 1); acts[ai]["fn"](); ai += 1
    issued = len(seq)
    A.label("L_tail")
    if not o["tag"]: A(f"s_mov_b32 {sSPIN}, 0")
    late = (Lw1 + Lw2) if o["w12late"] else []
    nlate = [0]
    def late_load(k=1, limit=None):
        nonlocal issued
        for _ in range(k):
            if late and (limit is None or nlate[0] < limit):
                late.pop(0)["emit"](); issued += 1; nlate[0] += 1
    late_load(o["n1"])
    if o["warmpos"] >= 192: issued += warm_lines()
    if o["flag"]:
        fs = o["fstr"]
        A(f"s_mul_i32 {sC}, s2, {fs}"); A(f"s_add_u32 {sC}, {sC}, {FLB}")
        A(f"s_mul_i32 {sA}, {sW}, {512 * fs}"); A(f"s_add_u32 {sC}, {sC}, {sA}")
        A(f"v_mul_u32_u24 {vFS}, {256 * fs}, {vL}"); A(f"v_add_u32 {vFS}, {sC}, {vFS}")
        A(f"v_cmp_gt_u32 vcc, 2, {vL}"); A(f"v_mov_b32 {vFL}, {OOB}"); A(f"v_cndmask_b32 {vFS}, {vFL}, {vFS}, vcc")
        A(f"s_and_b32 {sC}, {sH}, 7"); A(f"s_lshl_b32 {sC}, {sC}, 3"); A(f"s_add_u32 {sC}, {sC}, {sB}")
        A(f"s_mul_i32 {sC}, {sC}, {32 * fs}"); A(f"s_add_u32 {sC}, {sC}, {FLB}")
        A(f"v_and_b32 {vFL}, 31, {vL}"); A(f"v_mul_u32_u24 {vFL}, {fs}, {vFL}"); A(f"v_add_u32 {vFL}, {sC}, {vFL}")
    if o["burst"] and o["nlateW"] >= 18 and o["tlate"] >= 192:
        touch_w2(); issued += 1 + (o["polT2"] is not None)
    while ai < len(acts):
        force_action(issued); late_load(1, o["n2"])
    o["_forced"] = forced

    def af_row(dst, u, src=S): return [f"v_and_b32_dpp {v(dst+k)}, {v(src)}, {v(MK[k])} row_newbcast:{u} {DPPF}" for k in range(4)]
    if o["tsplit"]:
        assert not late and not halfV
        vs = {key: slots[key][1] for key in slots if key[0] == "v"}
        assert all(slots[key][0] == "v" for key in slots if key[0] == "v") and len(vs) == 6 and len(freeV) >= 1
        f0 = freeV[0][1]
        s0, s1, s2_, s3_, s4, s5 = [vs[("v", n, t)] for t in range(3) for n in (14, 15)]
        DO = [f0, f0 + 4, s0, s0 + 4, s1]
        AO = [s1 + 4, T + 4]
        G = [s2_, s2_ + 4, s3_, s3_ + 4]
        F = [s4, s4 + 2, s4 + 4, s4 + 6, s5]
        Wk = [f0, f0 + 2, f0 + 4, f0 + 6, s0]
        R0, R1 = s1, s1 + 4
        OP = [T + 8, T + 9]
        for ins in afrag_oct(AF[0], S + 2, 6): A(ins)
        for ins in afrag_oct(AF[1], S + 2, 7): A(ins)
        for k in range(8): A(f"v_mov_b32 {v(f0+k)}, 0")
        def oread(t):
            A(f"ds_read_b128 {vr(T,4)}, {tO_R} offset:{RED + 1024*t}")
            A(f"ds_read_b128 {vr(S,4)}, {tO_R} offset:{RED + 1024*t + 16}")
        def opack(t):
            A(f"v_pk_add_f32 {vr(T,2)}, {vr(T,2)}, {vr(T+2,2)}")
            A(f"v_pk_add_f32 {vr(S,2)}, {vr(S,2)}, {vr(S+2,2)}")
            A(f"v_add_f32 {v(T)}, {v(T)}, {v(T+1)}")
            A(f"v_add_f32 {v(S)}, {v(S)}, {v(S+1)}")
            A(f"v_cvt_pk_bf16_f32 {v(OP[t & 1])}, {v(T)}, {v(S)}")
        def oproj(t):
            for ins in af_row(AO[0], 0, OP[t & 1]): A(ins)
            nxt = af_row(AO[1], 1, OP[t & 1])
            A(nxt.pop(0)); A(nxt.pop(0))
            for uu in range(2):
                for blk in range(5):
                    smf(DO[blk], AO[uu], slots[("wo", 2 * t + uu, blk)])
                    if nxt: A(nxt.pop(0))
        wait_for(max(pos[it["tag"]] for it in Lwo), issued)
        for t in range(3):
            for n in (14, 15):
                wait_for(pos[("v", n, t, 1)], issued)
                smf(D + 4 * t, AF[n & 1], slots[("v", n, t)])
            if t == 2:
                A.comment("o: cross-wave reduction")
                stamp()
            if t == 0:
                for k in range(12): A(f"v_mov_b32 {v((s0 if k < 8 else s1 - 8) + k)}, 0")
            compact([D + 4 * t])
            A(f"ds_write_b32 {vREDW}, {v(D+4*t)} offset:{RED + 1024*t}")
            A("s_waitcnt lgkmcnt(0)")
            A("s_barrier")
            oread(t)
            if o["flag"] == t + 1:
                A(f"buffer_store_dword {tCNT}, {vFS}, {srd(sWS)}, 0 offen sc1"); issued += 1
            A("s_waitcnt lgkmcnt(0)")
            opack(t)
            oproj(t)
            if o["latepos"] == "oproj" and Llate and t < 2:
                if t == 0:
                    for u in range(2):
                        for blk in range(5): release("pair", ("wo", u, blk))
                    for it in Llate:
                        if it["need"]: alloc("pair", it["tag"][:-1])
                    assert all(slots[it["tag"][:-1]][0] == "a" for it in Llate)
                last_soff[0] = None
                for it in (Llate[:o["nsplit"]] if t == 0 else Llate[o["nsplit"]:]):
                    it["emit"](); issued += 1
    else:
        A.comment("o: cross-wave reduction")
        stamp()
        if o["notail"]:
            for k in range(nstamp[0], nstamp[0] + 4): A(f"s_memrealtime s[{4+2*k}:{5+2*k}]")
            A("s_branch L_prof")
        assert not halfV
        tv = sorted(s[1] for s in freeV)
        assert len(tv) >= 7, tv
        DO = [tv[0], tv[0] + 4, tv[1], tv[1] + 4, tv[2]]
        G = [tv[3], tv[3] + 4, tv[4], tv[4] + 4]
        F = [tv[5], tv[5] + 2, tv[5] + 4, tv[5] + 6, tv[6]]
        Wk = [tv[0], tv[0] + 2, tv[0] + 4, tv[0] + 6, tv[1]]
        R0, R1 = tv[2], tv[2] + 4
        for d in DO[:2]:
            for k in range(4): A(f"v_mov_b32 {v(d+k)}, 0")
        compact([D, D + 4, D + 8])
        for t in range(3): A(f"ds_write_b32 {vREDW}, {v(D+4*t)} offset:{RED + 1024*t}")
        late_load(1, o["n2"])
        for d in DO[2:4]:
            for k in range(4): A(f"v_mov_b32 {v(d+k)}, 0")
        A("s_waitcnt lgkmcnt(0)")
        A("s_barrier")
        A(f"ds_read_b128 {vr(T,4)}, {tO_R} offset:{RED}")
        A(f"ds_read_b128 {vr(T+4,4)}, {tO_R} offset:{RED+16}")
        late_load(1, o["n2"])
        for k in range(4): A(f"v_mov_b32 {v(DO[4]+k)}, 0")
        wait_for(max(pos[it["tag"]] for it in Lwo), issued)
        A("s_waitcnt lgkmcnt(0)")
        A(f"v_pk_add_f32 {vr(T,2)}, {vr(T,2)}, {vr(T+2,2)}")
        A(f"v_pk_add_f32 {vr(T+4,2)}, {vr(T+4,2)}, {vr(T+6,2)}")
        A(f"v_add_f32 {v(T)}, {v(T)}, {v(T+1)}")
        A(f"v_add_f32 {v(T+4)}, {v(T+4)}, {v(T+5)}")
        A(f"v_cvt_pk_bf16_f32 {v(S)}, {v(T)}, {v(T+4)}")
        for ins in af_row(AF[0], 0): A(ins)
        for u in range(6):
            nxt = af_row(AF[(u + 1) & 1], u + 1) if u < 5 else []
            for blk in range(5):
                smf(DO[blk], AF[u & 1], slots[("wo", u, blk)])
                if nxt: A(nxt.pop(0))
                if blk == 4: late_load(1, o["n2"])
    for k in range(4): A(f"v_mov_b32_dpp {v(DO[0]+k)}, {v(DO[1]+k)} quad_perm:[0,1,2,3] row_mask:0xc bank_mask:0xf")
    A(f"ds_write_b128 {tR2W}, {vr(DO[0],4)} offset:{RED2}")
    for k in range(4): A(f"v_mov_b32_dpp {v(DO[2]+k)}, {v(DO[3]+k)} quad_perm:[0,1,2,3] row_mask:0xc bank_mask:0xf")
    A(f"ds_write_b128 {tR2W}, {vr(DO[2],4)} offset:{RED2+1024}")
    A(f"ds_write_b128 {tR2W}, {vr(DO[4],4)} offset:{RED2+2048}")
    A("s_waitcnt lgkmcnt(0)")
    A("s_barrier")
    for k in range(4): A(f"ds_read_b128 {vr(G[k],4)}, {tR2R} offset:{RED2 + 3072*k}")
    for k in range(12): A(f"v_mov_b32 {v(D+k)}, 0")
    A("s_waitcnt lgkmcnt(0)")
    def sum4():
        for hh in (0, 2):
            A(f"v_pk_add_f32 {vr(R0+hh,2)}, {vr(G[0]+hh,2)}, {vr(G[1]+hh,2)}")
            A(f"v_pk_add_f32 {vr(R1+hh,2)}, {vr(G[2]+hh,2)}, {vr(G[3]+hh,2)}")
        for hh in (0, 2):
            A(f"v_pk_add_f32 {vr(R0+hh,2)}, {vr(R0+hh,2)}, {vr(R1+hh,2)}")
    sum4()
    def seal(r):
        if o["tag"] and o["tag1"]:
            A(f"v_and_or_b32 {v(r)}, {v(r)}, {vMH}, {vTG1}"); return
        for k in range(4):
            if o["tag"]: A(f"v_and_or_b32 {v(r+k)}, {v(r+k)}, {vMH}, {sTB[k]}")
            else: A(f"v_min_u32 {v(r+k)}, -2, {v(r+k)}")
    seal(R0)
    A(f"buffer_store_dwordx4 {vr(R0,4)}, {vP1ST}, {srd(sWS)}, 0 offen sc1")
    issued += 1
    stamp()
    if o["prof"]:
        stamp(); nstamp[0] -= 1
    if o["warm2"]: issued += warm_lines(o["warm2"])
    if o["burst"] and Llate and o["latepos"] != "oproj":
        for u in range(6):
            for blk in range(5): release("pair", ("wo", u, blk))
        for it in Llate:
            if it["need"]: alloc("pair", it["tag"][:-1])
        def late_w():
            last_soff[0] = None
            for it in Llate: it["emit"]()
    if not o["tag"]:
        wait_for(pos[("cnt",)], issued)
        A(f"v_cmp_gt_u32 vcc, 32, {tCNT}")
        if not o["nosig"]: A("s_cbranch_vccnz L_cntwait")
        A.label("L_cntok")
    last_soff[0] = None
    while late:
        A(f"s_waitcnt vmcnt({o['Wb'] - 2})"); late_load(2)
    haslate = o["burst"] and bool(Llate) and o["latepos"] != "oproj"
    if haslate and o["latepos"] == "pre": late_w()
    A(f"s_cmp_lg_u32 {sW}, {o['redw']}"); A("s_cbranch_scc1 " + ("L_latew" if haslate and o["latepos"] in ("ack", "post0") else "L_hpoll0"))
    if not o["hbar"]:
        A(f"s_cmp_ge_u32 {sH}, 20"); A("s_cbranch_scc1 L_hpoll0")
    def reduce_stage(lbl, dep):
        def loads():
            for k in range(4): A(f"buffer_load_dwordx4 {vr(G[k],4)}, {tRD}, {srd(sWS)}, {sRD[k]} offen sc1")
        for _ in range(dep - 1): loads()
        A.label(lbl)
        loads()
        spin_guard()
        A(f"s_waitcnt vmcnt({4 * (dep - 1)})")
        regs = [G[k] + j for k in range(4) for j in range(4)]
        if o["tag"] and o["tag1"] and dep > 1:
            A(f"v_bitop3_b32 {v(T)}, {v(G[0])}, {vTG1}, {vMH} bitop3:0xbe")
            for k in range(1, 4): A(f"v_bitop3_b32 {v(T)}, {v(G[k])}, {vTG1}, {v(T)} bitop3:0xbe")
            A(f"v_cmp_ne_u32 vcc, {v(T)}, {vMH}")
        elif o["tag"] and o["tag1"]:
            for k in range(4): A(f"v_xor_b32 {v(G[k])}, {vTG1}, {v(G[k])}")
            A(f"v_or3_b32 {v(T)}, {v(G[0])}, {v(G[1])}, {vMH}")
            A(f"v_or3_b32 {v(T)}, {v(G[2])}, {v(G[3])}, {v(T)}")
            A(f"v_cmp_ne_u32 vcc, {v(T)}, {vMH}")
        else:
            op3, op2 = ("v_or3_b32", "v_or_b32") if o["tag"] else ("v_max3_u32", "v_max_u32")
            if o["tag"]:
                assert dep == 1
                for i_, r_ in enumerate(regs): A(f"v_xor_b32 {v(r_)}, {sTB[i_ & 3]}, {v(r_)}")
            A(f"{op3} {v(T)}, {v(regs[0])}, {v(regs[1])}, {v(regs[2])}")
            A(f"{op3} {v(T+1)}, {v(regs[3])}, {v(regs[4])}, {v(regs[5])}")
            for k in range(6, 16, 2):
                d = v(T + ((k >> 1) & 1))
                A(f"{op3} {d}, {d}, {v(regs[k])}, {v(regs[k+1])}")
            if o["tag"]:
                A(f"v_or3_b32 {v(T)}, {v(T)}, {v(T+1)}, {vMH}")
                A(f"v_cmp_ne_u32 vcc, {v(T)}, {vMH}")
            else:
                A(f"v_max_u32 {v(T)}, {v(T)}, {v(T+1)}")
                A(f"v_cmp_eq_u32 vcc, -1, {v(T)}")
        if o["sleepR"]:
            A(f"s_cbranch_vccz {lbl}_ok"); A(f"s_sleep {o['sleepR']}"); A(f"s_branch {lbl}"); A.label(f"{lbl}_ok")
        else: A(f"s_cbranch_vccnz {lbl}")
        if o["tag"] and o["tag1"] and dep > 1:
            A("s_waitcnt vmcnt(0)")
            for k in range(4): A(f"v_and_b32 {v(G[k])}, {vMH}, {v(G[k])}")
        sum4()
        g = R0
        A(f"v_add_f32_dpp {v(T)}, {v(g)}, {v(g)} row_ror:8 row_mask:0xf bank_mask:0x3")
        A(f"v_add_f32_dpp {v(T+1)}, {v(g+2)}, {v(g+2)} row_ror:8 row_mask:0xf bank_mask:0x3")
        A(f"v_add_f32_dpp {v(T)}, {v(g+1)}, {v(g+1)} row_ror:8 row_mask:0xf bank_mask:0xc")
        A(f"v_add_f32_dpp {v(T+1)}, {v(g+3)}, {v(g+3)} row_ror:8 row_mask:0xf bank_mask:0xc")
        A(f"v_permlane16_swap_b32 {v(T)}, {v(T+1)}")
        A(f"v_add_f32 {v(T)}, {v(T)}, {v(T+1)}")
        A(f"v_mov_b32 {v(T+1)}, {v(T)}")
        A(f"v_permlane32_swap_b32 {v(T)}, {v(T+1)}")
        A(f"v_add_f32 {v(T)}, {v(T)}, {v(T+1)}")
        round_bf16(v(T))
    A(f"v_lshlrev_b32 {tXR}, 16, {tXR}")
    if o["ack1"]: A("s_waitcnt vmcnt(0)")
    if o["flag"]:
        A.label("L_fpoll")
        A(f"buffer_load_dword {v(T)}, {vFL}, {srd(sWS)}, 0 offen sc1")
        spin_guard()
        A("s_waitcnt vmcnt(0)")
        A(f"v_cmp_ne_u32 vcc, {v(T)}, {tCNT}")
        A("s_cbranch_vccnz L_fpoll")
    reduce_stage("L_red1", o["dR"])
    A(f"v_add_f32 {tXR}, {tXR}, {v(T)}")
    if o["tag"]:
        A(f"v_cvt_pk_bf16_f32 {tXR}, {tXR}, {tXR}")
        A(f"v_lshl_or_b32 {v(T)}, {tXR}, 16, {vTGH}")
        A(f"buffer_store_dword {v(T)}, {vHST}, {srd(sWS)}, 0 offen sc1")
        if o["hcopy"]:
            for k in range(1, 4):
                A(f"buffer_store_dword {v(T)}, {vHST}, {srd(sWS)}, s{sU+5+k} offen sc1")
        A(f"v_lshlrev_b32 {tXR}, 16, {tXR}")
    else:
        round_bf16(tXR)
        A(f"buffer_store_dword {tXR}, {vHST}, {srd(sWS)}, 0 offen sc1")
    if o["prof"]:
        A("s_waitcnt lgkmcnt(0)"); stamp()
    def hloads():
        for k in range(4): A(f"buffer_load_dwordx2 {vr(F[k],2)}, {tHL0}, {srd(sWS)}, {sHL[k]} offen sc1")
        A(f"buffer_load_dwordx2 {vr(F[4],2)}, {tHL4}, {srd(sWS)}, 0 offen offset:2048 sc1")
    if haslate and o["latepos"] == "ack":
        assert o["hbar"] and o["ack2"]
        A.label("L_latew")
        if o["redw"] >= 2:
            assert o["nlateW"] == 18
            last_soff[0] = None
            for it in Llate:
                if it["tag"][2] < 2: it["emit"]()
            if o["ackn"] < 4: A(f"s_waitcnt vmcnt({12 + o['ackn']})")
            A(f"s_cmp_ge_u32 {sW}, 2"); A("s_cbranch_scc1 L_hpoll0")
            for it in Llate:
                if it["tag"][2] == 2: it["emit"]()
        else:
            late_w()
            A(f"s_waitcnt vmcnt({len(Llate)})")
    elif haslate and o["latepos"] == "post0":
        A("s_waitcnt vmcnt(0)")
        A("s_barrier")
        hloads(); late_w()
        A(f"s_waitcnt vmcnt({len(Llate)})")
        A("s_branch L_hcheck")
        A.label("L_latew")
        late_w()
    elif o["hbar"] and o["ack2"]: A("s_waitcnt vmcnt(0)")
    A.label("L_hpoll0")
    if o["hbar"]: A("s_barrier")
    if haslate and o["latepos"] == "post":
        hloads(); late_w()
        A(f"s_waitcnt vmcnt({len(Llate)})")
        A("s_branch L_hcheck")
    for _ in range(o["dH"] - 1): hloads()
    A.label("L_hpoll")
    hloads()
    spin_guard()
    A(f"s_waitcnt vmcnt({5 * (o['dH'] - 1)})")
    A.label("L_hcheck")
    if o["tag"] and o["tag1"]:
        assert o["dH"] == 1
        for k in range(5): A(f"v_xor_b32 {v(F[k])}, {vTGC}, {v(F[k])}")
        A(f"v_or3_b32 {v(T)}, {v(F[0])}, {v(F[1])}, {v(F[2])}")
        A(f"v_or3_b32 {v(T)}, {v(F[3])}, {v(F[4])}, {v(T)}")
        A(f"v_cmp_ne_u16 vcc, 0, {v(T)}")
    else:
        op3 = "v_or3_b32" if o["tag"] else "v_max3_u32"
        if o["tag"]:
            assert o["dH"] == 1
            for k in range(5):
                A(f"v_xor_b32 {v(F[k])}, {sTL}, {v(F[k])}"); A(f"v_xor_b32 {v(F[k]+1)}, {sTH}, {v(F[k]+1)}")
        A(f"{op3} {v(T)}, {v(F[0])}, {v(F[0]+1)}, {v(F[1])}")
        A(f"{op3} {v(T+1)}, {v(F[1]+1)}, {v(F[2])}, {v(F[2]+1)}")
        A(f"{op3} {v(T)}, {v(T)}, {v(F[3])}, {v(F[3]+1)}")
        A(f"{op3} {v(T+1)}, {v(T+1)}, {v(F[4])}, {v(F[4]+1)}")
        if o["tag"]:
            A(f"v_or_b32 {v(T)}, {v(T)}, {v(T+1)}")
            A(f"v_cmp_ne_u16 vcc, 0, {v(T)}")
        else:
            A(f"v_max_u32 {v(T)}, {v(T)}, {v(T+1)}")
            A(f"v_cmp_eq_u32 vcc, -1, {v(T)}")
    if o["sleep"]:
        A("s_cbranch_vccz L_hok"); A(f"s_sleep {o['sleep']}"); A("s_branch L_hpoll"); A.label("L_hok")
    else:
        A("s_cbranch_vccnz L_hpoll")
    stamp()
    if o["warm3"]: warm_lines(o["warm3"])
    layernorm(F, Wk, T, S)
    for ins in afrag_oct(AF[0], S, 0): A(ins)
    for u in range(10):
        nxt = afrag_oct(AF[(u + 1) & 1], S + 2 * ((u + 1) >> 3), (u + 1) & 7) if u < 9 else []
        if nxt: A(nxt.pop(0)); A(nxt.pop(0))
        smf(D, AF[u & 1], slots[("w1", u)])
        for ins in nxt: A(ins)
    A(f"v_mov_b32 {v(T+8)}, {hex(LOG2E ^ 0x80000000)}")
    compact([D])
    A(f"ds_write_b32 {vREDW}, {v(D)} offset:{REDZ}")
    A("s_waitcnt lgkmcnt(0)")
    A("s_barrier")
    A(f"ds_read_b128 {vr(T,4)}, {tZR} offset:{REDZ}")
    A(f"ds_read_b128 {vr(T+4,4)}, {tZR} offset:{REDZ+16}")
    for k in range(4): A(f"v_mov_b32 {v(D+k)}, 0")
    for k in range(4): A(f"s_add_u32 {sRD[k]}, {sRD[k]}, {P2 - P1}")
    A("s_waitcnt lgkmcnt(0)")
    A(f"v_pk_add_f32 {vr(T,2)}, {vr(T,2)}, {vr(T+2,2)}")
    A(f"v_pk_add_f32 {vr(T+4,2)}, {vr(T+4,2)}, {vr(T+6,2)}")
    A(f"v_add_f32 {v(T)}, {v(T)}, {v(T+1)}")
    A(f"v_add_f32 {v(T+4)}, {v(T+4)}, {v(T+5)}")
    A(f"v_cvt_pk_bf16_f32 {v(T+1)}, {v(T)}, {v(T+4)}")
    A(f"v_lshlrev_b32 {v(T)}, 16, {v(T+1)}")
    A(f"v_and_b32 {v(T+1)}, 0xffff0000, {v(T+1)}")
    for k in range(2): A(f"v_mul_f32 {v(T+2+k)}, {v(T+k)}, {v(T+8)}")
    for k in range(2): A(f"v_exp_f32 {v(T+2+k)}, {v(T+2+k)}")
    for k in range(2): A(f"v_add_f32 {v(T+2+k)}, 1.0, {v(T+2+k)}")
    for k in range(2): A(f"v_rcp_f32 {v(T+2+k)}, {v(T+2+k)}")
    for k in range(2): A(f"v_mul_f32 {v(T+k)}, {v(T+k)}, {v(T+2+k)}")
    A(f"v_cvt_pk_bf16_f32 {v(S)}, {v(T)}, {v(T+1)}")
    if haslate and o["latepos"] in ("post", "post0"):
        assert o["nlateW"] <= 18
        A("s_waitcnt vmcnt(0)")
    def af_quad(dst, u): return [f"v_and_b32_dpp {v(dst+k)}, {v(S)}, {v(MK[k])} quad_perm:[{u},{u},{u},{u}] {DPPF}" for k in range(4)]
    for ins in af_quad(AF[0], 0): A(ins)
    for u in range(3):
        nxt = af_quad(AF[(u + 1) & 1], u + 1) if u < 2 else []
        if nxt: A(nxt.pop(0)); A(nxt.pop(0))
        for blk in range(3):
            smf(D + 4 * blk, AF[u & 1], slots[("w2", u, blk)])
            if nxt: A(nxt.pop(0))
    X, Y, Z = D, D + 4, D + 8
    for e in range(4): A(f"v_permlane32_swap_b32 {v(X+e)}, {v(Y+e)}")
    for e in range(4): A(f"v_add_f32_dpp {v(X+e)}, {v(Y+e)}, {v(X+e)} row_ror:8 row_mask:0xf bank_mask:0x3")
    for e in range(4): A(f"v_permlane32_swap_b32 {v(Y+e)}, {v(Z+e)}")
    for e in range(4): A(f"v_add_f32_dpp {v(X+e)}, {v(Y+e)}, {v(Z+e)} row_ror:8 row_mask:0xc bank_mask:0xc")
    seal(X)
    A(f"buffer_store_dwordx4 {vr(X,4)}, {tP2ST}, {srd(sWS)}, 0 offen sc1")
    stamp()
    fin = "L_prof" if o["prof"] else "L_end"
    A(f"s_cmp_lg_u32 {sW}, {o['redw']}"); A(f"s_cbranch_scc1 {fin}")
    A(f"s_cmp_ge_u32 {sH}, 20"); A(f"s_cbranch_scc1 {fin}")
    if o["ack3"]: A("s_waitcnt vmcnt(0)")
    reduce_stage("L_red2", o.get("dR2", 1))
    A(f"v_add_f32 {v(T)}, {tXR}, {v(T)}")
    A(f"v_cvt_pk_bf16_f32 {v(T)}, {v(T)}, {v(T)}")
    A(f"buffer_store_short {v(T)}, {tOUT}, {srd(sOUT)}, 0 offen {o['polO']}")
    if o["prof"]:
        A.label("L_prof")
        stamp()
        A("s_getreg_b32 s25, hwreg(HW_REG_XCC_ID)")
        A("s_waitcnt lgkmcnt(0)")
        A(f"s_lshl_b32 {sA}, s2, 2"); A(f"s_add_u32 {sA}, {sA}, {sW}"); A(f"s_lshl_b32 {sA}, {sA}, 6"); A(f"s_add_u32 {sA}, {sA}, {PROF}")
        for k in range(nstamp[0]):
            A(f"v_mov_b32 {v(T)}, s{4+2*k}")
            A(f"buffer_store_dword {v(T)}, off, {srd(sWS)}, {sA} offset:{4*k}")
        A(f"v_mov_b32 {v(T)}, s25"); A(f"buffer_store_dword {v(T)}, off, {srd(sWS)}, {sA} offset:56")
        A(f"v_mov_b32 {v(T)}, {'s0' if o['probe'] else sSPIN}"); A(f"buffer_store_dword {v(T)}, off, {srd(sWS)}, {sA} offset:60")
    A.label("L_end")
    A("s_endpgm")
    A.label("L_cntwait")
    if o["tag"]: A(f"s_mov_b32 {sT2}, 0")
    else: A(f"s_lshl_b32 {sT2}, {sB}, 5")
    if o["dyn"]: A(f"buffer_load_dwordx2 {vr(T+8,2)}, off, {srd(sDBG)}, 0 sc1")
    else: A(f"buffer_load_dword {tCNT}, off, {srd(sDBG)}, {sT2} sc1")
    spin_guard()
    A("s_waitcnt vmcnt(0)")
    if o["tag"]: A(f"v_cmp_eq_u32 vcc, 0, {v(T+8) if o['dyn'] else tCNT}")
    else: A(f"v_cmp_gt_u32 vcc, 32, {tCNT}")
    A("s_cbranch_vccnz L_cntwait")
    A.label("L_last")
    A("s_branch L_cntok")
    if o["burst"] and o["dsig"]:
        A.label("L_signal"); signal_body(); A(f"s_setpc_b64 {sRA}")
    for nm, lst, snap in subs:
        A.label(f"L_burst_{nm}")
        slots.clear(); slots.update(snap); last_soff[0] = None
        for i, it in enumerate(lst):
            if nm in o["skip"]: break
            if i % 2 == 0: A(f"s_waitcnt vmcnt({o['Wb'] - 2})")
            it["emit"]()
        A(f"s_setpc_b64 {sRA}")
    A.label("L_codeend")
    A.raw('.section .rodata,"a"'); A.raw(".p2align 6"); A.raw(f".amdhsa_kernel {KNAME}")
    A.raw("  .amdhsa_next_free_vgpr 512"); A.raw("  .amdhsa_next_free_sgpr 102"); A.raw("  .amdhsa_accum_offset 256")
    A.raw("  .amdhsa_float_denorm_mode_32 3")
    A.raw("  .amdhsa_group_segment_fixed_size 0"); A.raw("  .amdhsa_kernarg_size 88"); A.raw("  .amdhsa_user_sgpr_count 2")
    A.raw("  .amdhsa_user_sgpr_kernarg_segment_ptr 1"); A.raw("  .amdhsa_system_sgpr_workgroup_id_x 1"); A.raw(".end_amdhsa_kernel")
    o["_nstamp"] = nstamp[0]
    txt = A.text()
    if o["align"]:
        from align import align
        txt, o["_prom"], o["_nops"] = align(txt, o["align"])
    return txt, o

if __name__ == "__main__":
    out = sys.argv[1]
    kw = eval("dict(" + (sys.argv[2] if len(sys.argv) > 2 else "") + ")")
    txt, o = gen(**kw)
    open(out, "w").write(txt)
    print("forced", o["_forced"], "lines", txt.count("\n"))
```

```python
import sys, os
sys.path.insert(0, os.path.dirname(os.path.abspath(__file__)))
from asmlib import Asm

NAME = "sequential_preLN__sliding_block_cached__dense_activation_silu__decode"
KNAME = NAME + "_kernel"

DEF = dict(
    WA=15, WB=12, WC=12,
    nKA=30,
    nWOB=30,
    rot=5,
    polKV="nt", polW="",
    prof=False,
    wlast=0,
    codepf=True,
    burst=True, W=12, Wb=12,
    grp="b",
    a0=7, da=8, b0=94, db=8, c0=162, dc=3, tlead=14, touch64=False, touch=True, polT="", polT2=None, skip=(), notail=False, sleep=0, dR=1, dH=1, ack3=True, hbar=True, ack2=True, Ws=None, perm=False, nosig=False, noclr=False, sig0=46, dsig=0, xorid=0, hcopy=True, p32=False, nlateW=18, w1bal=True, tlate=192, latepos="ack", align="L_tail", redw=3, nsplit=9, ackn=0, par=None, dup16=False, probe=None, dyn=(24, 34, 44, 54), ordx=(0, 0, 0), early=True, nfill=1, sleepR=0, flag=0, fstr=128, offs=(172, 172, 168), batch=1, vorder="t", umode="int", dw=(0, 0), rot2=0, tag1=True, tsplit=True, kfirst=True, polO="", ack1=False, warm=6, warm2=0, warm3=4, pf8=True, polWm="", warmpos=192, tag=True, nL=12, rL=4, tqs=None, tws=4, dtw=3, qkcost=0.5, pf0=True, st0=False, tB=None, tC=None, polC="sc1", clrpos=6, w12late=False, n1=6, n2=14,
    spin=200000,
)

RED, QB, SM, RED2, REDZ, LDS_BYTES = 0, 3072, 4608, 5120, 17408, 18432
P1, P2, HB, FLB, PROF, PRB = 0, 0x200000, 0x400000, 0x600000, 0x800000, 0x480000
OOB = 0x40000000
LOG2E = 0x3fb8aa3b
import struct
def fbits(x): return struct.unpack("<I", struct.pack("<f", x))[0]

def gen(**kw):
    o = dict(DEF); o.update(kw)
    A = Asm()
    hdr = open(os.path.join(os.path.dirname(os.path.abspath(__file__)), "..", "cdna_kernels", NAME + ".s.ref")).read().splitlines()
    for ln in hdr:
        if ln.startswith("; Override") : break
        A.raw(ln)
    KL = RED2
    if o["dyn"]: o["par"] = 0
    numa = o["par"] is not None
    P2 = 0x100000 if numa else globals()["P2"]
    HS = 8192 if numa else 0x10000
    PS = o.get("PS", 4096 if o["p32"] else 2560)
    assert o["tag"] or not o["p32"]
    lds_bytes = max(LDS_BYTES, KL + 4 * o["nL"] * 3072)
    assert lds_bytes <= 163840 and o["nL"] % 2 == 0
    A.raw(f"; @launch grid=(256,1,1) block=(256,1,1) lds={lds_bytes}")
    A.raw('.amdgcn_target "amdgcn-amd-amdhsa--gfx950"')
    A.raw(".text"); A.raw(f".globl {KNAME}"); A.raw(".p2align 8"); A.raw(f".type {KNAME},@function"); A.label(KNAME)

    sW, sB, sH = "s3", "s26", "s27"
    sX, sK, sV, sWQ, sWO, sW1, sW2, sOUT, sDBG, sWS = [28 + 4 * i for i in range(10)]
    srd = lambda n: f"s[{n}:{n+3}]"
    sU = 68
    sT = "s84"
    sQB0, sQB1, sF0, sF1, sZ = "s86", "s87", "s88", "s89", "s1"
    sLM = "s[92:93]"
    sA, sC, sD, sE = "s94", "s95", "s96", "s97"
    sSPIN = "s98"
    sPC = 100
    vL, vK, vV, vWQ, vWO, vW2, vW1, vIDX = [f"v{i}" for i in range(8)]
    MK = [8, 9, 10, 11]
    AF = [12, 16]
    D = 20
    Q = 32
    S = 44
    T = 48
    vHST, vP1ST, vREDW = "v61", "v62", "v63"
    tO_R, tR2W, tR2R, tCNT, tRD, tPF, tHL0, tHL4, tZR, tP2ST, tOUT, tXR = [f"v{Q+i}" for i in range(12)]
    v = lambda n: f"v{n}"
    vr = lambda n, k: f"v[{n}:{n+k-1}]"
    nstamp = [0]
    def stamp():
        if o["prof"]:
            k = nstamp[0]; nstamp[0] += 1
            assert k < 11
            A(f"s_memrealtime s[{4+2*k}:{5+2*k}]")

    if o["early"]:
        A("s_load_dwordx8 s[4:11], s[0:1], 0")
    else:
        A("s_load_dwordx16 s[4:19], s[0:1], 0")
        A("s_load_dwordx4 s[20:23], s[0:1], 64")
        A("s_load_dwordx2 s[24:25], s[0:1], 80")
    A("s_cmpk_ge_u32 s2, 256")
    A("s_cbranch_scc1 L_end")
    if o["xorid"]: A(f"s_xor_b32 s2, s2, {o['xorid']}")
    if o["perm"]:
        A("s_lshr_b32 s3, s2, 3"); A("s_add_u32 s3, s3, s2"); A("s_and_b32 s3, s3, 7"); A("s_and_b32 s2, s2, 0xf8"); A("s_or_b32 s2, s2, s3")
    if o["prof"]: A("s_memrealtime s[100:101]")
    A(f"v_readfirstlane_b32 {sW}, v0")
    A(f"v_and_b32 {vL}, 63, v0")
    A(f"s_lshr_b32 {sW}, {sW}, 6")
    A(f"s_lshr_b32 {sB}, s2, 5")
    A(f"s_and_b32 {sH}, s2, 31")
    vR8, vC, t0, t1, t2, t3 = v(T+7), v(T+8), v(T+9), v(T+10), v(T+11), v(T+12)
    def code_pf0():
        A("s_cmp_ge_u32 s2, 8"); A("s_cbranch_scc1 L_nopf0")
        A(f"s_getpc_b64 s[{sOUT}:{sOUT+1}]")
        A.label("L_pc0")
        A(f"s_lshl_b32 {sT}, {sW}, 13")
        A(f"v_lshl_add_u32 {v(Q+2)}, {vL}, 7, {sT}")
        A(f"v_min_u32 {v(Q+2)}, L_codeend-L_pc0-4, {v(Q+2)}")
        A(f"global_load_dword {v(Q+2)}, {v(Q+2)}, s[{sOUT}:{sOUT+1}]")
        A.label("L_nopf0")
    if o["early"]:
        assert o["burst"] and o["touch"] and not o["tqs"] and o["polT2"] is None
        if o["pf0"]: code_pf0()
        A(f"v_min_u32 {v(Q+1)}, 59, {vL}")
        A(f"v_mul_u32_u24 {v(Q)}, 21846, {v(Q+1)}"); A(f"v_lshrrev_b32 {v(Q)}, 16, {v(Q)}")
        A(f"v_mul_u32_u24 {v(Q)}, {12288 - 3*128}, {v(Q)}"); A(f"v_lshl_add_u32 {v(Q+1)}, {v(Q+1)}, 7, {v(Q)}")
        A(f"s_lshl2_add_u32 s99, {sB}, {sW}"); A(f"s_mul_i32 s99, s99, {20*12288}")
        A(f"s_mul_i32 {sD}, {sH}, 384")
        A(f"s_sub_u32 s{sWQ+2}, {640*12288}, {sD}"); A(f"s_mov_b32 s{sWQ+3}, 0x20000")
        early_bytes = [len(A.lines)]
        def first_request():
            A("s_waitcnt lgkmcnt(0)")
            if o["st0"]: A("s_memrealtime s[72:73]")
            A(f"s_add_u32 s{sWQ}, s10, {sD}"); A(f"s_addc_u32 s{sWQ+1}, s11, 0")
            A(f"buffer_load_dword {v(Q)}, {v(Q+1)}, {srd(sWQ)}, s99 offen {o['polT']}")
            A.label("L_first")
            A("s_load_dwordx8 s[12:19], s[0:1], 32")
            A("s_load_dwordx4 s[20:23], s[0:1], 64")
            A("s_load_dwordx2 s[24:25], s[0:1], 80")
        if o["nfill"] == 0: first_request()
    A(f"v_lshrrev_b32 {vR8}, 3, {vL}")
    A(f"v_and_b32 {vC}, 7, {vL}")
    A(f"v_lshlrev_b32 {v(T+5)}, 2, {vL}")
    A(f"s_lshl_b32 {sA}, {sW}, 3")
    A(f"v_xor_b32 {v(T+6)}, {sA}, {v(T+5)}")
    A(f"v_and_b32 {t0}, 32, {vL}")
    A(f"v_bfe_u32 {t1}, {vL}, 3, 1")
    A(f"v_bfe_u32 {t2}, {vL}, 4, 1")
    A(f"v_lshl_add_u32 {t3}, {t1}, 4, {t0}")
    A(f"v_add_u32 {t3}, {t3}, {t2}")
    A(f"v_mul_u32_u24 {t3}, 12288, {t3}")
    A(f"v_lshl_add_u32 {vWQ}, {vC}, 4, {t3}")
    if o["early"] and o["nfill"] == 1: first_request()
    if o["offs"]:
        A(f"v_lshrrev_b32 {t3}, 4, {vL}")
    else:
        A(f"v_lshrrev_b32 {t3}, 2, {t0}")
        A(f"v_lshl_add_u32 {t3}, {t2}, 2, {t3}")
        A(f"v_add_u32 {t3}, {t3}, {t1}")
    A(f"v_mul_u32_u24 {t3}, 384, {t3}")
    A(f"v_lshl_add_u32 {vK}, {vC}, 4, {t3}")
    if o["early"] and o["nfill"] == 2: first_request()
    A(f"s_mul_i32 {sA}, s2, 1572864")
    A(f"s_add_u32 {sA}, {sA}, 1179648")
    A(f"s_mul_i32 {sC}, {sB}, 1280")
    if not o["early"]: A(f"s_mul_i32 {sD}, {sH}, 384")
    A(f"s_mul_i32 {sQB0}, {sW}, {128*12288}")
    sE2 = "s0"
    A(f"s_mul_i32 {sE}, s2, {o['rot']}")
    if o["rot2"]:
        A(f"s_lshr_b32 s{sU}, s2, {o['rot2'][0]}"); A(f"s_mul_i32 s{sU}, s{sU}, {o['rot2'][1]}"); A(f"s_add_u32 {sE}, {sE}, s{sU}")
    if o["umode"] == "int":
        A(f"s_add_u32 {sE}, {sE}, {sW}")
    elif o["umode"] == "blk":
        A(f"s_mul_i32 s{sU}, {sW}, {o['dw'][0]}"); A(f"s_lshr_b32 s{sU}, s{sU}, {o['dw'][1]}"); A(f"s_add_u32 {sE}, {sE}, s{sU}")
    else:
        A(f"s_and_b32 s{sU}, {sW}, 1"); A(f"s_add_u32 {sE}, {sE}, s{sU}")
        A(f"s_lshr_b32 s{sU}, {sW}, 1"); A(f"s_mul_i32 s{sU}, s{sU}, {o['dw'][0]}"); A(f"s_add_u32 {sE}, {sE}, s{sU}")
    def unit_off(n):
        d = f"s{sU+n}"
        if o["umode"] == "int":
            A(f"s_add_u32 {d}, {sE}, {4*n}"); A(f"s_and_b32 {d}, {d}, 63")
        elif o["umode"] == "blk":
            A(f"s_add_u32 {d}, {sE}, {n}"); A(f"s_and_b32 {d}, {d}, 15")
            A(f"s_lshl4_add_u32 {d}, {sW}, {d}")
        else:
            A(f"s_add_u32 {d}, {sE}, {2*(n & 7)}"); A(f"s_and_b32 {d}, {d}, 15")
            A(f"s_lshr_b32 {sT}, {sW}, 1"); A(f"s_lshl4_add_u32 {d}, {sT}, {d}"); A(f"s_add_u32 {d}, {d}, {32*(n >> 3)}")
        A(f"s_mulk_i32 {d}, 6144")
    offs = o["offs"]
    sSO, sCO, sCD = [f"s{sU+10}", f"s{sU+11}"], [f"s{sU+12}", f"s{sU+13}"], [f"s{sU+14}", f"s{sU+15}"]
    sP0, sP1, sP2, sP3 = f"s{sU}", f"s{sU+1}", f"s{sU+2}", f"s{sU+3}"
    if offs:
        assert sum(offs) == 512 and all(x % 4 == 0 for x in offs) and o["umode"] == "int"
        jst = [sum(offs[:k]) // 4 for k in range(len(offs))]
        for k in range(1, len(offs)): assert jst[k] % 2 == 0 or offs[k] == offs[k - 1]
        for r_ in sCO + sCD: A(f"s_mov_b32 {r_}, 0")
        unit_off = lambda n: None
    def half_params(n, hB, dB, dO):
        A(f"s_add_u32 {sP3}, {sE}, {4*n}"); A(f"s_and_b32 {sP3}, {sP3}, 63")
        A(f"s_lshl1_add_u32 {sP3}, {sP3}, {hB}")
        A(f"s_mul_i32 {dB}, {sP3}, 1536")
        if dO: A(f"s_mov_b32 {dO}, {offs[0] * 384}")
        for k in range(1, len(offs)):
            A(f"s_cmp_ge_u32 {sP3}, {jst[k]}")
            if dO and offs[k] != offs[k - 1]: A(f"s_cselect_b32 {dO}, {offs[k] * 384}, {dO}")
            A(f"s_cselect_b32 {sP2}, {offs[k - 1] * 384}, 0")
            A(f"s_add_u32 {dB}, {dB}, {sP2}")
    def lane_add(reg, mask, cur, new):
        A(f"s_sub_u32 {sP2}, {new}, {cur}"); A(f"s_mov_b32 {cur}, {new}")
        A(f"s_mov_b32 exec_lo, {hex(mask)}"); A(f"s_mov_b32 exec_hi, {hex(mask)}")
        A(f"v_add_u32 {reg}, {sP2}, {reg}")
        A("s_mov_b64 exec, -1")
    def k_addr(n, hB):
        half_params(n, hB, sSO[0], sP0); lane_add(vK, 0xff00ff00, sCO[1], sP0)
    def v_addr(n):
        p_ = n & 1; reg = (vV, vK)[p_]
        if n == 1:
            A(f"v_mov_b32 {vK}, {vV}"); A(f"s_mov_b32 {sCO[1]}, {sCO[0]}"); A(f"s_mov_b32 {sCD[1]}, {sCD[0]}")
        half_params(n, 0, sSO[p_], sP0); half_params(n, 1, sP1, None)
        A(f"s_sub_u32 {sP1}, {sP1}, {sSO[p_]}")
        lane_add(reg, 0xff00ff00, sCO[p_], sP0); lane_add(reg, 0xffff0000, sCD[p_], sP1)
    unit_off(0)
    sKL = "s90"
    if o["nL"]:
        A(f"s_mul_i32 {sKL}, {sW}, {o['nL'] * 3072}"); A(f"s_add_u32 {sKL}, {sKL}, {KL}")
    sG, sRA, sT2, sGT, sSG = "s85", "s[76:77]", "s91", "s99", "s98"
    vT1, vT2 = v(Q), v(Q + 1)
    if o["burst"]:
        sRA = f"s[{sPC}:{sPC+1}]"
        sQT = sGT
        if not o["early"]:
            A(f"v_mul_u32_u24 {vT1}, 21846, {vL}"); A(f"v_lshrrev_b32 {vT1}, 16, {vT1}")
            A(f"v_mul_u32_u24 {vT2}, {12288 - 3*128}, {vT1}"); A(f"v_lshl_add_u32 {vT2}, {vL}, 7, {vT2}")
            A(f"s_lshl_b32 {sQT}, {sB}, 2"); A(f"s_add_u32 {sQT}, {sQT}, {sW}"); A(f"s_mul_i32 {sQT}, {sQT}, {20*12288}")
        if o["grp"] == "h":
            A(f"s_lshr_b32 {sG}, {sH}, 3"); A(f"s_mov_b32 {sGT}, {sG}")
        elif o["grp"] == "hb":
            A(f"s_lshr_b32 {sGT}, {sH}, 3"); A(f"s_lshl_b32 {sGT}, {sGT}, 1"); A(f"s_and_b32 {sG}, {sB}, 1"); A(f"s_add_u32 {sG}, {sG}, {sGT}")
        else:
            A(f"s_mov_b32 {sG}, {sB}")
    if offs: k_addr(0, 0)
    A(f"s_mov_b32 s{sX+2}, 1280"); A(f"s_mov_b32 s{sX+3}, 0x20000")
    A(f"s_mov_b32 s{sK+2}, 393216"); A(f"s_mov_b32 s{sK+3}, 0x20000")
    if not o["early"]:
        A(f"s_sub_u32 s{sWQ+2}, {640*12288}, {sD}"); A(f"s_mov_b32 s{sWQ+3}, 0x20000")
        if o["pf0"]: code_pf0()
        A("s_waitcnt lgkmcnt(0)")
        if o["st0"]: A("s_memrealtime s[72:73]")
    A(f"s_add_u32 s{sX}, s4, {sC}"); A(f"s_addc_u32 s{sX+1}, s5, 0")
    A(f"s_add_u32 s{sK}, s6, {sA}"); A(f"s_addc_u32 s{sK+1}, s7, 0")
    if not o["early"]:
        A(f"s_add_u32 s{sWQ}, s10, {sD}"); A(f"s_addc_u32 s{sWQ+1}, s11, 0")

    sR, sQ = "s72", "s73"
    def v_page(reg, tmp, sbase):
        if o["dyn"]:
            A(f"v_add_u32 {tmp}, {sR}, {reg}"); A(f"v_bfi_b32 {reg}, 7, {tmp}, {reg}")
        A(f"v_bfe_u32 {tmp}, {reg}, 1, 2"); A(f"v_mul_u32_u24 {tmp}, 5, {tmp}")
        A(f"v_bfi_b32 {reg}, 6, {tmp}, {reg}")
        if o["dyn"]: A(f"v_xor_b32 {reg}, {sQ}, {reg}")
        elif o["par"]: A(f"v_xor_b32 {reg}, 2, {reg}")
        A(f"v_lshl_add_u32 {reg}, {reg}, 12, {sbase}")
    def s_page(reg, tmp):
        if o["dyn"]:
            A(f"s_add_u32 {tmp}, {reg}, {sR}"); A(f"s_and_b32 {tmp}, {tmp}, 7"); A(f"s_and_b32 {reg}, {reg}, 0x38"); A(f"s_or_b32 {reg}, {reg}, {tmp}")
        A(f"s_bfe_u32 {tmp}, {reg}, 0x20001"); A(f"s_mul_i32 {tmp}, {tmp}, 5"); A(f"s_and_b32 {tmp}, {tmp}, 6")
        A(f"s_and_b32 {reg}, {reg}, 0x39"); A(f"s_or_b32 {reg}, {reg}, {tmp}")
        if o["dyn"]: A(f"s_xor_b32 {reg}, {reg}, {sQ}")
        elif o["par"]: A(f"s_xor_b32 {reg}, {reg}, 2")
        A(f"s_lshl_b32 {reg}, {reg}, 12")
    def late_setup():
        if o["early"]: A("s_waitcnt lgkmcnt(0)")
        A(f"s_add_u32 s{sV}, s8, {sA}"); A(f"s_addc_u32 s{sV+1}, s9, 0")
        A(f"s_mov_b32 s{sV+2}, 393216"); A(f"s_mov_b32 s{sV+3}, 0x20000")
        A(f"s_add_u32 s{sOUT}, s20, {sC}"); A(f"s_addc_u32 s{sOUT+1}, s21, 0")
        A(f"s_mov_b32 s{sOUT+2}, 1280"); A(f"s_mov_b32 s{sOUT+3}, 0x20000")
        A(f"s_mul_i32 {sD}, {sH}, 245760")
        A(f"s_add_u32 s{sWO}, s12, {sD}"); A(f"s_addc_u32 s{sWO+1}, s13, 0")
        A(f"s_mov_b32 s{sWO+2}, 245760"); A(f"s_mov_b32 s{sWO+3}, 0x20000")
        A(f"s_and_b32 {sA}, {sH}, 7"); A(f"s_lshl_b32 {sA}, {sA}, 2"); A(f"s_lshr_b32 {sC}, {sH}, 3"); A(f"s_add_u32 {sA}, {sA}, {sC}")
        if o["w1bal"]:
            A(f"s_and_b32 {sD}, {sH}, 7"); A(f"s_mul_i32 {sD}, {sD}, 384")
        else: A(f"s_mul_i32 {sD}, {sA}, 96")
        A(f"s_add_u32 s{sW1}, s16, {sD}"); A(f"s_addc_u32 s{sW1+1}, s17, 0")
        A(f"s_sub_u32 s{sW1+2}, {640*3072}, {sD}"); A(f"s_mov_b32 s{sW1+3}, 0x20000")
        A(f"s_mul_i32 {sD}, {sA}, 61440")
        A(f"s_add_u32 s{sW2}, s18, {sD}"); A(f"s_addc_u32 s{sW2+1}, s19, 0")
        A(f"s_mov_b32 s{sW2+2}, 61440"); A(f"s_mov_b32 s{sW2+3}, 0x20000")
        A(f"s_mov_b32 s{sDBG}, s22"); A(f"s_mov_b32 s{sDBG+1}, s23"); A(f"s_mov_b32 s{sDBG+2}, 256"); A(f"s_mov_b32 s{sDBG+3}, 0x20000")
        A(f"s_mov_b32 s{sWS}, s24"); A(f"s_mov_b32 s{sWS+1}, s25"); A(f"s_mov_b32 s{sWS+2}, 0x1000000"); A(f"s_mov_b32 s{sWS+3}, 0x20000")
        if o["prof"]:
            A("s_mov_b32 s4, s100"); nstamp[0] = 1
            if o["st0"]:
                A("s_waitcnt lgkmcnt(0)"); A("s_mov_b32 s6, s72"); A("s_memrealtime s[8:9]"); nstamp[0] = 3
        for n in range(1, 16): unit_off(n)
        A(f"s_lshl_b32 {sA}, {sW}, 2"); A(f"s_add_u32 {sA}, {sA}, 512"); A(f"s_mul_i32 {sQB1}, {sA}, 12288")
        A(f"s_mul_i32 {sF0}, {sW}, {128*3072}")
        A(f"s_and_b32 {sA}, {sW}, 1"); A(f"s_lshl_b32 {sA}, {sA}, 5"); A(f"s_lshr_b32 {sC}, {sW}, 1"); A(f"s_add_u32 {sA}, {sA}, {sC}")
        A(f"s_add_u32 {sA}, {sA}, 512"); A(f"s_mul_i32 {sF1}, {sA}, 3072")
        A(f"s_sub_u32 {sA}, 8, {sW}"); A(f"s_lshl_b32 {sA}, {sA}, 7"); A(f"s_cmp_lt_u32 {sW}, 2"); A(f"s_cselect_b32 {sZ}, {sA}, 0x100000")
        A("s_mov_b32 s92, 0x01010101"); A("s_mov_b32 s93, 0x01010101")
        A(f"s_lshr_b32 {sSG}, s2, 3"); A(f"s_cmp_eq_u32 {sW}, 0"); A(f"s_cselect_b32 {sSG}, {sSG}, 64")
        if o["offs"]: A(f"v_mul_u32_u24 {t3}, 12, {t0}")
        else: A(f"v_mul_u32_u24 {t3}, 384, {vR8}")
        A(f"v_lshl_add_u32 {vV}, {vC}, 4, {t3}")
        A(f"v_lshrrev_b32 {t3}, 4, {vL}"); A(f"s_mul_i32 {sA}, {sW}, {16 if o['tsplit'] else 48}"); A(f"v_add_u32 {t3}, {sA}, {t3}")
        A(f"v_mul_u32_u24 {t3}, 1280, {t3}"); A(f"v_and_b32 {vWO}, 15, {vL}"); A(f"v_lshl_add_u32 {vWO}, {vWO}, 4, {t3}")
        A(f"v_lshrrev_b32 {t3}, 3, {t0}")
        A(f"v_lshl_add_u32 {t3}, {t1}, 1, {t3}")
        A(f"v_lshl_add_u32 {vW1}, {t2}, 3, {t3}")
        A(f"v_mul_u32_u24 {vW1}, 3072, {vW1}")
        A(f"v_min_u32 {vW2}, 5, {vC}")
        A(f"v_lshl_add_u32 {vW1}, {vW2}, 4, {vW1}")
        if o["w1bal"]:
            A(f"s_lshr_b32 {sA}, {sH}, 3"); A(f"s_mul_i32 {sA}, {sA}, 96"); A(f"v_add_u32 {vW1}, {sA}, {vW1}")
        A(f"v_add_u32 {t3}, {t3}, {t2}")
        A(f"v_mul_u32_u24 {t3}, 1280, {t3}")
        A(f"v_lshl_add_u32 {t3}, {vC}, 4, {t3}")
        A(f"s_lshl_b32 {sA}, {sW}, 8")
        A(f"v_add_u32 {vW2}, {sA}, {t3}")
        A(f"v_cmp_gt_u32 vcc, 4, {vC}")
        A(f"v_mov_b32 {t3}, 0xffff")
        A(f"v_and_b32 {vIDX}, 3, {vC}")
        A(f"v_cndmask_b32 {v(MK[0])}, 0, {t3}, vcc")
        A(f"v_mul_u32_u24 {vIDX}, 0x5555, {vIDX}")
        A(f"v_xor_b32 {v(MK[1])}, {t3}, {v(MK[0])}")
        A(f"v_lshlrev_b32 {v(MK[2])}, 16, {v(MK[0])}")
        A(f"v_lshlrev_b32 {v(MK[3])}, 16, {v(MK[1])}")
        A(f"v_lshrrev_b32 {t3}, 5, {vL}")
        A(f"v_lshl_add_u32 {t3}, {t1}, 1, {t3}")
        A(f"v_lshl_add_u32 {t3}, {t2}, 2, {t3}")
        A(f"v_lshl_add_u32 {t3}, {vC}, 3, {t3}")
        A(f"s_lshl_b32 {sA}, {sW}, 2")
        A(f"v_lshl_add_u32 {vREDW}, {t3}, 4, {sA}")
        if numa:
            A(f"v_mov_b32 {t3}, {OOB}")
            A(f"s_lshl_b32 {sA}, {sB}, 15"); A(f"s_lshl_b32 {sC}, {sH}, 7"); A(f"s_add_u32 {sA}, {sA}, {sC}"); A(f"s_add_u32 {sA}, {sA}, {HB}")
            A(f"s_cmp_eq_u32 {sW}, {o['redw']}"); A(f"s_cselect_b32 {sC}, 64, 0")
            A(f"v_and_b32 {vHST}, 31, {vL}"); A(f"v_lshl_add_u32 {vHST}, {vHST}, 2, {sA}")
            A(f"v_lshl_add_u32 {vHST}, {t0}, 7, {vHST}")
            A(f"v_cmp_gt_u32 vcc, {sC}, {vL}")
        else:
            A(f"s_mul_i32 {sA}, s2, {PS}"); A(f"s_mul_i32 {sC}, {sW}, 640"); A(f"s_add_u32 {sC}, {sA}, {sC}")
            A(f"v_lshl_add_u32 {vP1ST}, {vL}, 4, {sC}")
            if o["p32"]:
                A(f"s_mul_i32 {sC}, {sW}, 384"); A(f"s_add_u32 {sC}, {sA}, {sC}"); A(f"s_add_u32 {sC}, {sC}, {2560 - 640}")
                A(f"v_lshl_add_u32 {vHST}, {vL}, 4, {sC}")
            A(f"v_mov_b32 {t3}, {OOB}")
            A(f"v_cmp_gt_u32 vcc, 40, {vL}")
            A(f"s_mul_i32 {sA}, {sB}, 2560"); A(f"s_lshl_b32 {sC}, {sH}, 7"); A(f"s_add_u32 {sA}, {sA}, {sC}"); A(f"s_add_u32 {sA}, {sA}, {HB}")
            A(f"v_cndmask_b32 {vP1ST}, {vHST if o['p32'] else t3}, {vP1ST}, vcc")
            if o["hbar"]:
                A(f"s_lshl_b32 {sC}, s2, 7"); A(f"s_add_u32 {sC}, {sC}, {HB + 0x80000}")
                A(f"s_cmp_lt_u32 {sH}, 20"); A(f"s_cselect_b32 {sA}, {sA}, {sC}")
                A(f"s_cmp_eq_u32 {sW}, {o['redw']}"); A(f"s_cselect_b32 {sC}, 32, 0")
            else:
                A(f"s_cmp_lt_u32 {sH}, 20"); A(f"s_cselect_b32 {sC}, 32, 0"); A(f"s_cmp_eq_u32 {sW}, 0"); A(f"s_cselect_b32 {sC}, {sC}, 0")
            if o["hcopy"]:
                A(f"v_and_b32 {vHST}, 31, {vL}"); A(f"v_lshl_add_u32 {vHST}, {vHST}, 2, {sA}")
                A(f"v_lshl_add_u32 {vHST}, {t0}, 10, {vHST}"); A(f"s_lshl_b32 {sC}, {sC}, 1")
            else:
                A(f"v_lshl_add_u32 {vHST}, {vL}, 2, {sA}")
            A(f"v_cmp_gt_u32 vcc, {sC}, {vL}")
        if not o["tag"]:
            for k in range(4): A(f"v_mov_b32 {v(AF[1]+k)}, -1")
        A(f"v_cndmask_b32 {vHST}, {t3}, {vHST}, vcc")
        if o["dyn"]: A("s_mov_b32 s0, 0")
        if o["tag"] and not o["dyn"]:
            A(f"s_or_b32 {sA}, s2, {sW}"); A("s_cbranch_scc1 L_nononce")
            A(f"s_memrealtime s[{sPC}:{sPC+1}]"); A("s_waitcnt lgkmcnt(0)")
            A(f"s_mul_i32 {sA}, s{sPC}, 0x9e3779b1"); A(f"s_max_u32 {sA}, {sA}, 1")
            A("s_mov_b64 exec, 1")
            A(f"v_mov_b32 {t3}, {sA}")
            A(f"buffer_store_dword {t3}, off, {srd(sDBG)}, 0 sc1")
            A("s_mov_b64 exec, -1")
            A.label("L_nononce")

    DPPF = "row_mask:0xf bank_mask:0xf"
    def wave_reduce(op, reg, sdst, fill=()):
        fill = list(fill)
        steps = [f"quad_perm:[1,0,3,2] {DPPF}", f"quad_perm:[2,3,0,1] {DPPF}", f"row_half_mirror {DPPF}", f"row_mirror {DPPF}",
                 "row_bcast:15 row_mask:0xa bank_mask:0xf", "row_bcast:31 row_mask:0xc bank_mask:0xf"]
        for st in steps:
            for _ in range(2):
                if fill: A(fill.pop(0))
            A(f"{op}_dpp {reg}, {reg}, {reg} {st}")
        if fill: A(fill.pop(0))
        A(f"v_readlane_b32 {sdst}, {reg}, 63")
        for f in fill: A(f)
    def round_bf16(reg):
        A(f"v_cvt_pk_bf16_f32 {reg}, {reg}, {reg}")
        A(f"v_lshlrev_b32 {reg}, 16, {reg}")
    def layernorm(F, Wk, tp, out):
        p = lambda r: vr(r, 2)
        A(f"v_pk_add_f32 {p(tp)}, {p(F[0])}, {p(F[1])}")
        A(f"v_pk_add_f32 {p(tp+2)}, {p(F[2])}, {p(F[3])}")
        A(f"v_pk_add_f32 {p(tp)}, {p(tp)}, {p(F[4])}")
        A(f"v_pk_add_f32 {p(tp)}, {p(tp)}, {p(tp+2)}")
        A(f"v_add_f32 {v(tp)}, {v(tp)}, {v(tp+1)}")
        wave_reduce("v_add_f32", v(tp), sA, fill=[f"v_mov_b32 {v(tp+2)}, {hex(fbits(-1.0/640))}"])
        A(f"v_mul_f32 {v(tp)}, {sA}, {v(tp+2)}")
        A(f"v_mul_f32 {v(tp+1)}, {sA}, {v(tp+2)}")
        A(f"v_pk_add_f32 {p(tp+2)}, {p(F[0])}, {p(tp)}")
        A(f"v_pk_add_f32 {p(Wk[1])}, {p(F[1])}, {p(tp)}")
        A(f"v_pk_mul_f32 {p(tp+2)}, {p(tp+2)}, {p(tp+2)}")
        A(f"v_pk_add_f32 {p(Wk[2])}, {p(F[2])}, {p(tp)}")
        A(f"v_pk_fma_f32 {p(tp+2)}, {p(Wk[1])}, {p(Wk[1])}, {p(tp+2)}")
        A(f"v_pk_add_f32 {p(Wk[3])}, {p(F[3])}, {p(tp)}")
        A(f"v_pk_fma_f32 {p(tp+2)}, {p(Wk[2])}, {p(Wk[2])}, {p(tp+2)}")
        A(f"v_pk_add_f32 {p(Wk[1])}, {p(F[4])}, {p(tp)}")
        A(f"v_pk_fma_f32 {p(tp+2)}, {p(Wk[3])}, {p(Wk[3])}, {p(tp+2)}")
        A(f"v_pk_fma_f32 {p(tp+2)}, {p(Wk[1])}, {p(Wk[1])}, {p(tp+2)}")
        A(f"v_add_f32 {v(tp+2)}, {v(tp+2)}, {v(tp+3)}")
        a, b, c = Wk[0], Wk[4], Wk[1]
        fill = [f"v_cvt_pk_bf16_f32 {v(tp)}, {v(tp)}, {v(tp)}",
                f"v_lshlrev_b32 {v(tp+1)}, 16, {v(tp)}",
                f"v_lshlrev_b32 {v(tp)}, 16, {v(tp)}",
                f"v_pk_add_f32 {p(a)}, {p(F[0])}, {p(tp)}",
                f"v_pk_add_f32 {p(b)}, {p(F[4])}, {p(tp)}",
                f"v_cvt_pk_bf16_f32 {v(c)}, {v(a)}, {v(a+1)}",
                f"v_cvt_pk_bf16_f32 {v(c+1)}, {v(b)}, {v(b+1)}",
                f"v_lshlrev_b32 {v(a)}, 16, {v(c)}",
                f"v_and_b32 {v(a+1)}, 0xffff0000, {v(c)}",
                f"v_lshlrev_b32 {v(b)}, 16, {v(c+1)}",
                f"v_and_b32 {v(b+1)}, 0xffff0000, {v(c+1)}",
                f"v_mov_b32 {v(tp+4)}, {hex(fbits(1.0/640))}"]
        wave_reduce("v_add_f32", v(tp+2), sA, fill=fill)
        A(f"v_mul_f32 {v(tp)}, {sA}, {v(tp+4)}")
        round_bf16(v(tp))
        A(f"v_add_f32 {v(tp)}, {hex(fbits(1e-5))}, {v(tp)}")
        round_bf16(v(tp))
        A(f"v_sqrt_f32 {v(tp)}, {v(tp)}")
        round_bf16(v(tp))
        A(f"v_rcp_f32 {v(tp)}, {v(tp)}")
        A(f"v_mul_f32 {v(a)}, {v(a)}, {v(tp)}")
        A(f"v_mul_f32 {v(a+1)}, {v(a+1)}, {v(tp)}")
        A(f"v_cvt_pk_bf16_f32 {v(out)}, {v(a)}, {v(a+1)}")
        A(f"v_mul_f32 {v(b)}, {v(b)}, {v(tp)}")
        A(f"v_mul_f32 {v(b+1)}, {v(b+1)}, {v(tp)}")
        A(f"v_mov_b32_dpp {v(out+1)}, {v(out)} row_half_mirror {DPPF}")
        A(f"v_cvt_pk_bf16_f32 {v(out+2)}, {v(b)}, {v(b+1)}")
        A(f"v_mov_b32_dpp {v(out+3)}, {v(out+2)} row_half_mirror {DPPF}")
    def afrag_oct(dst, P, c0):
        lo, hi = ((P, c0), (P + 1, 3 - c0)) if c0 < 4 else ((P + 1, 7 - c0), (P, c0 - 4))
        out = []
        for k in range(4):
            src, x = lo if k % 2 == 0 else hi
            out.append(f"v_and_b32_dpp {v(dst+k)}, {v(src)}, {v(MK[k])} quad_perm:[{x},{x},{x},{x}] {DPPF}")
        return out
    def smf(d, a, slot):
        A(f"v_smfmac_f32_16x16x64_bf16 {vr(d,4)}, {vr(a,4)}, {slot[0]}[{slot[1]}:{slot[1]+7}], {vIDX}")
    def compact(blocks):
        for d in blocks:
            A(f"v_permlane32_swap_b32 {v(d)}, {v(d+1)}")
            A(f"v_permlane32_swap_b32 {v(d+2)}, {v(d+3)}")
        for d in blocks:
            A(f"v_add_f32_dpp {v(d)}, {v(d+1)}, {v(d)} row_ror:8 row_mask:0xf bank_mask:0x3")
        for d in blocks:
            A(f"v_add_f32_dpp {v(d)}, {v(d+2)}, {v(d+3)} row_ror:8 row_mask:0xf bank_mask:0xc")

    def signal(lbl, k=None):
        if k is None: A(f"s_cmp_lg_u32 {sW}, 0")
        else: A(f"s_cmp_lg_u32 {sSG}, {k}")
        A(f"s_cbranch_scc1 {lbl}")
        if k is None: signal_body()
        else: A(f"s_call_b64 {sRA}, L_signal")
        A.label(lbl)
    def signal_body():
        A(f"s_lshl_b32 {sT2}, {sB}, 5")
        A("s_mov_b64 exec, 1")
        A(f"v_mov_b32 {vWQ}, 1")
        if not o["nosig"]: A(f"buffer_atomic_add {vWQ}, off, {srd(sDBG)}, {sT2} sc1")
        A("s_mov_b64 exec, -1")

    freeA = [("a", 8 * i) for i in range(32)]
    freeV = [("v", 64 + 8 * i) for i in range(24)]
    halfV = []
    slots = {}
    def can_alloc(kind):
        if kind == "pair": return bool(freeA or freeV)
        if kind == "half": return bool(halfV or freeV)
        return True
    def alloc(kind, key, preferV=False):
        if kind == "pair":
            s = (freeV if (preferV and freeV) or not freeA else freeA).pop(0)
        else:
            if not halfV:
                s = freeV.pop(0); halfV.extend([s, (s[0], s[1] + 4)])
            s = halfV.pop(0)
        slots[key] = s
        return s
    def release(kind, key):
        s = slots.pop(key)
        if kind == "pair":
            (freeA if s[0] == "a" else freeV).append(s)
        else:
            mate = (s[0], s[1] ^ 4)
            if mate in halfV:
                halfV.remove(mate); freeV.append((s[0], s[1] & ~7))
            else: halfV.append(s)

    def tile_load(reg, vaddr, sr, soff, imm, pol):
        A(f"buffer_load_dwordx4 {reg[0]}[{reg[1]}:{reg[1]+3}], {vaddr}, {srd(sr)}, {soff} offen offset:{imm} {pol}".rstrip())
    def mk_pair(key, Tt, vaddr, sr, soff_fn, imm, pol, preferV=False):
        def emit():
            s = alloc("pair", key, preferV) if key not in slots else slots[key]
            tile_load((s[0], s[1] + 4 * Tt), vaddr, sr, soff_fn(), imm, pol)
        return dict(tag=key + (Tt,), need="pair" if Tt == 0 else None, emit=emit)
    last_soff = [None]
    def soff_add(base, const):
        def f():
            if last_soff[0] != (base, const):
                if base is None: A(f"s_mov_b32 {sT}, {const}")
                else: A(f"s_add_u32 {sT}, {base}, {const}")
                last_soff[0] = (base, const)
            return sT
        return f
    Lx = []
    for s_ in range(4):
        def emit(s_=s_):
            A(f"s_add_u32 {sT}, {sW}, {s_}"); A(f"s_and_b32 {sT}, {sT}, 3"); A(f"s_lshl_b32 {sT}, {sT}, 8")
            A(f"buffer_load_dword {v(T+s_)}, {v(T+5)}, {srd(sX)}, {sT} offen")
        Lx.append(dict(tag=("x", s_), need=None, emit=emit))
    Lx.append(dict(tag=("x", 4), need=None, emit=lambda: A(f"buffer_load_dword {v(T+4)}, {v(T+6)}, {srd(sX)}, 0 offen offset:1024")))
    Lwq = []
    for u in range(10):
        for t in range(3):
            for Tt in range(2):
                base, rows = (sQB0, 64 * Tt + 2 * u) if u < 8 else (sQB1, 64 * Tt + 2 * (u - 8))
                Lwq.append(mk_pair(("wq", u, t), Tt, vWQ, sWQ, soff_add(base, rows * 12288), 128 * t, o["polW"]))
    def next_addr(n, hB):
        j = 2 * n + hB + 1
        if j < 32: k_addr(j >> 1, j & 1)
        else: v_addr(0); v_addr(1)
    LK = []
    for n in range(16):
        for hB in range(2):
            for t in range(3):
                def emit(n=n, hB=hB, t=t):
                    s = alloc("half", ("k", n, hB, t))
                    if offs: tile_load(s, vK, sK, sSO[0], t * 128, o["polKV"])
                    else: tile_load(s, vK, sK, f"s{sU+n}", hB * 768 + t * 128, o["polKV"])
                    if offs and t == 2: next_addr(n, hB)
                def emitL(n=n, hB=hB, t=t):
                    imm = t * 128 if offs else hB * 768 + t * 128
                    A(f"s_add_u32 m0, {sKL}, {((2 * n + hB) * 3 + t) * 1024 - imm}")
                    A("s_nop 0")
                    A(f"buffer_load_dwordx4 {vK}, {srd(sK)}, {sSO[0] if offs else 's%d' % (sU+n)} offen offset:{imm} {o['polKV']} lds")
                    if offs and t == 2: next_addr(n, hB)
                if 2 * n + hB < o["nL"]: LK.append(dict(tag=("k", n, hB, t), need=None, emit=emitL))
                else: LK.append(dict(tag=("k", n, hB, t), need="half", emit=emit))
    LV = []
    for n in range(16):
        for t in range(3):
            for Tt in range(2):
                if offs:
                    it = mk_pair(("v", n, t), Tt, (vV, vK)[n & 1], sV, (lambda n=n: sSO[n & 1]), Tt * 768 + t * 128, o["polKV"], preferV=True)
                    if t == 2 and Tt == 1 and n + 2 < 16:
                        it["emit"] = (lambda e=it["emit"], n=n: (e(), v_addr(n + 2)))
                    LV.append(it)
                else:
                    LV.append(mk_pair(("v", n, t), Tt, vV, sV, (lambda n=n: f"s{sU+n}"), Tt * 3072 + t * 128, o["polKV"], preferV=True))
    if o["vorder"] == "T":
        nT = 14 if o["tsplit"] else 16
        LV = [it for n in range(nT) for Tt in range(2) for it in LV[6*n:6*n+6] if it["tag"][3] == Tt] + LV[6*nT:]
    if o["tsplit"]:
        LV = LV[:84] + [it for t in range(3) for n in (14, 15) for it in LV[84:] if it["tag"][1:3] == (n, t)]
    Lwo = []
    for u in range(6):
        for blk in range(5):
            for Tt in range(2):
                row0 = (64 * (u >> 1) + 8 * (u & 1) if o["tsplit"] else 8 * u) + 4 * Tt
                Lwo.append(mk_pair(("wo", u, blk), Tt, vWO, sWO, soff_add(None, row0 * 1280), blk * 256, o["polW"]))
    Lw1 = []
    for u in range(10):
        for Tt in range(2):
            base, rows = (sF0, 64 * Tt + 16 * (u & 3) + (u >> 2)) if u < 8 else (sF1, 64 * Tt + 16 * (u - 8))
            Lw1.append(mk_pair(("w1", u), Tt, vW1, sW1, soff_add(base, rows * 3072), 0, o["polW"]))
    Lw2 = []
    for u in range(3):
        for blk in range(3):
            for Tt in range(2):
                rows = 16 * u + 8 * Tt
                if blk < 2: Lw2.append(mk_pair(("w2", u, blk), Tt, vW2, sW2, soff_add(None, rows * 1280), blk * 128, o["polW"]))
                else: Lw2.append(mk_pair(("w2", u, blk), Tt, vW2, sW2, soff_add(sZ, rows * 1280), 0, o["polW"]))
    def misc(tag, fn): return dict(tag=tag, need=None, emit=fn)
    def mix(*lists):
        lists = [l for l in lists if l]
        items = []
        for li, l in enumerate(lists):
            for i, it in enumerate(l): items.append(((i + 0.5) / len(l), li, it))
        items.sort(key=lambda z: (z[0], z[1]))
        return [z[2] for z in items]
    def clr1():
        if o["noclr"]: A(f"buffer_load_dword {v(AF[1])}, off, {srd(sX)}, 0"); return
        A(f"buffer_store_dwordx4 {vr(AF[1],4)}, {vP1ST}, {srd(sWS)}, 0 offen {o['polC']}")
    def clr2():
        if o["noclr"]: A(f"buffer_load_dword {v(AF[1])}, off, {srd(sX)}, 0"); return
        A(f"s_mov_b32 {sT}, {P2}"); last_soff[0] = None
        A(f"buffer_store_dwordx4 {vr(AF[1],4)}, {vP1ST}, {srd(sWS)}, {sT} offen {o['polC']}")
    def clr3():
        if o["noclr"]: A(f"buffer_load_dword {v(AF[1])}, off, {srd(sX)}, 0"); return
        A(f"buffer_store_dword {v(AF[1])}, {vHST}, {srd(sWS)}, 0 offen {o['polC']}")
    def code_pf(label, reg, areg):
        def f():
            A(f"s_getpc_b64 s[{sPC}:{sPC+1}]")
            here = f"L_pc_{label}"
            A.label(here)
            A(f"s_add_u32 s{sPC}, s{sPC}, {label}-{here}"); A(f"s_addc_u32 s{sPC+1}, s{sPC+1}, 0")
            A(f"v_lshlrev_b32 {areg}, 7, {vL}")
            A(f"v_min_u32 {areg}, L_last-{label}, {areg}")
            A(f"global_load_dword {reg}, {areg}, s[{sPC}:{sPC+1}]")
        return f
    def cntload():
        if o["dyn"]:
            A(f"buffer_load_dwordx2 {vr(T+8,2)}, off, {srd(sDBG)}, 0 sc1"); return
        if o["tag"]:
            A(f"buffer_load_dword {tCNT}, off, {srd(sDBG)}, 0 sc1"); return
        A(f"s_lshl_b32 {sT}, {sB}, 5"); last_soff[0] = None
        A(f"buffer_load_dword {tCNT}, off, {srd(sX if o['nosig'] else sDBG)}, {sT} sc1")
    extra = [misc(("xr",), lambda: A(f"buffer_load_ushort {tXR}, {tXR}, {srd(sX)}, 0 offen"))]
    if o["codepf"] and not o["pf8"]: extra.append(misc(("pf",), code_pf("L_tail", tPF, tPF)))
    clrs = [misc(("clr", 0), clr1), misc(("clr", 1), clr2), misc(("clr", 2), clr3)]
    if o["tag"]: clrs = []
    qbar_done = [False]
    def warm_lines(msk=None):
        n_ = 0
        wm = o["warm"] & ~o["warm2"] & ~o["warm3"] if msk is None else msk
        o_ = dict(o); o_["warm"] = wm
        return warm_lines_(o_)
    def warm_lines_(o):
        n_ = 0
        if o["warm"] & 1:
            A(f"buffer_load_dword {v(T+12)}, {vP1ST}, {srd(sWS)}, 0 offen {o['polWm']}"); n_ += 1
        if o["warm"] & 2:
            for k in range(4 if o["hcopy"] else 1):
                A(f"s_mov_b32 {sT2}, {k * HS}")
                A(f"buffer_load_dword {v(T+12)}, {vHST}, {srd(sWS)}, {sT2} offen {o['polWm']}"); n_ += 1
        if o["warm"] & 4:
            A(f"buffer_load_dword {v(T+12)}, {tP2ST}, {srd(sWS)}, 0 offen {o['polWm']}"); n_ += 1
        return n_
    hooks = {}
    subs = []
    if not o["burst"]:
        phA = mix(Lwq, LK[:o["nKA"]])
        phB = mix(LK[o["nKA"]:], Lwo[:o["nWOB"]])
        rest = Lwo[o["nWOB"]:] + Lw1 + Lw2
        nlast = o["wlast"]
        phC = mix(LV, rest[:len(rest) - nlast]) + rest[len(rest) - nlast:]
        nfirst = o["WA"] - len(Lx)
        phA = phA[:nfirst] + clrs + phA[nfirst:]
        k = len(phC) * 2 // 3
        phC = phC[:k] + extra + phC[k:]
        k = len(phC) - nlast - o["WC"]
        phC = phC[:k] + [misc(("cnt",), cntload)] + phC[k:]
        seq = Lx + phA + phB + phC
        Wn = [o["WA"]] * (len(Lx) + len(phA)) + [o["WB"]] * len(phB) + [o["WC"]] * len(phC)
    else:
        NG = 4 if o["grp"] == "h" else 8
        KV = LK + LV
        pol = o["polT"]
        vDUM = v(T + 12)
        vTA = v(T + 11)
        def touch(areg, sr, soff, dst=vDUM, lanes=None):
            if lanes is not None:
                m = ((1 << lanes[1]) - 1) ^ ((1 << lanes[0]) - 1)
                A(f"s_mov_b32 exec_lo, {hex(m & 0xffffffff)}"); A(f"s_mov_b32 exec_hi, {hex(m >> 32)}")
                touch(areg, sr, soff, dst); A("s_mov_b64 exec, -1")
                return
            A(f"buffer_load_dword {dst}, {areg}, {srd(sr)}, {soff} offen {pol}")
            if o["touch64"]: A(f"buffer_load_dword {dst}, {areg}, {srd(sr)}, {soff} offen offset:64 {pol}")
            if o["polT2"] is not None: A(f"buffer_load_dword {dst}, {areg}, {srd(sr)}, {soff} offen {o['polT2']}")
        ncond = [0]
        def cond(sreg, k, fn):
            def f():
                lbl = f"L_skip{ncond[0]}"; ncond[0] += 1
                A(f"s_cmp_lg_u32 {sreg}, {k}"); A(f"s_cbranch_scc1 {lbl}")
                fn(); A.label(lbl); last_soff[0] = None
            return f
        def reserve(lst):
            def f():
                if lst[0]["tag"][0] == "wo": assert len(freeA) >= 30, "wo reserved before the q projection finished"
                for it in lst:
                    if it["need"]:
                        while not can_alloc("pair"): force_now()
                        freeV.sort(key=lambda z: -z[1])
                        alloc("pair", it["tag"][:-1])
                if not (lst[0]["tag"][0] == "w1" and o["w12late"]): subs.append((lst[0]["tag"][0], lst, dict(slots)))
            return f
        def piece(nl, p_, np_): return (nl * p_ // np_, nl * (p_ + 1) // np_)
        def touch_wo(p_=0, np_=1):
            a = vTA
            A(f"s_lshl_b32 {sT2}, {sB}, 2"); A(f"s_add_u32 {sT2}, {sT2}, {sW}"); A(f"s_mul_i32 {sT2}, {sT2}, {60*128}")
            A(f"v_lshlrev_b32 {a}, 7, {vL}"); touch(a, sWO, sT2, lanes=piece(60, p_, np_))
        def touch_w2(p_=0, np_=1, a=None):
            a = a or v(T + 9)
            A(f"s_lshl_b32 {sT2}, {sB}, 2"); A(f"s_add_u32 {sT2}, {sT2}, {sW}"); A(f"s_mul_i32 {sT2}, {sT2}, {15*128}")
            A(f"v_lshlrev_b32 {a}, 7, {vL}"); touch(a, sW2, sT2, lanes=piece(15, p_, np_))
        def touch_w12(p_=0, np_=1):
            a = vTA
            if o["w1bal"]:
                A(f"s_lshr_b32 {sT2}, s2, 3"); A(f"s_lshl_b32 {sT2}, {sT2}, 2"); A(f"s_add_u32 {sT2}, {sT2}, {sW}"); A(f"s_mul_i32 {sT2}, {sT2}, {5*3072}")
                A(f"v_mul_u32_u24 {a}, 21846, {vL}"); A(f"v_lshrrev_b32 {a}, 16, {a}")
                A(f"v_mul_u32_u24 {a}, {3072 - 384}, {a}"); A(f"v_lshl_add_u32 {a}, {vL}, 7, {a}")
                touch(a, sW1, sT2, lanes=piece(15, p_, np_))
            else:
                A(f"s_lshl_b32 {sT2}, {sB}, 2"); A(f"s_add_u32 {sT2}, {sT2}, {sW}"); A(f"s_mul_i32 {sT2}, {sT2}, {20*3072}")
                A(f"v_and_b32 {a}, 1, {vL}"); A(f"v_mul_u32_u24 {a}, {1536 - 92}, {a}")
                A(f"v_mul_u32_u24 {vWQ}, 1536, {vL}"); A(f"v_sub_u32 {a}, {vWQ}, {a}")
                touch(a, sW1, sT2, lanes=piece(40, p_, np_))
            if o["nlateW"] < 18: touch_w2(p_, np_, a)
        tb_ = o["b0"] - o["tlead"] if o["tB"] is None else o["tB"]
        tc_ = o["c0"] - o["tlead"] if o["tC"] is None else o["tC"]
        assert o["grp"] == "b" and tb_ >= 6 and tc_ > tb_ + o["W"]
        def hook(i, fn): hooks.setdefault(KV[i]["tag"], []).append(fn)
        Lw12 = Lw1 + Lw2
        Llate = Lw12[len(Lw12) - o["nlateW"]:]; Lw12 = Lw12[:len(Lw12) - o["nlateW"]]
        if o["nlateW"] >= 18 and o["tlate"] < 192: hook(o["tlate"], lambda: touch_w2())
        for base, step, lst, tfn in ((o["a0"], o["da"], Lwq, None), (o["b0"], o["db"], Lwo, touch_wo), (o["c0"], o["dc"], Lw12, touch_w12)):
            nm = lst[0]["tag"][0]
            hook(base, reserve(lst))
            for k in range(NG):
                if tfn and o["touch"] and (o["grp"] == "h" or (o["grp"] == "hb" and k % 2 == 0) or k == 0):
                    tp = o["tB"] if nm == "wo" else o["tC"]
                    tp = base - o["tlead"] if tp is None else tp
                    for p_ in range(o["tws"]):
                        hook(tp - (o["tws"] - 1 - p_) * o["dtw"], lambda p_=p_, tfn=tfn: tfn(p_, o["tws"]))
                if not (nm == "w1" and o["w12late"]):
                    kx = k ^ o["ordx"][("wq", "wo", "w1").index(nm)]
                    hook(base + k * step, cond(sG, kx, lambda nm=nm: A(f"s_call_b64 {sRA}, L_burst_{nm}")))
        if o["dsig"]:
            for k in range(32):
                def f(k=k):
                    assert qbar_done[0]
                    signal(f"L_sig{k}", k)
                hook(o["sig0"] + k * o["dsig"], f)
        if o["warmpos"] < 192: hook(o["warmpos"], warm_lines)
        if o["probe"]:
            def probe(i):
                def f():
                    A(f"s_lshl2_add_u32 s76, s2, {sW}"); A(f"s_and_b32 s77, s76, 31"); A("s_lshr_b32 s76, s76, 5")
                    A("s_lshl_b32 s76, s76, 15"); A("s_lshl_b32 s77, s77, 7"); A("s_add_u32 s76, s76, s77")
                    A(f"s_add_u32 s76, s76, {0x1000000 + (i >> 1) * 0x400000 + (i & 1) * 4096}")
                    A(f"s_add_u32 s76, s{sWS}, s76"); A(f"s_addc_u32 s77, s{sWS+1}, 0")
                    A("s_waitcnt lgkmcnt(0)")
                    if i & 1:
                        A("s_load_dwordx2 s[72:73], s[76:77], 0x2000"); A("s_load_dword s74, s[76:77], 0")
                    else:
                        A("s_load_dword s74, s[76:77], 0"); A("s_load_dwordx2 s[72:73], s[76:77], 0x2000")
                    A("s_waitcnt lgkmcnt(2)")
                    A("s_getreg_b32 s75, hwreg(HW_REG_IB_STS, 8, 4)")
                    A(f"s_lshl_b32 s0, s0, 2"); A("s_or_b32 s0, s0, s75")
                return f
            hook(6, lambda: A("s_mov_b32 s0, 0"))
            for i, at in enumerate(o["probe"]): hook(at, probe(i))
        if o["dyn"]:
            def probe(i):
                def f():
                    A.comment("workgroup 0: which of two pages of d_ws (address bit 13 = 0 / 1) is served by the nearer memory die?")
                    A("s_cmp_lg_u32 s2, 0"); A(f"s_cbranch_scc1 L_noprobe{i}")
                    A(f"s_lshl_b32 s76, {sW}, 8"); A(f"s_add_u32 s76, s76, {PRB + i * 1024}")
                    A(f"s_add_u32 s76, s{sWS}, s76"); A(f"s_addc_u32 s77, s{sWS+1}, 0")
                    A("s_waitcnt lgkmcnt(0)")
                    A(f"s_load_dword s74, s[76:77], {hex(0x2000 * (i & 1))}"); A(f"s_load_dword s75, s[76:77], {hex(0x2000 * (1 - (i & 1)))}")
                    A("s_waitcnt lgkmcnt(1)")
                    A("s_getreg_b32 s73, hwreg(HW_REG_IB_STS, 8, 4)")
                    A(f"{'s_add_u32' if i & 1 else 's_sub_u32'} s0, s0, s73")
                    A.label(f"L_noprobe{i}")
                return f
            for i, at in enumerate(o["dyn"]): hook(at, probe(i))
        if o["codepf"] and o["pf8"]:
            def pf_tail():
                A(f"s_lshr_b32 {sT2}, s2, 3"); A(f"s_or_b32 {sT2}, {sT2}, {sW}"); A("s_cbranch_scc1 L_nopf1")
                code_pf("L_tail", tPF, tPF)(); A.label("L_nopf1")
            hook(166, pf_tail)
        lastA = KV[o["a0"] + (NG - 1) * o["da"]]["tag"]
        lastB = KV[o["b0"] + (NG - 1) * o["db"]]["tag"]
        lastC = KV[o["c0"] + (NG - 1) * o["dc"]]["tag"]
        t0l = [misc(("tq",), lambda: touch(vT2, sWQ, sQT, vT1, lanes=(0, 60)))] if o["touch"] else []
        if o["early"]: t0l = []
        if o["tqs"] and o["touch"]:
            t0l = []
            for p_, at in enumerate(o["tqs"]):
                hook(at, lambda p_=p_: touch(vT2, sWQ, sQT, vT1, lanes=piece(60, p_, len(o["tqs"]))))
            assert max(o["tqs"]) < o["a0"]
        k1 = 150; k2 = 151 if o["tag"] else 192 - o["W"]
        head = (KV[:3] + t0l + Lx + KV[3:6]) if o["kfirst"] else (Lx + t0l + KV[:6])
        if o["dyn"]: seq = head + KV[6:122] + [misc(("cnt",), cntload)] + KV[122:156] + extra + KV[156:]
        else: seq = head + clrs + KV[6:k1] + extra + KV[k1:k2] + [misc(("cnt",), cntload)] + KV[k2:]
        nhead = len(Lx) + len(t0l) + 6 + len(clrs)
        Wn = [nhead + 2] * (nhead + 2) + [o["W"]] * (len(seq) - nhead - 2)
        if o["Ws"]:
            kvpos = {it["tag"]: i for i, it in enumerate(KV)}
            cw, acc = o["W"], 0.0
            for i, it in enumerate(seq):
                for p_, w_ in o["Ws"]:
                    if kvpos.get(it["tag"]) == p_: cw = w_
                if i >= nhead + 2:
                    acc += cw - int(cw)
                    Wn[i] = int(cw) + (1 if acc >= 0.999 else 0)
                    if acc >= 0.999: acc -= 1
    pos = {it["tag"]: i for i, it in enumerate(seq)}

    acts = []
    def act(needs, fn, before=None): acts.append(dict(needs=[pos[t] for t in needs], fn=fn))
    def a_lnx():
        A.comment("LayerNorm(x)")
        if o["st0"]: stamp()
        F = D
        for s_ in range(5):
            A(f"v_lshlrev_b32 {v(F+2*s_)}, 16, {v(T+s_)}")
            A(f"v_and_b32 {v(F+2*s_+1)}, 0xffff0000, {v(T+s_)}")
        layernorm([F + 2 * k for k in range(5)], [F + 2 * k for k in range(5)], T, S)
        for k in range(12): A(f"v_mov_b32 {v(D+k)}, 0")
    act([("x", s_) for s_ in range(5)], a_lnx)
    setup_tag = ("k", 1, 0, 0) if o["tag"] else ("clr", 0)
    assert pos[("k", 1, 0, 0)] >= pos[setup_tag]
    if o["burst"]:
        for it in Lwq: pos[it["tag"]] = pos[lastA]
        for it in Lwo: pos[it["tag"]] = pos[lastB]
        assert o["a0"] >= 6
    else:
        assert pos[("wq", 8, 0, 0)] > pos[("clr", 0)]
        assert pos[("x", 4)] + o["WA"] > pos[("clr", 2)]
    for u in range(10):
        for t in range(3):
            def f(u=u, t=t):
                if t == 0:
                    for ins in afrag_oct(AF[u & 1], S + 2 * (u >> 3), u & 7): A(ins)
                smf(D + 4 * t, AF[u & 1], slots[("wq", u, t)]); release("pair", ("wq", u, t))
            act([("wq", u, t, 1)], f); acts[-1]["cost"] = 0.2 if o["burst"] else 1
    def a_qred1():
        A.comment("q: cross-wave reduction")
        compact([D, D + 4, D + 8])
        for t in range(3): A(f"ds_write_b32 {vREDW}, {v(D+4*t)} offset:{RED + 1024*t}")
        A(f"v_lshlrev_b32 {v(T)}, 4, {vL}")
        A(f"s_mul_i32 {sA}, {sW}, 384")
        A(f"v_lshl_add_u32 {v(T+1)}, {vL}, 1, {sA}")
        A(f"v_and_b32 {v(T+2)}, 7, {vL}")
        A(f"v_lshl_add_u32 {v(T+2)}, {v(T+2)}, 4, {sA}")
        if o["dyn"]:
            A(f"s_lshl_b32 {sA}, {sW}, 2"); A(f"v_mov_b32 {v(T+4)}, {sA}"); A(f"v_mov_b32 {v(T+5)}, s0")
            A(f"ds_write_b32 {v(T+4)}, {v(T+5)} offset:{SM + 32}")
        A("s_waitcnt lgkmcnt(0)")
        A("s_barrier")
        if o["dyn"]:
            A.comment("workgroup 0 publishes this launch's hand-off tag (a value no earlier launch used) and the page choice")
            A(f"s_or_b32 {sA}, s2, {sW}"); A("s_cbranch_scc1 L_nononce")
            A(f"ds_read_b128 {vr(AF[0],4)}, {v(T+4)} offset:{SM + 32}")
            A("s_memrealtime s[76:77]"); A("s_waitcnt lgkmcnt(0)")
            A(f"s_mul_i32 {sA}, s76, 0x9e3779b1"); A(f"s_max_u32 {sA}, {sA}, 1")
            A(f"v_add3_u32 {v(AF[0])}, {v(AF[0])}, {v(AF[0]+1)}, {v(AF[0]+2)}")
            A(f"v_add_u32 {v(AF[0])}, {v(AF[0])}, {v(AF[0]+3)}")
            A(f"v_cmp_lt_i32 vcc, 0, {v(AF[0])}")
            A(f"s_getreg_b32 {sC}, hwreg(HW_REG_XCC_ID, 0, 3)")
            A(f"v_mov_b32 {v(AF[0])}, {sA}")
            A(f"s_lshr_b32 {sA}, {sC}, 1"); A(f"s_and_b32 {sA}, {sA}, 2"); A(f"s_lshl4_add_u32 {sA}, {sC}, {sA}")
            A(f"v_cndmask_b32 {v(AF[0]+1)}, 0, 2, vcc")
            A(f"v_xor_b32 {v(AF[0]+1)}, {sA}, {v(AF[0]+1)}")
            A("s_mov_b64 exec, 1")
            A(f"buffer_store_dwordx2 {vr(AF[0],2)}, off, {srd(sDBG)}, 0 sc1")
            A("s_mov_b64 exec, -1")
            A.label("L_nononce")
        for t in range(3): A(f"ds_read_b128 {vr(D+4*t,4)}, {v(T)} offset:{RED + 1024*t}")
        if o["burst"] and o["dsig"] == 0 and not o["tag"]: signal("L_nosig")
        qbar_done[0] = True
    act([] if o["tag"] else [("clr", 2)], a_qred1)
    def a_qred2():
        A("s_waitcnt lgkmcnt(0)")
        for t in range(3):
            d = D + 4 * t
            A(f"v_pk_add_f32 {vr(d,2)}, {vr(d,2)}, {vr(d+2,2)}")
        for t in range(3):
            d = D + 4 * t
            A(f"v_add_f32 {v(d)}, {v(d)}, {v(d+1)}")
        for t in range(3):
            d = D + 4 * t
            A(f"v_cvt_pk_bf16_f32 {v(d)}, {v(d)}, {v(d)}")
        for t in range(3): A(f"ds_write_b16 {v(T+1)}, {v(D+4*t)} offset:{QB + 128*t}")
        A("s_waitcnt lgkmcnt(0)")
        for t in range(3): A(f"ds_read_b128 {vr(Q+4*t,4)}, {v(T+2)} offset:{QB + 128*t}")
        for k in range(12): A(f"v_mov_b32 {v(D+k)}, 0")
        A("s_waitcnt lgkmcnt(0)")
        if not o["st0"]: stamp()
    act([], a_qred2)
    nLu = o["nL"] // 2
    order = list(range(nLu, nLu + o["rL"])) + list(range(nLu)) + list(range(nLu + o["rL"], 16)) if nLu else list(range(16))
    vKL = v(T + 3)
    def lds_reads(n, hB):
        for t in range(3):
            while not can_alloc("half"): raise AssertionError("no register for LDS K tile")
            s = alloc("half", ("k", n, hB, t))
            A(f"ds_read_b128 v[{s[1]}:{s[1]+3}], {vKL} offset:{((2 * n + hB) * 3 + t) * 1024}")
    halves = [(n, hB) for n in order for hB in range(2)]
    for i, (n, hB) in enumerate(halves):
        def f(i=i, n=n, hB=hB):
            if i == 0 and nLu: A(f"v_lshl_add_u32 {vKL}, {vL}, 4, {sKL}")
            if n < nLu: A("s_waitcnt lgkmcnt(0)")
            if i + 1 < 32 and halves[i + 1][0] < nLu: lds_reads(*halves[i + 1])
            acc = v(T + hB)
            first = True
            for t in range(3):
                s = slots[("k", n, hB, t)]
                for k in range(4):
                    if first: A(f"v_dot2_f32_bf16 {acc}, v{s[1]+k}, {v(Q+4*t+k)}, 0"); first = False
                    else: A(f"v_dot2_f32_bf16 {acc}, v{s[1]+k}, {v(Q+4*t+k)}, {acc}")
                release("half", ("k", n, hB, t))
            if hB == 1:
                A(f"s_lshl_b64 vcc, {sLM}, {n & 7}")
                for st in (f"quad_perm:[1,0,3,2] {DPPF}", f"quad_perm:[2,3,0,1] {DPPF}", f"row_half_mirror {DPPF}"):
                    for hh in range(2): A(f"v_add_f32_dpp {v(T+hh)}, {v(T+hh)}, {v(T+hh)} {st}")
                for hh in range(2):
                    d = v(S + 2 * (n >> 3) + hh)
                    A(f"v_cndmask_b32 {d}, {d}, {v(T+hh)}, vcc")
        act([("k", n, hB, 2)], f); acts[-1]["cost"] = o["qkcost"]
    assert not nLu or o["rL"] >= 1
    def a_soft1():
        A.comment("softmax statistics")
        if not o["st0"]: stamp()
        A(f"v_mov_b32 {v(T+4)}, {hex(fbits(192 ** -0.5))}")
        for rnd in range(2):
            for k in range(2): A(f"v_cvt_pk_bf16_f32 {v(T+k)}, {v(S+2*k)}, {v(S+2*k+1)}")
            for k in range(2):
                A(f"v_lshlrev_b32 {v(S+2*k)}, 16, {v(T+k)}")
                A(f"v_and_b32 {v(S+2*k+1)}, 0xffff0000, {v(T+k)}")
            if rnd == 0:
                for k in range(4): A(f"v_mul_f32 {v(S+k)}, {v(S+k)}, {v(T+4)}")
        A(f"v_max3_f32 {v(T)}, {v(S)}, {v(S+1)}, {v(S+2)}")
        A(f"v_max_f32 {v(T)}, {v(T)}, {v(S+3)}")
        wave_reduce("v_max_f32", v(T), sA, fill=[f"v_mov_b32 {v(T+8)}, {hex(LOG2E)}", f"s_lshl_b32 {sC}, {sW}, 3", f"v_mov_b32 {v(T+9)}, {sC}", f"v_mov_b32 {v(T+10)}, 0"])
        for k in range(4): A(f"v_subrev_f32 {v(T+k)}, {sA}, {v(S+k)}")
        for k in range(4): A(f"v_mul_f32 {v(T+k)}, {v(T+k)}, {v(T+8)}")
        for k in range(4): A(f"v_exp_f32 {v(T+k)}, {v(T+k)}")
        A(f"v_mov_b32 {v(T+4)}, {sA}")
        A(f"v_pk_add_f32 {vr(T,2)}, {vr(T,2)}, {vr(T+2,2)}")
        A(f"v_add_f32 {v(T)}, {v(T)}, {v(T+1)}")
        wave_reduce("v_add_f32", v(T), sC)
        A(f"v_mov_b32 {v(T+5)}, {sC}")
        A(f"ds_write_b64 {v(T+9)}, {vr(T+4,2)} offset:{SM}")
    act([], a_soft1)
    def a_soft2():
        A("s_waitcnt lgkmcnt(0)")
        A("s_barrier")
        A(f"ds_read_b128 {vr(T,4)}, {v(T+10)} offset:{SM}")
        A(f"ds_read_b128 {vr(T+4,4)}, {v(T+10)} offset:{SM+16}")
        if not (o["burst"] and o["dsig"] is not None): signal("L_nosig")
        A("s_waitcnt lgkmcnt(0)")
        A(f"v_max3_f32 {v(T+9)}, {v(T)}, {v(T+2)}, {v(T+4)}")
        A(f"v_max_f32 {v(T+9)}, {v(T+9)}, {v(T+6)}")
        for k in range(4): A(f"v_sub_f32 {v(T+2*k)}, {v(T+2*k)}, {v(T+9)}")
        for k in range(4): A(f"v_sub_f32 {v(S+k)}, {v(S+k)}, {v(T+9)}")
        for k in range(4): A(f"v_mul_f32 {v(T+2*k)}, {v(T+2*k)}, {v(T+8)}")
        for k in range(4): A(f"v_mul_f32 {v(S+k)}, {v(S+k)}, {v(T+8)}")
        for k in range(4): A(f"v_exp_f32 {v(T+2*k)}, {v(T+2*k)}")
        for k in range(4): A(f"v_exp_f32 {v(S+k)}, {v(S+k)}")
        A(f"v_mul_f32 {v(T)}, {v(T)}, {v(T+1)}")
        for k in range(1, 4): A(f"v_fmac_f32 {v(T)}, {v(T+2*k)}, {v(T+2*k+1)}")
        A(f"v_rcp_f32 {v(T)}, {v(T)}")
        for k in range(4): A(f"v_mul_f32 {v(S+k)}, {v(S+k)}, {v(T)}")
        A(f"v_cvt_pk_bf16_f32 {v(S)}, {v(S)}, {v(S+1)}")
        A(f"v_cvt_pk_bf16_f32 {v(S+2)}, {v(S+2)}, {v(S+3)}")
        A(f"v_mov_b32_dpp {v(S+1)}, {v(S)} row_half_mirror {DPPF}")
        A(f"v_mov_b32_dpp {v(S+3)}, {v(S+2)} row_half_mirror {DPPF}")
        if not o["st0"]: stamp()
    act([], a_soft2)
    sRD = [f"s{sWQ+k}" for k in range(4)]
    sHL = [f"s{sK+k}" for k in range(4)]
    def a_tailprep():
        A.comment("addresses used by the tail")
        c, r8, i16, b4, b3, b5, tt, oob = [v(T + k) for k in range(8)]
        A(f"v_and_b32 {c}, 7, {vL}"); A(f"v_lshrrev_b32 {r8}, 3, {vL}"); A(f"v_and_b32 {i16}, 15, {vL}")
        A(f"v_bfe_u32 {b4}, {vL}, 4, 1"); A(f"v_bfe_u32 {b3}, {vL}, 3, 1"); A(f"v_lshrrev_b32 {b5}, 5, {vL}")
        A(f"v_mov_b32 {oob}, {OOB}")
        A(f"v_min_u32 {tt}, {1 if o['tsplit'] else 5}, {i16}"); A(f"v_lshlrev_b32 {tt}, 7, {tt}")
        A(f"v_lshrrev_b32 {tO_R}, 4, {vL}"); A(f"v_lshl_add_u32 {tO_R}, {tO_R}, 5, {tt}")
        A(f"s_mul_i32 {sA}, {sW}, {256 if o['tsplit'] else 768}"); A(f"v_add_u32 {tO_R}, {sA}, {tO_R}")
        A(f"v_lshlrev_b32 {tt}, 9, {b5}"); A(f"v_lshl_add_u32 {tt}, {i16}, 5, {tt}"); A(f"v_lshl_add_u32 {tt}, {b4}, 4, {tt}")
        A(f"s_mul_i32 {sA}, {sW}, 3072"); A(f"v_add_u32 {tR2W}, {sA}, {tt}")
        A(f"s_mul_i32 {sA}, {sW}, 5"); A(f"v_add_u32 {tt}, {sA}, {r8}")
        A(f"v_lshrrev_b32 {tR2R}, 1, {tt}"); A(f"v_lshlrev_b32 {tR2R}, 8, {tR2R}")
        A(f"v_and_b32 {tt}, 1, {tt}"); A(f"v_lshl_add_u32 {tR2R}, {tt}, 4, {tR2R}"); A(f"v_lshl_add_u32 {tR2R}, {c}, 5, {tR2R}")
        if numa:
            A(f"s_lshl_b32 {sA}, {sB}, 17"); A(f"s_lshl_b32 {sC}, {sH}, 7"); A(f"s_add_u32 {sA}, {sA}, {sC}")
            A(f"s_mul_i32 {sC}, {sW}, 5"); A(f"v_add_u32 {vP1ST}, {sC}, {r8}")
            v_page(vP1ST, tt, sA)
            A(f"v_lshl_add_u32 {vP1ST}, {c}, 4, {vP1ST}")
            A(f"v_cmp_gt_u32 vcc, 40, {vL}")
            A(f"s_sub_u32 {sC}, {sH}, 16"); A(f"s_cmp_lt_u32 {sH}, 20"); A(f"s_cselect_b32 {sC}, {sH}, {sC}")
            A(f"v_cndmask_b32 {vP1ST}, {oob}, {vP1ST}, vcc")
            s_page(sC, sA)
            A(f"s_lshl_b32 {sA}, {sB}, 17"); A(f"s_add_u32 {sA}, {sA}, {sC}")
            A(f"v_lshl_add_u32 {tRD}, {vL}, 4, {sA}")
            A(f"s_and_b32 {sC}, {sH}, 7"); s_page(sC, sA)
            A(f"s_lshl_b32 {sA}, {sB}, 15"); A(f"s_add_u32 {sA}, {sA}, {sC}"); A(f"s_add_u32 {sA}, {sA}, {HB}")
        else:
            if o["p32"]: A(f"s_mov_b32 {sC}, {sH}")
            elif o["dup16"]: A(f"s_sub_u32 {sC}, {sH}, 16"); A(f"s_cmp_lt_u32 {sH}, 20"); A(f"s_cselect_b32 {sC}, {sH}, {sC}")
            else: A(f"s_sub_u32 {sC}, {sH}, 20"); A(f"s_cselect_b32 {sC}, {sH}, {sC}")
            A(f"s_mul_i32 {sA}, {sB}, {32 * PS}"); A(f"s_lshl_b32 {sC}, {sC}, 7"); A(f"s_add_u32 {sA}, {sA}, {sC}")
            A(f"v_mul_u32_u24 {tt}, {PS}, {r8}"); A(f"v_lshl_add_u32 {tt}, {c}, 4, {tt}"); A(f"v_add_u32 {tRD}, {sA}, {tt}")
            A(f"s_mul_i32 {sA}, {sB}, 2560"); A(f"s_add_u32 {sA}, {sA}, {HB}")
            if o["hcopy"]:
                A(f"s_and_b32 {sC}, {sH}, 7"); A(f"s_lshl_b32 {sC}, {sC}, 15"); A(f"s_add_u32 {sA}, {sA}, {sC}")
        A(f"v_lshl_add_u32 {tHL0}, {vL}, 3, {sA}")
        A(f"s_lshl_b32 {sC}, {sW}, 1"); A(f"v_xor_b32 {tt}, {sC}, {vL}"); A(f"v_lshl_add_u32 {tHL4}, {tt}, 3, {sA}")
        for k in range(4):
            A(f"s_add_u32 {sHL[k]}, {sW}, {k}"); A(f"s_and_b32 {sHL[k]}, {sHL[k]}, 3"); A(f"s_lshl_b32 {sHL[k]}, {sHL[k]}, 9")
            A(f"s_mov_b32 {sRD[k]}, {P1 + k * (1024 if numa else 8 * PS)}")
        A(f"v_and_b32 {tt}, 3, {c}"); A(f"v_min_u32 {tt}, 2, {tt}"); A(f"v_lshlrev_b32 {tt}, 8, {tt}"); A(f"v_lshl_add_u32 {tZR}, {r8}, 5, {tt}")
        if numa:
            A(f"s_lshl_b32 {sA}, {sB}, 17"); A(f"s_lshl_b32 {sC}, {sH}, 7"); A(f"s_add_u32 {sA}, {sA}, {sC}"); A(f"s_add_u32 {sA}, {sA}, {P2}")
            A(f"s_lshl_b32 {sC}, {sW}, 1"); A(f"v_add_u32 {tP2ST}, {sC}, {b5}")
            A(f"s_add_u32 {sC}, {sW}, 8"); A(f"v_mov_b32 {i16}, {sC}")
            A(f"v_cmp_eq_u32 vcc, 1, {b3}")
            A(f"v_cndmask_b32 {tP2ST}, {tP2ST}, {i16}, vcc")
            A(f"v_lshl_add_u32 {tP2ST}, {tP2ST}, 1, {b4}")
            v_page(tP2ST, tt, sA)
            A(f"v_lshl_add_u32 {tP2ST}, {c}, 4, {tP2ST}")
            A(f"s_cmp_lt_u32 {sW}, 2"); A(f"s_cselect_b32 vcc_hi, -1, 0x00ff00ff"); A(f"s_mov_b32 vcc_lo, 0x00ff00ff")
            A(f"v_cndmask_b32 {tP2ST}, {oob}, {tP2ST}, vcc")
        else:
            A(f"s_mul_i32 {sA}, s2, {PS}"); A(f"s_add_u32 {sA}, {sA}, {P2}")
            A(f"v_lshlrev_b32 {tt}, 7, {b4}"); A(f"v_lshl_add_u32 {tt}, {c}, 4, {tt}"); A(f"v_add_u32 {tt}, {sA}, {tt}")
            A(f"s_lshl_b32 {sC}, {sW}, 9"); A(f"v_lshl_add_u32 {tP2ST}, {b5}, 8, {sC}")
            A(f"s_add_u32 {sC}, {sW}, 8"); A(f"s_lshl_b32 {sC}, {sC}, 8"); A(f"s_cmp_lt_u32 {sW}, 2"); A(f"s_cselect_b32 {sC}, {sC}, {OOB}")
            A(f"v_cmp_eq_u32 vcc, 1, {b5}"); A(f"v_mov_b32 {i16}, {sC}")
            A(f"v_cndmask_b32 {i16}, {oob}, {i16}, vcc")
            A(f"v_cmp_eq_u32 vcc, 1, {b3}")
            A(f"v_cndmask_b32 {tP2ST}, {tP2ST}, {i16}, vcc")
            A(f"v_add_u32 {tP2ST}, {tP2ST}, {tt}")
        A(f"s_lshr_b32 {sA}, {sH}, 1"); A(f"s_lshl_b32 {sA}, {sA}, 7"); A(f"s_and_b32 {sC}, {sH}, 1"); A(f"s_lshl_b32 {sC}, {sC}, 3"); A(f"s_add_u32 {sA}, {sA}, {sC}")
        A(f"v_and_b32 {r8}, 3, {r8}")
        A(f"v_lshl_add_u32 {tt}, {c}, 3, {r8}"); A(f"v_lshl_add_u32 {tXR}, {tt}, 1, {sA}")
        A(f"v_cmp_gt_u32 vcc, 32, {vL}")
        A(f"v_cndmask_b32 {tOUT}, {oob}, {tXR}, vcc")
    sTB = [f"s{sU+k}" for k in range(4)]; sTL, sTH = f"s{sU+4}", f"s{sU+5}"
    vMH, vTGH, vTG1, vTGC = vWO, vWQ, v(T + 10), v(T + 11)
    assert not offs or (o["tag1"] and o["tag"])
    vFS, vFL = vV, vK
    def spin_guard():
        A(f"s_add_u32 {sSPIN}, {sSPIN}, 1"); A(f"s_cmp_gt_u32 {sSPIN}, {o['spin']}"); A("s_cbranch_scc1 L_end")
    def a_tagprep():
        A(f"s_mov_b32 {sSPIN}, 0")
        A(f"v_cmp_eq_u32 vcc, 0, {v(T+8) if o['dyn'] else tCNT}")
        A("s_cbranch_vccnz L_cntwait")
        A.label("L_cntok")
        if o["dyn"]:
            A(f"v_readfirstlane_b32 {sR}, {v(T+9)}")
            A(f"v_mov_b32 {tCNT}, {v(T+8)}")
            A(f"s_and_b32 {sQ}, {sR}, 2"); A(f"s_lshr_b32 {sR}, {sR}, 4")
        else: a_tagregs()
    def a_tagregs():
        A(f"v_readfirstlane_b32 {sA}, {tCNT}")
        A(f"v_mov_b32 {vMH}, 0xffffff00")
        if o["tag1"]:
            A(f"v_and_b32 {vTG1}, 3, {vL}"); A(f"v_lshlrev_b32 {vTG1}, 3, {vTG1}"); A(f"v_bfe_u32 {vTG1}, {tCNT}, {vTG1}, 8")
            A(f"v_and_b32 {vTGC}, 1, {vL}"); A(f"v_cmp_eq_u32 vcc, 0, {vTGC}")
            A(f"v_lshlrev_b32 {vTGC}, 4, {vTGC}"); A(f"v_bfe_u32 {vTGC}, {tCNT}, {vTGC}, 16")
            A(f"v_bfe_u32 {vTGH}, {vL}, 1, 1")
        else:
            A(f"v_and_b32 {vTGH}, 1, {vL}")
            for k in range(4): A(f"s_bfe_u32 {sTB[k]}, {sA}, {hex(0x80000 | (8 * k))}")
            A(f"s_and_b32 {sTL}, {sA}, 0xffff"); A(f"s_lshr_b32 {sTH}, {sA}, 16")
        if o["hcopy"]:
            for k in range(1, 4): A(f"s_mov_b32 s{sU+5+k}, {k * HS}")
        A(f"v_lshlrev_b32 {vTGH}, 4, {vTGH}")
        A(f"v_bfe_u32 {vTGH}, {tCNT}, {vTGH}, 16")
        if o["tag1"]: A(f"v_cndmask_b32 {vTGH}, 0, {vTGH}, vcc")
    tailprep_done = [False]
    for n in range(14 if o["tsplit"] else 16):
        for t in range(3):
            def f(n=n, t=t):
                if t == 0:
                    for ins in afrag_oct(AF[n & 1], S + 2 * (n >> 3), n & 7): A(ins)
                smf(D + 4 * t, AF[n & 1], slots[("v", n, t)]); release("pair", ("v", n, t))
            act([("v", n, t, 1)], f)
        if n == (4 if o["dyn"] else 10) and o["tag"]: act([("cnt",)], a_tagprep)
        if n == 10 and o["dyn"]: act([], a_tagregs)
        if n == (5 if o["dyn"] else 4):
            def g(): a_tailprep(); tailprep_done[0] = True
            act([], g)

    arrived = -1
    ai = 0
    def wait_for(idx, issued):
        nonlocal arrived
        if idx > arrived:
            A(f"s_waitcnt vmcnt({issued - 1 - idx})"); arrived = idx
    def force_action(issued):
        nonlocal ai
        a = acts[ai]; m = max(a["needs"], default=-1)
        assert m < issued, "action needs a load that is not issued yet"
        wait_for(m, issued); a["fn"](); ai += 1
    forced = 0
    kvi = {it["tag"]: i for i, it in enumerate(LK + LV)}
    cur = [0]
    def force_now():
        nonlocal forced
        force_action(cur[0]); forced += 1
    for n, it in enumerate(seq):
        cur[0] = n
        if it["tag"] == setup_tag: late_setup()
        if it["tag"] == ("xr",): assert tailprep_done[0]
        kv = kvi.get(it["tag"])
        if o["batch"] > 1 and kv is not None:
            if kv % o["batch"] == 0:
                tgt = n + o["batch"] - 1 - Wn[n]
                if tgt > arrived: wait_for(tgt, n)
        elif n - Wn[n] > arrived: wait_for(n - Wn[n], n)
        for hk in hooks.get(it["tag"], []): hk()
        while it["need"] and not can_alloc(it["need"]):
            force_action(n); forced += 1
        it["emit"]()
        budget = 1.0
        if o["batch"] > 1 and kv is not None:
            budget = float(o["batch"]) if kv % o["batch"] == o["batch"] - 1 else 0.0
        while budget > 0.01 and ai < len(acts) and max(acts[ai]["needs"], default=-1) <= arrived:
            budget -= acts[ai].get("cost", 1); acts[ai]["fn"](); ai += 1
    issued = len(seq)
    A.label("L_tail")
    if not o["tag"]: A(f"s_mov_b32 {sSPIN}, 0")
    late = (Lw1 + Lw2) if o["w12late"] else []
    nlate = [0]
    def late_load(k=1, limit=None):
        nonlocal issued
        for _ in range(k):
            if late and (limit is None or nlate[0] < limit):
                late.pop(0)["emit"](); issued += 1; nlate[0] += 1
    late_load(o["n1"])
    if o["warmpos"] >= 192: issued += warm_lines()
    if o["flag"]:
        fs = o["fstr"]
        A(f"s_mul_i32 {sC}, s2, {fs}"); A(f"s_add_u32 {sC}, {sC}, {FLB}")
        A(f"s_mul_i32 {sA}, {sW}, {512 * fs}"); A(f"s_add_u32 {sC}, {sC}, {sA}")
        A(f"v_mul_u32_u24 {vFS}, {256 * fs}, {vL}"); A(f"v_add_u32 {vFS}, {sC}, {vFS}")
        A(f"v_cmp_gt_u32 vcc, 2, {vL}"); A(f"v_mov_b32 {vFL}, {OOB}"); A(f"v_cndmask_b32 {vFS}, {vFL}, {vFS}, vcc")
        A(f"s_and_b32 {sC}, {sH}, 7"); A(f"s_lshl_b32 {sC}, {sC}, 3"); A(f"s_add_u32 {sC}, {sC}, {sB}")
        A(f"s_mul_i32 {sC}, {sC}, {32 * fs}"); A(f"s_add_u32 {sC}, {sC}, {FLB}")
        A(f"v_and_b32 {vFL}, 31, {vL}"); A(f"v_mul_u32_u24 {vFL}, {fs}, {vFL}"); A(f"v_add_u32 {vFL}, {sC}, {vFL}")
    if o["burst"] and o["nlateW"] >= 18 and o["tlate"] >= 192:
        touch_w2(); issued += 1 + (o["polT2"] is not None)
    while ai < len(acts):
        force_action(issued); late_load(1, o["n2"])
    o["_forced"] = forced

    def af_row(dst, u, src=S): return [f"v_and_b32_dpp {v(dst+k)}, {v(src)}, {v(MK[k])} row_newbcast:{u} {DPPF}" for k in range(4)]
    if o["tsplit"]:
        assert not late and not halfV
        vs = {key: slots[key][1] for key in slots if key[0] == "v"}
        assert all(slots[key][0] == "v" for key in slots if key[0] == "v") and len(vs) == 6 and len(freeV) >= 1
        f0 = freeV[0][1]
        s0, s1, s2_, s3_, s4, s5 = [vs[("v", n, t)] for t in range(3) for n in (14, 15)]
        DO = [f0, f0 + 4, s0, s0 + 4, s1]
        AO = [s1 + 4, T + 4]
        G = [s2_, s2_ + 4, s3_, s3_ + 4]
        F = [s4, s4 + 2, s4 + 4, s4 + 6, s5]
        Wk = [f0, f0 + 2, f0 + 4, f0 + 6, s0]
        R0, R1 = s1, s1 + 4
        OP = [T + 8, T + 9]
        for ins in afrag_oct(AF[0], S + 2, 6): A(ins)
        for ins in afrag_oct(AF[1], S + 2, 7): A(ins)
        for k in range(8): A(f"v_mov_b32 {v(f0+k)}, 0")
        def oread(t):
            A(f"ds_read_b128 {vr(T,4)}, {tO_R} offset:{RED + 1024*t}")
            A(f"ds_read_b128 {vr(S,4)}, {tO_R} offset:{RED + 1024*t + 16}")
        def opack(t):
            A(f"v_pk_add_f32 {vr(T,2)}, {vr(T,2)}, {vr(T+2,2)}")
            A(f"v_pk_add_f32 {vr(S,2)}, {vr(S,2)}, {vr(S+2,2)}")
            A(f"v_add_f32 {v(T)}, {v(T)}, {v(T+1)}")
            A(f"v_add_f32 {v(S)}, {v(S)}, {v(S+1)}")
            A(f"v_cvt_pk_bf16_f32 {v(OP[t & 1])}, {v(T)}, {v(S)}")
        def oproj(t):
            for ins in af_row(AO[0], 0, OP[t & 1]): A(ins)
            nxt = af_row(AO[1], 1, OP[t & 1])
            A(nxt.pop(0)); A(nxt.pop(0))
            for uu in range(2):
                for blk in range(5):
                    smf(DO[blk], AO[uu], slots[("wo", 2 * t + uu, blk)])
                    if nxt: A(nxt.pop(0))
        wait_for(max(pos[it["tag"]] for it in Lwo), issued)
        for t in range(3):
            for n in (14, 15):
                wait_for(pos[("v", n, t, 1)], issued)
                smf(D + 4 * t, AF[n & 1], slots[("v", n, t)])
            if t == 2:
                A.comment("o: cross-wave reduction")
                stamp()
            if t == 0:
                for k in range(12): A(f"v_mov_b32 {v((s0 if k < 8 else s1 - 8) + k)}, 0")
            compact([D + 4 * t])
            A(f"ds_write_b32 {vREDW}, {v(D+4*t)} offset:{RED + 1024*t}")
            A("s_waitcnt lgkmcnt(0)")
            A("s_barrier")
            oread(t)
            if o["flag"] == t + 1:
                A(f"buffer_store_dword {tCNT}, {vFS}, {srd(sWS)}, 0 offen sc1"); issued += 1
            A("s_waitcnt lgkmcnt(0)")
            opack(t)
            oproj(t)
            if o["latepos"] == "oproj" and Llate and t < 2:
                if t == 0:
                    for u in range(2):
                        for blk in range(5): release("pair", ("wo", u, blk))
                    for it in Llate:
                        if it["need"]: alloc("pair", it["tag"][:-1])
                    assert all(slots[it["tag"][:-1]][0] == "a" for it in Llate)
                last_soff[0] = None
                for it in (Llate[:o["nsplit"]] if t == 0 else Llate[o["nsplit"]:]):
                    it["emit"](); issued += 1
    else:
        A.comment("o: cross-wave reduction")
        stamp()
        if o["notail"]:
            for k in range(nstamp[0], nstamp[0] + 4): A(f"s_memrealtime s[{4+2*k}:{5+2*k}]")
            A("s_branch L_prof")
        assert not halfV
        tv = sorted(s[1] for s in freeV)
        assert len(tv) >= 7, tv
        DO = [tv[0], tv[0] + 4, tv[1], tv[1] + 4, tv[2]]
        G = [tv[3], tv[3] + 4, tv[4], tv[4] + 4]
        F = [tv[5], tv[5] + 2, tv[5] + 4, tv[5] + 6, tv[6]]
        Wk = [tv[0], tv[0] + 2, tv[0] + 4, tv[0] + 6, tv[1]]
        R0, R1 = tv[2], tv[2] + 4
        for d in DO[:2]:
            for k in range(4): A(f"v_mov_b32 {v(d+k)}, 0")
        compact([D, D + 4, D + 8])
        for t in range(3): A(f"ds_write_b32 {vREDW}, {v(D+4*t)} offset:{RED + 1024*t}")
        late_load(1, o["n2"])
        for d in DO[2:4]:
            for k in range(4): A(f"v_mov_b32 {v(d+k)}, 0")
        A("s_waitcnt lgkmcnt(0)")
        A("s_barrier")
        A(f"ds_read_b128 {vr(T,4)}, {tO_R} offset:{RED}")
        A(f"ds_read_b128 {vr(T+4,4)}, {tO_R} offset:{RED+16}")
        late_load(1, o["n2"])
        for k in range(4): A(f"v_mov_b32 {v(DO[4]+k)}, 0")
        wait_for(max(pos[it["tag"]] for it in Lwo), issued)
        A("s_waitcnt lgkmcnt(0)")
        A(f"v_pk_add_f32 {vr(T,2)}, {vr(T,2)}, {vr(T+2,2)}")
        A(f"v_pk_add_f32 {vr(T+4,2)}, {vr(T+4,2)}, {vr(T+6,2)}")
        A(f"v_add_f32 {v(T)}, {v(T)}, {v(T+1)}")
        A(f"v_add_f32 {v(T+4)}, {v(T+4)}, {v(T+5)}")
        A(f"v_cvt_pk_bf16_f32 {v(S)}, {v(T)}, {v(T+4)}")
        for ins in af_row(AF[0], 0): A(ins)
        for u in range(6):
            nxt = af_row(AF[(u + 1) & 1], u + 1) if u < 5 else []
            for blk in range(5):
                smf(DO[blk], AF[u & 1], slots[("wo", u, blk)])
                if nxt: A(nxt.pop(0))
                if blk == 4: late_load(1, o["n2"])
    for k in range(4): A(f"v_mov_b32_dpp {v(DO[0]+k)}, {v(DO[1]+k)} quad_perm:[0,1,2,3] row_mask:0xc bank_mask:0xf")
    A(f"ds_write_b128 {tR2W}, {vr(DO[0],4)} offset:{RED2}")
    for k in range(4): A(f"v_mov_b32_dpp {v(DO[2]+k)}, {v(DO[3]+k)} quad_perm:[0,1,2,3] row_mask:0xc bank_mask:0xf")
    A(f"ds_write_b128 {tR2W}, {vr(DO[2],4)} offset:{RED2+1024}")
    A(f"ds_write_b128 {tR2W}, {vr(DO[4],4)} offset:{RED2+2048}")
    A("s_waitcnt lgkmcnt(0)")
    A("s_barrier")
    for k in range(4): A(f"ds_read_b128 {vr(G[k],4)}, {tR2R} offset:{RED2 + 3072*k}")
    for k in range(12): A(f"v_mov_b32 {v(D+k)}, 0")
    A("s_waitcnt lgkmcnt(0)")
    def sum4():
        for hh in (0, 2):
            A(f"v_pk_add_f32 {vr(R0+hh,2)}, {vr(G[0]+hh,2)}, {vr(G[1]+hh,2)}")
            A(f"v_pk_add_f32 {vr(R1+hh,2)}, {vr(G[2]+hh,2)}, {vr(G[3]+hh,2)}")
        for hh in (0, 2):
            A(f"v_pk_add_f32 {vr(R0+hh,2)}, {vr(R0+hh,2)}, {vr(R1+hh,2)}")
    sum4()
    def seal(r):
        if o["tag"] and o["tag1"]:
            A(f"v_and_or_b32 {v(r)}, {v(r)}, {vMH}, {vTG1}"); return
        for k in range(4):
            if o["tag"]: A(f"v_and_or_b32 {v(r+k)}, {v(r+k)}, {vMH}, {sTB[k]}")
            else: A(f"v_min_u32 {v(r+k)}, -2, {v(r+k)}")
    seal(R0)
    A(f"buffer_store_dwordx4 {vr(R0,4)}, {vP1ST}, {srd(sWS)}, 0 offen sc1")
    issued += 1
    stamp()
    if o["prof"]:
        stamp(); nstamp[0] -= 1
    if o["warm2"]: issued += warm_lines(o["warm2"])
    if o["burst"] and Llate and o["latepos"] != "oproj":
        for u in range(6):
            for blk in range(5): release("pair", ("wo", u, blk))
        for it in Llate:
            if it["need"]: alloc("pair", it["tag"][:-1])
        def late_w():
            last_soff[0] = None
            for it in Llate: it["emit"]()
    if not o["tag"]:
        wait_for(pos[("cnt",)], issued)
        A(f"v_cmp_gt_u32 vcc, 32, {tCNT}")
        if not o["nosig"]: A("s_cbranch_vccnz L_cntwait")
        A.label("L_cntok")
    last_soff[0] = None
    while late:
        A(f"s_waitcnt vmcnt({o['Wb'] - 2})"); late_load(2)
    haslate = o["burst"] and bool(Llate) and o["latepos"] != "oproj"
    if haslate and o["latepos"] == "pre": late_w()
    A(f"s_cmp_lg_u32 {sW}, {o['redw']}"); A("s_cbranch_scc1 " + ("L_latew" if haslate and o["latepos"] in ("ack", "post0") else "L_hpoll0"))
    if not o["hbar"]:
        A(f"s_cmp_ge_u32 {sH}, 20"); A("s_cbranch_scc1 L_hpoll0")
    def reduce_stage(lbl, dep):
        def loads():
            for k in range(4): A(f"buffer_load_dwordx4 {vr(G[k],4)}, {tRD}, {srd(sWS)}, {sRD[k]} offen sc1")
        for _ in range(dep - 1): loads()
        A.label(lbl)
        loads()
        spin_guard()
        A(f"s_waitcnt vmcnt({4 * (dep - 1)})")
        regs = [G[k] + j for k in range(4) for j in range(4)]
        if o["tag"] and o["tag1"] and dep > 1:
            A(f"v_bitop3_b32 {v(T)}, {v(G[0])}, {vTG1}, {vMH} bitop3:0xbe")
            for k in range(1, 4): A(f"v_bitop3_b32 {v(T)}, {v(G[k])}, {vTG1}, {v(T)} bitop3:0xbe")
            A(f"v_cmp_ne_u32 vcc, {v(T)}, {vMH}")
        elif o["tag"] and o["tag1"]:
            for k in range(4): A(f"v_xor_b32 {v(G[k])}, {vTG1}, {v(G[k])}")
            A(f"v_or3_b32 {v(T)}, {v(G[0])}, {v(G[1])}, {vMH}")
            A(f"v_or3_b32 {v(T)}, {v(G[2])}, {v(G[3])}, {v(T)}")
            A(f"v_cmp_ne_u32 vcc, {v(T)}, {vMH}")
        else:
            op3, op2 = ("v_or3_b32", "v_or_b32") if o["tag"] else ("v_max3_u32", "v_max_u32")
            if o["tag"]:
                assert dep == 1
                for i_, r_ in enumerate(regs): A(f"v_xor_b32 {v(r_)}, {sTB[i_ & 3]}, {v(r_)}")
            A(f"{op3} {v(T)}, {v(regs[0])}, {v(regs[1])}, {v(regs[2])}")
            A(f"{op3} {v(T+1)}, {v(regs[3])}, {v(regs[4])}, {v(regs[5])}")
            for k in range(6, 16, 2):
                d = v(T + ((k >> 1) & 1))
                A(f"{op3} {d}, {d}, {v(regs[k])}, {v(regs[k+1])}")
            if o["tag"]:
                A(f"v_or3_b32 {v(T)}, {v(T)}, {v(T+1)}, {vMH}")
                A(f"v_cmp_ne_u32 vcc, {v(T)}, {vMH}")
            else:
                A(f"v_max_u32 {v(T)}, {v(T)}, {v(T+1)}")
                A(f"v_cmp_eq_u32 vcc, -1, {v(T)}")
        if o["sleepR"]:
            A(f"s_cbranch_vccz {lbl}_ok"); A(f"s_sleep {o['sleepR']}"); A(f"s_branch {lbl}"); A.label(f"{lbl}_ok")
        else: A(f"s_cbranch_vccnz {lbl}")
        if o["tag"] and o["tag1"] and dep > 1:
            A("s_waitcnt vmcnt(0)")
            for k in range(4): A(f"v_and_b32 {v(G[k])}, {vMH}, {v(G[k])}")
        sum4()
        g = R0
        A(f"v_add_f32_dpp {v(T)}, {v(g)}, {v(g)} row_ror:8 row_mask:0xf bank_mask:0x3")
        A(f"v_add_f32_dpp {v(T+1)}, {v(g+2)}, {v(g+2)} row_ror:8 row_mask:0xf bank_mask:0x3")
        A(f"v_add_f32_dpp {v(T)}, {v(g+1)}, {v(g+1)} row_ror:8 row_mask:0xf bank_mask:0xc")
        A(f"v_add_f32_dpp {v(T+1)}, {v(g+3)}, {v(g+3)} row_ror:8 row_mask:0xf bank_mask:0xc")
        A(f"v_permlane16_swap_b32 {v(T)}, {v(T+1)}")
        A(f"v_add_f32 {v(T)}, {v(T)}, {v(T+1)}")
        A(f"v_mov_b32 {v(T+1)}, {v(T)}")
        A(f"v_permlane32_swap_b32 {v(T)}, {v(T+1)}")
        A(f"v_add_f32 {v(T)}, {v(T)}, {v(T+1)}")
        round_bf16(v(T))
    A(f"v_lshlrev_b32 {tXR}, 16, {tXR}")
    if o["ack1"]: A("s_waitcnt vmcnt(0)")
    if o["flag"]:
        A.label("L_fpoll")
        A(f"buffer_load_dword {v(T)}, {vFL}, {srd(sWS)}, 0 offen sc1")
        spin_guard()
        A("s_waitcnt vmcnt(0)")
        A(f"v_cmp_ne_u32 vcc, {v(T)}, {tCNT}")
        A("s_cbranch_vccnz L_fpoll")
    reduce_stage("L_red1", o["dR"])
    A(f"v_add_f32 {tXR}, {tXR}, {v(T)}")
    if o["tag"]:
        A(f"v_cvt_pk_bf16_f32 {tXR}, {tXR}, {tXR}")
        A(f"v_lshl_or_b32 {v(T)}, {tXR}, 16, {vTGH}")
        A(f"buffer_store_dword {v(T)}, {vHST}, {srd(sWS)}, 0 offen sc1")
        if o["hcopy"]:
            for k in range(1, 4):
                A(f"buffer_store_dword {v(T)}, {vHST}, {srd(sWS)}, s{sU+5+k} offen sc1")
        A(f"v_lshlrev_b32 {tXR}, 16, {tXR}")
    else:
        round_bf16(tXR)
        A(f"buffer_store_dword {tXR}, {vHST}, {srd(sWS)}, 0 offen sc1")
    if o["prof"]:
        A("s_waitcnt lgkmcnt(0)"); stamp()
    def hloads():
        for k in range(4): A(f"buffer_load_dwordx2 {vr(F[k],2)}, {tHL0}, {srd(sWS)}, {sHL[k]} offen sc1")
        A(f"buffer_load_dwordx2 {vr(F[4],2)}, {tHL4}, {srd(sWS)}, 0 offen offset:2048 sc1")
    if haslate and o["latepos"] == "ack":
        assert o["hbar"] and o["ack2"]
        A.label("L_latew")
        if o["redw"] >= 2:
            assert o["nlateW"] == 18
            last_soff[0] = None
            for it in Llate:
                if it["tag"][2] < 2: it["emit"]()
            if o["ackn"] < 4: A(f"s_waitcnt vmcnt({12 + o['ackn']})")
            A(f"s_cmp_ge_u32 {sW}, 2"); A("s_cbranch_scc1 L_hpoll0")
            for it in Llate:
                if it["tag"][2] == 2: it["emit"]()
        else:
            late_w()
            A(f"s_waitcnt vmcnt({len(Llate)})")
    elif haslate and o["latepos"] == "post0":
        A("s_waitcnt vmcnt(0)")
        A("s_barrier")
        hloads(); late_w()
        A(f"s_waitcnt vmcnt({len(Llate)})")
        A("s_branch L_hcheck")
        A.label("L_latew")
        late_w()
    elif o["hbar"] and o["ack2"]: A("s_waitcnt vmcnt(0)")
    A.label("L_hpoll0")
    if o["hbar"]: A("s_barrier")
    if haslate and o["latepos"] == "post":
        hloads(); late_w()
        A(f"s_waitcnt vmcnt({len(Llate)})")
        A("s_branch L_hcheck")
    for _ in range(o["dH"] - 1): hloads()
    A.label("L_hpoll")
    hloads()
    spin_guard()
    A(f"s_waitcnt vmcnt({5 * (o['dH'] - 1)})")
    A.label("L_hcheck")
    if o["tag"] and o["tag1"]:
        assert o["dH"] == 1
        for k in range(5): A(f"v_xor_b32 {v(F[k])}, {vTGC}, {v(F[k])}")
        A(f"v_or3_b32 {v(T)}, {v(F[0])}, {v(F[1])}, {v(F[2])}")
        A(f"v_or3_b32 {v(T)}, {v(F[3])}, {v(F[4])}, {v(T)}")
        A(f"v_cmp_ne_u16 vcc, 0, {v(T)}")
    else:
        op3 = "v_or3_b32" if o["tag"] else "v_max3_u32"
        if o["tag"]:
            assert o["dH"] == 1
            for k in range(5):
                A(f"v_xor_b32 {v(F[k])}, {sTL}, {v(F[k])}"); A(f"v_xor_b32 {v(F[k]+1)}, {sTH}, {v(F[k]+1)}")
        A(f"{op3} {v(T)}, {v(F[0])}, {v(F[0]+1)}, {v(F[1])}")
        A(f"{op3} {v(T+1)}, {v(F[1]+1)}, {v(F[2])}, {v(F[2]+1)}")
        A(f"{op3} {v(T)}, {v(T)}, {v(F[3])}, {v(F[3]+1)}")
        A(f"{op3} {v(T+1)}, {v(T+1)}, {v(F[4])}, {v(F[4]+1)}")
        if o["tag"]:
            A(f"v_or_b32 {v(T)}, {v(T)}, {v(T+1)}")
            A(f"v_cmp_ne_u16 vcc, 0, {v(T)}")
        else:
            A(f"v_max_u32 {v(T)}, {v(T)}, {v(T+1)}")
            A(f"v_cmp_eq_u32 vcc, -1, {v(T)}")
    if o["sleep"]:
        A("s_cbranch_vccz L_hok"); A(f"s_sleep {o['sleep']}"); A("s_branch L_hpoll"); A.label("L_hok")
    else:
        A("s_cbranch_vccnz L_hpoll")
    stamp()
    if o["warm3"]: warm_lines(o["warm3"])
    layernorm(F, Wk, T, S)
    for ins in afrag_oct(AF[0], S, 0): A(ins)
    for u in range(10):
        nxt = afrag_oct(AF[(u + 1) & 1], S + 2 * ((u + 1) >> 3), (u + 1) & 7) if u < 9 else []
        if nxt: A(nxt.pop(0)); A(nxt.pop(0))
        smf(D, AF[u & 1], slots[("w1", u)])
        for ins in nxt: A(ins)
    A(f"v_mov_b32 {v(T+8)}, {hex(LOG2E ^ 0x80000000)}")
    compact([D])
    A(f"ds_write_b32 {vREDW}, {v(D)} offset:{REDZ}")
    A("s_waitcnt lgkmcnt(0)")
    A("s_barrier")
    A(f"ds_read_b128 {vr(T,4)}, {tZR} offset:{REDZ}")
    A(f"ds_read_b128 {vr(T+4,4)}, {tZR} offset:{REDZ+16}")
    for k in range(4): A(f"v_mov_b32 {v(D+k)}, 0")
    for k in range(4): A(f"s_add_u32 {sRD[k]}, {sRD[k]}, {P2 - P1}")
    A("s_waitcnt lgkmcnt(0)")
    A(f"v_pk_add_f32 {vr(T,2)}, {vr(T,2)}, {vr(T+2,2)}")
    A(f"v_pk_add_f32 {vr(T+4,2)}, {vr(T+4,2)}, {vr(T+6,2)}")
    A(f"v_add_f32 {v(T)}, {v(T)}, {v(T+1)}")
    A(f"v_add_f32 {v(T+4)}, {v(T+4)}, {v(T+5)}")
    A(f"v_cvt_pk_bf16_f32 {v(T+1)}, {v(T)}, {v(T+4)}")
    A(f"v_lshlrev_b32 {v(T)}, 16, {v(T+1)}")
    A(f"v_and_b32 {v(T+1)}, 0xffff0000, {v(T+1)}")
    for k in range(2): A(f"v_mul_f32 {v(T+2+k)}, {v(T+k)}, {v(T+8)}")
    for k in range(2): A(f"v_exp_f32 {v(T+2+k)}, {v(T+2+k)}")
    for k in range(2): A(f"v_add_f32 {v(T+2+k)}, 1.0, {v(T+2+k)}")
    for k in range(2): A(f"v_rcp_f32 {v(T+2+k)}, {v(T+2+k)}")
    for k in range(2): A(f"v_mul_f32 {v(T+k)}, {v(T+k)}, {v(T+2+k)}")
    A(f"v_cvt_pk_bf16_f32 {v(S)}, {v(T)}, {v(T+1)}")
    if haslate and o["latepos"] in ("post", "post0"):
        assert o["nlateW"] <= 18
        A("s_waitcnt vmcnt(0)")
    def af_quad(dst, u): return [f"v_and_b32_dpp {v(dst+k)}, {v(S)}, {v(MK[k])} quad_perm:[{u},{u},{u},{u}] {DPPF}" for k in range(4)]
    for ins in af_quad(AF[0], 0): A(ins)
    for u in range(3):
        nxt = af_quad(AF[(u + 1) & 1], u + 1) if u < 2 else []
        if nxt: A(nxt.pop(0)); A(nxt.pop(0))
        for blk in range(3):
            smf(D + 4 * blk, AF[u & 1], slots[("w2", u, blk)])
            if nxt: A(nxt.pop(0))
    X, Y, Z = D, D + 4, D + 8
    for e in range(4): A(f"v_permlane32_swap_b32 {v(X+e)}, {v(Y+e)}")
    for e in range(4): A(f"v_add_f32_dpp {v(X+e)}, {v(Y+e)}, {v(X+e)} row_ror:8 row_mask:0xf bank_mask:0x3")
    for e in range(4): A(f"v_permlane32_swap_b32 {v(Y+e)}, {v(Z+e)}")
    for e in range(4): A(f"v_add_f32_dpp {v(X+e)}, {v(Y+e)}, {v(Z+e)} row_ror:8 row_mask:0xc bank_mask:0xc")
    seal(X)
    A(f"buffer_store_dwordx4 {vr(X,4)}, {tP2ST}, {srd(sWS)}, 0 offen sc1")
    stamp()
    fin = "L_prof" if o["prof"] else "L_end"
    A(f"s_cmp_lg_u32 {sW}, {o['redw']}"); A(f"s_cbranch_scc1 {fin}")
    A(f"s_cmp_ge_u32 {sH}, 20"); A(f"s_cbranch_scc1 {fin}")
    if o["ack3"]: A("s_waitcnt vmcnt(0)")
    reduce_stage("L_red2", o.get("dR2", 1))
    A(f"v_add_f32 {v(T)}, {tXR}, {v(T)}")
    A(f"v_cvt_pk_bf16_f32 {v(T)}, {v(T)}, {v(T)}")
    A(f"buffer_store_short {v(T)}, {tOUT}, {srd(sOUT)}, 0 offen {o['polO']}")
    if o["prof"]:
        A.label("L_prof")
        stamp()
        A("s_getreg_b32 s25, hwreg(HW_REG_XCC_ID)")
        A("s_waitcnt lgkmcnt(0)")
        A(f"s_lshl_b32 {sA}, s2, 2"); A(f"s_add_u32 {sA}, {sA}, {sW}"); A(f"s_lshl_b32 {sA}, {sA}, 6"); A(f"s_add_u32 {sA}, {sA}, {PROF}")
        for k in range(nstamp[0]):
            A(f"v_mov_b32 {v(T)}, s{4+2*k}")
            A(f"buffer_store_dword {v(T)}, off, {srd(sWS)}, {sA} offset:{4*k}")
        A(f"v_mov_b32 {v(T)}, s25"); A(f"buffer_store_dword {v(T)}, off, {srd(sWS)}, {sA} offset:56")
        A(f"v_mov_b32 {v(T)}, {'s0' if o['probe'] else sSPIN}"); A(f"buffer_store_dword {v(T)}, off, {srd(sWS)}, {sA} offset:60")
    A.label("L_end")
    A("s_endpgm")
    A.label("L_cntwait")
    if o["tag"]: A(f"s_mov_b32 {sT2}, 0")
    else: A(f"s_lshl_b32 {sT2}, {sB}, 5")
    if o["dyn"]: A(f"buffer_load_dwordx2 {vr(T+8,2)}, off, {srd(sDBG)}, 0 sc1")
    else: A(f"buffer_load_dword {tCNT}, off, {srd(sDBG)}, {sT2} sc1")
    spin_guard()
    A("s_waitcnt vmcnt(0)")
    if o["tag"]: A(f"v_cmp_eq_u32 vcc, 0, {v(T+8) if o['dyn'] else tCNT}")
    else: A(f"v_cmp_gt_u32 vcc, 32, {tCNT}")
    A("s_cbranch_vccnz L_cntwait")
    A.label("L_last")
    A("s_branch L_cntok")
    if o["burst"] and o["dsig"]:
        A.label("L_signal"); signal_body(); A(f"s_setpc_b64 {sRA}")
    for nm, lst, snap in subs:
        A.label(f"L_burst_{nm}")
        slots.clear(); slots.update(snap); last_soff[0] = None
        for i, it in enumerate(lst):
            if nm in o["skip"]: break
            if i % 2 == 0: A(f"s_waitcnt vmcnt({o['Wb'] - 2})")
            it["emit"]()
        A(f"s_setpc_b64 {sRA}")
    A.label("L_codeend")
    A.raw('.section .rodata,"a"'); A.raw(".p2align 6"); A.raw(f".amdhsa_kernel {KNAME}")
    A.raw("  .amdhsa_next_free_vgpr 512"); A.raw("  .amdhsa_next_free_sgpr 102"); A.raw("  .amdhsa_accum_offset 256")
    A.raw("  .amdhsa_float_denorm_mode_32 3")
    A.raw("  .amdhsa_group_segment_fixed_size 0"); A.raw("  .amdhsa_kernarg_size 88"); A.raw("  .amdhsa_user_sgpr_count 2")
    A.raw("  .amdhsa_user_sgpr_kernarg_segment_ptr 1"); A.raw("  .amdhsa_system_sgpr_workgroup_id_x 1"); A.raw(".end_amdhsa_kernel")
    o["_nstamp"] = nstamp[0]
    txt = A.text()
    if o["align"]:
        from align import align
        txt, o["_prom"], o["_nops"] = align(txt, o["align"])
    return txt, o

if __name__ == "__main__":
    out = sys.argv[1]
    kw = eval("dict(" + (sys.argv[2] if len(sys.argv) > 2 else "") + ")")
    txt, o = gen(**kw)
    open(out, "w").write(txt)
    print("forced", o["_forced"], "lines", txt.count("\n"))
```

```python
import sys, os
sys.path.insert(0, os.path.dirname(os.path.abspath(__file__)))
from asmlib import Asm

NAME = "sequential_preLN__sliding_block_cached__dense_activation_silu__decode"
KNAME = NAME + "_kernel"

DEF = dict(
    WA=15, WB=12, WC=12,
    nKA=30,
    nWOB=30,
    rot=5,
    polKV="nt", polW="",
    prof=False,
    wlast=0,
    codepf=True,
    burst=True, W=12, Wb=12,
    grp="b",
    a0=7, da=8, b0=94, db=8, c0=162, dc=3, tlead=14, touch64=False, touch=True, polT="", polT2=None, skip=(), notail=False, sleep=0, dR=1, dH=1, ack3=True, hbar=True, ack2=True, Ws=None, perm=False, nosig=False, noclr=False, sig0=46, dsig=0, xorid=0, hcopy=True, p32=False, nlateW=18, w1bal=True, tlate=192, latepos="ack", align="L_tail", redw=3, nsplit=9, ackn=0, par=None, dup16=False, probe=None, dyn=(24, 34, 44, 54), ordx=(0, 0, 0), early=True, nfill=1, sleepR=0, flag=0, fstr=128, offs=(172, 172, 168), batch=1, vorder="t", umode="int", dw=(0, 0), rot2=0, tag1=True, tsplit=True, kfirst=True, polO="", ack1=False, warm=6, warm2=0, warm3=4, pf8=True, polWm="", warmpos=192, tag=True, nL=12, rL=4, tqs=None, tws=4, dtw=3, qkcost=0.5, pf0=True, st0=False, tB=None, tC=None, polC="sc1", clrpos=6, w12late=False, n1=6, n2=14,
    spin=200000,
)

RED, QB, SM, RED2, REDZ, LDS_BYTES = 0, 3072, 4608, 5120, 17408, 18432
P1, P2, HB, FLB, PROF, PRB = 0, 0x200000, 0x400000, 0x600000, 0x800000, 0x480000
OOB = 0x40000000
LOG2E = 0x3fb8aa3b
import struct
def fbits(x): return struct.unpack("<I", struct.pack("<f", x))[0]

def gen(**kw):
    o = dict(DEF); o.update(kw)
    A = Asm()
    hdr = open(os.path.join(os.path.dirname(os.path.abspath(__file__)), "..", "cdna_kernels", NAME + ".s.ref")).read().splitlines()
    for ln in hdr:
        if ln.startswith("; Override") : break
        A.raw(ln)
    KL = RED2
    if o["dyn"]: o["par"] = 0
    numa = o["par"] is not None
    P2 = 0xC0000 if numa else globals()["P2"]
    HB = 0x180000 if numa else globals()["HB"]
    PRB = 0x1C0000
    HS = 8192 if numa else 0x10000
    PS = o.get("PS", 4096 if o["p32"] else 2560)
    assert o["tag"] or not o["p32"]
    lds_bytes = max(LDS_BYTES, KL + 4 * o["nL"] * 3072)
    assert lds_bytes <= 163840 and o["nL"] % 2 == 0
    A.raw(f"; @launch grid=(256,1,1) block=(256,1,1) lds={lds_bytes}")
    A.raw('.amdgcn_target "amdgcn-amd-amdhsa--gfx950"')
    A.raw(".text"); A.raw(f".globl {KNAME}"); A.raw(".p2align 8"); A.raw(f".type {KNAME},@function"); A.label(KNAME)

    sW, sB, sH = "s3", "s26", "s27"
    sX, sK, sV, sWQ, sWO, sW1, sW2, sOUT, sDBG, sWS = [28 + 4 * i for i in range(10)]
    srd = lambda n: f"s[{n}:{n+3}]"
    sU = 68
    sT = "s84"
    sQB0, sQB1, sF0, sF1, sZ = "s86", "s87", "s88", "s89", "s1"
    sLM = "s[92:93]"
    sA, sC, sD, sE = "s94", "s95", "s96", "s97"
    sSPIN = "s98"
    sPC = 100
    vL, vK, vV, vWQ, vWO, vW2, vW1, vIDX = [f"v{i}" for i in range(8)]
    MK = [8, 9, 10, 11]
    AF = [12, 16]
    D = 20
    Q = 32
    S = 44
    T = 48
    vHST, vP1ST, vREDW = "v61", "v62", "v63"
    tO_R, tR2W, tR2R, tCNT, tRD, tPF, tHL0, tHL4, tZR, tP2ST, tOUT, tXR = [f"v{Q+i}" for i in range(12)]
    v = lambda n: f"v{n}"
    vr = lambda n, k: f"v[{n}:{n+k-1}]"
    nstamp = [0]
    def stamp():
        if o["prof"]:
            k = nstamp[0]; nstamp[0] += 1
            assert k < 11
            A(f"s_memrealtime s[{4+2*k}:{5+2*k}]")

    if o["early"]:
        A("s_load_dwordx8 s[4:11], s[0:1], 0")
    else:
        A("s_load_dwordx16 s[4:19], s[0:1], 0")
        A("s_load_dwordx4 s[20:23], s[0:1], 64")
        A("s_load_dwordx2 s[24:25], s[0:1], 80")
    A("s_cmpk_ge_u32 s2, 256")
    A("s_cbranch_scc1 L_end")
    if o["xorid"]: A(f"s_xor_b32 s2, s2, {o['xorid']}")
    if o["perm"]:
        A("s_lshr_b32 s3, s2, 3"); A("s_add_u32 s3, s3, s2"); A("s_and_b32 s3, s3, 7"); A("s_and_b32 s2, s2, 0xf8"); A("s_or_b32 s2, s2, s3")
    if o["prof"]: A("s_memrealtime s[100:101]")
    A(f"v_readfirstlane_b32 {sW}, v0")
    A(f"v_and_b32 {vL}, 63, v0")
    A(f"s_lshr_b32 {sW}, {sW}, 6")
    A(f"s_lshr_b32 {sB}, s2, 5")
    A(f"s_and_b32 {sH}, s2, 31")
    vR8, vC, t0, t1, t2, t3 = v(T+7), v(T+8), v(T+9), v(T+10), v(T+11), v(T+12)
    def code_pf0():
        A("s_cmp_ge_u32 s2, 8"); A("s_cbranch_scc1 L_nopf0")
        A(f"s_getpc_b64 s[{sOUT}:{sOUT+1}]")
        A.label("L_pc0")
        A(f"s_lshl_b32 {sT}, {sW}, 13")
        A(f"v_lshl_add_u32 {v(Q+2)}, {vL}, 7, {sT}")
        A(f"v_min_u32 {v(Q+2)}, L_codeend-L_pc0-4, {v(Q+2)}")
        A(f"global_load_dword {v(Q+2)}, {v(Q+2)}, s[{sOUT}:{sOUT+1}]")
        A.label("L_nopf0")
    if o["early"]:
        assert o["burst"] and o["touch"] and not o["tqs"] and o["polT2"] is None
        if o["pf0"]: code_pf0()
        A(f"v_min_u32 {v(Q+1)}, 59, {vL}")
        A(f"v_mul_u32_u24 {v(Q)}, 21846, {v(Q+1)}"); A(f"v_lshrrev_b32 {v(Q)}, 16, {v(Q)}")
        A(f"v_mul_u32_u24 {v(Q)}, {12288 - 3*128}, {v(Q)}"); A(f"v_lshl_add_u32 {v(Q+1)}, {v(Q+1)}, 7, {v(Q)}")
        A(f"s_lshl2_add_u32 s99, {sB}, {sW}"); A(f"s_mul_i32 s99, s99, {20*12288}")
        A(f"s_mul_i32 {sD}, {sH}, 384")
        A(f"s_sub_u32 s{sWQ+2}, {640*12288}, {sD}"); A(f"s_mov_b32 s{sWQ+3}, 0x20000")
        early_bytes = [len(A.lines)]
        def first_request():
            A("s_waitcnt lgkmcnt(0)")
            if o["st0"]: A("s_memrealtime s[72:73]")
            A(f"s_add_u32 s{sWQ}, s10, {sD}"); A(f"s_addc_u32 s{sWQ+1}, s11, 0")
            A(f"buffer_load_dword {v(Q)}, {v(Q+1)}, {srd(sWQ)}, s99 offen {o['polT']}")
            A.label("L_first")
            A("s_load_dwordx8 s[12:19], s[0:1], 32")
            A("s_load_dwordx4 s[20:23], s[0:1], 64")
            A("s_load_dwordx2 s[24:25], s[0:1], 80")
        if o["nfill"] == 0: first_request()
    A(f"v_lshrrev_b32 {vR8}, 3, {vL}")
    A(f"v_and_b32 {vC}, 7, {vL}")
    A(f"v_lshlrev_b32 {v(T+5)}, 2, {vL}")
    A(f"s_lshl_b32 {sA}, {sW}, 3")
    A(f"v_xor_b32 {v(T+6)}, {sA}, {v(T+5)}")
    A(f"v_and_b32 {t0}, 32, {vL}")
    A(f"v_bfe_u32 {t1}, {vL}, 3, 1")
    A(f"v_bfe_u32 {t2}, {vL}, 4, 1")
    A(f"v_lshl_add_u32 {t3}, {t1}, 4, {t0}")
    A(f"v_add_u32 {t3}, {t3}, {t2}")
    A(f"v_mul_u32_u24 {t3}, 12288, {t3}")
    A(f"v_lshl_add_u32 {vWQ}, {vC}, 4, {t3}")
    if o["early"] and o["nfill"] == 1: first_request()
    if o["offs"]:
        A(f"v_lshrrev_b32 {t3}, 4, {vL}")
    else:
        A(f"v_lshrrev_b32 {t3}, 2, {t0}")
        A(f"v_lshl_add_u32 {t3}, {t2}, 2, {t3}")
        A(f"v_add_u32 {t3}, {t3}, {t1}")
    A(f"v_mul_u32_u24 {t3}, 384, {t3}")
    A(f"v_lshl_add_u32 {vK}, {vC}, 4, {t3}")
    if o["early"] and o["nfill"] == 2: first_request()
    A(f"s_mul_i32 {sA}, s2, 1572864")
    A(f"s_add_u32 {sA}, {sA}, 1179648")
    A(f"s_mul_i32 {sC}, {sB}, 1280")
    if not o["early"]: A(f"s_mul_i32 {sD}, {sH}, 384")
    A(f"s_mul_i32 {sQB0}, {sW}, {128*12288}")
    sE2 = "s0"
    A(f"s_mul_i32 {sE}, s2, {o['rot']}")
    if o["rot2"]:
        A(f"s_lshr_b32 s{sU}, s2, {o['rot2'][0]}"); A(f"s_mul_i32 s{sU}, s{sU}, {o['rot2'][1]}"); A(f"s_add_u32 {sE}, {sE}, s{sU}")
    if o["umode"] == "int":
        A(f"s_add_u32 {sE}, {sE}, {sW}")
    elif o["umode"] == "blk":
        A(f"s_mul_i32 s{sU}, {sW}, {o['dw'][0]}"); A(f"s_lshr_b32 s{sU}, s{sU}, {o['dw'][1]}"); A(f"s_add_u32 {sE}, {sE}, s{sU}")
    else:
        A(f"s_and_b32 s{sU}, {sW}, 1"); A(f"s_add_u32 {sE}, {sE}, s{sU}")
        A(f"s_lshr_b32 s{sU}, {sW}, 1"); A(f"s_mul_i32 s{sU}, s{sU}, {o['dw'][0]}"); A(f"s_add_u32 {sE}, {sE}, s{sU}")
    def unit_off(n):
        d = f"s{sU+n}"
        if o["umode"] == "int":
            A(f"s_add_u32 {d}, {sE}, {4*n}"); A(f"s_and_b32 {d}, {d}, 63")
        elif o["umode"] == "blk":
            A(f"s_add_u32 {d}, {sE}, {n}"); A(f"s_and_b32 {d}, {d}, 15")
            A(f"s_lshl4_add_u32 {d}, {sW}, {d}")
        else:
            A(f"s_add_u32 {d}, {sE}, {2*(n & 7)}"); A(f"s_and_b32 {d}, {d}, 15")
            A(f"s_lshr_b32 {sT}, {sW}, 1"); A(f"s_lshl4_add_u32 {d}, {sT}, {d}"); A(f"s_add_u32 {d}, {d}, {32*(n >> 3)}")
        A(f"s_mulk_i32 {d}, 6144")
    offs = o["offs"]
    sSO, sCO, sCD = [f"s{sU+10}", f"s{sU+11}"], [f"s{sU+12}", f"s{sU+13}"], [f"s{sU+14}", f"s{sU+15}"]
    sP0, sP1, sP2, sP3 = f"s{sU}", f"s{sU+1}", f"s{sU+2}", f"s{sU+3}"
    if offs:
        assert sum(offs) == 512 and all(x % 4 == 0 for x in offs) and o["umode"] == "int"
        jst = [sum(offs[:k]) // 4 for k in range(len(offs))]
        for k in range(1, len(offs)): assert jst[k] % 2 == 0 or offs[k] == offs[k - 1]
        for r_ in sCO + sCD: A(f"s_mov_b32 {r_}, 0")
        unit_off = lambda n: None
    def half_params(n, hB, dB, dO):
        A(f"s_add_u32 {sP3}, {sE}, {4*n}"); A(f"s_and_b32 {sP3}, {sP3}, 63")
        A(f"s_lshl1_add_u32 {sP3}, {sP3}, {hB}")
        A(f"s_mul_i32 {dB}, {sP3}, 1536")
        if dO: A(f"s_mov_b32 {dO}, {offs[0] * 384}")
        for k in range(1, len(offs)):
            A(f"s_cmp_ge_u32 {sP3}, {jst[k]}")
            if dO and offs[k] != offs[k - 1]: A(f"s_cselect_b32 {dO}, {offs[k] * 384}, {dO}")
            A(f"s_cselect_b32 {sP2}, {offs[k - 1] * 384}, 0")
            A(f"s_add_u32 {dB}, {dB}, {sP2}")
    def lane_add(reg, mask, cur, new):
        A(f"s_sub_u32 {sP2}, {new}, {cur}"); A(f"s_mov_b32 {cur}, {new}")
        A(f"s_mov_b32 exec_lo, {hex(mask)}"); A(f"s_mov_b32 exec_hi, {hex(mask)}")
        A(f"v_add_u32 {reg}, {sP2}, {reg}")
        A("s_mov_b64 exec, -1")
    def k_addr(n, hB):
        half_params(n, hB, sSO[0], sP0); lane_add(vK, 0xff00ff00, sCO[1], sP0)
    def v_addr(n):
        p_ = n & 1; reg = (vV, vK)[p_]
        if n == 1:
            A(f"v_mov_b32 {vK}, {vV}"); A(f"s_mov_b32 {sCO[1]}, {sCO[0]}"); A(f"s_mov_b32 {sCD[1]}, {sCD[0]}")
        half_params(n, 0, sSO[p_], sP0); half_params(n, 1, sP1, None)
        A(f"s_sub_u32 {sP1}, {sP1}, {sSO[p_]}")
        lane_add(reg, 0xff00ff00, sCO[p_], sP0); lane_add(reg, 0xffff0000, sCD[p_], sP1)
    unit_off(0)
    sKL = "s90"
    if o["nL"]:
        A(f"s_mul_i32 {sKL}, {sW}, {o['nL'] * 3072}"); A(f"s_add_u32 {sKL}, {sKL}, {KL}")
    sG, sRA, sT2, sGT, sSG = "s85", "s[76:77]", "s91", "s99", "s98"
    vT1, vT2 = v(Q), v(Q + 1)
    if o["burst"]:
        sRA = f"s[{sPC}:{sPC+1}]"
        sQT = sGT
        if not o["early"]:
            A(f"v_mul_u32_u24 {vT1}, 21846, {vL}"); A(f"v_lshrrev_b32 {vT1}, 16, {vT1}")
            A(f"v_mul_u32_u24 {vT2}, {12288 - 3*128}, {vT1}"); A(f"v_lshl_add_u32 {vT2}, {vL}, 7, {vT2}")
            A(f"s_lshl_b32 {sQT}, {sB}, 2"); A(f"s_add_u32 {sQT}, {sQT}, {sW}"); A(f"s_mul_i32 {sQT}, {sQT}, {20*12288}")
        if o["grp"] == "h":
            A(f"s_lshr_b32 {sG}, {sH}, 3"); A(f"s_mov_b32 {sGT}, {sG}")
        elif o["grp"] == "hb":
            A(f"s_lshr_b32 {sGT}, {sH}, 3"); A(f"s_lshl_b32 {sGT}, {sGT}, 1"); A(f"s_and_b32 {sG}, {sB}, 1"); A(f"s_add_u32 {sG}, {sG}, {sGT}")
        else:
            A(f"s_mov_b32 {sG}, {sB}")
    if offs: k_addr(0, 0)
    A(f"s_mov_b32 s{sX+2}, 1280"); A(f"s_mov_b32 s{sX+3}, 0x20000")
    A(f"s_mov_b32 s{sK+2}, 393216"); A(f"s_mov_b32 s{sK+3}, 0x20000")
    if not o["early"]:
        A(f"s_sub_u32 s{sWQ+2}, {640*12288}, {sD}"); A(f"s_mov_b32 s{sWQ+3}, 0x20000")
        if o["pf0"]: code_pf0()
        A("s_waitcnt lgkmcnt(0)")
        if o["st0"]: A("s_memrealtime s[72:73]")
    A(f"s_add_u32 s{sX}, s4, {sC}"); A(f"s_addc_u32 s{sX+1}, s5, 0")
    A(f"s_add_u32 s{sK}, s6, {sA}"); A(f"s_addc_u32 s{sK+1}, s7, 0")
    if not o["early"]:
        A(f"s_add_u32 s{sWQ}, s10, {sD}"); A(f"s_addc_u32 s{sWQ+1}, s11, 0")

    sR, sQ = "s72", "s73"
    def v_page(reg, tmp, sbase):
        if o["dyn"]:
            A(f"v_add_u32 {tmp}, {sR}, {reg}"); A(f"v_bfi_b32 {reg}, 7, {tmp}, {reg}")
        A(f"v_bfe_u32 {tmp}, {reg}, 1, 2"); A(f"v_mul_u32_u24 {tmp}, 5, {tmp}")
        A(f"v_bfi_b32 {reg}, 6, {tmp}, {reg}")
        if o["dyn"]: A(f"v_xor_b32 {reg}, {sQ}, {reg}")
        elif o["par"]: A(f"v_xor_b32 {reg}, 2, {reg}")
        A(f"v_lshl_add_u32 {reg}, {reg}, 12, {sbase}")
    def s_page(reg, tmp):
        if o["dyn"]:
            A(f"s_add_u32 {tmp}, {reg}, {sR}"); A(f"s_and_b32 {tmp}, {tmp}, 7"); A(f"s_and_b32 {reg}, {reg}, 0x38"); A(f"s_or_b32 {reg}, {reg}, {tmp}")
        A(f"s_bfe_u32 {tmp}, {reg}, 0x20001"); A(f"s_mul_i32 {tmp}, {tmp}, 5"); A(f"s_and_b32 {tmp}, {tmp}, 6")
        A(f"s_and_b32 {reg}, {reg}, 0x39"); A(f"s_or_b32 {reg}, {reg}, {tmp}")
        if o["dyn"]: A(f"s_xor_b32 {reg}, {reg}, {sQ}")
        elif o["par"]: A(f"s_xor_b32 {reg}, {reg}, 2")
        A(f"s_lshl_b32 {reg}, {reg}, 12")
    def late_setup():
        if o["early"]: A("s_waitcnt lgkmcnt(0)")
        A(f"s_add_u32 s{sV}, s8, {sA}"); A(f"s_addc_u32 s{sV+1}, s9, 0")
        A(f"s_mov_b32 s{sV+2}, 393216"); A(f"s_mov_b32 s{sV+3}, 0x20000")
        A(f"s_add_u32 s{sOUT}, s20, {sC}"); A(f"s_addc_u32 s{sOUT+1}, s21, 0")
        A(f"s_mov_b32 s{sOUT+2}, 1280"); A(f"s_mov_b32 s{sOUT+3}, 0x20000")
        A(f"s_mul_i32 {sD}, {sH}, 245760")
        A(f"s_add_u32 s{sWO}, s12, {sD}"); A(f"s_addc_u32 s{sWO+1}, s13, 0")
        A(f"s_mov_b32 s{sWO+2}, 245760"); A(f"s_mov_b32 s{sWO+3}, 0x20000")
        A(f"s_and_b32 {sA}, {sH}, 7"); A(f"s_lshl_b32 {sA}, {sA}, 2"); A(f"s_lshr_b32 {sC}, {sH}, 3"); A(f"s_add_u32 {sA}, {sA}, {sC}")
        if o["w1bal"]:
            A(f"s_and_b32 {sD}, {sH}, 7"); A(f"s_mul_i32 {sD}, {sD}, 384")
        else: A(f"s_mul_i32 {sD}, {sA}, 96")
        A(f"s_add_u32 s{sW1}, s16, {sD}"); A(f"s_addc_u32 s{sW1+1}, s17, 0")
        A(f"s_sub_u32 s{sW1+2}, {640*3072}, {sD}"); A(f"s_mov_b32 s{sW1+3}, 0x20000")
        A(f"s_mul_i32 {sD}, {sA}, 61440")
        A(f"s_add_u32 s{sW2}, s18, {sD}"); A(f"s_addc_u32 s{sW2+1}, s19, 0")
        A(f"s_mov_b32 s{sW2+2}, 61440"); A(f"s_mov_b32 s{sW2+3}, 0x20000")
        A(f"s_mov_b32 s{sDBG}, s22"); A(f"s_mov_b32 s{sDBG+1}, s23"); A(f"s_mov_b32 s{sDBG+2}, 256"); A(f"s_mov_b32 s{sDBG+3}, 0x20000")
        A(f"s_mov_b32 s{sWS}, s24"); A(f"s_mov_b32 s{sWS+1}, s25"); A(f"s_mov_b32 s{sWS+2}, 0x1000000"); A(f"s_mov_b32 s{sWS+3}, 0x20000")
        if o["prof"]:
            A("s_mov_b32 s4, s100"); nstamp[0] = 1
            if o["st0"]:
                A("s_waitcnt lgkmcnt(0)"); A("s_mov_b32 s6, s72"); A("s_memrealtime s[8:9]"); nstamp[0] = 3
        for n in range(1, 16): unit_off(n)
        A(f"s_lshl_b32 {sA}, {sW}, 2"); A(f"s_add_u32 {sA}, {sA}, 512"); A(f"s_mul_i32 {sQB1}, {sA}, 12288")
        A(f"s_mul_i32 {sF0}, {sW}, {128*3072}")
        A(f"s_and_b32 {sA}, {sW}, 1"); A(f"s_lshl_b32 {sA}, {sA}, 5"); A(f"s_lshr_b32 {sC}, {sW}, 1"); A(f"s_add_u32 {sA}, {sA}, {sC}")
        A(f"s_add_u32 {sA}, {sA}, 512"); A(f"s_mul_i32 {sF1}, {sA}, 3072")
        A(f"s_sub_u32 {sA}, 8, {sW}"); A(f"s_lshl_b32 {sA}, {sA}, 7"); A(f"s_cmp_lt_u32 {sW}, 2"); A(f"s_cselect_b32 {sZ}, {sA}, 0x100000")
        A("s_mov_b32 s92, 0x01010101"); A("s_mov_b32 s93, 0x01010101")
        A(f"s_lshr_b32 {sSG}, s2, 3"); A(f"s_cmp_eq_u32 {sW}, 0"); A(f"s_cselect_b32 {sSG}, {sSG}, 64")
        if o["offs"]: A(f"v_mul_u32_u24 {t3}, 12, {t0}")
        else: A(f"v_mul_u32_u24 {t3}, 384, {vR8}")
        A(f"v_lshl_add_u32 {vV}, {vC}, 4, {t3}")
        A(f"v_lshrrev_b32 {t3}, 4, {vL}"); A(f"s_mul_i32 {sA}, {sW}, {16 if o['tsplit'] else 48}"); A(f"v_add_u32 {t3}, {sA}, {t3}")
        A(f"v_mul_u32_u24 {t3}, 1280, {t3}"); A(f"v_and_b32 {vWO}, 15, {vL}"); A(f"v_lshl_add_u32 {vWO}, {vWO}, 4, {t3}")
        A(f"v_lshrrev_b32 {t3}, 3, {t0}")
        A(f"v_lshl_add_u32 {t3}, {t1}, 1, {t3}")
        A(f"v_lshl_add_u32 {vW1}, {t2}, 3, {t3}")
        A(f"v_mul_u32_u24 {vW1}, 3072, {vW1}")
        A(f"v_min_u32 {vW2}, 5, {vC}")
        A(f"v_lshl_add_u32 {vW1}, {vW2}, 4, {vW1}")
        if o["w1bal"]:
            A(f"s_lshr_b32 {sA}, {sH}, 3"); A(f"s_mul_i32 {sA}, {sA}, 96"); A(f"v_add_u32 {vW1}, {sA}, {vW1}")
        A(f"v_add_u32 {t3}, {t3}, {t2}")
        A(f"v_mul_u32_u24 {t3}, 1280, {t3}")
        A(f"v_lshl_add_u32 {t3}, {vC}, 4, {t3}")
        A(f"s_lshl_b32 {sA}, {sW}, 8")
        A(f"v_add_u32 {vW2}, {sA}, {t3}")
        A(f"v_cmp_gt_u32 vcc, 4, {vC}")
        A(f"v_mov_b32 {t3}, 0xffff")
        A(f"v_and_b32 {vIDX}, 3, {vC}")
        A(f"v_cndmask_b32 {v(MK[0])}, 0, {t3}, vcc")
        A(f"v_mul_u32_u24 {vIDX}, 0x5555, {vIDX}")
        A(f"v_xor_b32 {v(MK[1])}, {t3}, {v(MK[0])}")
        A(f"v_lshlrev_b32 {v(MK[2])}, 16, {v(MK[0])}")
        A(f"v_lshlrev_b32 {v(MK[3])}, 16, {v(MK[1])}")
        A(f"v_lshrrev_b32 {t3}, 5, {vL}")
        A(f"v_lshl_add_u32 {t3}, {t1}, 1, {t3}")
        A(f"v_lshl_add_u32 {t3}, {t2}, 2, {t3}")
        A(f"v_lshl_add_u32 {t3}, {vC}, 3, {t3}")
        A(f"s_lshl_b32 {sA}, {sW}, 2")
        A(f"v_lshl_add_u32 {vREDW}, {t3}, 4, {sA}")
        if numa:
            A(f"v_mov_b32 {t3}, {OOB}")
            A(f"s_lshl_b32 {sA}, {sB}, 15"); A(f"s_lshl_b32 {sC}, {sH}, 7"); A(f"s_add_u32 {sA}, {sA}, {sC}"); A(f"s_add_u32 {sA}, {sA}, {HB}")
            A(f"s_cmp_eq_u32 {sW}, {o['redw']}"); A(f"s_cselect_b32 {sC}, 64, 0")
            A(f"v_and_b32 {vHST}, 31, {vL}"); A(f"v_lshl_add_u32 {vHST}, {vHST}, 2, {sA}")
            A(f"v_lshl_add_u32 {vHST}, {t0}, 7, {vHST}")
            A(f"v_cmp_gt_u32 vcc, {sC}, {vL}")
        else:
            A(f"s_mul_i32 {sA}, s2, {PS}"); A(f"s_mul_i32 {sC}, {sW}, 640"); A(f"s_add_u32 {sC}, {sA}, {sC}")
            A(f"v_lshl_add_u32 {vP1ST}, {vL}, 4, {sC}")
            if o["p32"]:
                A(f"s_mul_i32 {sC}, {sW}, 384"); A(f"s_add_u32 {sC}, {sA}, {sC}"); A(f"s_add_u32 {sC}, {sC}, {2560 - 640}")
                A(f"v_lshl_add_u32 {vHST}, {vL}, 4, {sC}")
            A(f"v_mov_b32 {t3}, {OOB}")
            A(f"v_cmp_gt_u32 vcc, 40, {vL}")
            A(f"s_mul_i32 {sA}, {sB}, 2560"); A(f"s_lshl_b32 {sC}, {sH}, 7"); A(f"s_add_u32 {sA}, {sA}, {sC}"); A(f"s_add_u32 {sA}, {sA}, {HB}")
            A(f"v_cndmask_b32 {vP1ST}, {vHST if o['p32'] else t3}, {vP1ST}, vcc")
            if o["hbar"]:
                A(f"s_lshl_b32 {sC}, s2, 7"); A(f"s_add_u32 {sC}, {sC}, {HB + 0x80000}")
                A(f"s_cmp_lt_u32 {sH}, 20"); A(f"s_cselect_b32 {sA}, {sA}, {sC}")
                A(f"s_cmp_eq_u32 {sW}, {o['redw']}"); A(f"s_cselect_b32 {sC}, 32, 0")
            else:
                A(f"s_cmp_lt_u32 {sH}, 20"); A(f"s_cselect_b32 {sC}, 32, 0"); A(f"s_cmp_eq_u32 {sW}, 0"); A(f"s_cselect_b32 {sC}, {sC}, 0")
            if o["hcopy"]:
                A(f"v_and_b32 {vHST}, 31, {vL}"); A(f"v_lshl_add_u32 {vHST}, {vHST}, 2, {sA}")
                A(f"v_lshl_add_u32 {vHST}, {t0}, 10, {vHST}"); A(f"s_lshl_b32 {sC}, {sC}, 1")
            else:
                A(f"v_lshl_add_u32 {vHST}, {vL}, 2, {sA}")
            A(f"v_cmp_gt_u32 vcc, {sC}, {vL}")
        if not o["tag"]:
            for k in range(4): A(f"v_mov_b32 {v(AF[1]+k)}, -1")
        A(f"v_cndmask_b32 {vHST}, {t3}, {vHST}, vcc")
        if o["dyn"]: A("s_mov_b32 s0, 0")
        if o["tag"] and not o["dyn"]:
            A(f"s_or_b32 {sA}, s2, {sW}"); A("s_cbranch_scc1 L_nononce")
            A(f"s_memrealtime s[{sPC}:{sPC+1}]"); A("s_waitcnt lgkmcnt(0)")
            A(f"s_mul_i32 {sA}, s{sPC}, 0x9e3779b1"); A(f"s_max_u32 {sA}, {sA}, 1")
            A("s_mov_b64 exec, 1")
            A(f"v_mov_b32 {t3}, {sA}")
            A(f"buffer_store_dword {t3}, off, {srd(sDBG)}, 0 sc1")
            A("s_mov_b64 exec, -1")
            A.label("L_nononce")

    DPPF = "row_mask:0xf bank_mask:0xf"
    def wave_reduce(op, reg, sdst, fill=()):
        fill = list(fill)
        steps = [f"quad_perm:[1,0,3,2] {DPPF}", f"quad_perm:[2,3,0,1] {DPPF}", f"row_half_mirror {DPPF}", f"row_mirror {DPPF}",
                 "row_bcast:15 row_mask:0xa bank_mask:0xf", "row_bcast:31 row_mask:0xc bank_mask:0xf"]
        for st in steps:
            for _ in range(2):
                if fill: A(fill.pop(0))
            A(f"{op}_dpp {reg}, {reg}, {reg} {st}")
        if fill: A(fill.pop(0))
        A(f"v_readlane_b32 {sdst}, {reg}, 63")
        for f in fill: A(f)
    def round_bf16(reg):
        A(f"v_cvt_pk_bf16_f32 {reg}, {reg}, {reg}")
        A(f"v_lshlrev_b32 {reg}, 16, {reg}")
    def layernorm(F, Wk, tp, out):
        p = lambda r: vr(r, 2)
        A(f"v_pk_add_f32 {p(tp)}, {p(F[0])}, {p(F[1])}")
        A(f"v_pk_add_f32 {p(tp+2)}, {p(F[2])}, {p(F[3])}")
        A(f"v_pk_add_f32 {p(tp)}, {p(tp)}, {p(F[4])}")
        A(f"v_pk_add_f32 {p(tp)}, {p(tp)}, {p(tp+2)}")
        A(f"v_add_f32 {v(tp)}, {v(tp)}, {v(tp+1)}")
        wave_reduce("v_add_f32", v(tp), sA, fill=[f"v_mov_b32 {v(tp+2)}, {hex(fbits(-1.0/640))}"])
        A(f"v_mul_f32 {v(tp)}, {sA}, {v(tp+2)}")
        A(f"v_mul_f32 {v(tp+1)}, {sA}, {v(tp+2)}")
        A(f"v_pk_add_f32 {p(tp+2)}, {p(F[0])}, {p(tp)}")
        A(f"v_pk_add_f32 {p(Wk[1])}, {p(F[1])}, {p(tp)}")
        A(f"v_pk_mul_f32 {p(tp+2)}, {p(tp+2)}, {p(tp+2)}")
        A(f"v_pk_add_f32 {p(Wk[2])}, {p(F[2])}, {p(tp)}")
        A(f"v_pk_fma_f32 {p(tp+2)}, {p(Wk[1])}, {p(Wk[1])}, {p(tp+2)}")
        A(f"v_pk_add_f32 {p(Wk[3])}, {p(F[3])}, {p(tp)}")
        A(f"v_pk_fma_f32 {p(tp+2)}, {p(Wk[2])}, {p(Wk[2])}, {p(tp+2)}")
        A(f"v_pk_add_f32 {p(Wk[1])}, {p(F[4])}, {p(tp)}")
        A(f"v_pk_fma_f32 {p(tp+2)}, {p(Wk[3])}, {p(Wk[3])}, {p(tp+2)}")
        A(f"v_pk_fma_f32 {p(tp+2)}, {p(Wk[1])}, {p(Wk[1])}, {p(tp+2)}")
        A(f"v_add_f32 {v(tp+2)}, {v(tp+2)}, {v(tp+3)}")
        a, b, c = Wk[0], Wk[4], Wk[1]
        fill = [f"v_cvt_pk_bf16_f32 {v(tp)}, {v(tp)}, {v(tp)}",
                f"v_lshlrev_b32 {v(tp+1)}, 16, {v(tp)}",
                f"v_lshlrev_b32 {v(tp)}, 16, {v(tp)}",
                f"v_pk_add_f32 {p(a)}, {p(F[0])}, {p(tp)}",
                f"v_pk_add_f32 {p(b)}, {p(F[4])}, {p(tp)}",
                f"v_cvt_pk_bf16_f32 {v(c)}, {v(a)}, {v(a+1)}",
                f"v_cvt_pk_bf16_f32 {v(c+1)}, {v(b)}, {v(b+1)}",
                f"v_lshlrev_b32 {v(a)}, 16, {v(c)}",
                f"v_and_b32 {v(a+1)}, 0xffff0000, {v(c)}",
                f"v_lshlrev_b32 {v(b)}, 16, {v(c+1)}",
                f"v_and_b32 {v(b+1)}, 0xffff0000, {v(c+1)}",
                f"v_mov_b32 {v(tp+4)}, {hex(fbits(1.0/640))}"]
        wave_reduce("v_add_f32", v(tp+2), sA, fill=fill)
        A(f"v_mul_f32 {v(tp)}, {sA}, {v(tp+4)}")
        round_bf16(v(tp))
        A(f"v_add_f32 {v(tp)}, {hex(fbits(1e-5))}, {v(tp)}")
        round_bf16(v(tp))
        A(f"v_sqrt_f32 {v(tp)}, {v(tp)}")
        round_bf16(v(tp))
        A(f"v_rcp_f32 {v(tp)}, {v(tp)}")
        A(f"v_mul_f32 {v(a)}, {v(a)}, {v(tp)}")
        A(f"v_mul_f32 {v(a+1)}, {v(a+1)}, {v(tp)}")
        A(f"v_cvt_pk_bf16_f32 {v(out)}, {v(a)}, {v(a+1)}")
        A(f"v_mul_f32 {v(b)}, {v(b)}, {v(tp)}")
        A(f"v_mul_f32 {v(b+1)}, {v(b+1)}, {v(tp)}")
        A(f"v_mov_b32_dpp {v(out+1)}, {v(out)} row_half_mirror {DPPF}")
        A(f"v_cvt_pk_bf16_f32 {v(out+2)}, {v(b)}, {v(b+1)}")
        A(f"v_mov_b32_dpp {v(out+3)}, {v(out+2)} row_half_mirror {DPPF}")
    def afrag_oct(dst, P, c0):
        lo, hi = ((P, c0), (P + 1, 3 - c0)) if c0 < 4 else ((P + 1, 7 - c0), (P, c0 - 4))
        out = []
        for k in range(4):
            src, x = lo if k % 2 == 0 else hi
            out.append(f"v_and_b32_dpp {v(dst+k)}, {v(src)}, {v(MK[k])} quad_perm:[{x},{x},{x},{x}] {DPPF}")
        return out
    def smf(d, a, slot):
        A(f"v_smfmac_f32_16x16x64_bf16 {vr(d,4)}, {vr(a,4)}, {slot[0]}[{slot[1]}:{slot[1]+7}], {vIDX}")
    def compact(blocks):
        for d in blocks:
            A(f"v_permlane32_swap_b32 {v(d)}, {v(d+1)}")
            A(f"v_permlane32_swap_b32 {v(d+2)}, {v(d+3)}")
        for d in blocks:
            A(f"v_add_f32_dpp {v(d)}, {v(d+1)}, {v(d)} row_ror:8 row_mask:0xf bank_mask:0x3")
        for d in blocks:
            A(f"v_add_f32_dpp {v(d)}, {v(d+2)}, {v(d+3)} row_ror:8 row_mask:0xf bank_mask:0xc")

    def signal(lbl, k=None):
        if k is None: A(f"s_cmp_lg_u32 {sW}, 0")
        else: A(f"s_cmp_lg_u32 {sSG}, {k}")
        A(f"s_cbranch_scc1 {lbl}")
        if k is None: signal_body()
        else: A(f"s_call_b64 {sRA}, L_signal")
        A.label(lbl)
    def signal_body():
        A(f"s_lshl_b32 {sT2}, {sB}, 5")
        A("s_mov_b64 exec, 1")
        A(f"v_mov_b32 {vWQ}, 1")
        if not o["nosig"]: A(f"buffer_atomic_add {vWQ}, off, {srd(sDBG)}, {sT2} sc1")
        A("s_mov_b64 exec, -1")

    freeA = [("a", 8 * i) for i in range(32)]
    freeV = [("v", 64 + 8 * i) for i in range(24)]
    halfV = []
    slots = {}
    def can_alloc(kind):
        if kind == "pair": return bool(freeA or freeV)
        if kind == "half": return bool(halfV or freeV)
        return True
    def alloc(kind, key, preferV=False):
        if kind == "pair":
            s = (freeV if (preferV and freeV) or not freeA else freeA).pop(0)
        else:
            if not halfV:
                s = freeV.pop(0); halfV.extend([s, (s[0], s[1] + 4)])
            s = halfV.pop(0)
        slots[key] = s
        return s
    def release(kind, key):
        s = slots.pop(key)
        if kind == "pair":
            (freeA if s[0] == "a" else freeV).append(s)
        else:
            mate = (s[0], s[1] ^ 4)
            if mate in halfV:
                halfV.remove(mate); freeV.append((s[0], s[1] & ~7))
            else: halfV.append(s)

    def tile_load(reg, vaddr, sr, soff, imm, pol):
        A(f"buffer_load_dwordx4 {reg[0]}[{reg[1]}:{reg[1]+3}], {vaddr}, {srd(sr)}, {soff} offen offset:{imm} {pol}".rstrip())
    def mk_pair(key, Tt, vaddr, sr, soff_fn, imm, pol, preferV=False):
        def emit():
            s = alloc("pair", key, preferV) if key not in slots else slots[key]
            tile_load((s[0], s[1] + 4 * Tt), vaddr, sr, soff_fn(), imm, pol)
        return dict(tag=key + (Tt,), need="pair" if Tt == 0 else None, emit=emit)
    last_soff = [None]
    def soff_add(base, const):
        def f():
            if last_soff[0] != (base, const):
                if base is None: A(f"s_mov_b32 {sT}, {const}")
                else: A(f"s_add_u32 {sT}, {base}, {const}")
                last_soff[0] = (base, const)
            return sT
        return f
    Lx = []
    for s_ in range(4):
        def emit(s_=s_):
            A(f"s_add_u32 {sT}, {sW}, {s_}"); A(f"s_and_b32 {sT}, {sT}, 3"); A(f"s_lshl_b32 {sT}, {sT}, 8")
            A(f"buffer_load_dword {v(T+s_)}, {v(T+5)}, {srd(sX)}, {sT} offen")
        Lx.append(dict(tag=("x", s_), need=None, emit=emit))
    Lx.append(dict(tag=("x", 4), need=None, emit=lambda: A(f"buffer_load_dword {v(T+4)}, {v(T+6)}, {srd(sX)}, 0 offen offset:1024")))
    Lwq = []
    for u in range(10):
        for t in range(3):
            for Tt in range(2):
                base, rows = (sQB0, 64 * Tt + 2 * u) if u < 8 else (sQB1, 64 * Tt + 2 * (u - 8))
                Lwq.append(mk_pair(("wq", u, t), Tt, vWQ, sWQ, soff_add(base, rows * 12288), 128 * t, o["polW"]))
    def next_addr(n, hB):
        j = 2 * n + hB + 1
        if j < 32: k_addr(j >> 1, j & 1)
        else: v_addr(0); v_addr(1)
    LK = []
    for n in range(16):
        for hB in range(2):
            for t in range(3):
                def emit(n=n, hB=hB, t=t):
                    s = alloc("half", ("k", n, hB, t))
                    if offs: tile_load(s, vK, sK, sSO[0], t * 128, o["polKV"])
                    else: tile_load(s, vK, sK, f"s{sU+n}", hB * 768 + t * 128, o["polKV"])
                    if offs and t == 2: next_addr(n, hB)
                def emitL(n=n, hB=hB, t=t):
                    imm = t * 128 if offs else hB * 768 + t * 128
                    A(f"s_add_u32 m0, {sKL}, {((2 * n + hB) * 3 + t) * 1024 - imm}")
                    A("s_nop 0")
                    A(f"buffer_load_dwordx4 {vK}, {srd(sK)}, {sSO[0] if offs else 's%d' % (sU+n)} offen offset:{imm} {o['polKV']} lds")
                    if offs and t == 2: next_addr(n, hB)
                if 2 * n + hB < o["nL"]: LK.append(dict(tag=("k", n, hB, t), need=None, emit=emitL))
                else: LK.append(dict(tag=("k", n, hB, t), need="half", emit=emit))
    LV = []
    for n in range(16):
        for t in range(3):
            for Tt in range(2):
                if offs:
                    it = mk_pair(("v", n, t), Tt, (vV, vK)[n & 1], sV, (lambda n=n: sSO[n & 1]), Tt * 768 + t * 128, o["polKV"], preferV=True)
                    if t == 2 and Tt == 1 and n + 2 < 16:
                        it["emit"] = (lambda e=it["emit"], n=n: (e(), v_addr(n + 2)))
                    LV.append(it)
                else:
                    LV.append(mk_pair(("v", n, t), Tt, vV, sV, (lambda n=n: f"s{sU+n}"), Tt * 3072 + t * 128, o["polKV"], preferV=True))
    if o["vorder"] == "T":
        nT = 14 if o["tsplit"] else 16
        LV = [it for n in range(nT) for Tt in range(2) for it in LV[6*n:6*n+6] if it["tag"][3] == Tt] + LV[6*nT:]
    if o["tsplit"]:
        LV = LV[:84] + [it for t in range(3) for n in (14, 15) for it in LV[84:] if it["tag"][1:3] == (n, t)]
    Lwo = []
    for u in range(6):
        for blk in range(5):
            for Tt in range(2):
                row0 = (64 * (u >> 1) + 8 * (u & 1) if o["tsplit"] else 8 * u) + 4 * Tt
                Lwo.append(mk_pair(("wo", u, blk), Tt, vWO, sWO, soff_add(None, row0 * 1280), blk * 256, o["polW"]))
    Lw1 = []
    for u in range(10):
        for Tt in range(2):
            base, rows = (sF0, 64 * Tt + 16 * (u & 3) + (u >> 2)) if u < 8 else (sF1, 64 * Tt + 16 * (u - 8))
            Lw1.append(mk_pair(("w1", u), Tt, vW1, sW1, soff_add(base, rows * 3072), 0, o["polW"]))
    Lw2 = []
    for u in range(3):
        for blk in range(3):
            for Tt in range(2):
                rows = 16 * u + 8 * Tt
                if blk < 2: Lw2.append(mk_pair(("w2", u, blk), Tt, vW2, sW2, soff_add(None, rows * 1280), blk * 128, o["polW"]))
                else: Lw2.append(mk_pair(("w2", u, blk), Tt, vW2, sW2, soff_add(sZ, rows * 1280), 0, o["polW"]))
    def misc(tag, fn): return dict(tag=tag, need=None, emit=fn)
    def mix(*lists):
        lists = [l for l in lists if l]
        items = []
        for li, l in enumerate(lists):
            for i, it in enumerate(l): items.append(((i + 0.5) / len(l), li, it))
        items.sort(key=lambda z: (z[0], z[1]))
        return [z[2] for z in items]
    def clr1():
        if o["noclr"]: A(f"buffer_load_dword {v(AF[1])}, off, {srd(sX)}, 0"); return
        A(f"buffer_store_dwordx4 {vr(AF[1],4)}, {vP1ST}, {srd(sWS)}, 0 offen {o['polC']}")
    def clr2():
        if o["noclr"]: A(f"buffer_load_dword {v(AF[1])}, off, {srd(sX)}, 0"); return
        A(f"s_mov_b32 {sT}, {P2}"); last_soff[0] = None
        A(f"buffer_store_dwordx4 {vr(AF[1],4)}, {vP1ST}, {srd(sWS)}, {sT} offen {o['polC']}")
    def clr3():
        if o["noclr"]: A(f"buffer_load_dword {v(AF[1])}, off, {srd(sX)}, 0"); return
        A(f"buffer_store_dword {v(AF[1])}, {vHST}, {srd(sWS)}, 0 offen {o['polC']}")
    def code_pf(label, reg, areg):
        def f():
            A(f"s_getpc_b64 s[{sPC}:{sPC+1}]")
            here = f"L_pc_{label}"
            A.label(here)
            A(f"s_add_u32 s{sPC}, s{sPC}, {label}-{here}"); A(f"s_addc_u32 s{sPC+1}, s{sPC+1}, 0")
            A(f"v_lshlrev_b32 {areg}, 7, {vL}")
            A(f"v_min_u32 {areg}, L_last-{label}, {areg}")
            A(f"global_load_dword {reg}, {areg}, s[{sPC}:{sPC+1}]")
        return f
    def cntload():
        if o["dyn"]:
            A(f"buffer_load_dwordx2 {vr(T+8,2)}, off, {srd(sDBG)}, 0 sc1"); return
        if o["tag"]:
            A(f"buffer_load_dword {tCNT}, off, {srd(sDBG)}, 0 sc1"); return
        A(f"s_lshl_b32 {sT}, {sB}, 5"); last_soff[0] = None
        A(f"buffer_load_dword {tCNT}, off, {srd(sX if o['nosig'] else sDBG)}, {sT} sc1")
    extra = [misc(("xr",), lambda: A(f"buffer_load_ushort {tXR}, {tXR}, {srd(sX)}, 0 offen"))]
    if o["codepf"] and not o["pf8"]: extra.append(misc(("pf",), code_pf("L_tail", tPF, tPF)))
    clrs = [misc(("clr", 0), clr1), misc(("clr", 1), clr2), misc(("clr", 2), clr3)]
    if o["tag"]: clrs = []
    qbar_done = [False]
    def warm_lines(msk=None):
        n_ = 0
        wm = o["warm"] & ~o["warm2"] & ~o["warm3"] if msk is None else msk
        o_ = dict(o); o_["warm"] = wm
        return warm_lines_(o_)
    def warm_lines_(o):
        n_ = 0
        if o["warm"] & 1:
            A(f"buffer_load_dword {v(T+12)}, {vP1ST}, {srd(sWS)}, 0 offen {o['polWm']}"); n_ += 1
        if o["warm"] & 2:
            for k in range(4 if o["hcopy"] else 1):
                A(f"s_mov_b32 {sT2}, {k * HS}")
                A(f"buffer_load_dword {v(T+12)}, {vHST}, {srd(sWS)}, {sT2} offen {o['polWm']}"); n_ += 1
        if o["warm"] & 4:
            A(f"buffer_load_dword {v(T+12)}, {tP2ST}, {srd(sWS)}, 0 offen {o['polWm']}"); n_ += 1
        return n_
    hooks = {}
    subs = []
    if not o["burst"]:
        phA = mix(Lwq, LK[:o["nKA"]])
        phB = mix(LK[o["nKA"]:], Lwo[:o["nWOB"]])
        rest = Lwo[o["nWOB"]:] + Lw1 + Lw2
        nlast = o["wlast"]
        phC = mix(LV, rest[:len(rest) - nlast]) + rest[len(rest) - nlast:]
        nfirst = o["WA"] - len(Lx)
        phA = phA[:nfirst] + clrs + phA[nfirst:]
        k = len(phC) * 2 // 3
        phC = phC[:k] + extra + phC[k:]
        k = len(phC) - nlast - o["WC"]
        phC = phC[:k] + [misc(("cnt",), cntload)] + phC[k:]
        seq = Lx + phA + phB + phC
        Wn = [o["WA"]] * (len(Lx) + len(phA)) + [o["WB"]] * len(phB) + [o["WC"]] * len(phC)
    else:
        NG = 4 if o["grp"] == "h" else 8
        KV = LK + LV
        pol = o["polT"]
        vDUM = v(T + 12)
        vTA = v(T + 11)
        def touch(areg, sr, soff, dst=vDUM, lanes=None):
            if lanes is not None:
                m = ((1 << lanes[1]) - 1) ^ ((1 << lanes[0]) - 1)
                A(f"s_mov_b32 exec_lo, {hex(m & 0xffffffff)}"); A(f"s_mov_b32 exec_hi, {hex(m >> 32)}")
                touch(areg, sr, soff, dst); A("s_mov_b64 exec, -1")
                return
            A(f"buffer_load_dword {dst}, {areg}, {srd(sr)}, {soff} offen {pol}")
            if o["touch64"]: A(f"buffer_load_dword {dst}, {areg}, {srd(sr)}, {soff} offen offset:64 {pol}")
            if o["polT2"] is not None: A(f"buffer_load_dword {dst}, {areg}, {srd(sr)}, {soff} offen {o['polT2']}")
        ncond = [0]
        def cond(sreg, k, fn):
            def f():
                lbl = f"L_skip{ncond[0]}"; ncond[0] += 1
                A(f"s_cmp_lg_u32 {sreg}, {k}"); A(f"s_cbranch_scc1 {lbl}")
                fn(); A.label(lbl); last_soff[0] = None
            return f
        def reserve(lst):
            def f():
                if lst[0]["tag"][0] == "wo": assert len(freeA) >= 30, "wo reserved before the q projection finished"
                for it in lst:
                    if it["need"]:
                        while not can_alloc("pair"): force_now()
                        freeV.sort(key=lambda z: -z[1])
                        alloc("pair", it["tag"][:-1])
                if not (lst[0]["tag"][0] == "w1" and o["w12late"]): subs.append((lst[0]["tag"][0], lst, dict(slots)))
            return f
        def piece(nl, p_, np_): return (nl * p_ // np_, nl * (p_ + 1) // np_)
        def touch_wo(p_=0, np_=1):
            a = vTA
            A(f"s_lshl_b32 {sT2}, {sB}, 2"); A(f"s_add_u32 {sT2}, {sT2}, {sW}"); A(f"s_mul_i32 {sT2}, {sT2}, {60*128}")
            A(f"v_lshlrev_b32 {a}, 7, {vL}"); touch(a, sWO, sT2, lanes=piece(60, p_, np_))
        def touch_w2(p_=0, np_=1, a=None):
            a = a or v(T + 9)
            A(f"s_lshl_b32 {sT2}, {sB}, 2"); A(f"s_add_u32 {sT2}, {sT2}, {sW}"); A(f"s_mul_i32 {sT2}, {sT2}, {15*128}")
            A(f"v_lshlrev_b32 {a}, 7, {vL}"); touch(a, sW2, sT2, lanes=piece(15, p_, np_))
        def touch_w12(p_=0, np_=1):
            a = vTA
            if o["w1bal"]:
                A(f"s_lshr_b32 {sT2}, s2, 3"); A(f"s_lshl_b32 {sT2}, {sT2}, 2"); A(f"s_add_u32 {sT2}, {sT2}, {sW}"); A(f"s_mul_i32 {sT2}, {sT2}, {5*3072}")
                A(f"v_mul_u32_u24 {a}, 21846, {vL}"); A(f"v_lshrrev_b32 {a}, 16, {a}")
                A(f"v_mul_u32_u24 {a}, {3072 - 384}, {a}"); A(f"v_lshl_add_u32 {a}, {vL}, 7, {a}")
                touch(a, sW1, sT2, lanes=piece(15, p_, np_))
            else:
                A(f"s_lshl_b32 {sT2}, {sB}, 2"); A(f"s_add_u32 {sT2}, {sT2}, {sW}"); A(f"s_mul_i32 {sT2}, {sT2}, {20*3072}")
                A(f"v_and_b32 {a}, 1, {vL}"); A(f"v_mul_u32_u24 {a}, {1536 - 92}, {a}")
                A(f"v_mul_u32_u24 {vWQ}, 1536, {vL}"); A(f"v_sub_u32 {a}, {vWQ}, {a}")
                touch(a, sW1, sT2, lanes=piece(40, p_, np_))
            if o["nlateW"] < 18: touch_w2(p_, np_, a)
        tb_ = o["b0"] - o["tlead"] if o["tB"] is None else o["tB"]
        tc_ = o["c0"] - o["tlead"] if o["tC"] is None else o["tC"]
        assert o["grp"] == "b" and tb_ >= 6 and tc_ > tb_ + o["W"]
        def hook(i, fn): hooks.setdefault(KV[i]["tag"], []).append(fn)
        Lw12 = Lw1 + Lw2
        Llate = Lw12[len(Lw12) - o["nlateW"]:]; Lw12 = Lw12[:len(Lw12) - o["nlateW"]]
        if o["nlateW"] >= 18 and o["tlate"] < 192: hook(o["tlate"], lambda: touch_w2())
        for base, step, lst, tfn in ((o["a0"], o["da"], Lwq, None), (o["b0"], o["db"], Lwo, touch_wo), (o["c0"], o["dc"], Lw12, touch_w12)):
            nm = lst[0]["tag"][0]
            hook(base, reserve(lst))
            for k in range(NG):
                if tfn and o["touch"] and (o["grp"] == "h" or (o["grp"] == "hb" and k % 2 == 0) or k == 0):
                    tp = o["tB"] if nm == "wo" else o["tC"]
                    tp = base - o["tlead"] if tp is None else tp
                    for p_ in range(o["tws"]):
                        hook(tp - (o["tws"] - 1 - p_) * o["dtw"], lambda p_=p_, tfn=tfn: tfn(p_, o["tws"]))
                if not (nm == "w1" and o["w12late"]):
                    kx = k ^ o["ordx"][("wq", "wo", "w1").index(nm)]
                    hook(base + k * step, cond(sG, kx, lambda nm=nm: A(f"s_call_b64 {sRA}, L_burst_{nm}")))
        if o["dsig"]:
            for k in range(32):
                def f(k=k):
                    assert qbar_done[0]
                    signal(f"L_sig{k}", k)
                hook(o["sig0"] + k * o["dsig"], f)
        if o["warmpos"] < 192: hook(o["warmpos"], warm_lines)
        if o["probe"]:
            def probe(i):
                def f():
                    A(f"s_lshl2_add_u32 s76, s2, {sW}"); A(f"s_and_b32 s77, s76, 31"); A("s_lshr_b32 s76, s76, 5")
                    A("s_lshl_b32 s76, s76, 15"); A("s_lshl_b32 s77, s77, 7"); A("s_add_u32 s76, s76, s77")
                    A(f"s_add_u32 s76, s76, {0x1000000 + (i >> 1) * 0x400000 + (i & 1) * 4096}")
                    A(f"s_add_u32 s76, s{sWS}, s76"); A(f"s_addc_u32 s77, s{sWS+1}, 0")
                    A("s_waitcnt lgkmcnt(0)")
                    if i & 1:
                        A("s_load_dwordx2 s[72:73], s[76:77], 0x2000"); A("s_load_dword s74, s[76:77], 0")
                    else:
                        A("s_load_dword s74, s[76:77], 0"); A("s_load_dwordx2 s[72:73], s[76:77], 0x2000")
                    A("s_waitcnt lgkmcnt(2)")
                    A("s_getreg_b32 s75, hwreg(HW_REG_IB_STS, 8, 4)")
                    A(f"s_lshl_b32 s0, s0, 2"); A("s_or_b32 s0, s0, s75")
                return f
            hook(6, lambda: A("s_mov_b32 s0, 0"))
            for i, at in enumerate(o["probe"]): hook(at, probe(i))
        if o["dyn"]:
            def probe(i):
                def f():
                    A.comment("workgroup 0: which of two pages of d_ws (address bit 13 = 0 / 1) is served by the nearer memory die?")
                    A("s_cmp_lg_u32 s2, 0"); A(f"s_cbranch_scc1 L_noprobe{i}")
                    A(f"s_lshl_b32 s76, {sW}, 8"); A(f"s_add_u32 s76, s76, {PRB + i * 1024}")
                    A(f"s_add_u32 s76, s{sWS}, s76"); A(f"s_addc_u32 s77, s{sWS+1}, 0")
                    A("s_waitcnt lgkmcnt(0)")
                    A(f"s_load_dword s74, s[76:77], {hex(0x2000 * (i & 1))}"); A(f"s_load_dword s75, s[76:77], {hex(0x2000 * (1 - (i & 1)))}")
                    A("s_waitcnt lgkmcnt(1)")
                    A("s_getreg_b32 s73, hwreg(HW_REG_IB_STS, 8, 4)")
                    A(f"{'s_add_u32' if i & 1 else 's_sub_u32'} s0, s0, s73")
                    A.label(f"L_noprobe{i}")
                return f
            for i, at in enumerate(o["dyn"]): hook(at, probe(i))
        if o["codepf"] and o["pf8"]:
            def pf_tail():
                A(f"s_lshr_b32 {sT2}, s2, 3"); A(f"s_or_b32 {sT2}, {sT2}, {sW}"); A("s_cbranch_scc1 L_nopf1")
                code_pf("L_tail", tPF, tPF)(); A.label("L_nopf1")
            hook(166, pf_tail)
        lastA = KV[o["a0"] + (NG - 1) * o["da"]]["tag"]
        lastB = KV[o["b0"] + (NG - 1) * o["db"]]["tag"]
        lastC = KV[o["c0"] + (NG - 1) * o["dc"]]["tag"]
        t0l = [misc(("tq",), lambda: touch(vT2, sWQ, sQT, vT1, lanes=(0, 60)))] if o["touch"] else []
        if o["early"]: t0l = []
        if o["tqs"] and o["touch"]:
            t0l = []
            for p_, at in enumerate(o["tqs"]):
                hook(at, lambda p_=p_: touch(vT2, sWQ, sQT, vT1, lanes=piece(60, p_, len(o["tqs"]))))
            assert max(o["tqs"]) < o["a0"]
        k1 = 150; k2 = 151 if o["tag"] else 192 - o["W"]
        head = (KV[:3] + t0l + Lx + KV[3:6]) if o["kfirst"] else (Lx + t0l + KV[:6])
        if o["dyn"]: seq = head + KV[6:122] + [misc(("cnt",), cntload)] + KV[122:156] + extra + KV[156:]
        else: seq = head + clrs + KV[6:k1] + extra + KV[k1:k2] + [misc(("cnt",), cntload)] + KV[k2:]
        nhead = len(Lx) + len(t0l) + 6 + len(clrs)
        Wn = [nhead + 2] * (nhead + 2) + [o["W"]] * (len(seq) - nhead - 2)
        if o["Ws"]:
            kvpos = {it["tag"]: i for i, it in enumerate(KV)}
            cw, acc = o["W"], 0.0
            for i, it in enumerate(seq):
                for p_, w_ in o["Ws"]:
                    if kvpos.get(it["tag"]) == p_: cw = w_
                if i >= nhead + 2:
                    acc += cw - int(cw)
                    Wn[i] = int(cw) + (1 if acc >= 0.999 else 0)
                    if acc >= 0.999: acc -= 1
    pos = {it["tag"]: i for i, it in enumerate(seq)}

    acts = []
    def act(needs, fn, before=None): acts.append(dict(needs=[pos[t] for t in needs], fn=fn))
    def a_lnx():
        A.comment("LayerNorm(x)")
        if o["st0"]: stamp()
        F = D
        for s_ in range(5):
            A(f"v_lshlrev_b32 {v(F+2*s_)}, 16, {v(T+s_)}")
            A(f"v_and_b32 {v(F+2*s_+1)}, 0xffff0000, {v(T+s_)}")
        layernorm([F + 2 * k for k in range(5)], [F + 2 * k for k in range(5)], T, S)
        for k in range(12): A(f"v_mov_b32 {v(D+k)}, 0")
    act([("x", s_) for s_ in range(5)], a_lnx)
    setup_tag = ("k", 1, 0, 0) if o["tag"] else ("clr", 0)
    assert pos[("k", 1, 0, 0)] >= pos[setup_tag]
    if o["burst"]:
        for it in Lwq: pos[it["tag"]] = pos[lastA]
        for it in Lwo: pos[it["tag"]] = pos[lastB]
        assert o["a0"] >= 6
    else:
        assert pos[("wq", 8, 0, 0)] > pos[("clr", 0)]
        assert pos[("x", 4)] + o["WA"] > pos[("clr", 2)]
    for u in range(10):
        for t in range(3):
            def f(u=u, t=t):
                if t == 0:
                    for ins in afrag_oct(AF[u & 1], S + 2 * (u >> 3), u & 7): A(ins)
                smf(D + 4 * t, AF[u & 1], slots[("wq", u, t)]); release("pair", ("wq", u, t))
            act([("wq", u, t, 1)], f); acts[-1]["cost"] = 0.2 if o["burst"] else 1
    def a_qred1():
        A.comment("q: cross-wave reduction")
        compact([D, D + 4, D + 8])
        for t in range(3): A(f"ds_write_b32 {vREDW}, {v(D+4*t)} offset:{RED + 1024*t}")
        A(f"v_lshlrev_b32 {v(T)}, 4, {vL}")
        A(f"s_mul_i32 {sA}, {sW}, 384")
        A(f"v_lshl_add_u32 {v(T+1)}, {vL}, 1, {sA}")
        A(f"v_and_b32 {v(T+2)}, 7, {vL}")
        A(f"v_lshl_add_u32 {v(T+2)}, {v(T+2)}, 4, {sA}")
        if o["dyn"]:
            A(f"s_lshl_b32 {sA}, {sW}, 2"); A(f"v_mov_b32 {v(T+4)}, {sA}"); A(f"v_mov_b32 {v(T+5)}, s0")
            A(f"ds_write_b32 {v(T+4)}, {v(T+5)} offset:{SM + 32}")
        A("s_waitcnt lgkmcnt(0)")
        A("s_barrier")
        if o["dyn"]:
            A.comment("workgroup 0 publishes this launch's hand-off tag (a value no earlier launch used) and the page choice")
            A(f"s_or_b32 {sA}, s2, {sW}"); A("s_cbranch_scc1 L_nononce")
            A(f"ds_read_b128 {vr(AF[0],4)}, {v(T+4)} offset:{SM + 32}")
            A("s_memrealtime s[76:77]"); A("s_waitcnt lgkmcnt(0)")
            A(f"s_mul_i32 {sA}, s76, 0x9e3779b1"); A(f"s_max_u32 {sA}, {sA}, 1")
            A(f"v_add3_u32 {v(AF[0])}, {v(AF[0])}, {v(AF[0]+1)}, {v(AF[0]+2)}")
            A(f"v_add_u32 {v(AF[0])}, {v(AF[0])}, {v(AF[0]+3)}")
            A(f"v_cmp_lt_i32 vcc, 0, {v(AF[0])}")
            A(f"s_getreg_b32 {sC}, hwreg(HW_REG_XCC_ID, 0, 3)")
            A(f"v_mov_b32 {v(AF[0])}, {sA}")
            A(f"s_lshr_b32 {sA}, {sC}, 1"); A(f"s_and_b32 {sA}, {sA}, 2"); A(f"s_lshl4_add_u32 {sA}, {sC}, {sA}")
            A(f"v_cndmask_b32 {v(AF[0]+1)}, 0, 2, vcc")
            A(f"v_xor_b32 {v(AF[0]+1)}, {sA}, {v(AF[0]+1)}")
            A("s_mov_b64 exec, 1")
            A(f"buffer_store_dwordx2 {vr(AF[0],2)}, off, {srd(sDBG)}, 0 sc1")
            A("s_mov_b64 exec, -1")
            A.label("L_nononce")
        for t in range(3): A(f"ds_read_b128 {vr(D+4*t,4)}, {v(T)} offset:{RED + 1024*t}")
        if o["burst"] and o["dsig"] == 0 and not o["tag"]: signal("L_nosig")
        qbar_done[0] = True
    act([] if o["tag"] else [("clr", 2)], a_qred1)
    def a_qred2():
        A("s_waitcnt lgkmcnt(0)")
        for t in range(3):
            d = D + 4 * t
            A(f"v_pk_add_f32 {vr(d,2)}, {vr(d,2)}, {vr(d+2,2)}")
        for t in range(3):
            d = D + 4 * t
            A(f"v_add_f32 {v(d)}, {v(d)}, {v(d+1)}")
        for t in range(3):
            d = D + 4 * t
            A(f"v_cvt_pk_bf16_f32 {v(d)}, {v(d)}, {v(d)}")
        for t in range(3): A(f"ds_write_b16 {v(T+1)}, {v(D+4*t)} offset:{QB + 128*t}")
        A("s_waitcnt lgkmcnt(0)")
        for t in range(3): A(f"ds_read_b128 {vr(Q+4*t,4)}, {v(T+2)} offset:{QB + 128*t}")
        for k in range(12): A(f"v_mov_b32 {v(D+k)}, 0")
        A("s_waitcnt lgkmcnt(0)")
        if not o["st0"]: stamp()
    act([], a_qred2)
    nLu = o["nL"] // 2
    order = list(range(nLu, nLu + o["rL"])) + list(range(nLu)) + list(range(nLu + o["rL"], 16)) if nLu else list(range(16))
    vKL = v(T + 3)
    def lds_reads(n, hB):
        for t in range(3):
            while not can_alloc("half"): raise AssertionError("no register for LDS K tile")
            s = alloc("half", ("k", n, hB, t))
            A(f"ds_read_b128 v[{s[1]}:{s[1]+3}], {vKL} offset:{((2 * n + hB) * 3 + t) * 1024}")
    halves = [(n, hB) for n in order for hB in range(2)]
    for i, (n, hB) in enumerate(halves):
        def f(i=i, n=n, hB=hB):
            if i == 0 and nLu: A(f"v_lshl_add_u32 {vKL}, {vL}, 4, {sKL}")
            if n < nLu: A("s_waitcnt lgkmcnt(0)")
            if i + 1 < 32 and halves[i + 1][0] < nLu: lds_reads(*halves[i + 1])
            acc = v(T + hB)
            first = True
            for t in range(3):
                s = slots[("k", n, hB, t)]
                for k in range(4):
                    if first: A(f"v_dot2_f32_bf16 {acc}, v{s[1]+k}, {v(Q+4*t+k)}, 0"); first = False
                    else: A(f"v_dot2_f32_bf16 {acc}, v{s[1]+k}, {v(Q+4*t+k)}, {acc}")
                release("half", ("k", n, hB, t))
            if hB == 1:
                A(f"s_lshl_b64 vcc, {sLM}, {n & 7}")
                for st in (f"quad_perm:[1,0,3,2] {DPPF}", f"quad_perm:[2,3,0,1] {DPPF}", f"row_half_mirror {DPPF}"):
                    for hh in range(2): A(f"v_add_f32_dpp {v(T+hh)}, {v(T+hh)}, {v(T+hh)} {st}")
                for hh in range(2):
                    d = v(S + 2 * (n >> 3) + hh)
                    A(f"v_cndmask_b32 {d}, {d}, {v(T+hh)}, vcc")
        act([("k", n, hB, 2)], f); acts[-1]["cost"] = o["qkcost"]
    assert not nLu or o["rL"] >= 1
    def a_soft1():
        A.comment("softmax statistics")
        if not o["st0"]: stamp()
        A(f"v_mov_b32 {v(T+4)}, {hex(fbits(192 ** -0.5))}")
        for rnd in range(2):
            for k in range(2): A(f"v_cvt_pk_bf16_f32 {v(T+k)}, {v(S+2*k)}, {v(S+2*k+1)}")
            for k in range(2):
                A(f"v_lshlrev_b32 {v(S+2*k)}, 16, {v(T+k)}")
                A(f"v_and_b32 {v(S+2*k+1)}, 0xffff0000, {v(T+k)}")
            if rnd == 0:
                for k in range(4): A(f"v_mul_f32 {v(S+k)}, {v(S+k)}, {v(T+4)}")
        A(f"v_max3_f32 {v(T)}, {v(S)}, {v(S+1)}, {v(S+2)}")
        A(f"v_max_f32 {v(T)}, {v(T)}, {v(S+3)}")
        wave_reduce("v_max_f32", v(T), sA, fill=[f"v_mov_b32 {v(T+8)}, {hex(LOG2E)}", f"s_lshl_b32 {sC}, {sW}, 3", f"v_mov_b32 {v(T+9)}, {sC}", f"v_mov_b32 {v(T+10)}, 0"])
        for k in range(4): A(f"v_subrev_f32 {v(T+k)}, {sA}, {v(S+k)}")
        for k in range(4): A(f"v_mul_f32 {v(T+k)}, {v(T+k)}, {v(T+8)}")
        for k in range(4): A(f"v_exp_f32 {v(T+k)}, {v(T+k)}")
        A(f"v_mov_b32 {v(T+4)}, {sA}")
        A(f"v_pk_add_f32 {vr(T,2)}, {vr(T,2)}, {vr(T+2,2)}")
        A(f"v_add_f32 {v(T)}, {v(T)}, {v(T+1)}")
        wave_reduce("v_add_f32", v(T), sC)
        A(f"v_mov_b32 {v(T+5)}, {sC}")
        A(f"ds_write_b64 {v(T+9)}, {vr(T+4,2)} offset:{SM}")
    act([], a_soft1)
    def a_soft2():
        A("s_waitcnt lgkmcnt(0)")
        A("s_barrier")
        A(f"ds_read_b128 {vr(T,4)}, {v(T+10)} offset:{SM}")
        A(f"ds_read_b128 {vr(T+4,4)}, {v(T+10)} offset:{SM+16}")
        if not (o["burst"] and o["dsig"] is not None): signal("L_nosig")
        A("s_waitcnt lgkmcnt(0)")
        A(f"v_max3_f32 {v(T+9)}, {v(T)}, {v(T+2)}, {v(T+4)}")
        A(f"v_max_f32 {v(T+9)}, {v(T+9)}, {v(T+6)}")
        for k in range(4): A(f"v_sub_f32 {v(T+2*k)}, {v(T+2*k)}, {v(T+9)}")
        for k in range(4): A(f"v_sub_f32 {v(S+k)}, {v(S+k)}, {v(T+9)}")
        for k in range(4): A(f"v_mul_f32 {v(T+2*k)}, {v(T+2*k)}, {v(T+8)}")
        for k in range(4): A(f"v_mul_f32 {v(S+k)}, {v(S+k)}, {v(T+8)}")
        for k in range(4): A(f"v_exp_f32 {v(T+2*k)}, {v(T+2*k)}")
        for k in range(4): A(f"v_exp_f32 {v(S+k)}, {v(S+k)}")
        A(f"v_mul_f32 {v(T)}, {v(T)}, {v(T+1)}")
        for k in range(1, 4): A(f"v_fmac_f32 {v(T)}, {v(T+2*k)}, {v(T+2*k+1)}")
        A(f"v_rcp_f32 {v(T)}, {v(T)}")
        for k in range(4): A(f"v_mul_f32 {v(S+k)}, {v(S+k)}, {v(T)}")
        A(f"v_cvt_pk_bf16_f32 {v(S)}, {v(S)}, {v(S+1)}")
        A(f"v_cvt_pk_bf16_f32 {v(S+2)}, {v(S+2)}, {v(S+3)}")
        A(f"v_mov_b32_dpp {v(S+1)}, {v(S)} row_half_mirror {DPPF}")
        A(f"v_mov_b32_dpp {v(S+3)}, {v(S+2)} row_half_mirror {DPPF}")
        if not o["st0"]: stamp()
    soft_done = [False]
    act([], lambda: (a_soft2(), soft_done.__setitem__(0, True)))
    sRD = [f"s{sWQ+k}" for k in range(4)]
    sHL = [f"s{sK+k}" for k in range(4)]
    def a_tailprep():
        A.comment("addresses used by the tail")
        c, r8, i16, b4, b3, b5, tt, oob = [v(T + k) for k in range(8)]
        A(f"v_and_b32 {c}, 7, {vL}"); A(f"v_lshrrev_b32 {r8}, 3, {vL}"); A(f"v_and_b32 {i16}, 15, {vL}")
        A(f"v_bfe_u32 {b4}, {vL}, 4, 1"); A(f"v_bfe_u32 {b3}, {vL}, 3, 1"); A(f"v_lshrrev_b32 {b5}, 5, {vL}")
        A(f"v_mov_b32 {oob}, {OOB}")
        A(f"v_min_u32 {tt}, {1 if o['tsplit'] else 5}, {i16}"); A(f"v_lshlrev_b32 {tt}, 7, {tt}")
        A(f"v_lshrrev_b32 {tO_R}, 4, {vL}"); A(f"v_lshl_add_u32 {tO_R}, {tO_R}, 5, {tt}")
        A(f"s_mul_i32 {sA}, {sW}, {256 if o['tsplit'] else 768}"); A(f"v_add_u32 {tO_R}, {sA}, {tO_R}")
        A(f"v_lshlrev_b32 {tt}, 9, {b5}"); A(f"v_lshl_add_u32 {tt}, {i16}, 5, {tt}"); A(f"v_lshl_add_u32 {tt}, {b4}, 4, {tt}")
        A(f"s_mul_i32 {sA}, {sW}, 3072"); A(f"v_add_u32 {tR2W}, {sA}, {tt}")
        A(f"s_mul_i32 {sA}, {sW}, 5"); A(f"v_add_u32 {tt}, {sA}, {r8}")
        A(f"v_lshrrev_b32 {tR2R}, 1, {tt}"); A(f"v_lshlrev_b32 {tR2R}, 8, {tR2R}")
        A(f"v_and_b32 {tt}, 1, {tt}"); A(f"v_lshl_add_u32 {tR2R}, {tt}, 4, {tR2R}"); A(f"v_lshl_add_u32 {tR2R}, {c}, 5, {tR2R}")
        if numa:
            A(f"s_mul_i32 {sA}, {sB}, {24 * 4096}"); A(f"s_lshl_b32 {sC}, {sH}, 7"); A(f"s_add_u32 {sA}, {sA}, {sC}")
            A(f"s_mul_i32 {sC}, {sW}, 5"); A(f"v_add_u32 {vP1ST}, {sC}, {r8}")
            v_page(vP1ST, tt, sA)
            A(f"v_lshl_add_u32 {vP1ST}, {c}, 4, {vP1ST}")
            A(f"v_cmp_gt_u32 vcc, 40, {vL}")
            A(f"s_sub_u32 {sC}, {sH}, 16"); A(f"s_cmp_lt_u32 {sH}, 20"); A(f"s_cselect_b32 {sC}, {sH}, {sC}")
            A(f"v_cndmask_b32 {vP1ST}, {oob}, {vP1ST}, vcc")
            s_page(sC, sA)
            A(f"s_mul_i32 {sA}, {sB}, {24 * 4096}"); A(f"s_add_u32 {sA}, {sA}, {sC}")
            A(f"v_lshl_add_u32 {tRD}, {vL}, 4, {sA}")
            A(f"s_and_b32 {sC}, {sH}, 7"); s_page(sC, sA)
            A(f"s_lshl_b32 {sA}, {sB}, 15"); A(f"s_add_u32 {sA}, {sA}, {sC}"); A(f"s_add_u32 {sA}, {sA}, {HB}")
        else:
            if o["p32"]: A(f"s_mov_b32 {sC}, {sH}")
            elif o["dup16"]: A(f"s_sub_u32 {sC}, {sH}, 16"); A(f"s_cmp_lt_u32 {sH}, 20"); A(f"s_cselect_b32 {sC}, {sH}, {sC}")
            else: A(f"s_sub_u32 {sC}, {sH}, 20"); A(f"s_cselect_b32 {sC}, {sH}, {sC}")
            A(f"s_mul_i32 {sA}, {sB}, {32 * PS}"); A(f"s_lshl_b32 {sC}, {sC}, 7"); A(f"s_add_u32 {sA}, {sA}, {sC}")
            A(f"v_mul_u32_u24 {tt}, {PS}, {r8}"); A(f"v_lshl_add_u32 {tt}, {c}, 4, {tt}"); A(f"v_add_u32 {tRD}, {sA}, {tt}")
            A(f"s_mul_i32 {sA}, {sB}, 2560"); A(f"s_add_u32 {sA}, {sA}, {HB}")
            if o["hcopy"]:
                A(f"s_and_b32 {sC}, {sH}, 7"); A(f"s_lshl_b32 {sC}, {sC}, 15"); A(f"s_add_u32 {sA}, {sA}, {sC}")
        A(f"v_lshl_add_u32 {tHL0}, {vL}, 3, {sA}")
        A(f"s_lshl_b32 {sC}, {sW}, 1"); A(f"v_xor_b32 {tt}, {sC}, {vL}"); A(f"v_lshl_add_u32 {tHL4}, {tt}, 3, {sA}")
        for k in range(4):
            A(f"s_add_u32 {sHL[k]}, {sW}, {k}"); A(f"s_and_b32 {sHL[k]}, {sHL[k]}, 3"); A(f"s_lshl_b32 {sHL[k]}, {sHL[k]}, 9")
            A(f"s_mov_b32 {sRD[k]}, {P1 + k * (1024 if numa else 8 * PS)}")
        A(f"v_and_b32 {tt}, 3, {c}"); A(f"v_min_u32 {tt}, 2, {tt}"); A(f"v_lshlrev_b32 {tt}, 8, {tt}"); A(f"v_lshl_add_u32 {tZR}, {r8}, 5, {tt}")
        if numa:
            A(f"s_mul_i32 {sA}, {sB}, {24 * 4096}"); A(f"s_lshl_b32 {sC}, {sH}, 7"); A(f"s_add_u32 {sA}, {sA}, {sC}"); A(f"s_add_u32 {sA}, {sA}, {P2}")
            A(f"s_lshl_b32 {sC}, {sW}, 1"); A(f"v_add_u32 {tP2ST}, {sC}, {b5}")
            A(f"s_add_u32 {sC}, {sW}, 8"); A(f"v_mov_b32 {i16}, {sC}")
            A(f"v_cmp_eq_u32 vcc, 1, {b3}")
            A(f"v_cndmask_b32 {tP2ST}, {tP2ST}, {i16}, vcc")
            A(f"v_lshl_add_u32 {tP2ST}, {tP2ST}, 1, {b4}")
            v_page(tP2ST, tt, sA)
            A(f"v_lshl_add_u32 {tP2ST}, {c}, 4, {tP2ST}")
            A(f"s_cmp_lt_u32 {sW}, 2"); A(f"s_cselect_b32 vcc_hi, -1, 0x00ff00ff"); A(f"s_mov_b32 vcc_lo, 0x00ff00ff")
            A(f"v_cndmask_b32 {tP2ST}, {oob}, {tP2ST}, vcc")
        else:
            A(f"s_mul_i32 {sA}, s2, {PS}"); A(f"s_add_u32 {sA}, {sA}, {P2}")
            A(f"v_lshlrev_b32 {tt}, 7, {b4}"); A(f"v_lshl_add_u32 {tt}, {c}, 4, {tt}"); A(f"v_add_u32 {tt}, {sA}, {tt}")
            A(f"s_lshl_b32 {sC}, {sW}, 9"); A(f"v_lshl_add_u32 {tP2ST}, {b5}, 8, {sC}")
            A(f"s_add_u32 {sC}, {sW}, 8"); A(f"s_lshl_b32 {sC}, {sC}, 8"); A(f"s_cmp_lt_u32 {sW}, 2"); A(f"s_cselect_b32 {sC}, {sC}, {OOB}")
            A(f"v_cmp_eq_u32 vcc, 1, {b5}"); A(f"v_mov_b32 {i16}, {sC}")
            A(f"v_cndmask_b32 {i16}, {oob}, {i16}, vcc")
            A(f"v_cmp_eq_u32 vcc, 1, {b3}")
            A(f"v_cndmask_b32 {tP2ST}, {tP2ST}, {i16}, vcc")
            A(f"v_add_u32 {tP2ST}, {tP2ST}, {tt}")
        A(f"s_lshr_b32 {sA}, {sH}, 1"); A(f"s_lshl_b32 {sA}, {sA}, 7"); A(f"s_and_b32 {sC}, {sH}, 1"); A(f"s_lshl_b32 {sC}, {sC}, 3"); A(f"s_add_u32 {sA}, {sA}, {sC}")
        A(f"v_and_b32 {r8}, 3, {r8}")
        A(f"v_lshl_add_u32 {tt}, {c}, 3, {r8}"); A(f"v_lshl_add_u32 {tXR}, {tt}, 1, {sA}")
        A(f"v_cmp_gt_u32 vcc, 32, {vL}")
        A(f"v_cndmask_b32 {tOUT}, {oob}, {tXR}, vcc")
    sTB = [f"s{sU+k}" for k in range(4)]; sTL, sTH = f"s{sU+4}", f"s{sU+5}"
    vMH, vTGH, vTG1, vTGC = vWO, vWQ, v(T + 10), v(T + 11)
    assert not offs or (o["tag1"] and o["tag"])
    vFS, vFL = vV, vK
    def spin_guard():
        A(f"s_add_u32 {sSPIN}, {sSPIN}, 1"); A(f"s_cmp_gt_u32 {sSPIN}, {o['spin']}"); A("s_cbranch_scc1 L_end")
    def a_tagprep():
        A(f"s_mov_b32 {sSPIN}, 0")
        A(f"v_cmp_eq_u32 vcc, 0, {v(T+8) if o['dyn'] else tCNT}")
        A("s_cbranch_vccnz L_cntwait")
        A.label("L_cntok")
        if o["dyn"]:
            A(f"v_readfirstlane_b32 {sR}, {v(T+9)}")
            A(f"v_mov_b32 {tCNT}, {v(T+8)}")
            A(f"s_and_b32 {sQ}, {sR}, 2"); A(f"s_lshr_b32 {sR}, {sR}, 4")
        else: a_tagregs()
    def a_tagregs():
        A(f"v_readfirstlane_b32 {sA}, {tCNT}")
        A(f"v_mov_b32 {vMH}, 0xffffff00")
        if o["tag1"]:
            A(f"v_and_b32 {vTG1}, 3, {vL}"); A(f"v_lshlrev_b32 {vTG1}, 3, {vTG1}"); A(f"v_bfe_u32 {vTG1}, {tCNT}, {vTG1}, 8")
            A(f"v_and_b32 {vTGC}, 1, {vL}"); A(f"v_cmp_eq_u32 vcc, 0, {vTGC}")
            A(f"v_lshlrev_b32 {vTGC}, 4, {vTGC}"); A(f"v_bfe_u32 {vTGC}, {tCNT}, {vTGC}, 16")
            A(f"v_bfe_u32 {vTGH}, {vL}, 1, 1")
        else:
            A(f"v_and_b32 {vTGH}, 1, {vL}")
            for k in range(4): A(f"s_bfe_u32 {sTB[k]}, {sA}, {hex(0x80000 | (8 * k))}")
            A(f"s_and_b32 {sTL}, {sA}, 0xffff"); A(f"s_lshr_b32 {sTH}, {sA}, 16")
        if o["hcopy"]:
            for k in range(1, 4): A(f"s_mov_b32 s{sU+5+k}, {k * HS}")
        A(f"v_lshlrev_b32 {vTGH}, 4, {vTGH}")
        A(f"v_bfe_u32 {vTGH}, {tCNT}, {vTGH}, 16")
        if o["tag1"]: A(f"v_cndmask_b32 {vTGH}, 0, {vTGH}, vcc")
    tailprep_done = [False]
    for n in range(14 if o["tsplit"] else 16):
        for t in range(3):
            def f(n=n, t=t):
                if t == 0:
                    for ins in afrag_oct(AF[n & 1], S + 2 * (n >> 3), n & 7): A(ins)
                smf(D + 4 * t, AF[n & 1], slots[("v", n, t)]); release("pair", ("v", n, t))
            act([("v", n, t, 1)], f)
        if n == (4 if o["dyn"] else 10) and o["tag"]: act([("cnt",)], a_tagprep)
        if n == 10 and o["dyn"]: act([], a_tagregs)
        if n == (5 if o["dyn"] else 4):
            def g(): a_tailprep(); tailprep_done[0] = True
            act([], g)

    arrived = -1
    ai = 0
    def wait_for(idx, issued):
        nonlocal arrived
        if idx > arrived:
            A(f"s_waitcnt vmcnt({issued - 1 - idx})"); arrived = idx
    def force_action(issued):
        nonlocal ai
        a = acts[ai]; m = max(a["needs"], default=-1)
        assert m < issued, "action needs a load that is not issued yet"
        wait_for(m, issued); a["fn"](); ai += 1
    forced = 0
    kvi = {it["tag"]: i for i, it in enumerate(LK + LV)}
    cur = [0]
    def force_now():
        nonlocal forced
        force_action(cur[0]); forced += 1
    for n, it in enumerate(seq):
        cur[0] = n
        if it["tag"] == setup_tag: late_setup()
        if it["tag"] == ("xr",): assert tailprep_done[0]
        if it["tag"] == ("cnt",): assert soft_done[0]
        kv = kvi.get(it["tag"])
        if o["batch"] > 1 and kv is not None:
            if kv % o["batch"] == 0:
                tgt = n + o["batch"] - 1 - Wn[n]
                if tgt > arrived: wait_for(tgt, n)
        elif n - Wn[n] > arrived: wait_for(n - Wn[n], n)
        for hk in hooks.get(it["tag"], []): hk()
        while it["need"] and not can_alloc(it["need"]):
            force_action(n); forced += 1
        it["emit"]()
        budget = 1.0
        if o["batch"] > 1 and kv is not None:
            budget = float(o["batch"]) if kv % o["batch"] == o["batch"] - 1 else 0.0
        while budget > 0.01 and ai < len(acts) and max(acts[ai]["needs"], default=-1) <= arrived:
            budget -= acts[ai].get("cost", 1); acts[ai]["fn"](); ai += 1
    issued = len(seq)
    A.label("L_tail")
    if not o["tag"]: A(f"s_mov_b32 {sSPIN}, 0")
    late = (Lw1 + Lw2) if o["w12late"] else []
    nlate = [0]
    def late_load(k=1, limit=None):
        nonlocal issued
        for _ in range(k):
            if late and (limit is None or nlate[0] < limit):
                late.pop(0)["emit"](); issued += 1; nlate[0] += 1
    late_load(o["n1"])
    if o["warmpos"] >= 192: issued += warm_lines()
    if o["flag"]:
        fs = o["fstr"]
        A(f"s_mul_i32 {sC}, s2, {fs}"); A(f"s_add_u32 {sC}, {sC}, {FLB}")
        A(f"s_mul_i32 {sA}, {sW}, {512 * fs}"); A(f"s_add_u32 {sC}, {sC}, {sA}")
        A(f"v_mul_u32_u24 {vFS}, {256 * fs}, {vL}"); A(f"v_add_u32 {vFS}, {sC}, {vFS}")
        A(f"v_cmp_gt_u32 vcc, 2, {vL}"); A(f"v_mov_b32 {vFL}, {OOB}"); A(f"v_cndmask_b32 {vFS}, {vFL}, {vFS}, vcc")
        A(f"s_and_b32 {sC}, {sH}, 7"); A(f"s_lshl_b32 {sC}, {sC}, 3"); A(f"s_add_u32 {sC}, {sC}, {sB}")
        A(f"s_mul_i32 {sC}, {sC}, {32 * fs}"); A(f"s_add_u32 {sC}, {sC}, {FLB}")
        A(f"v_and_b32 {vFL}, 31, {vL}"); A(f"v_mul_u32_u24 {vFL}, {fs}, {vFL}"); A(f"v_add_u32 {vFL}, {sC}, {vFL}")
    if o["burst"] and o["nlateW"] >= 18 and o["tlate"] >= 192:
        touch_w2(); issued += 1 + (o["polT2"] is not None)
    while ai < len(acts):
        force_action(issued); late_load(1, o["n2"])
    o["_forced"] = forced

    def af_row(dst, u, src=S): return [f"v_and_b32_dpp {v(dst+k)}, {v(src)}, {v(MK[k])} row_newbcast:{u} {DPPF}" for k in range(4)]
    if o["tsplit"]:
        assert not late and not halfV
        vs = {key: slots[key][1] for key in slots if key[0] == "v"}
        assert all(slots[key][0] == "v" for key in slots if key[0] == "v") and len(vs) == 6 and len(freeV) >= 1
        f0 = freeV[0][1]
        s0, s1, s2_, s3_, s4, s5 = [vs[("v", n, t)] for t in range(3) for n in (14, 15)]
        DO = [f0, f0 + 4, s0, s0 + 4, s1]
        AO = [s1 + 4, T + 4]
        G = [s2_, s2_ + 4, s3_, s3_ + 4]
        F = [s4, s4 + 2, s4 + 4, s4 + 6, s5]
        Wk = [f0, f0 + 2, f0 + 4, f0 + 6, s0]
        R0, R1 = s1, s1 + 4
        OP = [T + 8, T + 9]
        for ins in afrag_oct(AF[0], S + 2, 6): A(ins)
        for ins in afrag_oct(AF[1], S + 2, 7): A(ins)
        for k in range(8): A(f"v_mov_b32 {v(f0+k)}, 0")
        def oread(t):
            A(f"ds_read_b128 {vr(T,4)}, {tO_R} offset:{RED + 1024*t}")
            A(f"ds_read_b128 {vr(S,4)}, {tO_R} offset:{RED + 1024*t + 16}")
        def opack(t):
            A(f"v_pk_add_f32 {vr(T,2)}, {vr(T,2)}, {vr(T+2,2)}")
            A(f"v_pk_add_f32 {vr(S,2)}, {vr(S,2)}, {vr(S+2,2)}")
            A(f"v_add_f32 {v(T)}, {v(T)}, {v(T+1)}")
            A(f"v_add_f32 {v(S)}, {v(S)}, {v(S+1)}")
            A(f"v_cvt_pk_bf16_f32 {v(OP[t & 1])}, {v(T)}, {v(S)}")
        def oproj(t):
            for ins in af_row(AO[0], 0, OP[t & 1]): A(ins)
            nxt = af_row(AO[1], 1, OP[t & 1])
            A(nxt.pop(0)); A(nxt.pop(0))
            for uu in range(2):
                for blk in range(5):
                    smf(DO[blk], AO[uu], slots[("wo", 2 * t + uu, blk)])
                    if nxt: A(nxt.pop(0))
        wait_for(max(pos[it["tag"]] for it in Lwo), issued)
        for t in range(3):
            for n in (14, 15):
                wait_for(pos[("v", n, t, 1)], issued)
                smf(D + 4 * t, AF[n & 1], slots[("v", n, t)])
            if t == 2:
                A.comment("o: cross-wave reduction")
                stamp()
            if t == 0:
                for k in range(12): A(f"v_mov_b32 {v((s0 if k < 8 else s1 - 8) + k)}, 0")
            compact([D + 4 * t])
            A(f"ds_write_b32 {vREDW}, {v(D+4*t)} offset:{RED + 1024*t}")
            A("s_waitcnt lgkmcnt(0)")
            A("s_barrier")
            oread(t)
            if o["flag"] == t + 1:
                A(f"buffer_store_dword {tCNT}, {vFS}, {srd(sWS)}, 0 offen sc1"); issued += 1
            A("s_waitcnt lgkmcnt(0)")
            opack(t)
            oproj(t)
            if o["latepos"] == "oproj" and Llate and t < 2:
                if t == 0:
                    for u in range(2):
                        for blk in range(5): release("pair", ("wo", u, blk))
                    for it in Llate:
                        if it["need"]: alloc("pair", it["tag"][:-1])
                    assert all(slots[it["tag"][:-1]][0] == "a" for it in Llate)
                last_soff[0] = None
                for it in (Llate[:o["nsplit"]] if t == 0 else Llate[o["nsplit"]:]):
                    it["emit"](); issued += 1
    else:
        A.comment("o: cross-wave reduction")
        stamp()
        if o["notail"]:
            for k in range(nstamp[0], nstamp[0] + 4): A(f"s_memrealtime s[{4+2*k}:{5+2*k}]")
            A("s_branch L_prof")
        assert not halfV
        tv = sorted(s[1] for s in freeV)
        assert len(tv) >= 7, tv
        DO = [tv[0], tv[0] + 4, tv[1], tv[1] + 4, tv[2]]
        G = [tv[3], tv[3] + 4, tv[4], tv[4] + 4]
        F = [tv[5], tv[5] + 2, tv[5] + 4, tv[5] + 6, tv[6]]
        Wk = [tv[0], tv[0] + 2, tv[0] + 4, tv[0] + 6, tv[1]]
        R0, R1 = tv[2], tv[2] + 4
        for d in DO[:2]:
            for k in range(4): A(f"v_mov_b32 {v(d+k)}, 0")
        compact([D, D + 4, D + 8])
        for t in range(3): A(f"ds_write_b32 {vREDW}, {v(D+4*t)} offset:{RED + 1024*t}")
        late_load(1, o["n2"])
        for d in DO[2:4]:
            for k in range(4): A(f"v_mov_b32 {v(d+k)}, 0")
        A("s_waitcnt lgkmcnt(0)")
        A("s_barrier")
        A(f"ds_read_b128 {vr(T,4)}, {tO_R} offset:{RED}")
        A(f"ds_read_b128 {vr(T+4,4)}, {tO_R} offset:{RED+16}")
        late_load(1, o["n2"])
        for k in range(4): A(f"v_mov_b32 {v(DO[4]+k)}, 0")
        wait_for(max(pos[it["tag"]] for it in Lwo), issued)
        A("s_waitcnt lgkmcnt(0)")
        A(f"v_pk_add_f32 {vr(T,2)}, {vr(T,2)}, {vr(T+2,2)}")
        A(f"v_pk_add_f32 {vr(T+4,2)}, {vr(T+4,2)}, {vr(T+6,2)}")
        A(f"v_add_f32 {v(T)}, {v(T)}, {v(T+1)}")
        A(f"v_add_f32 {v(T+4)}, {v(T+4)}, {v(T+5)}")
        A(f"v_cvt_pk_bf16_f32 {v(S)}, {v(T)}, {v(T+4)}")
        for ins in af_row(AF[0], 0): A(ins)
        for u in range(6):
            nxt = af_row(AF[(u + 1) & 1], u + 1) if u < 5 else []
            for blk in range(5):
                smf(DO[blk], AF[u & 1], slots[("wo", u, blk)])
                if nxt: A(nxt.pop(0))
                if blk == 4: late_load(1, o["n2"])
    for k in range(4): A(f"v_mov_b32_dpp {v(DO[0]+k)}, {v(DO[1]+k)} quad_perm:[0,1,2,3] row_mask:0xc bank_mask:0xf")
    A(f"ds_write_b128 {tR2W}, {vr(DO[0],4)} offset:{RED2}")
    for k in range(4): A(f"v_mov_b32_dpp {v(DO[2]+k)}, {v(DO[3]+k)} quad_perm:[0,1,2,3] row_mask:0xc bank_mask:0xf")
    A(f"ds_write_b128 {tR2W}, {vr(DO[2],4)} offset:{RED2+1024}")
    A(f"ds_write_b128 {tR2W}, {vr(DO[4],4)} offset:{RED2+2048}")
    A("s_waitcnt lgkmcnt(0)")
    A("s_barrier")
    for k in range(4): A(f"ds_read_b128 {vr(G[k],4)}, {tR2R} offset:{RED2 + 3072*k}")
    for k in range(12): A(f"v_mov_b32 {v(D+k)}, 0")
    A("s_waitcnt lgkmcnt(0)")
    def sum4():
        for hh in (0, 2):
            A(f"v_pk_add_f32 {vr(R0+hh,2)}, {vr(G[0]+hh,2)}, {vr(G[1]+hh,2)}")
            A(f"v_pk_add_f32 {vr(R1+hh,2)}, {vr(G[2]+hh,2)}, {vr(G[3]+hh,2)}")
        for hh in (0, 2):
            A(f"v_pk_add_f32 {vr(R0+hh,2)}, {vr(R0+hh,2)}, {vr(R1+hh,2)}")
    sum4()
    def seal(r):
        if o["tag"] and o["tag1"]:
            A(f"v_and_or_b32 {v(r)}, {v(r)}, {vMH}, {vTG1}"); return
        for k in range(4):
            if o["tag"]: A(f"v_and_or_b32 {v(r+k)}, {v(r+k)}, {vMH}, {sTB[k]}")
            else: A(f"v_min_u32 {v(r+k)}, -2, {v(r+k)}")
    seal(R0)
    A(f"buffer_store_dwordx4 {vr(R0,4)}, {vP1ST}, {srd(sWS)}, 0 offen sc1")
    issued += 1
    stamp()
    if o["prof"]:
        stamp(); nstamp[0] -= 1
    if o["warm2"]: issued += warm_lines(o["warm2"])
    if o["burst"] and Llate and o["latepos"] != "oproj":
        for u in range(6):
            for blk in range(5): release("pair", ("wo", u, blk))
        for it in Llate:
            if it["need"]: alloc("pair", it["tag"][:-1])
        def late_w():
            last_soff[0] = None
            for it in Llate: it["emit"]()
    if not o["tag"]:
        wait_for(pos[("cnt",)], issued)
        A(f"v_cmp_gt_u32 vcc, 32, {tCNT}")
        if not o["nosig"]: A("s_cbranch_vccnz L_cntwait")
        A.label("L_cntok")
    last_soff[0] = None
    while late:
        A(f"s_waitcnt vmcnt({o['Wb'] - 2})"); late_load(2)
    haslate = o["burst"] and bool(Llate) and o["latepos"] != "oproj"
    if haslate and o["latepos"] == "pre": late_w()
    A(f"s_cmp_lg_u32 {sW}, {o['redw']}"); A("s_cbranch_scc1 " + ("L_latew" if haslate and o["latepos"] in ("ack", "post0") else "L_hpoll0"))
    if not o["hbar"]:
        A(f"s_cmp_ge_u32 {sH}, 20"); A("s_cbranch_scc1 L_hpoll0")
    def reduce_stage(lbl, dep):
        def loads():
            for k in range(4): A(f"buffer_load_dwordx4 {vr(G[k],4)}, {tRD}, {srd(sWS)}, {sRD[k]} offen sc1")
        for _ in range(dep - 1): loads()
        A.label(lbl)
        loads()
        spin_guard()
        A(f"s_waitcnt vmcnt({4 * (dep - 1)})")
        regs = [G[k] + j for k in range(4) for j in range(4)]
        if o["tag"] and o["tag1"] and dep > 1:
            A(f"v_bitop3_b32 {v(T)}, {v(G[0])}, {vTG1}, {vMH} bitop3:0xbe")
            for k in range(1, 4): A(f"v_bitop3_b32 {v(T)}, {v(G[k])}, {vTG1}, {v(T)} bitop3:0xbe")
            A(f"v_cmp_ne_u32 vcc, {v(T)}, {vMH}")
        elif o["tag"] and o["tag1"]:
            for k in range(4): A(f"v_xor_b32 {v(G[k])}, {vTG1}, {v(G[k])}")
            A(f"v_or3_b32 {v(T)}, {v(G[0])}, {v(G[1])}, {vMH}")
            A(f"v_or3_b32 {v(T)}, {v(G[2])}, {v(G[3])}, {v(T)}")
            A(f"v_cmp_ne_u32 vcc, {v(T)}, {vMH}")
        else:
            op3, op2 = ("v_or3_b32", "v_or_b32") if o["tag"] else ("v_max3_u32", "v_max_u32")
            if o["tag"]:
                assert dep == 1
                for i_, r_ in enumerate(regs): A(f"v_xor_b32 {v(r_)}, {sTB[i_ & 3]}, {v(r_)}")
            A(f"{op3} {v(T)}, {v(regs[0])}, {v(regs[1])}, {v(regs[2])}")
            A(f"{op3} {v(T+1)}, {v(regs[3])}, {v(regs[4])}, {v(regs[5])}")
            for k in range(6, 16, 2):
                d = v(T + ((k >> 1) & 1))
                A(f"{op3} {d}, {d}, {v(regs[k])}, {v(regs[k+1])}")
            if o["tag"]:
                A(f"v_or3_b32 {v(T)}, {v(T)}, {v(T+1)}, {vMH}")
                A(f"v_cmp_ne_u32 vcc, {v(T)}, {vMH}")
            else:
                A(f"v_max_u32 {v(T)}, {v(T)}, {v(T+1)}")
                A(f"v_cmp_eq_u32 vcc, -1, {v(T)}")
        if o["sleepR"]:
            A(f"s_cbranch_vccz {lbl}_ok"); A(f"s_sleep {o['sleepR']}"); A(f"s_branch {lbl}"); A.label(f"{lbl}_ok")
        else: A(f"s_cbranch_vccnz {lbl}")
        if o["tag"] and o["tag1"] and dep > 1:
            A("s_waitcnt vmcnt(0)")
            for k in range(4): A(f"v_and_b32 {v(G[k])}, {vMH}, {v(G[k])}")
        sum4()
        g = R0
        A(f"v_add_f32_dpp {v(T)}, {v(g)}, {v(g)} row_ror:8 row_mask:0xf bank_mask:0x3")
        A(f"v_add_f32_dpp {v(T+1)}, {v(g+2)}, {v(g+2)} row_ror:8 row_mask:0xf bank_mask:0x3")
        A(f"v_add_f32_dpp {v(T)}, {v(g+1)}, {v(g+1)} row_ror:8 row_mask:0xf bank_mask:0xc")
        A(f"v_add_f32_dpp {v(T+1)}, {v(g+3)}, {v(g+3)} row_ror:8 row_mask:0xf bank_mask:0xc")
        A(f"v_permlane16_swap_b32 {v(T)}, {v(T+1)}")
        A(f"v_add_f32 {v(T)}, {v(T)}, {v(T+1)}")
        A(f"v_mov_b32 {v(T+1)}, {v(T)}")
        A(f"v_permlane32_swap_b32 {v(T)}, {v(T+1)}")
        A(f"v_add_f32 {v(T)}, {v(T)}, {v(T+1)}")
        round_bf16(v(T))
    A(f"v_lshlrev_b32 {tXR}, 16, {tXR}")
    if o["ack1"]: A("s_waitcnt vmcnt(0)")
    if o["flag"]:
        A.label("L_fpoll")
        A(f"buffer_load_dword {v(T)}, {vFL}, {srd(sWS)}, 0 offen sc1")
        spin_guard()
        A("s_waitcnt vmcnt(0)")
        A(f"v_cmp_ne_u32 vcc, {v(T)}, {tCNT}")
        A("s_cbranch_vccnz L_fpoll")
    reduce_stage("L_red1", o["dR"])
    A(f"v_add_f32 {tXR}, {tXR}, {v(T)}")
    if o["tag"]:
        A(f"v_cvt_pk_bf16_f32 {tXR}, {tXR}, {tXR}")
        A(f"v_lshl_or_b32 {v(T)}, {tXR}, 16, {vTGH}")
        A(f"buffer_store_dword {v(T)}, {vHST}, {srd(sWS)}, 0 offen sc1")
        if o["hcopy"]:
            for k in range(1, 4):
                A(f"buffer_store_dword {v(T)}, {vHST}, {srd(sWS)}, s{sU+5+k} offen sc1")
        A(f"v_lshlrev_b32 {tXR}, 16, {tXR}")
    else:
        round_bf16(tXR)
        A(f"buffer_store_dword {tXR}, {vHST}, {srd(sWS)}, 0 offen sc1")
    if o["prof"]:
        A("s_waitcnt lgkmcnt(0)"); stamp()
    def hloads():
        for k in range(4): A(f"buffer_load_dwordx2 {vr(F[k],2)}, {tHL0}, {srd(sWS)}, {sHL[k]} offen sc1")
        A(f"buffer_load_dwordx2 {vr(F[4],2)}, {tHL4}, {srd(sWS)}, 0 offen offset:2048 sc1")
    if haslate and o["latepos"] == "ack":
        assert o["hbar"] and o["ack2"]
        A.label("L_latew")
        if o["redw"] >= 2:
            assert o["nlateW"] == 18
            last_soff[0] = None
            for it in Llate:
                if it["tag"][2] < 2: it["emit"]()
            if o["ackn"] < 4: A(f"s_waitcnt vmcnt({12 + o['ackn']})")
            A(f"s_cmp_ge_u32 {sW}, 2"); A("s_cbranch_scc1 L_hpoll0")
            for it in Llate:
                if it["tag"][2] == 2: it["emit"]()
        else:
            late_w()
            A(f"s_waitcnt vmcnt({len(Llate)})")
    elif haslate and o["latepos"] == "post0":
        A("s_waitcnt vmcnt(0)")
        A("s_barrier")
        hloads(); late_w()
        A(f"s_waitcnt vmcnt({len(Llate)})")
        A("s_branch L_hcheck")
        A.label("L_latew")
        late_w()
    elif o["hbar"] and o["ack2"]: A("s_waitcnt vmcnt(0)")
    A.label("L_hpoll0")
    if o["hbar"]: A("s_barrier")
    if haslate and o["latepos"] == "post":
        hloads(); late_w()
        A(f"s_waitcnt vmcnt({len(Llate)})")
        A("s_branch L_hcheck")
    for _ in range(o["dH"] - 1): hloads()
    A.label("L_hpoll")
    hloads()
    spin_guard()
    A(f"s_waitcnt vmcnt({5 * (o['dH'] - 1)})")
    A.label("L_hcheck")
    if o["tag"] and o["tag1"]:
        assert o["dH"] == 1
        for k in range(5): A(f"v_xor_b32 {v(F[k])}, {vTGC}, {v(F[k])}")
        A(f"v_or3_b32 {v(T)}, {v(F[0])}, {v(F[1])}, {v(F[2])}")
        A(f"v_or3_b32 {v(T)}, {v(F[3])}, {v(F[4])}, {v(T)}")
        A(f"v_cmp_ne_u16 vcc, 0, {v(T)}")
    else:
        op3 = "v_or3_b32" if o["tag"] else "v_max3_u32"
        if o["tag"]:
            assert o["dH"] == 1
            for k in range(5):
                A(f"v_xor_b32 {v(F[k])}, {sTL}, {v(F[k])}"); A(f"v_xor_b32 {v(F[k]+1)}, {sTH}, {v(F[k]+1)}")
        A(f"{op3} {v(T)}, {v(F[0])}, {v(F[0]+1)}, {v(F[1])}")
        A(f"{op3} {v(T+1)}, {v(F[1]+1)}, {v(F[2])}, {v(F[2]+1)}")
        A(f"{op3} {v(T)}, {v(T)}, {v(F[3])}, {v(F[3]+1)}")
        A(f"{op3} {v(T+1)}, {v(T+1)}, {v(F[4])}, {v(F[4]+1)}")
        if o["tag"]:
            A(f"v_or_b32 {v(T)}, {v(T)}, {v(T+1)}")
            A(f"v_cmp_ne_u16 vcc, 0, {v(T)}")
        else:
            A(f"v_max_u32 {v(T)}, {v(T)}, {v(T+1)}")
            A(f"v_cmp_eq_u32 vcc, -1, {v(T)}")
    if o["sleep"]:
        A("s_cbranch_vccz L_hok"); A(f"s_sleep {o['sleep']}"); A("s_branch L_hpoll"); A.label("L_hok")
    else:
        A("s_cbranch_vccnz L_hpoll")
    stamp()
    if o["warm3"]: warm_lines(o["warm3"])
    layernorm(F, Wk, T, S)
    for ins in afrag_oct(AF[0], S, 0): A(ins)
    for u in range(10):
        nxt = afrag_oct(AF[(u + 1) & 1], S + 2 * ((u + 1) >> 3), (u + 1) & 7) if u < 9 else []
        if nxt: A(nxt.pop(0)); A(nxt.pop(0))
        smf(D, AF[u & 1], slots[("w1", u)])
        for ins in nxt: A(ins)
    A(f"v_mov_b32 {v(T+8)}, {hex(LOG2E ^ 0x80000000)}")
    compact([D])
    A(f"ds_write_b32 {vREDW}, {v(D)} offset:{REDZ}")
    A("s_waitcnt lgkmcnt(0)")
    A("s_barrier")
    A(f"ds_read_b128 {vr(T,4)}, {tZR} offset:{REDZ}")
    A(f"ds_read_b128 {vr(T+4,4)}, {tZR} offset:{REDZ+16}")
    for k in range(4): A(f"v_mov_b32 {v(D+k)}, 0")
    for k in range(4): A(f"s_add_u32 {sRD[k]}, {sRD[k]}, {P2 - P1}")
    A("s_waitcnt lgkmcnt(0)")
    A(f"v_pk_add_f32 {vr(T,2)}, {vr(T,2)}, {vr(T+2,2)}")
    A(f"v_pk_add_f32 {vr(T+4,2)}, {vr(T+4,2)}, {vr(T+6,2)}")
    A(f"v_add_f32 {v(T)}, {v(T)}, {v(T+1)}")
    A(f"v_add_f32 {v(T+4)}, {v(T+4)}, {v(T+5)}")
    A(f"v_cvt_pk_bf16_f32 {v(T+1)}, {v(T)}, {v(T+4)}")
    A(f"v_lshlrev_b32 {v(T)}, 16, {v(T+1)}")
    A(f"v_and_b32 {v(T+1)}, 0xffff0000, {v(T+1)}")
    for k in range(2): A(f"v_mul_f32 {v(T+2+k)}, {v(T+k)}, {v(T+8)}")
    for k in range(2): A(f"v_exp_f32 {v(T+2+k)}, {v(T+2+k)}")
    for k in range(2): A(f"v_add_f32 {v(T+2+k)}, 1.0, {v(T+2+k)}")
    for k in range(2): A(f"v_rcp_f32 {v(T+2+k)}, {v(T+2+k)}")
    for k in range(2): A(f"v_mul_f32 {v(T+k)}, {v(T+k)}, {v(T+2+k)}")
    A(f"v_cvt_pk_bf16_f32 {v(S)}, {v(T)}, {v(T+1)}")
    if haslate and o["latepos"] in ("post", "post0"):
        assert o["nlateW"] <= 18
        A("s_waitcnt vmcnt(0)")
    def af_quad(dst, u): return [f"v_and_b32_dpp {v(dst+k)}, {v(S)}, {v(MK[k])} quad_perm:[{u},{u},{u},{u}] {DPPF}" for k in range(4)]
    for ins in af_quad(AF[0], 0): A(ins)
    for u in range(3):
        nxt = af_quad(AF[(u + 1) & 1], u + 1) if u < 2 else []
        if nxt: A(nxt.pop(0)); A(nxt.pop(0))
        for blk in range(3):
            smf(D + 4 * blk, AF[u & 1], slots[("w2", u, blk)])
            if nxt: A(nxt.pop(0))
    X, Y, Z = D, D + 4, D + 8
    for e in range(4): A(f"v_permlane32_swap_b32 {v(X+e)}, {v(Y+e)}")
    for e in range(4): A(f"v_add_f32_dpp {v(X+e)}, {v(Y+e)}, {v(X+e)} row_ror:8 row_mask:0xf bank_mask:0x3")
    for e in range(4): A(f"v_permlane32_swap_b32 {v(Y+e)}, {v(Z+e)}")
    for e in range(4): A(f"v_add_f32_dpp {v(X+e)}, {v(Y+e)}, {v(Z+e)} row_ror:8 row_mask:0xc bank_mask:0xc")
    seal(X)
    A(f"buffer_store_dwordx4 {vr(X,4)}, {tP2ST}, {srd(sWS)}, 0 offen sc1")
    stamp()
    fin = "L_prof" if o["prof"] else "L_end"
    A(f"s_cmp_lg_u32 {sW}, {o['redw']}"); A(f"s_cbranch_scc1 {fin}")
    A(f"s_cmp_ge_u32 {sH}, 20"); A(f"s_cbranch_scc1 {fin}")
    if o["ack3"]: A("s_waitcnt vmcnt(0)")
    reduce_stage("L_red2", o.get("dR2", 1))
    A(f"v_add_f32 {v(T)}, {tXR}, {v(T)}")
    A(f"v_cvt_pk_bf16_f32 {v(T)}, {v(T)}, {v(T)}")
    A(f"buffer_store_short {v(T)}, {tOUT}, {srd(sOUT)}, 0 offen {o['polO']}")
    if o["prof"]:
        A.label("L_prof")
        stamp()
        A("s_getreg_b32 s25, hwreg(HW_REG_XCC_ID)")
        A("s_waitcnt lgkmcnt(0)")
        A(f"s_lshl_b32 {sA}, s2, 2"); A(f"s_add_u32 {sA}, {sA}, {sW}"); A(f"s_lshl_b32 {sA}, {sA}, 6"); A(f"s_add_u32 {sA}, {sA}, {PROF}")
        for k in range(nstamp[0]):
            A(f"v_mov_b32 {v(T)}, s{4+2*k}")
            A(f"buffer_store_dword {v(T)}, off, {srd(sWS)}, {sA} offset:{4*k}")
        A(f"v_mov_b32 {v(T)}, s25"); A(f"buffer_store_dword {v(T)}, off, {srd(sWS)}, {sA} offset:56")
        A(f"v_mov_b32 {v(T)}, {'s0' if o['probe'] else sSPIN}"); A(f"buffer_store_dword {v(T)}, off, {srd(sWS)}, {sA} offset:60")
    A.label("L_end")
    A("s_endpgm")
    A.label("L_cntwait")
    if o["tag"]: A(f"s_mov_b32 {sT2}, 0")
    else: A(f"s_lshl_b32 {sT2}, {sB}, 5")
    if o["dyn"]: A(f"buffer_load_dwordx2 {vr(T+8,2)}, off, {srd(sDBG)}, 0 sc1")
    else: A(f"buffer_load_dword {tCNT}, off, {srd(sDBG)}, {sT2} sc1")
    spin_guard()
    A("s_waitcnt vmcnt(0)")
    if o["tag"]: A(f"v_cmp_eq_u32 vcc, 0, {v(T+8) if o['dyn'] else tCNT}")
    else: A(f"v_cmp_gt_u32 vcc, 32, {tCNT}")
    A("s_cbranch_vccnz L_cntwait")
    A.label("L_last")
    A("s_branch L_cntok")
    if o["burst"] and o["dsig"]:
        A.label("L_signal"); signal_body(); A(f"s_setpc_b64 {sRA}")
    for nm, lst, snap in subs:
        A.label(f"L_burst_{nm}")
        slots.clear(); slots.update(snap); last_soff[0] = None
        for i, it in enumerate(lst):
            if nm in o["skip"]: break
            if i % 2 == 0: A(f"s_waitcnt vmcnt({o['Wb'] - 2})")
            it["emit"]()
        A(f"s_setpc_b64 {sRA}")
    A.label("L_codeend")
    A.raw('.section .rodata,"a"'); A.raw(".p2align 6"); A.raw(f".amdhsa_kernel {KNAME}")
    A.raw("  .amdhsa_next_free_vgpr 512"); A.raw("  .amdhsa_next_free_sgpr 102"); A.raw("  .amdhsa_accum_offset 256")
    A.raw("  .amdhsa_float_denorm_mode_32 3")
    A.raw("  .amdhsa_group_segment_fixed_size 0"); A.raw("  .amdhsa_kernarg_size 88"); A.raw("  .amdhsa_user_sgpr_count 2")
    A.raw("  .amdhsa_user_sgpr_kernarg_segment_ptr 1"); A.raw("  .amdhsa_system_sgpr_workgroup_id_x 1"); A.raw(".end_amdhsa_kernel")
    o["_nstamp"] = nstamp[0]
    txt = A.text()
    if o["align"]:
        from align import align
        txt, o["_prom"], o["_nops"] = align(txt, o["align"])
    return txt, o

if __name__ == "__main__":
    out = sys.argv[1]
    kw = eval("dict(" + (sys.argv[2] if len(sys.argv) > 2 else "") + ")")
    txt, o = gen(**kw)
    open(out, "w").write(txt)
    print("forced", o["_forced"], "lines", txt.count("\n"))
```
